```python
import torch

def _softmax(x, axis=-1):
    return torch.softmax(x, dim=axis)
def _gelu(x):
    return torch.nn.functional.gelu(x, approximate="tanh")
def _silu(x):
    return torch.nn.functional.silu(x)
def _sigmoid(x):
    return torch.sigmoid(x)
def _layernorm(x, axis=-1, eps=1e-5):
    m = x.mean(dim=axis, keepdim=True)
    v = x.var(dim=axis, keepdim=True, unbiased=False)
    return (x - m) / torch.sqrt(v + eps)
def _scatter_add(tgt, idx, src, axis=0):
    return tgt.clone().index_add_(axis, idx, src)
def _segment_sum(src, seg, n):
    out = torch.zeros((n,) + src.shape[1:], dtype=src.dtype)
    return out.index_add_(0, seg, src)
def _pad(x, pw):
    flat = tuple(v for pair in reversed(pw) for v in pair)
    return torch.nn.functional.pad(x, flat)

kernel_name = 'parallel_sum__spectral_gfnet__dense_activation_silu__prompt'

def setup_inputs():

    _w = (lambda a: (lambda t: t.to(torch.bfloat16) if t.is_floating_point() else t)(torch.as_tensor(a)))
    def _A_setup():
        B, S, D = 1, 2048, 512
        Df = D // 2 + 1
        return {
            "x": _w((lambda *s: torch.randn(*s, dtype=torch.bfloat16) * 0.05)(B, S, D)),
            "w_r": _w((lambda *s: torch.randn(*s, dtype=torch.bfloat16) * 0.8)(S, Df) * 0.02),
            "w_i": _w((lambda *s: torch.randn(*s, dtype=torch.bfloat16) * 0.8)(S, Df) * 0.02),
        }
    _A_in = _A_setup()

    def _B_setup():
        B, S, D, F = 1, 2048, 512, 1792
        return {
            "x": _w((lambda *s: torch.randn(*s, dtype=torch.bfloat16) * 0.05)(B, S, D)),
            "w1": _w((lambda *s: torch.randn(*s, dtype=torch.bfloat16) * 0.8)(D, F) * (D ** -0.5)),
            "w2": _w((lambda *s: torch.randn(*s, dtype=torch.bfloat16) * 0.1)(F, D) * (F ** -0.5)),
        }
    _B_in = _B_setup()

    return {
        "A_x": _A_in["x"],
        "A_w_r": _A_in["w_r"],
        "A_w_i": _A_in["w_i"],
        "B_x": _B_in["x"],
        "B_w1": _B_in["w1"],
        "B_w2": _B_in["w2"],
    }

def reference(A_x, A_w_r, A_w_i, B_x, B_w1, B_w2):
    def _A_ref(x, w_r, w_i):
        B, S, D = x.shape
        X = (lambda x, axes=(-2,-1): torch.fft.rfft2(x.float(), dim=axes))(x, axes=(-2, -1))
        W = w_r + 1j * w_i
        X = X * W
        y = (lambda x, s, axes=(-2,-1): torch.fft.irfft2(x, s=s, dim=axes).to(torch.bfloat16))(X, (S, D), axes=(-2, -1))
        return y

    def _B_ref(x, w1, w2):
        h = torch.einsum("bsd,df->bsf", x, w1)
        h = _silu(h)
        out = torch.einsum("bsf,fd->bsd", h, w2)
        return out

    x = A_x
    xn = _layernorm(x, axis=-1)
    return x + _A_ref(xn, A_w_r, A_w_i) + _B_ref(xn, B_w1, B_w2)
```

```python
import re, copy

REG_RE = re.compile(r'^(-|abs\()?([vas])(\d+)\)?$')
RNG_RE = re.compile(r'^(-)?([vas])\[(\d+):(\d+)\]$')
TRANS = ('v_exp_f32', 'v_log_f32', 'v_rcp_f32', 'v_rsq_f32', 'v_sqrt_f32', 'v_sin_f32', 'v_cos_f32')

def regs_of(tok):
    tok = tok.strip()
    m = REG_RE.match(tok)
    if m: return [(m.group(2), int(m.group(3)))]
    m = RNG_RE.match(tok)
    if m: return [(m.group(2), i) for i in range(int(m.group(3)), int(m.group(4)) + 1)]
    if tok == 'vcc': return [('s', 'vcc')]
    if tok == 'm0': return [('s', 'm0')]
    if tok == 'exec': return [('s', 'exec')]
    return []

class Ins:
    __slots__ = ('text', 'mn', 'kind', 'w', 'r', 'srcc', 'ab', 'passes', 'dpp')
    def __init__(self, text):
        self.text = text
        t = text.split(';')[0].strip()
        self.w, self.r, self.srcc, self.ab, self.passes, self.dpp = [], [], [], [], 0, False
        if not t or t.startswith('.'):
            self.mn, self.kind = '', 'none'; return
        if t.endswith(':'):
            self.mn, self.kind = t, 'label'; return
        p = t.split(None, 1)
        mn = p[0]; self.mn = mn
        rest = p[1] if len(p) > 1 else ''
        ops = [o.strip() for o in rest.split(',')] if rest else []
        mods = ''
        if ops:
            lp = ops[-1].split(None, 1)
            ops[-1] = lp[0]
            mods = lp[1] if len(lp) > 1 else ''
        R = [regs_of(o) for o in ops]
        flat = lambda L: [x for l in L for x in l]
        base = mn.replace('_e32', '').replace('_e64', '').replace('_dpp', '')
        if mn.startswith('v_mfma'):
            self.kind = 'mfma'; self.w = R[0]; self.ab = R[1] + R[2]; self.srcc = R[3]; self.r = self.ab + self.srcc
            self.passes = 2 if '4x4x4' in mn else (8 if '32x32' in mn else 4)
        elif mn.startswith('ds_'):
            self.kind = 'ds'
            if mn.startswith('ds_read') or mn.startswith('ds_bpermute') or mn.startswith('ds_swizzle'):
                self.w = R[0]; self.r = flat(R[1:])
            else:
                self.r = flat(R)
            if 'addtid' in mn: self.r = self.r + [('s', 'm0')]
        elif mn.startswith('buffer_') or mn.startswith('global_'):
            self.kind = 'vmem'
            islds = re.search(r'\blds\b', mods) is not None or '_lds_' in mn
            if islds:
                self.r = flat(R) + [('s', 'm0')]
            elif '_load' in mn:
                self.w = R[0]; self.r = flat(R[1:])
            else:
                self.r = flat(R)
        elif mn.startswith('s_'):
            if mn in ('s_waitcnt', 's_barrier', 's_endpgm', 's_sleep', 's_setprio'): self.kind = 'misc'
            elif mn == 's_nop': self.kind = 'nop'; self.passes = int(ops[0], 0) + 1
            elif mn.startswith('s_cbranch') or mn == 's_branch': self.kind = 'branch'
            elif mn.startswith('s_cmp'): self.kind = 'salu'; self.r = flat(R)
            elif mn.startswith('s_load') or mn.startswith('s_mem'): self.kind = 'smem'; self.w = R[0]; self.r = flat(R[1:])
            else:
                self.kind = 'salu'; self.w = R[0]; self.r = flat(R[1:])
                if 'saveexec' in mn: self.w = self.w + [('s', 'exec')]
        elif mn.startswith('v_'):
            self.kind = 'trans' if base in TRANS else 'valu'
            self.dpp = '_dpp' in mn
            if 'permlane' in mn and 'swap' in mn:
                self.w = R[0] + R[1]; self.r = R[0] + R[1]
            elif base.startswith('v_cmp'):
                self.w = R[0]; self.r = flat(R[1:])
            elif '_co_' in base:
                self.w = R[0] + R[1]; self.r = flat(R[2:])
            else:
                self.w = R[0]; self.r = flat(R[1:])
                if base in ('v_fmac_f32', 'v_dot2c_f32_bf16') or self.dpp: self.r = self.r + R[0]
        else:
            raise ValueError('cannot parse: ' + text)

def pad_hazards(lines):
    out = []
    pos = 0
    last = {}
    def need(key, n):
        if key in last:
            p = last[key]
            return max(0, n - (pos - p[0] - 1))
        return 0
    nops_added = 0
    for text in lines:
        I = Ins(text)
        if I.kind == 'none':
            out.append(text); continue
        req = 0
        if I.kind in ('label', 'branch'):
            for (cl, rg), p in last.items():
                lim = {'valu': 2, 'valus': 5, 'trans': 1, 'm0': 1, 'store': 2}.get(cl)
                if cl == 'mfma': lim = {2: 5, 4: 8, 8: 12}[p[1]]
                if cl == 'srcc': lim = {2: 1, 4: 3, 8: 7}[p[1]]
                req = max(req, lim - (pos - p[0] - 1))
        isv = I.kind in ('valu', 'trans')
        if I.kind == 'mfma':
            for rg in I.r: req = max(req, need(('valu', rg), 2))
            for rg in I.ab:
                if ('mfma', rg) in last: req = max(req, need(('mfma', rg), {2: 5, 4: 8, 8: 12}[last[('mfma', rg)][1]]))
            for rg in I.srcc:
                if ('mfma', rg) in last:
                    p = last[('mfma', rg)]
                    same = p[2] == tuple(I.srcc) and p[1] == I.passes
                    req = max(req, need(('mfma', rg), ({2: 2, 4: 0, 8: 0} if same else {2: 4, 4: 6, 8: 10})[p[1]]))
            for rg in I.w:
                if rg not in I.srcc and ('mfma', rg) in last:
                    p = last[('mfma', rg)]
                    req = max(req, need(('mfma', rg), {2: 4, 4: 6, 8: 10}[p[1]]))
            req = max(req, need(('valus', ('s', 'exec')), 4))
        if isv or I.kind in ('ds', 'vmem'):
            for rg in I.r + I.w:
                if ('mfma', rg) in last: req = max(req, need(('mfma', rg), {2: 5, 4: 8, 8: 12}[last[('mfma', rg)][1]]))
        if isv:
            for rg in I.w:
                if ('srcc', rg) in last: req = max(req, need(('srcc', rg), {2: 1, 4: 3, 8: 7}[last[('srcc', rg)][1]]))
                req = max(req, need(('store', rg), 2))
            for rg in I.r:
                if I.kind != 'trans': req = max(req, need(('trans', rg), 1))
                if rg[0] == 's': req = max(req, need(('valus', rg), 4 if 'lane' in I.mn else 2))
                if 'readfirstlane' in I.mn or 'readlane' in I.mn: req = max(req, need(('valu', rg), 1))
                if 'permlane' in I.mn or I.dpp: req = max(req, need(('valu', rg), 2))
            if I.dpp: req = max(req, need(('valus', ('s', 'exec')), 5))
        if I.kind in ('ds', 'vmem'):
            for rg in I.w: req = max(req, need(('store', rg), 1))
            for rg in I.r:
                req = max(req, need(('trans', rg), 1))
                if rg == ('s', 'm0'): req = max(req, need(('m0', rg), 1))
                if rg[0] == 's' and I.kind == 'vmem': req = max(req, need(('valus', rg), 5))
        if I.kind in ('salu', 'smem', 'branch'):
            for rg in I.r: req = max(req, need(('valus', rg), 2))
            if 'vcc' in I.mn: req = max(req, need(('valus', ('s', 'vcc')), 2))
        while req > 0:
            n = min(req, 16)
            out.append(f'    s_nop {n-1}'); pos += n; req -= n; nops_added += 1
        out.append(text)
        if I.kind == 'label':
            last = {}
            continue
        if isv:
            for rg in I.w:
                if rg[0] == 's': last[('valus', rg)] = (pos,)
                else:
                    last[('valu', rg)] = (pos,)
                    last.pop(('trans', rg), None)
                    if I.kind == 'trans': last[('trans', rg)] = (pos,)
                last.pop(('mfma', rg), None)
        if I.kind == 'mfma':
            for rg in I.w: last[('mfma', rg)] = (pos, I.passes, tuple(I.w))
            for rg in I.srcc: last[('srcc', rg)] = (pos, I.passes)
        if I.kind == 'salu':
            for rg in I.w:
                if rg == ('s', 'm0'): last[('m0', rg)] = (pos,)
                last.pop(('valus', rg), None)
        if I.kind == 'vmem' and '_store' in I.mn and ('x4' in I.mn or 'x3' in I.mn):
            for rg in I.r:
                if rg[0] != 's': last[('store', rg)] = (pos,)
        pos += I.passes if I.kind == 'nop' else 1
        if I.kind == 'branch': last = {}
    return out, nops_added

class E:
    def __init__(self):
        self.l = []
        self.vm = []
        self.lg = []
        self.uid = 0
    def __call__(self, s, tag=None):
        for x in s.split('\n'):
            x = x.strip()
            if not x: continue
            self.l.append(x if x.endswith(':') or x.startswith('.') or x.startswith(';') else '    ' + x)
            mn = x.split()[0]
            if mn.startswith('buffer_') or mn.startswith('global_'):
                self.vm.append(tag)
                if len(self.vm) > 63: print('WARN vm outstanding', len(self.vm), x)
            elif mn.startswith('ds_'):
                self.lg.append(tag)
                if len(self.lg) > 15: print('WARN lgkm outstanding', len(self.lg), x)
    def _cnt(self, lst, tags, mx):
        tags = tags if isinstance(tags, (list, tuple, set)) else [tags]
        idx = [i for i, t in enumerate(lst) if t in tags]
        if not idx: return None
        n = len(lst) - 1 - max(idx)
        return min(n, mx)
    def wait(self, vm=None, lg=None):
        parts = []
        if vm is not None:
            n = 0 if vm == 'all' else self._cnt(self.vm, vm, 63)
            if n is not None and (vm != 'all' or self.vm):
                parts.append(f'vmcnt({n})'); self.vm = self.vm[len(self.vm) - n:] if n else []
        if lg is not None:
            n = 0 if lg == 'all' else self._cnt(self.lg, lg, 15)
            if n is not None and (lg != 'all' or self.lg):
                parts.append(f'lgkmcnt({n})'); self.lg = self.lg[len(self.lg) - n:] if n else []
        if parts: self.l.append('    s_waitcnt ' + ' '.join(parts))
    def label(self, base):
        self.uid += 1
        return f'L_{base}_{self.uid}'
    def snapshot(self): return (list(self.vm), list(self.lg))
    def restore(self, s): self.vm, self.lg = list(s[0]), list(s[1])
```

```python
import sys
from emit import E, pad_hazards

KNAME = "parallel_sum__spectral_gfnet__dense_activation_silu__prompt_kernel"

WS_Q     = 0
WS_STATS = 0x10000
WS_Z1F   = 0x20000
WS_HF    = 0x24000
WS_Z3F   = 0x28000
WS_Z1    = 0x100000
WS_Z3    = 0x300000
WS_H     = 0x500000
WS_DBG   = 0xC00000
WS_SIZE  = 0x1000000

L_XS, L_MISC, L_S1, L_S2 = 0, 32768, 49152, 98304
L_CS = L_MISC + 8192
L_RB = L_MISC + 12288
L_ZB = L_MISC
L_ZX = L_MISC + 8192
L_FD = L_S1
L_S1B = L_S1 + 32768
RED_TS = 4096 + 16
RED_WS = 4 * RED_TS

sX, sW1, sW2, sWS, sWR, sWI, sOUT = 4, 8, 12, 16, 20, 24, 28
sT, sW, sRB, sBLK, sTY, sC0, sK1, sCG, sP, sQ = 32, 33, 34, 35, 36, 37, 38, 39, 40, 41
sXROW, sCOL1, sCOL2, sHB1, sHB2, sXSW, sQB, sPOLL = 42, 43, 44, 45, 46, 47, 48, 49
st = list(range(50, 62))
sKS = 64
sSTAMP = 92
def srd(n): return f"s[{n}:{n+3}]"

vTID, vL = 0, 1
vXD = [2, 3, 4, 5]; vSD = [6, 7]; vS1D = 8
vXR = [9, 10, 11, 12]; vT1 = [13, 14]; vT2 = [15, 16]; vTS = 17; vFD = 18
vC1 = [19, 20]; vC2 = [21, 22]
vNC1, vRINV, vSIG, vL16 = 23, 24, 25, 26
vSTAMP = 27
vBX = 28; vAX = [32, 36]; vCSA = [40, 44]; vCSF = [48, 52]
vONES = 56
vTMP = 58
ACCA, ACC2, ACCD = 64, 96, 128
vW = 240
TMP = 192
aX, aA2, aA3, aG1, aFB = 0, 128, 160, 192, 216

LOG2E = 1.4426950408889634
def fhex(f):
    import struct
    return "0x%08x" % struct.unpack("<I", struct.pack("<f", f))[0]
def vr(a, n): return f"v[{a}:{a+n-1}]"
def ar(a, n): return f"a[{a}:{a+n-1}]"

def merge(main, side, start=0, end=None):
    end = len(main) if end is None else end
    out = list(main[:start]); n = end - start; k = len(side); j = 0
    for i in range(n):
        out.append(main[start + i])
        while j < k and (j + 1) * n <= (i + 1) * k:
            out.append(side[j]); j += 1
    out += side[j:]
    out += main[end:]
    return out
def run(ths):
    for t in ths: t()

class Gen:
    def __init__(self, stamps=False, opts=None):
        self.e = E(); self.stamps = stamps; self.nst = 0
        self.o = dict(ntw=True, pf=True)
        self.o.update(opts or {})
    def stamp(self, i):
        if not self.stamps: return
        e = self.e
        e(f"s_memtime s[{sSTAMP}:{sSTAMP+1}]"); e.l.append("    s_waitcnt lgkmcnt(0)"); e.lg = []
        e(f"v_writelane_b32 v{vSTAMP}, s{sSTAMP}, {i}")
    def T(self, s, tag=None):
        return lambda: self.e(s, tag)
    def TL(self, s):
        return [self.T(x) for x in s.split("\n") if x.strip()]

    def prologue(self):
        e = self.e
        e("s_cmp_ge_u32 s2, 256\ns_cbranch_scc1 L_end")
        e(f"s_load_dwordx2 s[{sX}:{sX+1}], s[0:1], 0\ns_load_dwordx4 s[52:55], s[0:1], 32\ns_load_dwordx2 s[{sWS}:{sWS+1}], s[0:1], 64")
        e(f"s_load_dwordx4 s[56:59], s[0:1], 8\ns_load_dwordx2 s[{sOUT}:{sOUT+1}], s[0:1], 48")
        if self.stamps:
            e(f"s_memrealtime s[94:95]\ns_memtime s[96:97]")
        e(f"v_and_b32 v{vL}, 63, v0\nv_lshrrev_b32 v{vTMP}, 6, v0\nv_lshlrev_b32 v{vL16}, 4, v{vL}\nv_readfirstlane_b32 s{sW}, v{vTMP}")
        if self.o['pf']:
            e(f"s_getpc_b64 s[50:51]\ns_lshr_b32 s60, s2, 3\ns_lshl_b32 s60, s60, 11")
            e(f"s_and_b32 s61, s{sW}, 1\ns_lshl_b32 s61, s61, 10\ns_add_u32 s60, s60, s61\ns_min_u32 s60, s60, L_end-{KNAME}-1280")
            e(f"s_add_u32 s50, s50, s60\ns_addc_u32 s51, s51, 0")
            e(f"v_mov_b32 v{vTMP+1}, s51\nv_add_co_u32 v{vTMP}, vcc, s50, v{vL16}\nv_addc_co_u32 v{vTMP+1}, vcc, 0, v{vTMP+1}, vcc")
            e(f"global_load_dwordx4 {vr(TMP+8,4)}, {vr(vTMP,2)}, off", "pf")
        e(f"""s_and_b32 s50, s2, 7
s_lshr_b32 s51, s2, 3
s_lshr_b32 s60, s50, 1
s_lshl_b32 s60, s60, 2
s_lshr_b32 s61, s51, 3
s_add_u32 s{sRB}, s60, s61
s_and_b32 s62, s51, 7
s_and_b32 s{sTY}, s62, 1
s_and_b32 s63, s50, 1
s_lshl_b32 s{sBLK}, s63, 2
s_lshr_b32 s60, s62, 1
s_add_u32 s{sBLK}, s{sBLK}, s60
s_add_u32 s{sC0}, s62, s61
s_and_b32 s{sC0}, s{sC0}, 7
s_lshl_b32 s{sK1}, s50, 2
s_add_u32 s{sK1}, s{sK1}, s61
s_mov_b32 s{sCG}, s62
s_lshr_b32 s60, s50, 1
s_lshl_b32 s60, s60, 3
s_lshr_b32 s{sP}, s51, 2
s_add_u32 s{sP}, s{sP}, s60
s_and_b32 s{sQ}, s51, 3
s_lshl_b32 s60, s63, 2
s_add_u32 s{sQ}, s{sQ}, s60
s_lshl_b32 s63, s63, 3
s_add_u32 s63, s63, s62""")
        e(f"s_lshl_b32 s60, s{sRB}, 2\ns_add_u32 s60, s60, s{sW}\ns_lshl_b32 s{sXROW}, s60, 10\ns_lshl_b32 s{sXSW}, s{sW}, 13")
        e(f"""s_lshl_b32 s60, s{sBLK}, 8
s_add_u32 s61, s60, 128
s_mul_i32 s62, s{sBLK}, 192
s_add_u32 s62, s62, 2048
s_and_b32 s50, s{sBLK}, 1
s_lshl_b32 s51, s50, 6
s_add_u32 s51, s51, s62
s_lshl_b32 s50, s50, 7
s_sub_u32 s62, s62, s50
s_add_u32 s62, s62, 128
s_cmp_eq_u32 s{sTY}, 0
s_cselect_b32 s{sCOL1}, s60, s62
s_cselect_b32 s{sCOL2}, s61, s51""")
        e(f"s_mul_i32 s60, s{sXROW}, 112\ns_add_u32 s60, s60, {WS_H}\ns_lshl_b32 s61, s{sCOL1}, 5\ns_add_u32 s{sHB1}, s60, s61\ns_lshl_b32 s61, s{sCOL2}, 5\ns_add_u32 s{sHB2}, s60, s61")
        t0, t1, t2 = vTMP, vTMP+1, vTMP+2
        e(f"""v_lshrrev_b32 v{t0}, 3, v{vL}
v_and_b32 v{t1}, 7, v{vL}
v_lshrrev_b32 v{t2}, 4, v{vL}
v_xor_b32 v{t1}, v{t1}, v{t2}
v_lshlrev_b32 v{t1}, 4, v{t1}
v_lshl_add_u32 v{vXD[0]}, v{t0}, 16, v{t1}
v_xor_b32 v{vXD[1]}, 64, v{vXD[0]}
v_add_u32 v{vXD[2]}, {2*(524288-1024)}, v{vXD[0]}
v_add_u32 v{vXD[3]}, {3*(524288-1024)}, v{vXD[1]}
v_add_u32 v{vXD[1]}, {524288-1024}, v{vXD[1]}""")
        e(f"""v_lshrrev_b32 v{t1}, 5, v{vL}
v_and_b32 v{t2}, 31, v{vL}
v_lshlrev_b32 v{t2}, 4, v{t2}
v_lshl_add_u32 v{t2}, v{t1}, 16, v{t2}
s_lshl_b32 s60, s63, 17
s_add_u32 s60, s60, s{sXROW}""")
        e(f"""s_lshl_b32 s61, s{sW}, 4
v_add_u32 v{t0}, s61, v{t0}
v_mul_u32_u24 v{t0}, 3584, v{t0}
v_and_b32 v{t1}, 7, v{vL}
v_lshlrev_b32 v{t1}, 4, v{t1}
v_and_b32 v{vTMP+3}, 16, v{vL}
v_lshlrev_b32 v{vTMP+3}, 2, v{vTMP+3}
v_xor_b32 v{t1}, v{t1}, v{vTMP+3}
v_add_u32 v{vSD[0]}, v{t0}, v{t1}
v_add_u32 v{vSD[1]}, {8*3584-1024}, v{vSD[0]}
v_lshrrev_b32 v{t0}, 2, v{vL}
v_add_u32 v{t0}, s61, v{t0}
v_mul_u32_u24 v{t0}, 3584, v{t0}
v_and_b32 v{t1}, 3, v{vL}
v_lshl_add_u32 v{vS1D}, v{t1}, 4, v{t0}""")
        e.l.append("    s_waitcnt lgkmcnt(0)")
        e(f"s_mov_b32 s{sX+2}, 2097152\ns_mov_b32 s{sX+3}, 0x20000")
        e(f"buffer_load_dwordx4 {vr(TMP,4)}, v{t2}, {srd(sX)}, s60 offen", "stat")
        e(f"buffer_load_dwordx4 {vr(TMP+4,4)}, v{t2}, {srd(sX)}, s60 offen offset:512", "stat")
        e(f"s_load_dword s{sT}, s[{sWS}:{sWS+1}], {WS_Q}")
        e(f"s_mov_b32 s{sW1}, s52\ns_mov_b32 s{sW1+1}, s53\ns_mov_b32 s{sW1+2}, 1835008\ns_mov_b32 s{sW1+3}, 0x20000")
        self.dma_x(0)
        e(f"s_mov_b32 s{sW2}, s54\ns_mov_b32 s{sW2+1}, s55\ns_mov_b32 s{sW2+2}, 1835008\ns_mov_b32 s{sW2+3}, 0x20000")
        e(f"s_mov_b32 s{sWS+2}, {WS_SIZE}\ns_mov_b32 s{sWS+3}, 0x20000")
        e(f"s_mov_b32 s{sWR}, s56\ns_mov_b32 s{sWR+1}, s57\ns_mov_b32 s{sWR+2}, 1052672\ns_mov_b32 s{sWR+3}, 0x20000")
        e(f"s_mov_b32 s{sWI}, s58\ns_mov_b32 s{sWI+1}, s59\ns_mov_b32 s{sWI+2}, 1052672\ns_mov_b32 s{sWI+3}, 0x20000")
        e(f"s_mov_b32 s{sOUT+2}, 2097152\ns_mov_b32 s{sOUT+3}, 0x20000")
        e(f"s_mov_b32 s{sPOLL}, s63")

    def chunk(self, t, d):
        self.e(f"s_add_u32 s{d}, s{sC0}, {(t>>1) + 4*(t&1)}\ns_and_b32 s{d}, s{d}, 7")
    def dma_x(self, t):
        e = self.e
        self.chunk(t, 50)
        e(f"s_lshl_b32 s50, s50, 7\ns_add_u32 s50, s50, s{sXROW}\ns_add_u32 m0, s{sXSW}, {L_XS + (t&1)*4096}")
        for i in range(4):
            e(f"buffer_load_dwordx4 v{vXD[i]}, {srd(sX)}, s50 offen offset:{i*1024} lds", f"x{t}")
    def dma_pair(self, t, col, ldsbase, tag):
        e = self.e
        self.chunk(t, 51)
        e(f"s_mul_i32 s51, s51, {64*3584}\ns_add_u32 s51, s51, s{col}\ns_lshl_b32 s52, s{sW}, 11\ns_add_u32 m0, s52, {ldsbase}")
        for i in range(2):
            e(f"buffer_load_dwordx4 v{vSD[i]}, {srd(sW1)}, s51 offen offset:{i*1024} lds", tag)
    def dma_single(self, t, ldsbase, tag):
        e = self.e
        self.chunk(t, 51)
        e(f"s_mul_i32 s51, s51, {64*3584}\ns_add_u32 s51, s51, s{sCOL1}\ns_lshl_b32 s52, s{sW}, 10\ns_add_u32 m0, s52, {ldsbase}")
        e(f"buffer_load_dwordx4 v{vS1D}, {srd(sW1)}, s51 offen lds", tag)
    def dma_s1(self, ty, t):
        if ty == 0: self.dma_pair(t, sCOL1, L_S1 + (t % 6) * 8192, f"s1_{t}")
        else: self.dma_single(t, L_S1B + (t % 4) * 4096, f"s1_{t}")
    def dma_s2(self, t):
        self.dma_pair(t, sCOL2, L_S2 + t * 8192, f"s2_{t}")

    def addr_setup(self):
        e = self.e
        t0, t1, t2, t3 = vTMP, vTMP+1, vTMP+2, vTMP+3
        e(f"""v_and_b32 v{t0}, 31, v{vL}
v_lshrrev_b32 v{t1}, 5, v{vL}
v_bfe_u32 v{t2}, v{vL}, 1, 3
v_xor_b32 v{t2}, v{t2}, v{t1}
v_lshlrev_b32 v{t2}, 4, v{t2}
v_lshl_add_u32 v{t2}, v{t0}, 7, v{t2}
v_add_u32 v{vXR[0]}, s{sXSW}, v{t2}
v_xor_b32 v{vXR[1]}, 32, v{vXR[0]}
v_xor_b32 v{vXR[2]}, 64, v{vXR[0]}
v_xor_b32 v{vXR[3]}, 96, v{vXR[0]}""")
        e(f"""v_bfe_u32 v{t0}, v{vL}, 2, 2
v_lshl_add_u32 v{t2}, v{t1}, 3, v{t0}
v_and_b32 v{t3}, 3, v{vL}
v_lshlrev_b32 v{t3}, 3, v{t3}
v_and_b32 v{vTMP+4}, 16, v{vL}
v_lshl_add_u32 v{t3}, v{vTMP+4}, 1, v{t3}
v_lshl_add_u32 v{vTS}, v{t2}, 6, v{t3}
v_add_u32 v{vTS}, {L_S1B}, v{vTS}
v_lshl_add_u32 v{t3}, v{t2}, 7, v{t3}
v_and_b32 v{vTMP+4}, 8, v{vL}
v_lshl_add_u32 v{t3}, v{vTMP+4}, 3, v{t3}
v_add_u32 v{vT1[0]}, {L_S1}, v{t3}
v_xor_b32 v{vT1[1]}, 64, v{vT1[0]}
v_add_u32 v{vT2[0]}, {L_S2}, v{t3}
v_xor_b32 v{vT2[1]}, 64, v{vT2[0]}
s_lshl_b32 s50, s{sW}, 11
v_add_u32 v{vC2[0]}, s50, v{vT2[0]}
v_add_u32 v{vC2[1]}, s50, v{vT2[1]}
v_add_u32 v{vFD}, {L_FD}, v{vL16}
v_mov_b32 v{vONES}, 0x3f803f80
v_mov_b32 v{vONES+1}, 0x3f803f80""")

    def stats(self):
        e = self.e
        e.wait(vm="stat")
        U = TMP + 16
        for i in range(8):
            e(f"v_lshlrev_b32 v{U+2*i}, 16, v{TMP+i}\nv_and_b32 v{U+2*i+1}, 0xffff0000, v{TMP+i}")
        def reduce(src, n, acc):
            e(f"v_add_f32 v{acc}, v{src}, v{src+1}\nv_add_f32 v{acc+1}, v{src+2}, v{src+3}")
            for i in range(4, n, 2):
                e(f"v_add_f32 v{acc}, v{acc}, v{src+i}\nv_add_f32 v{acc+1}, v{acc+1}, v{src+i+1}")
            e(f"v_add_f32 v{acc}, v{acc}, v{acc+1}")
            for k in (8, 4, 2, 1):
                e(f"v_add_f32_dpp v{acc}, v{acc}, v{acc} row_ror:{k} row_mask:0xf bank_mask:0xf")
            e(f"v_mov_b32 v{acc+1}, v{acc}\nv_permlane16_swap_b32 v{acc}, v{acc+1}\nv_add_f32 v{acc}, v{acc}, v{acc+1}")
        M = TMP + 32
        reduce(U, 16, M)
        e(f"v_mul_f32 v{M}, {fhex(1/512)}, v{M}")
        for i in range(16):
            e(f"v_sub_f32 v{U+i}, v{U+i}, v{M}")
        for i in range(16):
            e(f"v_mul_f32 v{U+i}, v{U+i}, v{U+i}")
        reduce(U, 16, M+2)
        e(f"v_mov_b32 v{M+3}, {fhex(1e-5)}\nv_fmac_f32 v{M+3}, {fhex(1/512)}, v{M+2}\nv_rsq_f32 v{M+2}, v{M+3}")
        e.l.append("    s_waitcnt lgkmcnt(0)"); e.lg = []
        e(f"s_mul_i32 s{sT}, s{sT}, 0x9E3779B1\ns_add_u32 s{sT}, s{sT}, 0x7F4A7C15")
        e(f"v_mov_b32 v{M+1}, s{sT}\nv_mov_b32 v{M+3}, s{sT}")
        e(f"s_lshr_b32 s50, s{sXROW}, 1\ns_lshl_b32 s51, s{sPOLL}, 5\ns_add_u32 s50, s50, s51\ns_add_u32 s50, s50, {WS_STATS}")
        e(f"v_lshrrev_b32 v{vTMP}, 5, v{vL}\nv_lshlrev_b32 v{vTMP}, 4, v{vTMP}\nv_and_b32 v{vTMP+1}, 31, v{vL}\nv_cmp_eq_u32 vcc, 0, v{vTMP+1}")
        e(f"s_and_saveexec_b64 s[52:53], vcc")
        e(f"buffer_store_dwordx4 {vr(M,4)}, v{vTMP}, {srd(sWS)}, s50 offen sc1", "statst")
        e(f"s_mov_b64 exec, s[52:53]")

    def sincos(self, ang, c, s):
        return [self.T(f"v_cos_f32 v{c}, v{ang}"), self.T(f"v_sin_f32 v{s}, v{ang}")]

    def gen_a2a3(self):
        T = self.T; th = []
        t0, t1, t2, t3, k2, n2 = [TMP + 40 + i for i in range(6)]
        ang, inc, c, s, pk = [TMP + 48 + i for i in range(5)]
        th += self.TL(f"""v_bfe_u32 v{t0}, v{vL}, 4, 1
v_bfe_u32 v{t1}, v{vL}, 3, 1
v_bfe_u32 v{t2}, v{vL}, 2, 1
v_bfe_u32 v{t3}, v{vL}, 1, 1
v_lshl_add_u32 v{k2}, v{t1}, 1, v{t3}
v_lshl_add_u32 v{k2}, v{t2}, 2, v{k2}
v_lshl_add_u32 v{k2}, v{t0}, 3, v{k2}
s_lshl_b32 s50, s{sW}, 4
v_add_u32 v{k2}, s50, v{k2}
v_and_b32 v{n2}, 1, v{vL}
v_cvt_f32_u32 v{ang}, v{n2}
v_mul_f32 v{ang}, 0x3e800000, v{ang}
v_cvt_f32_u32 v{inc}, v{k2}
v_mul_f32 v{inc}, {fhex(1/64)}, v{inc}
v_lshrrev_b32 v{k2}, 5, v{vL}
v_lshlrev_b32 v{k2}, 2, v{k2}
v_cvt_f32_u32 v{k2}, v{k2}
v_fmac_f32 v{ang}, v{k2}, v{inc}""")
        def series(dst, neg):
            r = []
            for t in range(8):
                for q in range(4):
                    cc, ss = c + 2*((t*4+q) & 1)*0, s
                    r += self.sincos(ang, c, s)
                    step = 1.0 if q < 3 else 5.0
                    if q < 3: r.append(T(f"v_add_f32 v{ang}, v{ang}, v{inc}"))
                    else: r.append(T(f"v_fmac_f32 v{ang}, {fhex(5.0)}, v{inc}"))
                    r.append(T(f"v_cvt_pk_bf16_f32 v{pk}, v{c}, {'-' if neg else ''}v{s}"))
                    r.append(T(f"v_accvgpr_write_b32 a{dst + 4*t + q}, v{pk}"))
            return r
        th += series(aA2, False)
        th += self.TL(f"""v_bfe_u32 v{n2}, v{vL}, 3, 2
v_lshl_add_u32 v{n2}, v{n2}, 1, v{t2}
v_and_b32 v{t0}, 1, v{vL}
v_lshl_add_u32 v{n2}, v{n2}, 1, v{t0}
s_lshl_b32 s50, s{sW}, 4
v_add_u32 v{n2}, s50, v{n2}
v_cvt_f32_u32 v{n2}, v{n2}
v_mul_f32 v{inc}, {fhex(1/64)}, v{n2}
v_cvt_f32_u32 v{ang}, v{t3}
v_mul_f32 v{ang}, 0xbe800000, v{ang}
v_cvt_f32_u32 v{t0}, s{sK1}
v_mul_f32 v{t0}, {fhex(1/2048)}, v{t0}
v_fmac_f32 v{ang}, v{t0}, v{n2}
v_fmac_f32 v{ang}, v{k2}, v{inc}""")
        th += series(aA3, True)
        return th

    def gen_fd(self):
        T = self.T; th = []
        kc, inc, ang, t0 = TMP + 40, TMP + 41, TMP + 42, TMP + 43
        C, S, PC, PS = TMP + 44, TMP + 46, TMP + 48, TMP + 52
        th += self.TL(f"""v_and_b32 v{kc}, 31, v{vL}
s_lshl_b32 s50, s{sBLK}, 5
v_add_u32 v{kc}, s50, v{kc}
v_and_b32 v{t0}, 1, v{kc}
v_lshlrev_b32 v{t0}, 31, v{t0}
v_xor_b32 v{vSIG}, 1.0, v{t0}
v_mov_b32 v{t0}, 0x100
v_cmp_eq_u32 vcc, 0, v{kc}
v_cndmask_b32 v{kc}, v{kc}, v{t0}, vcc
s_add_u32 s50, s{sC0}, s{sW}
s_lshl_b32 s50, s50, 6
v_lshrrev_b32 v{t0}, 5, v{vL}
v_lshlrev_b32 v{t0}, 3, v{t0}
v_add_u32 v{t0}, s50, v{t0}
v_mul_u32_u24 v{t0}, v{t0}, v{kc}
v_and_b32 v{t0}, 511, v{t0}
v_cvt_f32_u32 v{ang}, v{t0}
v_mul_f32 v{ang}, {fhex(1/512)}, v{ang}
v_cvt_f32_u32 v{inc}, v{kc}
v_mul_f32 v{inc}, {fhex(1/512)}, v{inc}
s_lshl_b32 s50, s{sW}, 13
v_add_u32 v{t0}, s50, v{vFD}""")
        for ks in range(4):
            for q in range(4):
                for b in range(2):
                    th += self.sincos(ang, C + b, S + b)
                    if q == 3 and b == 1: th.append(T(f"v_fmac_f32 v{ang}, {fhex(9.0)}, v{inc}"))
                    else: th.append(T(f"v_add_f32 v{ang}, v{ang}, v{inc}"))
                th.append(T(f"v_cvt_pk_bf16_f32 v{PC+q}, v{C}, v{C+1}"))
                th.append(T(f"v_cvt_pk_bf16_f32 v{PS+q}, -v{S}, -v{S+1}"))
            th.append(T(f"ds_write_b128 v{t0}, {vr(PC,4)} offset:{ks*2048}", "fdw"))
            th.append(T(f"ds_write_b128 v{t0}, {vr(PS,4)} offset:{ks*2048+1024}", "fdw"))
            th.append(lambda: self.e.wait(lg="fdw"))
        th += self.TL(f"""v_and_b32 v{kc}, 31, v{vL}
v_cvt_f32_u32 v{kc}, v{kc}
v_mul_f32 v{inc}, {fhex(1/32)}, v{kc}
s_lshr_b32 s50, s{sXROW}, 10
v_cvt_f32_u32 v{ang}, s50
v_mul_f32 v{ang}, {fhex(1/2048)}, v{ang}
v_mul_f32 v{ang}, v{ang}, v{kc}
v_lshrrev_b32 v{t0}, 5, v{vL}
v_lshlrev_b32 v{t0}, 2, v{t0}
v_cvt_f32_u32 v{t0}, v{t0}
v_fmac_f32 v{ang}, v{t0}, v{inc}""")
        for jj in range(2):
            for q in range(4):
                for b in range(2):
                    th += self.sincos(ang, C + b, S + b)
                    if (q & 1) and b == 1: th.append(T(f"v_fmac_f32 v{ang}, {fhex(5.0)}, v{inc}"))
                    else: th.append(T(f"v_add_f32 v{ang}, v{ang}, v{inc}"))
                th.append(T(f"v_cvt_pk_bf16_f32 v{PC}, v{C}, v{C+1}"))
                th.append(T(f"v_cvt_pk_bf16_f32 v{PC+1}, v{S}, v{S+1}"))
                th.append(T(f"v_cvt_pk_bf16_f32 v{PC+2}, -v{S}, -v{S+1}"))
                th.append(T(f"v_accvgpr_write_b32 a{aG1 + 4*jj + q}, v{PC}"))
                th.append(T(f"v_accvgpr_write_b32 a{aG1 + 8 + 4*jj + q}, v{PC+1}"))
                th.append(T(f"v_accvgpr_write_b32 a{aG1 + 16 + 4*jj + q}, v{PC+2}"))
        return th

    def csum_chunk(self, t, addrs, slot_off, ntile, first, single=False):
        T = self.T
        rd, mm = [], []
        for dt in range(ntile):
            for eh in range(2):
                rd.append(T(f"ds_read_b64_tr_b16 {vr(vCSF[dt]+2*eh,2)}, v{addrs[dt]} offset:{slot_off + eh*(256 if single else 512)}", f"cs{t}"))
        mm.append(lambda: self.e.wait(lg=f"cs{t}"))
        for eh in range(2):
            for dt in range(ntile):
                c = "0" if (first and eh == 0) else vr(vCSA[dt], 4)
                mm.append(T(f"v_mfma_f32_4x4x4_16b_bf16 {vr(vCSA[dt],4)}, {vr(vONES,2)}, {vr(vCSF[dt]+2*eh,2)}, {c}"))
        return rd, mm

    def csum_publish(self, ntile, ps):
        e = self.e
        e(f"s_lshl_b32 s50, s{sW}, 2\nv_add_u32 v{vTMP}, s50, v{vL16}")
        for dt in range(ntile):
            e(f"ds_write_b32 v{vTMP}, v{vCSA[dt]} offset:{L_CS + ps*2048 + dt*1024}", "csw")
        e.wait(lg="csw")
    def csum_fetch(self, ntile, ps):
        for dt in range(ntile):
            self.e(f"ds_read_b128 {vr(vCSF[dt],4)}, v{vL16} offset:{L_CS + ps*2048 + dt*1024}", "csr")
    def csum_finish(self, ntile, acc):
        e = self.e
        e.wait(lg="csr")
        for dt in range(ntile):
            F, A = vCSF[dt], vAX[dt]
            e(f"v_add_f32 v{F}, v{F}, v{F+1}\nv_add_f32 v{F+2}, v{F+2}, v{F+3}\nv_add_f32 v{F}, v{F}, v{F+2}")
            e(f"v_cvt_pk_bf16_f32 v{A+1}, v{F}, v{F}\nv_and_b32 v{F+1}, 0xffff0000, v{A+1}\nv_sub_f32 v{F+2}, v{F}, v{F+1}\nv_cvt_pk_bf16_f32 v{A}, v{F+1}, v{F+2}")
        for dt in range(ntile):
            e(f"v_mfma_f32_32x32x16_bf16 {vr(acc+16*dt,16)}, {vr(vAX[dt],4)}, {vr(vBX,4)}, {vr(acc+16*dt,16)}")

    def stats_fetch(self):
        e = self.e
        e(f"s_lshr_b32 s53, s{sXROW}, 1\ns_add_u32 s53, s53, {WS_STATS}\nv_and_b32 v{vTMP+4}, 31, v{vL}\nv_lshlrev_b32 v{vTMP+4}, 4, v{vTMP+4}")
        e(f"buffer_load_dwordx4 {vr(TMP,4)}, v{vTMP+4}, {srd(sWS)}, s53 offen sc1", "stl")
    def stats_use(self, ty):
        e = self.e
        e.wait(vm="stl")
        again, ok = e.label("sta"), e.label("sto")
        e(f"s_mov_b32 s{sPOLL}, 0")
        e(f"{again}:")
        e(f"v_cmp_ne_u32 vcc, s{sT}, v{TMP+1}\nv_cmp_ne_u32 s[54:55], s{sT}, v{TMP+3}\ns_or_b64 vcc, vcc, s[54:55]\ns_cbranch_vccz {ok}")
        e(f"s_add_u32 s{sPOLL}, s{sPOLL}, 1\ns_cmp_gt_u32 s{sPOLL}, 20000\ns_cbranch_scc1 {ok}")
        e.l.append(f"    buffer_load_dwordx4 {vr(TMP,4)}, v{vTMP+4}, {srd(sWS)}, s53 offen sc1\n    s_waitcnt vmcnt(0)".split("\n")[0])
        e.l.append("    s_waitcnt vmcnt(0)")
        e(f"s_branch {again}\n{ok}:")
        m, r = TMP, TMP + 2
        e(f"v_mul_f32 v{vNC1}, {fhex(-LOG2E)}, v{r}\nv_rcp_f32 v{vRINV}, v{r}")
        e(f"v_cvt_pk_bf16_f32 v{vBX}, -v{m}, -v{m}\nv_and_b32 v{TMP+1}, 0xffff0000, v{vBX}\nv_sub_f32 v{TMP+1}, -v{m}, v{TMP+1}")
        e(f"v_mov_b32 v{vBX+2}, 0\nv_mov_b32 v{vBX+3}, 0\nv_cvt_pk_bf16_f32 v{vBX+1}, v{TMP+1}, v{vBX+2}")
        for dt in range(2):
            e(f"v_mov_b32 v{vAX[dt]+2}, 0\nv_mov_b32 v{vAX[dt]+3}, 0")
        if ty == 1:
            e(f"s_lshl_b32 s50, s{sW}, 7\nv_lshrrev_b32 v{vTMP+4}, 2, v{vTMP+4}\nv_add_u32 v{vTMP+4}, s50, v{vTMP+4}")
            e(f"ds_write_b32 v{vTMP+4}, v{r} offset:{L_RB}", "rbw")

    def silu(self, acc, ntile, hb, pk, tagp):
        T = self.T; th = []
        for f in range(2 * ntile):
            P = TMP + 8 + 4 * (f & 1)
            for q in range(4):
                a = acc + 8*f + 2*q
                u = TMP + 16 + 4 * (q & 1)
                if pk:
                    th.append(T(f"v_pk_mul_f32 {vr(u,2)}, {vr(a,2)}, {vr(vTMP,2)}"))
                else:
                    th += [T(f"v_mul_f32 v{u}, v{a}, v{vNC1}"), T(f"v_mul_f32 v{u+1}, v{a+1}, v{vNC1}")]
                th += [T(f"v_exp_f32 v{u}, v{u}"), T(f"v_exp_f32 v{u+1}, v{u+1}")]
                if pk:
                    th.append(T(f"v_pk_fma_f32 {vr(u,2)}, {vr(u,2)}, {vr(vTMP+2,2)}, {vr(vTMP+2,2)}"))
                else:
                    th += [T(f"v_fma_f32 v{u}, v{u}, v{vRINV}, v{vRINV}"), T(f"v_fma_f32 v{u+1}, v{u+1}, v{vRINV}, v{vRINV}")]
                th += [T(f"v_rcp_f32 v{u}, v{u}"), T(f"v_rcp_f32 v{u+1}, v{u+1}")]
                if pk:
                    th.append(T(f"v_pk_mul_f32 {vr(u,2)}, {vr(u,2)}, {vr(a,2)}"))
                else:
                    th += [T(f"v_mul_f32 v{u}, v{u}, v{a}"), T(f"v_mul_f32 v{u+1}, v{u+1}, v{a+1}")]
                th.append(T(f"v_cvt_pk_bf16_f32 v{P+q}, v{u}, v{u+1}"))
            th.append(T(f"buffer_store_dwordx4 {vr(P,4)}, v{vL16}, {srd(sWS)}, s{hb} offen offset:{f*1024} sc1", tagp))
        return th

    def gemm_pass(self, ps, ty, fill_at):
        e = self.e; LA = 2
        nt = 2 if (ps == 1 or ty == 0) else 1
        dft = (ps == 0 and ty == 1)
        acc = ACCA if ps == 0 else ACC2
        def slot(t):
            if ps == 1: return t * 8192
            return (t % 6) * 8192 if ty == 0 else (t % 4) * 4096
        def reads(n):
            t, ks = n >> 2, n & 3
            fb = aFB + 12 * (n % 3)
            if ps == 0 and ks < 2:
                for k2 in (2*ks, 2*ks + 1):
                    e(f"ds_read_b128 {ar(aX+16*t+4*k2,4)}, v{vXR[k2]} offset:{(t&1)*4096}", f"r{n}")
            if nt == 2:
                ad = vT1 if ps == 0 else vT2
                for dt in range(2):
                    for eh in range(2):
                        e(f"ds_read_b64_tr_b16 {ar(fb+4*dt+2*eh,2)}, v{ad[dt]} offset:{slot(t)+ks*2048+eh*512}", f"r{n}")
            else:
                for eh in range(2):
                    e(f"ds_read_b64_tr_b16 {ar(fb+2*eh,2)}, v{vTS} offset:{slot(t)+ks*1024+eh*256}", f"r{n}")
                for cs in range(2):
                    e(f"ds_read_b128 {ar(fb+4+4*cs,4)}, v{vFD} offset:{(t>>1)*8192+ks*2048+cs*1024}", f"r{n}")
        def boundary(t):
            if ps == 0: e.wait(vm=[f"x{t}", f"s1_{t}"])
            else: e.wait(vm=f"s2_{t}")
            e("s_barrier")
        pend_cs = []
        for n in range(-LA, 32):
            m = n + LA
            if n >= 0: e.wait(lg=f"r{n}")
            if m < 32:
                if m % 4 == 0:
                    boundary(m >> 2)
                reads(m)
                if m % 4 == 2:
                    t = m >> 2
                    if ps == 0: ad = vC1 if nt == 2 else [vC1[0]]
                    else: ad = vC2
                    rd, mm = self.csum_chunk(f"{ps}_{t}", ad, slot(t), nt, t == 0, single=(nt == 1))
                    run(rd); pend_cs = mm
            if n < 0: continue
            fb = aFB + 12 * (n % 3)
            first = n == 0
            for dt in range(nt):
                c = "0" if first else vr(acc+16*dt, 16)
                e(f"v_mfma_f32_32x32x16_bf16 {vr(acc+16*dt,16)}, {ar(fb+4*dt,4)}, {ar(aX+4*n,4)}, {c}")
            if dft:
                par = (n >> 2) & 1
                for cs in range(2):
                    d = ACCD + 32*par + 16*cs
                    c = "0" if n in (0, 4) else vr(d, 16)
                    e(f"v_mfma_f32_32x32x16_bf16 {vr(d,16)}, {ar(aX+4*n,4)}, {ar(fb+4+4*cs,4)}, {c}")
            if n % 4 == 2 and pend_cs:
                run(pend_cs); pend_cs = []
            run(fill_at.get(n, []))

    def z1_path(self):
        e = self.e
        R = TMP + 16
        e.wait(lg="rbw")
        e(f"s_lshl_b32 s50, s{sW}, 7\nv_lshrrev_b32 v{vTMP}, 5, v{vL}\nv_lshlrev_b32 v{vTMP}, 4, v{vTMP}\nv_add_u32 v{vTMP}, s50, v{vTMP}")
        for j in range(4):
            e(f"ds_read_b128 {vr(R+4*j,4)}, v{vTMP} offset:{L_RB + j*32}", "rbr")
        e(f"v_and_b32 v{vTMP+1}, 31, v{vL}\nv_or_b32 v{vTMP+1}, s{sBLK}, v{vTMP+1}\nv_mov_b32 v{vTMP+2}, {fhex(2.0**-19)}\nv_mov_b32 v{vTMP+3}, {fhex(2.0**-20)}")
        e(f"v_cmp_eq_u32 vcc, 0, v{vTMP+1}\nv_cndmask_b32 v{vTMP+2}, v{vTMP+2}, v{vTMP+3}, vcc")
        for i in range(32):
            e(f"v_fmac_f32 v{ACCD+i}, v{vSIG}, v{ACCD+32+i}")
        e.wait(lg="rbr")
        for i in range(16):
            e(f"v_mul_f32 v{R+i}, v{R+i}, v{vTMP+2}")
        for i in range(32):
            e(f"v_mul_f32 v{ACCD+i}, v{ACCD+i}, v{R+(i&15)}")
        PT = ACCD + 32
        for i in range(16):
            e(f"v_cvt_pk_bf16_f32 v{PT+i}, v{ACCD+2*i}, v{ACCD+2*i+1}")
        Zr, Zi = ACCD, ACCD + 16
        C = lambda j: ar(aG1+4*j, 4); S = lambda j: ar(aG1+8+4*j, 4); N = lambda j: ar(aG1+16+4*j, 4)
        Tr = lambda j: vr(PT+4*j, 4); Ti = lambda j: vr(PT+8+4*j, 4)
        e(f"v_mfma_f32_32x32x16_bf16 {vr(Zr,16)}, {C(0)}, {Tr(0)}, 0")
        e(f"v_mfma_f32_32x32x16_bf16 {vr(Zi,16)}, {N(0)}, {Tr(0)}, 0")
        e(f"v_mfma_f32_32x32x16_bf16 {vr(Zr,16)}, {C(1)}, {Tr(1)}, {vr(Zr,16)}")
        e(f"v_mfma_f32_32x32x16_bf16 {vr(Zi,16)}, {N(1)}, {Tr(1)}, {vr(Zi,16)}")
        e(f"v_mfma_f32_32x32x16_bf16 {vr(Zr,16)}, {S(0)}, {Ti(0)}, {vr(Zr,16)}")
        e(f"v_mfma_f32_32x32x16_bf16 {vr(Zi,16)}, {C(0)}, {Ti(0)}, {vr(Zi,16)}")
        e(f"v_mfma_f32_32x32x16_bf16 {vr(Zr,16)}, {S(1)}, {Ti(1)}, {vr(Zr,16)}")
        e(f"v_mfma_f32_32x32x16_bf16 {vr(Zi,16)}, {C(1)}, {Ti(1)}, {vr(Zi,16)}")
    def z1_gather_write(self):
        e = self.e
        Zr, Zi, PT = ACCD, ACCD + 16, ACCD + 32
        e(f"v_lshrrev_b32 v{vTMP}, 5, v{vL}\nv_and_b32 v{vTMP+1}, 31, v{vL}\nv_lshlrev_b32 v{vTMP+1}, 4, v{vTMP+1}\nv_lshl_add_u32 v{vTMP}, v{vTMP}, 11, v{vTMP+1}")
        e(f"s_lshl_b32 s50, s{sW}, 2\ns_add_u32 s50, s50, {L_FD}\nv_add_u32 v{vTMP}, s50, v{vTMP}")
        for i in range(16):
            e(f"v_cvt_pk_bf16_f32 v{PT+i}, v{Zr+i}, v{Zi+i}")
            e(f"ds_write_b32 v{vTMP}, v{PT+i} offset:{(8*(i>>2) + (i&3))*512}", "z1w")
            if i == 11: e.wait(lg="z1w")
        e.wait(lg="z1w")
    def z1_gather_read(self):
        e = self.e
        e(f"v_lshlrev_b32 v{vTMP}, 4, v0")
        for k in range(4):
            e(f"ds_read_b128 {vr(ACCD+4*k,4)}, v{vTMP} offset:{L_FD + k*4096}", "z1r")
    def z1_store(self):
        e = self.e
        e(f"v_lshrrev_b32 v{vTMP}, 5, v0\nv_and_b32 v{vTMP+1}, 31, v0\nv_lshlrev_b32 v{vTMP+1}, 4, v{vTMP+1}\nv_lshl_add_u32 v{vTMP}, v{vTMP}, 13, v{vTMP+1}")
        e(f"s_lshl_b32 s50, s{sBLK}, 18\ns_lshl_b32 s51, s{sRB}, 9\ns_add_u32 s50, s50, s51\ns_add_u32 s50, s50, {WS_Z1}")
        e.wait(lg="z1r")
        for k in range(4):
            e(f"buffer_store_dwordx4 {vr(ACCD+4*k,4)}, v{vTMP}, {srd(sWS)}, s50 offen sc1", "z1s")
            if k < 3: e(f"s_add_u32 s50, s50, 65536")
    def flag_store(self, soff, tag):
        e = self.e
        e(f"v_mov_b32 v{vTMP+4}, 0\nv_mov_b32 v{vTMP+5}, s{sT}\ns_mov_b64 exec, 1")
        e(f"buffer_store_dword v{vTMP+5}, v{vTMP+4}, {srd(sWS)}, s{soff} offen sc1", tag)
        e(f"s_mov_b64 exec, -1")
    def z1_flag(self):
        e = self.e
        e.wait(vm="z1s")
        e(f"s_lshl_b32 s50, s{sBLK}, 10\ns_lshl_b32 s51, s{sW}, 8\ns_add_u32 s50, s50, s51\ns_lshl_b32 s51, s{sRB}, 4\ns_add_u32 s50, s50, s51\ns_add_u32 s50, s50, {WS_Z1F}")
        self.flag_store(50, "z1f")

    POS = [('A', 0), ('A', 1), ('A', 2), ('A', 3), ('B', 0), ('B', 1), ('B', 2)] + [('A', i) for i in range(4, 16)] + [('B', i) for i in range(3, 12)]
    def g2_setup(self):
        T = self.T; th = []
        th += self.TL(f"s_and_b32 s50, s{sQ}, 3\ns_lshl_b32 s51, s50, 2\ns_mul_i32 s52, s50, 3\ns_lshl_b32 s53, s{sW}, 4\ns_mul_i32 s54, s{sW}, 12\ns_add_u32 s54, s54, 64")
        for n, (k, i) in enumerate(self.POS):
            d = sKS + n
            if k == 'A': th.append(T(f"s_add_u32 s{d}, s51, {i}\ns_and_b32 s{d}, s{d}, 15\ns_add_u32 s{d}, s{d}, s53\ns_lshl_b32 s{d}, s{d}, 10"))
            else: th.append(T(f"s_add_u32 s{d}, s52, {i}\ns_cmp_ge_u32 s{d}, 12\ns_cselect_b32 s55, 12, 0\ns_sub_u32 s{d}, s{d}, s55\ns_add_u32 s{d}, s{d}, s54\ns_lshl_b32 s{d}, s{d}, 10"))
        th += self.TL(f"s_lshl_b32 s{sQB}, s{sQ}, 7")
        return th
    def w2_addr_setup(self):
        t0, t1 = vTMP + 4, vTMP + 5
        return self.TL(f"""v_lshrrev_b32 v{t0}, 3, v{vL}
v_and_b32 v{t1}, 7, v{vL}
v_lshlrev_b32 v{t1}, 4, v{t1}
v_lshl_add_u32 v{t0}, v{t0}, 10, v{t1}
v_and_b32 v{t1}, 16, v{vL}
v_lshlrev_b32 v{t1}, 2, v{t1}
v_xor_b32 v{vXD[0]}, v{t0}, v{t1}
v_add_u32 v{vXD[1]}, {8192-1024}, v{vXD[0]}""")
    def w2_lds(self, n):
        if n < 8: return (16384, L_S2 + n * 2048)
        if n < 12: return (8192, L_XS + (n - 8) * 2048)
        g = n - 12
        if g < 4: return (8192, L_XS + g * 2048)
        if g < 10: return (12288, L_S1 + (g - 4) * 2048)
        return (12288, L_S1 + (g - 10) * 2048)
    def dma_w2(self, n):
        mul, base = self.w2_lds(n)
        sb = {16384: 56, 8192: sXSW, 12288: 57}[mul]
        return [self.T(f"s_lshl4_add_u32 s55, s{sKS+n}, s{sQB}\ns_add_u32 m0, s{sb}, {base}\nbuffer_load_dwordx4 v{vXD[0]}, {srd(sW2)}, s55 offen lds", f"w2_{n}"),
                self.T(f"buffer_load_dwordx4 v{vXD[1]}, {srd(sW2)}, s55 offen offset:1024 lds", f"w2_{n}")]
    vU = {8192: [9, 10], 12288: [11, 12], 16384: [13, 14]}
    def w2_tr_setup(self):
        t0, t1, t3 = vTMP + 3, vTMP + 4, vTMP + 5
        th = self.TL(f"""v_lshrrev_b32 v{t1}, 5, v{vL}
v_bfe_u32 v{t0}, v{vL}, 2, 2
v_lshl_add_u32 v{t0}, v{t1}, 2, v{t0}
v_and_b32 v{t3}, 3, v{vL}
v_lshlrev_b32 v{t3}, 3, v{t3}
v_and_b32 v{t1}, 16, v{vL}
v_lshl_add_u32 v{t3}, v{t1}, 1, v{t3}
v_lshl_add_u32 v{t3}, v{t0}, 7, v{t3}
v_and_b32 v{t1}, 8, v{vL}
v_lshl_add_u32 v{t3}, v{t1}, 3, v{t3}""")
        for mul, sb, base in ((8192, sXSW, L_XS), (12288, 57, L_S1), (16384, 56, L_S2)):
            a = self.vU[mul]
            th += self.TL(f"s_add_u32 s55, s{sb}, {base}\nv_add_u32 v{a[0]}, s55, v{t3}\nv_xor_b32 v{a[1]}, 64, v{a[0]}")
        return th
    def w2_tr(self, n, dst, tag):
        mul, base = self.w2_lds(n)
        off = base - {8192: L_XS, 12288: L_S1, 16384: L_S2}[mul]
        return [self.T(f"ds_read_b64_tr_b16 {ar(dst+4*dt+2*eh,2)}, v{self.vU[mul][dt]} offset:{off+eh*1024}", tag) for dt in range(2) for eh in range(2)]

    def w_loads(self):
        T = self.T; th = []
        t0, t1 = vTMP + 2, vTMP + 3
        th += self.TL(f"""v_and_b32 v{t0}, 31, v{vL}
s_lshl_b32 s59, s{sCG}, 5
v_add_u32 v{t0}, s59, v{t0}
v_mov_b32 v{t1}, 0x100
v_cmp_eq_u32 vcc, 0, v{t0}
v_cndmask_b32 v{t0}, v{t0}, v{t1}, vcc
v_lshrrev_b32 v{t1}, 5, v{vL}
v_mul_u32_u24 v{t1}, {128*514}, v{t1}
v_lshl_add_u32 v{vS1D}, v{t0}, 1, v{t1}
s_lshl_b32 s58, s{sW}, 9
s_add_u32 s58, s58, s{sK1}
s_mul_i32 s58, s58, 514""")
        for i in range(16): th.append(T(f"v_mov_b32 v{vW+i}, 0"))
        nt = " nt" if self.o['ntw'] else ""
        for z in range(8):
            th.append(T(f"s_add_u32 s59, s58, {16448*(8*(z>>2)+(z&3))}\nbuffer_load_short_d16_hi v{vW+2*z}, v{vS1D}, {srd(sWR)}, s59 offen{nt}", "wl"))
            th.append(T(f"buffer_load_short_d16_hi v{vW+2*z+1}, v{vS1D}, {srd(sWI)}, s59 offen{nt}", "wl"))
        return th

    def f1(self, ty):
        e = self.e
        self.dma_s1(ty, 0); self.dma_s1(ty, 1); self.dma_x(1); self.dma_s2(0); self.dma_s2(1)
        self.addr_setup()
        if ty == 0: e(f"v_add_u32 v{vC1[0]}, s50, v{vT1[0]}\nv_add_u32 v{vC1[1]}, s50, v{vT1[1]}")
        else: e(f"s_lshl_b32 s50, s{sW}, 10\nv_add_u32 v{vC1[0]}, s50, v{vTS}")
        if ty == 1: run(self.gen_fd())
        self.stamp(1)
        self.stats()
        self.stamp(2)
        run(self.gen_a2a3())
        run(self.g2_setup())
        e(f"s_lshl_b32 s56, s{sW}, 14\ns_mul_i32 s57, s{sW}, 12288")
        self.stamp(3)
        fill = {}
        for t in range(6):
            fill.setdefault(4*t + 1, []).append(lambda t=t: (self.dma_x(t + 2), self.dma_s1(ty, t + 2)))
        fill.setdefault(22, []).append(self.stats_fetch)
        for i, t in enumerate(range(2, 8)):
            fill.setdefault(24 + i + (i > 3), []).append(lambda t=t: self.dma_s2(t))
        self.gemm_pass(0, ty, fill)
        self.stamp(4)
        nt1 = 2 if ty == 0 else 1
        self.csum_publish(nt1, 0)
        self.stats_use(ty)
        e("s_barrier")
        self.csum_fetch(nt1, 0)
        if ty == 1: self.z1_path()
        self.csum_finish(nt1, ACCA)
        if ty == 1:
            self.z1_gather_write()
        self.stamp(5)
        fill = {}
        side = self.silu(ACCA, nt1, sHB1, False, "h1")
        pre = self.w2_addr_setup()
        dm = []
        for g in range(10): dm += self.dma_w2(12 + g)
        if ty == 1:
            fill[0] = [self.z1_gather_read]
            fill[1] = [self.z1_store]
        wl = self.w_loads()
        lo = 2
        seq = merge(pre + side, wl, 0, None)
        slots = list(range(lo, 31))
        per = [[] for _ in slots]
        for i, th in enumerate(seq): per[i * len(slots) // len(seq)].append(th)
        dslots = list(range(8, 31))
        for i, th in enumerate(dm): per[slots.index(dslots[i * len(dslots) // len(dm)])].append(th)
        for s, p in zip(slots, per): fill.setdefault(s, []).extend(p)
        if ty == 1: fill.setdefault(20, []).append(self.z1_flag)
        self.gemm_pass(1, ty, fill)

    def poll(self, addr_v, soff, nl, dst, tag, between):
        e = self.e
        ld = f"buffer_load_dword v{dst}, v{addr_v}, {srd(sWS)}, s{soff} offen sc1"
        e(ld, tag)
        run(between)
        e.wait(vm=tag)
        again, ok = e.label("pa"), e.label("po")
        e(f"s_mov_b32 s{sPOLL}, 0\n{again}:")
        e(f"v_cmp_ne_u32 vcc, s{sT}, v{dst}")
        if nl < 64: e(f"s_and_b64 vcc, vcc, {hex((1<<nl)-1)}")
        e(f"s_cbranch_vccz {ok}\ns_add_u32 s{sPOLL}, s{sPOLL}, 1\ns_cmp_gt_u32 s{sPOLL}, 20000\ns_cbranch_scc1 {ok}")
        e.l.append("    " + ld); e.l.append("    s_waitcnt vmcnt(0)")
        e(f"s_branch {again}\n{ok}:")

    IFD, S4R, S4I = 128, 192, 208
    def gen_s4(self):
        T = self.T; th = []
        n1, inc, ang, c, s = 32, 33, 34, 35, 36
        th += self.TL(f"""v_and_b32 v{n1}, 31, v{vL}
v_cvt_f32_u32 v{n1}, v{n1}
v_mul_f32 v{inc}, {fhex(1/32)}, v{n1}
v_lshrrev_b32 v{n1}, 5, v{vL}
v_lshlrev_b32 v{n1}, 2, v{n1}
v_cvt_f32_u32 v{n1}, v{n1}
v_mul_f32 v{ang}, v{n1}, v{inc}""")
        for ks in range(4):
            for q in range(4):
                th += self.sincos(ang, c, s)
                th.append(T(f"v_add_f32 v{ang}, v{ang}, v{inc}") if q < 3 else T(f"v_fmac_f32 v{ang}, {fhex(5.0)}, v{inc}"))
                th.append(T(f"v_cvt_pk_bf16_f32 v{self.S4R+4*ks+q}, v{c}, -v{s}"))
                th.append(T(f"v_cvt_pk_bf16_f32 v{self.S4I+4*ks+q}, v{s}, v{c}"))
        return th
    def gen_ifd(self):
        T = self.T; th = []
        d, inc, ang, c, s, t0, a0 = 37, 38, 39, 40, 41, 42, 43
        for dt in range(2):
            th += self.TL(f"""v_and_b32 v{d}, 31, v{vL}
s_lshl_b32 s60, s{sQ}, 6
s_add_u32 s60, s60, {32*dt}
v_add_u32 v{d}, s60, v{d}
v_lshrrev_b32 v{t0}, 5, v{vL}
v_lshlrev_b32 v{t0}, 1, v{t0}
s_lshl_b32 s60, s{sW}, 6
v_add_u32 v{t0}, s60, v{t0}
v_cmp_eq_u32 vcc, 0, v{t0}
v_mul_u32_u24 v{t0}, v{t0}, v{d}
v_and_b32 v{t0}, 511, v{t0}
v_cvt_f32_u32 v{ang}, v{t0}
v_mul_f32 v{ang}, {fhex(1/512)}, v{ang}
v_cvt_f32_u32 v{inc}, v{d}
v_mul_f32 v{a0}, 0.5, v{inc}
v_fract_f32 v{a0}, v{a0}
v_cndmask_b32 v{a0}, v{ang}, v{a0}, vcc
v_mul_f32 v{inc}, {fhex(1/512)}, v{inc}""")
            for g in range(8):
                for q in range(4):
                    th += self.sincos(a0 if (g == 0 and q == 0) else ang, c, s)
                    th.append(T(f"v_add_f32 v{ang}, v{ang}, v{inc}") if not (q & 1) else T(f"v_fmac_f32 v{ang}, {fhex(3.0)}, v{inc}"))
                    th.append(T(f"v_cvt_pk_bf16_f32 v{self.IFD + (g*2+dt)*4 + q}, v{c}, -v{s}"))
        return th

    def post(self):
        e = self.e; T = self.T
        self.stamp(6)
        self.csum_publish(2, 1)
        e("s_barrier")
        self.csum_fetch(2, 1)
        run(self.w2_tr_setup())
        for n in range(3): run(self.dma_w2(n))
        self.csum_finish(2, ACC2)
        e(f"v_mov_b32 v{vTMP}, v{vNC1}\nv_mov_b32 v{vTMP+1}, v{vNC1}\nv_mov_b32 v{vTMP+2}, v{vRINV}\nv_mov_b32 v{vTMP+3}, v{vRINV}")
        side = []
        for g in range(10):
            side.append(lambda g=g: e.wait(vm=f"w2_{12+g}"))
            side += self.w2_tr(12 + g, aX + 8*g, f"g{g}")
            if g < 5: side += self.dma_w2(3 + g)
            if g == 4: side.append(lambda: e.wait(lg="g3")); side += self.dma_w2(8)
            if g > 4 and g < 8: side += self.dma_w2(4 + g)
        run(merge(self.silu(ACC2, 2, sHB2, True, "h2"), side))
        self.stamp(7)
        e.wait(lg="g9")
        e(f"s_lshr_b32 s50, s{sK1}, 1\ns_and_b32 s50, s50, 3\ns_lshl_b32 s50, s50, 8\ns_lshl_b32 s51, s{sCG}, 10\ns_add_u32 s50, s50, s51\ns_add_u32 s58, s50, {WS_Z1F}")
        e(f"v_and_b32 v{vTMP}, 15, v{vL}\nv_lshlrev_b32 v{vTMP}, 4, v{vTMP}")
        dm = []
        for g in range(10, 16): dm += self.dma_w2(12 + g)
        self.poll(vTMP, 58, 16, vTMP + 1, "pz1", merge(self.gen_s4(), dm[:6]))
        e(f"s_lshl_b32 s50, s{sRB}, 1\ns_lshr_b32 s51, s{sW}, 1\ns_add_u32 s50, s50, s51\ns_lshl_b32 s50, s50, 2\ns_lshr_b32 s51, s{sBLK}, 1\ns_add_u32 s50, s50, s51\ns_lshl_b32 s50, s50, 3")
        e(f"s_lshl_b32 s51, s{sTY}, 2\ns_add_u32 s50, s50, s51\ns_and_b32 s51, s{sBLK}, 1\ns_lshl_b32 s51, s51, 1\ns_add_u32 s50, s50, s51\ns_and_b32 s51, s{sW}, 1\ns_add_u32 s50, s50, s51")
        e(f"s_lshl_b32 s50, s50, 4\ns_add_u32 s50, s50, {WS_HF}")
        self.flag_store(50, "hf")
        self.stamp(8)
        e(f"s_lshl_b32 s50, s{sCG}, 5\ns_add_u32 s50, s50, s{sK1}\ns_lshl_b32 s50, s50, 13\ns_lshl_b32 s51, s{sW}, 11\ns_add_u32 s50, s50, s51\ns_add_u32 s50, s50, {WS_Z1}\ns_add_u32 m0, s51, {L_ZB}")
        for i in range(2): e(f"buffer_load_dwordx4 v{vL16}, {srd(sWS)}, s50 offen offset:{i*1024} sc1 lds", "zb")
        ifd = self.gen_ifd()
        h1 = len(ifd) // 2
        run(merge(ifd[:h1], dm[6:]))
        e.wait(vm="zb"); e("s_barrier")
        ZF = 192
        for t in range(8): e(f"ds_read_b128 {ar(ZF+4*t,4)}, v{vL16} offset:{L_ZB + t*1024}", f"zf{t}")
        D = 64
        for t in range(8):
            e.wait(lg=f"zf{t}")
            e(f"v_mfma_f32_32x32x16_bf16 {vr(D,16)}, {ar(aA2+4*t,4)}, {ar(ZF+4*t,4)}, {'0' if t == 0 else vr(D,16)}")
        run(ifd[h1:h1+12])
        e.wait(vm="wl")
        P = 96
        for z in range(8):
            xr, xi, wr_, wi_ = D + 2*z, D + 2*z + 1, vW + 2*z, vW + 2*z + 1
            u = 80 + 2*(z & 1)
            e(f"v_mul_f32 v{u}, v{xr}, v{wr_}\nv_mul_f32 v{u+1}, v{xr}, v{wi_}\nv_fma_f32 v{u}, -v{xi}, v{wi_}, v{u}\nv_fmac_f32 v{u+1}, v{xi}, v{wr_}\nv_cvt_pk_bf16_f32 v{P+z}, v{u}, v{u+1}")
        e(f"s_lshl_b32 s50, s{sW}, 11\nv_add_u32 v{vTMP}, s50, v{vL16}")
        for jj in range(2): e(f"ds_write_b128 v{vTMP}, {vr(P+4*jj,4)} offset:{L_ZX + jj*1024}", "zxw")
        e.wait(lg="zxw"); e("s_barrier")
        for t in range(8): e(f"ds_read_b128 {ar(ZF+4*t,4)}, v{vL16} offset:{L_ZX + t*1024}", f"zg{t}")
        for t in range(8):
            e.wait(lg=f"zg{t}")
            e(f"v_mfma_f32_32x32x16_bf16 {vr(D,16)}, {ar(aA3+4*t,4)}, {ar(ZF+4*t,4)}, {'0' if t == 0 else vr(D,16)}")
        run(ifd[h1+12:h1+24])
        e(f"s_add_u32 m0, s50, {L_ZB}")
        for k in range(8):
            e(f"v_cvt_pk_bf16_f32 v{P+k}, v{D+2*k}, v{D+2*k+1}")
            e(f"ds_write_addtid_b32 v{P+k} offset:{k*256}", "zww")
        e(f"""v_lshrrev_b32 v{vTMP+1}, 5, v{vL}
v_bfe_u32 v{vTMP+2}, v{vL}, 3, 1
v_lshl_add_u32 v{vTMP+1}, v{vTMP+1}, 1, v{vTMP+2}
v_bfe_u32 v{vTMP+2}, v{vL}, 4, 1
v_lshlrev_b32 v{vTMP+2}, 10, v{vTMP+2}
v_lshl_add_u32 v{vTMP+1}, v{vTMP+1}, 16, v{vTMP+2}
v_and_b32 v{vTMP+2}, 7, v{vL}
v_lshl_add_u32 v{vTMP+1}, v{vTMP+2}, 4, v{vTMP+1}
s_lshl_b32 s51, s{sW}, 19
s_lshl_b32 s52, s{sK1}, 11
s_add_u32 s51, s51, s52
s_lshl_b32 s52, s{sCG}, 7
s_add_u32 s51, s51, s52
s_add_u32 s51, s51, {WS_Z3}
s_add_u32 s52, s51, {4*65536}""")
        e.wait(lg="zww")
        for k in range(2): e(f"ds_read_b128 {vr(D+4*k,4)}, v{vTMP} offset:{L_ZB + k*1024}", "zwr")
        e.wait(lg="zwr")
        for k in range(2): e(f"buffer_store_dwordx4 {vr(D+4*k,4)}, v{vTMP+1}, {srd(sWS)}, s{51+k} offen sc1", "z3s")
        self.stamp(9)
        e(f"s_lshl_b32 s50, s{sP}, 2\ns_add_u32 s50, s50, s{sW}\ns_lshl_b32 s50, s50, 7\ns_add_u32 s58, s50, {WS_HF}")
        e(f"v_and_b32 v{vTMP}, 7, v{vL}\nv_lshlrev_b32 v{vTMP}, 4, v{vTMP}")
        side = []
        for g in range(10, 16):
            side.append(lambda g=g: e.wait(vm=f"w2_{12+g}"))
            side += self.w2_tr(12 + g, aX + 8*g, f"g{g}")
        self.poll(vTMP, 58, 8, vTMP + 1, "phf", merge(ifd[h1+24:], side))
        e(f"s_lshl_b32 s50, s{sW}, 3\ns_add_u32 s50, s50, s{sCG}\ns_lshl_b32 s50, s50, 5\ns_add_u32 s50, s50, s{sK1}\ns_lshl_b32 s50, s50, 4\ns_add_u32 s50, s50, {WS_Z3F}")
        self.flag_store(50, "z3f")
        self.stamp(10)
        self.g2()

    def g2(self):
        e = self.e; T = self.T
        HB, HD = 192, 8
        LB = 160
        ZF = 128
        ACC = 64
        vH = [2, 3]
        e(f"s_mul_i32 s50, s{sP}, {2*112*1024}\ns_add_u32 s50, s50, {WS_H}\nv_add_u32 v{vH[0]}, s50, v{vL16}\nv_add_u32 v{vH[1]}, {112*1024}, v{vH[0]}")
        def hload(n):
            for rt in range(2):
                e(f"buffer_load_dwordx4 {ar(HB + 8*(n % HD) + 4*rt, 4)}, v{vH[rt]}, {srd(sWS)}, s{sKS+n} offen sc1", f"h{n}")
        for n in range(HD): hload(n)
        vO, XR = 4, 48
        e(f"""v_lshrrev_b32 v{vTMP}, 3, v{vL}
v_and_b32 v{vTMP+1}, 1, v{vTMP}
v_bfe_u32 v{vTMP+2}, v{vTMP}, 1, 1
v_lshrrev_b32 v{vTMP+3}, 2, v{vTMP}
v_lshl_add_u32 v{vTMP+1}, v{vTMP+3}, 1, v{vTMP+1}
v_lshl_add_u32 v{vTMP+3}, v{vTMP+2}, 2, v{vTMP+1}
v_and_b32 v{vTMP+4}, 7, v{vL}
v_lshlrev_b32 v{vO}, 4, v{vTMP+4}
v_lshl_add_u32 v{vO}, v{vTMP+3}, 16, v{vO}
v_lshlrev_b32 v5, 8, v{vTMP+1}
v_lshl_add_u32 v5, v{vTMP+2}, 7, v5
v_and_b32 v{vTMP+1}, 3, v{vL}
v_lshl_add_u32 v5, v{vTMP+1}, 5, v5
v_bfe_u32 v{vTMP+1}, v{vL}, 2, 1
v_mul_u32_u24 v{vTMP+1}, {RED_TS}, v{vTMP+1}
v_add_u32 v5, v5, v{vTMP+1}
s_lshl_b32 s50, s{sW}, 10
v_add_u32 v5, s50, v5
s_lshl_b32 s59, s{sW}, 19
s_lshl_b32 s50, s{sP}, 11
s_add_u32 s59, s59, s50
s_add_u32 s59, s59, s{sQB}""")
        vZD, vZ = 6, [15, 16, 17, 18]
        e(f"""v_lshrrev_b32 v{vTMP}, 4, v{vL}
v_and_b32 v{vTMP+1}, 15, v{vL}
v_lshlrev_b32 v{vTMP+2}, 2, v{vTMP}
v_xor_b32 v{vTMP+1}, v{vTMP+1}, v{vTMP+2}
v_lshlrev_b32 v{vTMP+1}, 4, v{vTMP+1}
v_lshl_add_u32 v{vZD}, v{vTMP}, 10, v{vTMP+1}
v_lshrrev_b32 v{vTMP}, 5, v{vL}
v_bfe_u32 v{vTMP+1}, v{vL}, 2, 2
v_lshl_add_u32 v{vTMP}, v{vTMP}, 3, v{vTMP+1}
v_lshlrev_b32 v{vTMP}, 8, v{vTMP}
v_lshl_add_u32 v{vTMP}, v{vTMP+1}, 6, v{vTMP}
v_and_b32 v{vTMP+1}, 3, v{vL}
v_lshl_add_u32 v{vTMP}, v{vTMP+1}, 3, v{vTMP}
v_and_b32 v{vTMP+1}, 16, v{vL}
v_lshl_add_u32 v{vTMP}, v{vTMP+1}, 1, v{vTMP}
s_add_u32 s50, s56, {L_S2}
v_add_u32 v{vZ[0]}, s50, v{vTMP}
v_xor_b32 v{vZ[1]}, 64, v{vZ[0]}
v_xor_b32 v{vZ[2]}, 128, v{vZ[0]}
v_xor_b32 v{vZ[3]}, 192, v{vZ[0]}""")
        e.wait(vm="w2_11")
        def lreads(n): run(self.w2_tr(n, LB + 8*(n % 3), f"l{n}"))
        lreads(0); lreads(1)
        def z3_dma():
            e(f"s_lshr_b32 s50, s{sP}, 3\ns_lshl_b32 s50, s50, 3\ns_lshl_b32 s51, s{sW}, 1\ns_add_u32 s50, s50, s51\ns_lshl_b32 s50, s50, 9\ns_add_u32 s58, s50, {WS_Z3F}")
            self.poll(vL16, 58, 64, vTMP + 1, "pz3", [])
            e(f"s_lshl_b32 s50, s{sP}, 16\ns_lshl_b32 s51, s{sW}, 8\ns_add_u32 s50, s50, s51\ns_add_u32 s50, s50, {WS_Z3}\ns_add_u32 s51, s56, {L_S2}")
            for n in range(16):
                e(f"s_mov_b32 m0, s51")
                e(f"buffer_load_dwordx4 v{vZD}, {srd(sWS)}, s50 offen sc1 lds", "z3d")
                if n < 15: e(f"s_add_u32 s50, s50, 4096\ns_add_u32 s51, s51, 1024")
            for rt in range(2):
                e(f"buffer_load_dwordx4 {vr(XR+4*rt,4)}, v{vO}, {srd(sX)}, s59 offen offset:{rt*1024}", "xr")
        def tail():
            DR, DI, PK = 224, 240, 32
            e.wait(vm="z3d")
            def zreads(mt):
                for ks in range(4):
                    for eh in range(2):
                        e(f"ds_read_b64_tr_b16 {ar(ZF + 16*(mt&1) + 4*ks + 2*eh, 2)}, v{vZ[mt]} offset:{ks*4096 + eh*1024}", f"z{mt}_{ks}")
            zreads(0)
            for mt in range(4):
                for ks in range(4):
                    e.wait(lg=f"z{mt}_{ks}")
                    fr = ar(ZF + 16*(mt&1) + 4*ks, 4)
                    e(f"v_mfma_f32_32x32x16_bf16 {vr(DR,16)}, {fr}, {vr(self.S4R+4*ks,4)}, {'0' if ks == 0 else vr(DR,16)}")
                    e(f"v_mfma_f32_32x32x16_bf16 {vr(DI,16)}, {fr}, {vr(self.S4I+4*ks,4)}, {'0' if ks == 0 else vr(DI,16)}")
                if mt < 3: zreads(mt + 1)
                for jj in range(2):
                    for rt in range(2):
                        for q in range(4):
                            r = 8*jj + 4*(q >> 1) + 2*(q & 1) + rt
                            e(f"v_cvt_pk_bf16_f32 v{PK + (jj*2+rt)*4 + q}, v{DR+r}, v{DI+r}")
                for jj in range(2):
                    for rt in range(2):
                        for dt in range(2):
                            A = ACC + (rt*2+dt)*16
                            e(f"v_mfma_f32_32x32x16_bf16 {vr(A,16)}, {vr(PK+(jj*2+rt)*4,4)}, {vr(self.IFD+((mt*2+jj)*2+dt)*4,4)}, {vr(A,16)}")
        ZD_AT, TAIL_AT = 12, 22
        for n in range(28):
            if n + 2 < 12: lreads(n + 2)
            e.wait(vm=f"h{n}")
            if n < 12: e.wait(lg=f"l{n}")
            elif n == 12: e.wait(lg="all")
            for rt in range(2):
                for dt in range(2):
                    A = ACC + (rt*2+dt)*16
                    B = ar(LB + 8*(n % 3) + 4*dt, 4) if n < 12 else ar(aX + 8*(n-12) + 4*dt, 4)
                    e(f"v_mfma_f32_32x32x16_bf16 {vr(A,16)}, {ar(HB + 8*(n % HD) + 4*rt, 4)}, {B}, {'0' if n == 0 else vr(A,16)}")
            if n == ZD_AT: self.stamp(11); z3_dma(); self.stamp(12)
            if n + HD < 28: hload(n + HD)
            if n == TAIL_AT: tail()
        self.stamp(13)
        e("s_barrier")
        e(f"s_mul_i32 m0, s{sW}, {RED_WS}")
        for i in range(64):
            e(f"ds_write_addtid_b32 v{ACC+i} offset:{(i>>4)*RED_TS + (i&15)*256}", "rw")
        e.wait(lg="all"); e("s_barrier")
        R = 128
        for rt in range(2):
            for pw in range(4):
                for k in range(2):
                    e(f"ds_read_b128 {vr(R + rt*32 + pw*8 + 4*k, 4)}, v5 offset:{pw*RED_WS + rt*2*RED_TS + 16*k}", f"rr{rt}_{pw}")
        e.wait(vm="xr")
        for rt in range(2):
            X = 64 + 8*rt
            for i in range(4):
                e(f"v_lshlrev_b32 v{X+2*i}, 16, v{XR+4*rt+i}\nv_and_b32 v{X+2*i+1}, 0xffff0000, v{XR+4*rt+i}")
            for pw in range(4):
                e.wait(lg=f"rr{rt}_{pw}")
                for i in range(4):
                    e(f"v_pk_add_f32 {vr(X+2*i,2)}, {vr(X+2*i,2)}, {vr(R + rt*32 + pw*8 + 2*i, 2)}")
            for i in range(4):
                e(f"v_cvt_pk_bf16_f32 v{80+4*rt+i}, v{X+2*i}, v{X+2*i+1}")
            e(f"buffer_store_dwordx4 {vr(80+4*rt,4)}, v{vO}, {srd(sOUT)}, s59 offen offset:{rt*1024}")
        done = e.label("nq")
        e(f"s_or_b32 s50, s2, s{sW}\ns_cmp_lg_u32 s50, 0\ns_cbranch_scc1 {done}\ns_mov_b32 s50, {WS_Q}")
        self.flag_store(50, "q")
        e(f"{done}:")
        if self.stamps:
            self.stamp(14)
            e(f"v_writelane_b32 v{vSTAMP}, s96, 0\nv_writelane_b32 v{vSTAMP}, s94, 15")
            e(f"s_memrealtime s[94:95]"); e.l.append("    s_waitcnt lgkmcnt(0)")
            e(f"v_writelane_b32 v{vSTAMP}, s94, 16")
            e(f"s_lshl_b32 s50, s2, 2\ns_add_u32 s50, s50, s{sW}\ns_lshl_b32 s50, s50, 8\ns_add_u32 s50, s50, {WS_DBG}\nv_lshlrev_b32 v{vTMP}, 2, v{vL}")
            e(f"buffer_store_dword v{vSTAMP}, v{vTMP}, {srd(sWS)}, s50 offen")

    def build(self):
        e = self.e
        self.prologue()
        snap = e.snapshot()
        e(f"s_cmp_eq_u32 s{sTY}, 1\ns_cbranch_scc1 L_typeB")
        self.f1(0)
        endA = e.snapshot()
        e("s_branch L_join\nL_typeB:")
        e.restore(snap)
        self.f1(1)
        endB = e.snapshot()
        self.e.vm = self.join(endA[0], endB[0]); self.e.lg = self.join(endA[1], endB[1])
        e("L_join:")
        self.post()
        e("L_end:\ns_endpgm")
        lines, nn = pad_hazards(e.l)
        hdr = open("parallel_sum__spectral_gfnet__dense_activation_silu__prompt.s.ref").read().split("; Override")[0]
        out = hdr + "; @launch grid=(256,1,1) block=(256,1,1) lds=163840\n"
        out += '.amdgcn_target "amdgcn-amd-amdhsa--gfx950"\n.text\n'
        out += f".globl {KNAME}\n.p2align 8\n.type {KNAME},@function\n{KNAME}:\n"
        out += "\n".join(lines) + "\n"
        out += f""".section .rodata,"a"
.p2align 6
.amdhsa_kernel {KNAME}
  .amdhsa_next_free_vgpr 512
  .amdhsa_next_free_sgpr 102
  .amdhsa_accum_offset 256
  .amdhsa_group_segment_fixed_size 0
  .amdhsa_kernarg_size 72
  .amdhsa_user_sgpr_count 2
  .amdhsa_user_sgpr_kernarg_segment_ptr 1
  .amdhsa_system_sgpr_workgroup_id_x 1
.end_amdhsa_kernel
"""
        return out, nn, len(lines)
    @staticmethod
    def join(a, b):
        def after(l):
            d = {}
            for i, t in enumerate(l): d[t] = len(l) - 1 - i
            return d
        da, db = after(a), after(b)
        n = {t: min(da.get(t, 10**9), db.get(t, 10**9)) for t in set(da) | set(db) if t is not None}
        m = max(n.values()) + 1 if n else 0
        q = [None] * m
        res = []
        for pos in range(m - 1, -1, -1):
            tags = [t for t, v in n.items() if v == pos]
            res.append(MultiTag(tags))
        return res

class MultiTag:
    def __init__(self, tags): self.tags = set(tags)
    def __eq__(self, o): return (o in self.tags) if not isinstance(o, MultiTag) else self is o
    def __hash__(self): return id(self)

if __name__ == "__main__":
    import argparse
    ap = argparse.ArgumentParser()
    ap.add_argument("-o", default="parallel_sum__spectral_gfnet__dense_activation_silu__prompt.s")
    ap.add_argument("--stamps", action="store_true")
    ap.add_argument("--opt", action="append", default=[])
    a = ap.parse_args()
    opts = {}
    for kv in a.opt:
        k, v = kv.split("="); opts[k] = eval(v)
    txt, nn, nl = Gen(a.stamps, opts).build()
    open(a.o, "w").write(txt)
    print("lines", nl, "nops added", nn)
```

```python
import sys
from emit import E, pad_hazards

KNAME = "parallel_sum__spectral_gfnet__dense_activation_silu__prompt_kernel"

WS_Q     = 0
WS_STATS = 0x10000
WS_Z1F   = 0x20000
WS_HF    = 0x24000
WS_Z3F   = 0x28000
WS_Z1    = 0x100000
WS_Z3    = 0x300000
WS_H     = 0x500000
WS_DBG   = 0xC00000
WS_SIZE  = 0x1000000

L_XS, L_MISC, L_S1, L_S2 = 0, 32768, 49152, 98304
L_CS = L_MISC + 8192
L_RB = L_MISC + 12288
L_ZB = L_MISC
L_ZX = L_MISC + 8192
L_FD = L_S1
L_S1B = L_S1 + 32768
L_XS3 = L_S2 + 49152
S1B_OFF = [L_S1B - L_MISC + i*4096 for i in range(4)] + [0, 4096]
RED_TS = 4096 + 16
RED_WS = 4 * RED_TS

sX, sW1, sW2, sWS, sWR, sWI, sOUT = 4, 8, 12, 16, 20, 24, 28
sT, sW, sRB, sBLK, sTY, sC0, sK1, sCG, sP, sQ = 32, 33, 34, 35, 36, 37, 38, 39, 40, 41
sXROW, sCOL1, sCOL2, sHB1, sHB2, sXSW, sQB, sPOLL = 42, 43, 44, 45, 46, 47, 48, 49
sXS3, sW2K, sROT = 61, 62, 63
sKS = 64
sSTAMP = 92
def srd(n): return f"s[{n}:{n+3}]"

vTID, vL = 0, 1
vXD = [2, 3, 4, 5]; vSD = [6, 7]; vS1D = 8
vXR = [9, 10, 11, 12]; vT1 = [13, 14]; vT2 = [15, 16]; vTS = 17; vFD = 18
vC1 = [19, 20]; vC2 = [21, 22]
vNC1, vRINV, vSIG, vL16 = 23, 24, 25, 26
vSTAMP = 27
vBX = 28; vAX = [32, 36]; vCSA = [40, 44]; vCSF = [48, 52]
vONES = 56
vTMP = 58
vPF = [236, 237, 238, 239]
vXR2 = [232, 233, 234, 235]
ACCA, ACC2, ACCD = 64, 96, 128
vW = 240
TMP = 192
aX, aA2, aA3, aG1, aFB = 0, 128, 160, 192, 216

TRANS_ = ('v_exp_f32', 'v_rcp_f32', 'v_sin_f32', 'v_cos_f32', 'v_rsq_f32')
LOG2E = 1.4426950408889634
def fhex(f):
    import struct
    return "0x%08x" % struct.unpack("<I", struct.pack("<f", f))[0]
def vr(a, n): return f"v[{a}:{a+n-1}]"
def ar(a, n): return f"a[{a}:{a+n-1}]"

def merge(main, side, start=0, end=None):
    end = len(main) if end is None else end
    out = list(main[:start]); n = end - start; k = len(side); j = 0
    for i in range(n):
        out.append(main[start + i])
        while j < k and (j + 1) * n <= (i + 1) * k:
            out.append(side[j]); j += 1
    out += side[j:]
    out += main[end:]
    return out
def run(ths):
    for t in ths: t()
def cost(th): return getattr(th, 'cost', 1)
def spread(fill, caps):
    tot = sum(cost(t) for t in fill); cap = sum(caps)
    out = [[] for _ in caps]; acc = 0.0; g = 0; lim = caps[0] * tot / cap if cap else 0
    for t in fill:
        while g < len(caps) - 1 and acc + cost(t) / 2 > lim:
            g += 1; lim += caps[g] * tot / cap
        out[g].append(t); acc += cost(t)
    return out

class Gen:
    def __init__(self, stamps=False, opts=None):
        self.e = E(); self.stamps = stamps; self.nst = 0; self.xnames = []
        self.o = dict(ntw=True, pf=True, s2at={6: [0, 1, 2], 7: [3, 4, 5]}, w2p2=5, dm=[(0, 31), (15, 31)], z1f=26, pfw2=False, a2b=True, lep=0, gep=7, hd=6, zp=10, zc=12, t0=20)
        self.o.update(opts or {})
    def stamp(self, i):
        if not self.stamps: return
        e = self.e
        e(f"s_memtime s[{sSTAMP}:{sSTAMP+1}]"); e.l.append("    s_waitcnt lgkmcnt(0)"); e.lg = []
        e(f"v_writelane_b32 v{vSTAMP}, s{sSTAMP}, {i if i < 15 else i + 5}")
    def xs(self, name):
        if not (self.stamps and self.o.get('xs')): return
        if name not in self.xnames: self.xnames.append(name)
        self.stamp(15 + self.xnames.index(name))
    def dst(self, region):
        if self.o.get('detail') != region: return
        pairs = self.dpairs
        if self.nd < len(pairs):
            self.e(f"s_memtime s[{pairs[self.nd]}:{pairs[self.nd]+1}]"); self.nd += 1
    def dbegin(self, region, pairs):
        if self.o.get('detail') == region: self.nd = 0; self.dpairs = pairs
    def dend(self, region):
        if self.o.get('detail') != region: return
        self.e.l.append("    s_waitcnt lgkmcnt(0)"); self.e.lg = []
        for i in range(self.nd): self.e(f"v_writelane_b32 v{vSTAMP}, s{self.dpairs[i]}, {20+i}")
        run(self.g2_setup())
    def T(self, s, tag=None):
        f = lambda: self.e(s, tag)
        f.cost = sum(2 if x.split()[0] in TRANS_ else 1 for x in s.split("\n") if x.strip())
        return f
    def W(self, vm=None, lg=None):
        f = lambda: self.e.wait(vm=vm, lg=lg)
        f.cost = 0.5
        return f
    def TL(self, s):
        return [self.T(x) for x in s.split("\n") if x.strip()]

    def prologue(self):
        e = self.e
        e("s_cmp_ge_u32 s2, 256\ns_cbranch_scc1 L_end")
        e(f"s_load_dwordx2 s[{sX}:{sX+1}], s[0:1], 0\ns_load_dwordx4 s[52:55], s[0:1], 32\ns_load_dwordx2 s[{sWS}:{sWS+1}], s[0:1], 64")
        e(f"s_load_dwordx4 s[56:59], s[0:1], 8\ns_load_dwordx2 s[{sOUT}:{sOUT+1}], s[0:1], 48")
        if self.stamps:
            e(f"s_memrealtime s[94:95]\ns_memtime s[96:97]")
        e(f"v_and_b32 v{vL}, 63, v0\nv_lshrrev_b32 v{vTMP}, 6, v0\nv_lshlrev_b32 v{vL16}, 4, v{vL}\nv_readfirstlane_b32 s{sW}, v{vTMP}")
        if self.o['pf']:
            e(f"s_getpc_b64 s[50:51]\ns_lshr_b32 s60, s2, 3\ns_lshl_b32 s60, s60, 11")
            e(f"s_and_b32 s61, s{sW}, 1\ns_lshl_b32 s61, s61, 10\ns_add_u32 s60, s60, s61\ns_min_u32 s60, s60, L_end-{KNAME}-1280")
            e(f"s_add_u32 s50, s50, s60\ns_addc_u32 s51, s51, 0")
            e(f"v_mov_b32 v{vTMP+1}, s51\nv_add_co_u32 v{vTMP}, vcc, s50, v{vL16}\nv_addc_co_u32 v{vTMP+1}, vcc, 0, v{vTMP+1}, vcc")
            e(f"global_load_dwordx4 {vr(TMP+8,4)}, {vr(vTMP,2)}, off", "pf")
        e(f"""s_and_b32 s50, s2, 7
s_lshr_b32 s51, s2, 3
s_lshr_b32 s60, s50, 1
s_lshl_b32 s60, s60, 2
s_lshr_b32 s61, s51, 3
s_add_u32 s{sRB}, s60, s61
s_and_b32 s62, s51, 7
s_and_b32 s{sTY}, s62, 1
s_and_b32 s63, s50, 1
s_lshl_b32 s{sBLK}, s63, 2
s_lshr_b32 s60, s62, 1
s_add_u32 s{sBLK}, s{sBLK}, s60
s_add_u32 s{sC0}, s62, s61
s_and_b32 s{sC0}, s{sC0}, 7
s_lshl_b32 s{sK1}, s50, 2
s_add_u32 s{sK1}, s{sK1}, s61
s_mov_b32 s{sCG}, s62
s_mov_b32 s{sP}, s{sK1}
s_mov_b32 s{sQ}, s62
s_lshl_b32 s63, s63, 3
s_add_u32 s63, s63, s62""")
        e(f"s_lshl_b32 s60, s{sRB}, 2\ns_add_u32 s60, s60, s{sW}\ns_lshl_b32 s{sXROW}, s60, 10\ns_lshl_b32 s{sXSW}, s{sW}, 13")
        e(f"""s_lshl_b32 s60, s{sBLK}, 8
s_add_u32 s61, s60, 128
s_mul_i32 s62, s{sBLK}, 192
s_add_u32 s62, s62, 2048
s_and_b32 s50, s{sBLK}, 1
s_lshl_b32 s51, s50, 6
s_add_u32 s51, s51, s62
s_lshl_b32 s50, s50, 7
s_sub_u32 s62, s62, s50
s_add_u32 s62, s62, 128
s_cmp_eq_u32 s{sTY}, 0
s_cselect_b32 s{sCOL1}, s60, s62
s_cselect_b32 s{sCOL2}, s61, s51""")
        e(f"s_mul_i32 s60, s{sXROW}, 112\ns_add_u32 s60, s60, {WS_H}\ns_lshl_b32 s61, s{sCOL1}, 5\ns_add_u32 s{sHB1}, s60, s61\ns_lshl_b32 s61, s{sCOL2}, 5\ns_add_u32 s{sHB2}, s60, s61")
        t0, t1, t2 = vTMP, vTMP+1, vTMP+2
        e(f"""v_lshrrev_b32 v{t0}, 3, v{vL}
v_and_b32 v{t1}, 7, v{vL}
v_lshrrev_b32 v{t2}, 4, v{vL}
v_xor_b32 v{t1}, v{t1}, v{t2}
v_lshlrev_b32 v{t1}, 4, v{t1}
v_lshl_add_u32 v{vXD[0]}, v{t0}, 16, v{t1}
v_xor_b32 v{vXD[1]}, 64, v{vXD[0]}
v_add_u32 v{vXD[2]}, {2*(524288-1024)}, v{vXD[0]}
v_add_u32 v{vXD[3]}, {3*(524288-1024)}, v{vXD[1]}
v_add_u32 v{vXD[1]}, {524288-1024}, v{vXD[1]}""")
        e(f"""v_lshrrev_b32 v{t1}, 5, v{vL}
v_and_b32 v{t2}, 31, v{vL}
v_lshlrev_b32 v{t2}, 4, v{t2}
v_lshl_add_u32 v{t2}, v{t1}, 16, v{t2}
s_lshl_b32 s60, s63, 17
s_add_u32 s60, s60, s{sXROW}""")
        e(f"""s_lshl_b32 s61, s{sW}, 4
v_add_u32 v{t0}, s61, v{t0}
v_mul_u32_u24 v{t0}, 3584, v{t0}
v_and_b32 v{t1}, 7, v{vL}
v_lshlrev_b32 v{t1}, 4, v{t1}
v_and_b32 v{vTMP+3}, 16, v{vL}
v_lshlrev_b32 v{vTMP+3}, 2, v{vTMP+3}
v_xor_b32 v{t1}, v{t1}, v{vTMP+3}
v_add_u32 v{vSD[0]}, v{t0}, v{t1}
v_add_u32 v{vSD[1]}, {8*3584-1024}, v{vSD[0]}
v_lshrrev_b32 v{t0}, 2, v{vL}
v_add_u32 v{t0}, s61, v{t0}
v_mul_u32_u24 v{t0}, 3584, v{t0}
v_and_b32 v{t1}, 3, v{vL}
v_lshl_add_u32 v{vS1D}, v{t1}, 4, v{t0}""")
        e.l.append("    s_waitcnt lgkmcnt(0)")
        e(f"s_mov_b32 s{sX+2}, 2097152\ns_mov_b32 s{sX+3}, 0x20000")
        e(f"buffer_load_dwordx4 {vr(TMP,4)}, v{t2}, {srd(sX)}, s60 offen", "stat")
        e(f"buffer_load_dwordx4 {vr(TMP+4,4)}, v{t2}, {srd(sX)}, s60 offen offset:512", "stat")
        e(f"s_load_dword s{sT}, s[{sWS}:{sWS+1}], {WS_Q}")
        e(f"s_mov_b32 s{sW1}, s52\ns_mov_b32 s{sW1+1}, s53\ns_mov_b32 s{sW1+2}, 1835008\ns_mov_b32 s{sW1+3}, 0x20000")
        run(self.dma_x(0))
        e(f"s_mov_b32 s{sW2}, s54\ns_mov_b32 s{sW2+1}, s55\ns_mov_b32 s{sW2+2}, 1835008\ns_mov_b32 s{sW2+3}, 0x20000")
        e(f"s_mov_b32 s{sWS+2}, {WS_SIZE}\ns_mov_b32 s{sWS+3}, 0x20000")
        e(f"s_mov_b32 s{sWR}, s56\ns_mov_b32 s{sWR+1}, s57\ns_mov_b32 s{sWR+2}, 1052672\ns_mov_b32 s{sWR+3}, 0x20000")
        e(f"s_mov_b32 s{sWI}, s58\ns_mov_b32 s{sWI+1}, s59\ns_mov_b32 s{sWI+2}, 1052672\ns_mov_b32 s{sWI+3}, 0x20000")
        e(f"s_mov_b32 s{sOUT+2}, 2097152\ns_mov_b32 s{sOUT+3}, 0x20000")
        e(f"s_mov_b32 s{sPOLL}, s63")
        e(f"s_lshr_b32 s{sXS3}, s{sXSW}, 1\ns_add_u32 s{sXS3}, s{sXS3}, {L_XS3}\ns_lshl_b32 s{sW2K}, s{sW}, 11\ns_lshl_b32 s{sQB}, s{sQ}, 7")
        e(f"s_mul_i32 s50, s{sQ}, 7\ns_lshr_b32 s50, s50, 1\ns_and_b32 s51, s{sP}, 3\ns_mul_i32 s51, s51, 7\ns_add_u32 s{sROT}, s50, s51")

    def chunk(self, t, d):
        return f"s_add_u32 s{d}, s{sC0}, {(t>>1) + 4*(t&1)}\ns_and_b32 s{d}, s{d}, 7\n"
    def dma_x(self, t):
        pre = self.chunk(t, 50) + f"s_lshl_b32 s50, s50, 7\ns_add_u32 s50, s50, s{sXROW}\n"
        pre += f"s_add_u32 m0, s{sXSW}, {L_XS + (t % 3)*4096}\n" if t % 3 < 2 else f"s_add_u32 m0, s{sXS3}, 0\n"
        return [self.T((pre if i == 0 else "") + f"buffer_load_dwordx4 v{vXD[i]}, {srd(sX)}, s50 offen offset:{i*1024} lds", f"x{t}") for i in range(4)]
    def dma_pair(self, t, col, ldsbase, tag):
        pre = self.chunk(t, 51) + f"s_mul_i32 s51, s51, {64*3584}\ns_add_u32 s51, s51, s{col}\ns_add_u32 m0, s{sW2K}, {ldsbase}\n"
        return [self.T((pre if i == 0 else "") + f"buffer_load_dwordx4 v{vSD[i]}, {srd(sW1)}, s51 offen offset:{i*1024} lds", tag) for i in range(2)]
    def dma_single(self, t, ldsbase, tag):
        pre = self.chunk(t, 51) + f"s_mul_i32 s51, s51, {64*3584}\ns_add_u32 s51, s51, s{sCOL1}\ns_lshl_b32 s52, s{sW}, 10\ns_add_u32 m0, s52, {ldsbase}\n"
        return [self.T(pre + f"buffer_load_dwordx4 v{vS1D}, {srd(sW1)}, s51 offen lds", tag)]
    def dma_s1(self, ty, t):
        if ty == 0: return self.dma_pair(t, sCOL1, L_S1 + (t % 6) * 8192, f"s1_{t}")
        return self.dma_single(t, L_MISC + S1B_OFF[t % 6], f"s1_{t}")
    def dma_s2(self, t):
        return self.dma_pair(t, sCOL2, L_S2 + t * 8192, f"s2_{t}")
    def pf_setup(self):
        t0, t1, t2 = TMP + 37, TMP + 38, TMP + 39
        th = []
        for r in range(2):
            th.append(self.T(f"""v_lshrrev_b32 v{t0}, 4, v{vL}
v_min_u32 v{t0}, {3 - r}, v{t0}
s_add_u32 s50, s{sROT}, {12 + 4*r}
v_add_u32 v{t0}, s50, v{t0}
v_subrev_u32 v{t1}, 28, v{t0}
v_min_u32 v{t0}, v{t0}, v{t1}
v_subrev_u32 v{t1}, 28, v{t0}
v_min_u32 v{t0}, v{t0}, v{t1}
s_lshl_b32 s50, s{sW}, 4
s_mul_i32 s51, s{sW}, 12
s_add_u32 s51, s51, 48
v_mov_b32 v{t1}, s50
v_cmp_le_u32 vcc, 16, v{t0}
v_mov_b32 v{t2}, s51
v_cndmask_b32 v{t1}, v{t1}, v{t2}, vcc
v_add_lshl_u32 v{t0}, v{t0}, v{t1}, 4
v_and_b32 v{t1}, 15, v{vL}
v_add_lshl_u32 v{vPF[r]}, v{t0}, v{t1}, 10"""))
        return th
    def pf_w2(self, t):
        return [self.T(f"s_cmp_eq_u32 s{sW}, {t & 3}\ns_cselect_b32 s52, -1, 0\nv_and_b32 v{vPF[2]}, s52, v{vPF[t>>2]}\nbuffer_load_dword v{vPF[3]}, v{vPF[2]}, {srd(sW2)}, s{sQB} offen", f"pf{t}")]

    def addr_setup(self):
        e = self.e
        t0, t1, t2, t3 = vTMP, vTMP+1, vTMP+2, vTMP+3
        e(f"""v_and_b32 v{t0}, 31, v{vL}
v_lshrrev_b32 v{t1}, 5, v{vL}
v_bfe_u32 v{t2}, v{vL}, 1, 3
v_xor_b32 v{t2}, v{t2}, v{t1}
v_lshlrev_b32 v{t2}, 4, v{t2}
v_lshl_add_u32 v{t2}, v{t0}, 7, v{t2}
v_add_u32 v{vXR[0]}, s{sXSW}, v{t2}
v_xor_b32 v{vXR[1]}, 32, v{vXR[0]}
v_xor_b32 v{vXR[2]}, 64, v{vXR[0]}
v_xor_b32 v{vXR[3]}, 96, v{vXR[0]}
s_lshr_b32 s50, s{sXSW}, 1
s_add_u32 s50, s50, {L_XS3}
v_add_u32 v{vXR2[0]}, s50, v{t2}
v_xor_b32 v{vXR2[1]}, 32, v{vXR2[0]}
v_xor_b32 v{vXR2[2]}, 64, v{vXR2[0]}
v_xor_b32 v{vXR2[3]}, 96, v{vXR2[0]}""")
        e(f"""v_bfe_u32 v{t0}, v{vL}, 2, 2
v_lshl_add_u32 v{t2}, v{t1}, 3, v{t0}
v_and_b32 v{t3}, 3, v{vL}
v_lshlrev_b32 v{t3}, 3, v{t3}
v_and_b32 v{vTMP+4}, 16, v{vL}
v_lshl_add_u32 v{t3}, v{vTMP+4}, 1, v{t3}
v_lshl_add_u32 v{vTS}, v{t2}, 6, v{t3}
v_add_u32 v{vTS}, {L_MISC}, v{vTS}
v_lshl_add_u32 v{t3}, v{t2}, 7, v{t3}
v_and_b32 v{vTMP+4}, 8, v{vL}
v_lshl_add_u32 v{t3}, v{vTMP+4}, 3, v{t3}
v_add_u32 v{vT1[0]}, {L_S1}, v{t3}
v_xor_b32 v{vT1[1]}, 64, v{vT1[0]}
v_add_u32 v{vT2[0]}, {L_S2}, v{t3}
v_xor_b32 v{vT2[1]}, 64, v{vT2[0]}
s_lshl_b32 s50, s{sW}, 11
v_add_u32 v{vC2[0]}, s50, v{vT2[0]}
v_add_u32 v{vC2[1]}, s50, v{vT2[1]}
v_add_u32 v{vFD}, {L_FD}, v{vL16}
v_mov_b32 v{vONES}, 0x3f803f80
v_mov_b32 v{vONES+1}, 0x3f803f80""")

    def stats(self):
        e = self.e
        U = TMP + 16
        for i in range(8):
            e(f"v_lshlrev_b32 v{U+2*i}, 16, v{TMP+i}\nv_and_b32 v{U+2*i+1}, 0xffff0000, v{TMP+i}")
        def reduce(src, n, acc):
            e(f"v_add_f32 v{acc}, v{src}, v{src+1}\nv_add_f32 v{acc+1}, v{src+2}, v{src+3}")
            for i in range(4, n, 2):
                e(f"v_add_f32 v{acc}, v{acc}, v{src+i}\nv_add_f32 v{acc+1}, v{acc+1}, v{src+i+1}")
            e(f"v_add_f32 v{acc}, v{acc}, v{acc+1}")
            for k in (8, 4, 2, 1):
                e(f"v_add_f32_dpp v{acc}, v{acc}, v{acc} row_ror:{k} row_mask:0xf bank_mask:0xf")
            e(f"v_mov_b32 v{acc+1}, v{acc}\nv_permlane16_swap_b32 v{acc}, v{acc+1}\nv_add_f32 v{acc}, v{acc}, v{acc+1}")
        M = TMP + 32
        reduce(U, 16, M)
        e(f"v_mul_f32 v{M}, {fhex(1/512)}, v{M}")
        for i in range(16):
            e(f"v_sub_f32 v{U+i}, v{U+i}, v{M}")
        for i in range(16):
            e(f"v_mul_f32 v{U+i}, v{U+i}, v{U+i}")
        reduce(U, 16, M+2)
        e(f"v_mov_b32 v{M+3}, {fhex(1e-5)}\nv_fmac_f32 v{M+3}, {fhex(1/512)}, v{M+2}\nv_rsq_f32 v{M+2}, v{M+3}")
        e.l.append("    s_waitcnt lgkmcnt(0)"); e.lg = []
        e(f"s_mul_i32 s{sT}, s{sT}, 0x9E3779B1\ns_add_u32 s{sT}, s{sT}, 0x7F4A7C15")
        e(f"v_mov_b32 v{M+1}, s{sT}\nv_mov_b32 v{M+3}, s{sT}")
        e(f"s_lshr_b32 s50, s{sXROW}, 1\ns_lshl_b32 s51, s{sPOLL}, 5\ns_add_u32 s50, s50, s51\ns_add_u32 s50, s50, {WS_STATS}")
        e(f"v_lshrrev_b32 v{vTMP}, 5, v{vL}\nv_lshlrev_b32 v{vTMP}, 4, v{vTMP}\nv_and_b32 v{vTMP+1}, 31, v{vL}\nv_cmp_eq_u32 vcc, 0, v{vTMP+1}")
        e(f"s_and_saveexec_b64 s[52:53], vcc")
        e(f"buffer_store_dwordx4 {vr(M,4)}, v{vTMP}, {srd(sWS)}, s50 offen sc1", "statst")
        e(f"s_mov_b64 exec, s[52:53]")

    def trig(self, n, ang, inc, step, regs, use, group=1, first=None):
        T = self.T; th = []; pend = []
        for g in range(n // group):
            cs = []
            for b in range(group):
                i = g*group + b
                c, s_ = regs[(g & 1)*group + b]
                a = first if (first is not None and i == 0) else ang
                th += [T(f"v_cos_f32 v{c}, v{a}"), T(f"v_sin_f32 v{s_}, v{a}")]
                if i < n - 1:
                    k = step(i)
                    th.append(T(f"v_add_f32 v{ang}, v{ang}, v{inc}") if k == 1 else T(f"v_fmac_f32 v{ang}, {fhex(float(k))}, v{inc}"))
                cs.append((c, s_))
            th += pend
            pend = use(g, cs)
        return th + pend

    def gen_a2a3(self):
        T = self.T; th = []
        t0, t1, t2, t3, k2, n2, sg = [TMP + 12 + i for i in range(7)]
        ang, inc = TMP + 20, TMP + 21
        regs = [(TMP + 22, TMP + 23), (TMP + 24, TMP + 25)]
        pk = TMP + 26
        th += self.TL(f"""v_bfe_u32 v{t0}, v{vL}, 4, 1
v_bfe_u32 v{t1}, v{vL}, 3, 1
v_bfe_u32 v{t2}, v{vL}, 2, 1
v_bfe_u32 v{t3}, v{vL}, 1, 1
v_lshl_add_u32 v{k2}, v{t1}, 1, v{t3}
v_lshl_add_u32 v{k2}, v{t2}, 2, v{k2}
v_lshl_add_u32 v{k2}, v{t0}, 3, v{k2}
s_lshl_b32 s54, s{sW}, 4
v_add_u32 v{k2}, s54, v{k2}
v_and_b32 v{n2}, 1, v{vL}
v_cvt_f32_u32 v{ang}, v{n2}
v_mul_f32 v{ang}, 0x3e800000, v{ang}
v_cvt_f32_u32 v{inc}, v{k2}
v_mul_f32 v{inc}, {fhex(1/64)}, v{inc}
v_lshrrev_b32 v{k2}, 5, v{vL}
v_lshlrev_b32 v{k2}, 2, v{k2}
v_cvt_f32_u32 v{k2}, v{k2}
v_fmac_f32 v{ang}, v{k2}, v{inc}
s_mov_b32 s54, 0x80008000
v_mul_lo_u32 v{sg}, v{t3}, s54""")
        def use(dst, neg):
            def f(g, cs):
                c, s_ = cs[0]; p = pk + 2*(g & 1)
                return [T(f"v_cvt_pk_bf16_f32 v{p}, v{c}, {'-' if neg else ''}v{s_}"), T(f"v_xor_b32 v{p+1}, v{p}, v{sg}"),
                        T(f"v_accvgpr_write_b32 a{dst+g}, v{p}"), T(f"v_accvgpr_write_b32 a{dst+16+g}, v{p+1}")]
            return f
        st4 = lambda i: 1 if (i & 3) < 3 else 5
        th += self.trig(16, ang, inc, st4, regs, use(aA2, False))
        self.n_a2 = len(th)
        th += self.TL(f"""v_bfe_u32 v{n2}, v{vL}, 3, 2
v_lshl_add_u32 v{n2}, v{n2}, 1, v{t2}
v_and_b32 v{t0}, 1, v{vL}
v_lshl_add_u32 v{n2}, v{n2}, 1, v{t0}
s_mov_b32 s54, 0x80008000
v_mul_lo_u32 v{sg}, v{t0}, s54
s_lshl_b32 s54, s{sW}, 4
v_add_u32 v{n2}, s54, v{n2}
v_cvt_f32_u32 v{n2}, v{n2}
v_mul_f32 v{inc}, {fhex(1/64)}, v{n2}
v_cvt_f32_u32 v{ang}, v{t3}
v_mul_f32 v{ang}, 0xbe800000, v{ang}
v_cvt_f32_u32 v{t0}, s{sK1}
v_mul_f32 v{t0}, {fhex(1/2048)}, v{t0}
v_fmac_f32 v{ang}, v{t0}, v{n2}
v_fmac_f32 v{ang}, v{k2}, v{inc}""")
        th += self.trig(16, ang, inc, st4, regs, use(aA3, True))
        return th

    def gen_fd(self):
        T = self.T; th = []
        kc, inc, ang, t0 = TMP + 12, TMP + 13, TMP + 14, TMP + 15
        regs = [(TMP + 16 + 2*i, TMP + 17 + 2*i) for i in range(4)]
        PC, PS = TMP + 24, TMP + 32
        th += self.TL(f"""v_and_b32 v{kc}, 31, v{vL}
s_lshl_b32 s50, s{sBLK}, 5
v_add_u32 v{kc}, s50, v{kc}
v_and_b32 v{t0}, 1, v{kc}
v_lshlrev_b32 v{t0}, 31, v{t0}
v_xor_b32 v{vSIG}, 1.0, v{t0}
v_mov_b32 v{t0}, 0x100
v_cmp_eq_u32 vcc, 0, v{kc}
v_cndmask_b32 v{kc}, v{kc}, v{t0}, vcc
s_add_u32 s50, s{sC0}, s{sW}
s_lshl_b32 s50, s50, 6
v_lshrrev_b32 v{t0}, 5, v{vL}
v_lshlrev_b32 v{t0}, 3, v{t0}
v_add_u32 v{t0}, s50, v{t0}
v_mul_u32_u24 v{t0}, v{t0}, v{kc}
v_and_b32 v{t0}, 511, v{t0}
v_cvt_f32_u32 v{ang}, v{t0}
v_mul_f32 v{ang}, {fhex(1/512)}, v{ang}
v_cvt_f32_u32 v{inc}, v{kc}
v_mul_f32 v{inc}, {fhex(1/512)}, v{inc}
s_lshl_b32 s50, s{sW}, 13
v_add_u32 v{t0}, s50, v{vFD}""")
        def use(g, cs):
            ks, q = g >> 2, g & 3; o = 4*(ks & 1)
            r = [T(f"v_cvt_pk_bf16_f32 v{PC+o+q}, v{cs[0][0]}, v{cs[1][0]}"), T(f"v_cvt_pk_bf16_f32 v{PS+o+q}, -v{cs[0][1]}, -v{cs[1][1]}")]
            if q == 0 and ks >= 2: r = [self.W(lg=f"fdw{ks-2}")] + r
            if q == 3:
                r += [T(f"ds_write_b128 v{t0}, {vr(PC+o,4)} offset:{ks*2048}", f"fdw{ks}"), T(f"ds_write_b128 v{t0}, {vr(PS+o,4)} offset:{ks*2048+1024}", f"fdw{ks}")]
            return r
        th += self.trig(32, ang, inc, lambda i: 9 if (i & 7) == 7 else 1, regs, use, group=2)
        th.append(self.W(lg="fdw3"))
        return th
    def gen_g1(self):
        T = self.T; th = []
        kc, inc, ang, t0, sg = TMP + 12, TMP + 13, TMP + 14, TMP + 15, TMP + 36
        regs = [(TMP + 16 + 2*i, TMP + 17 + 2*i) for i in range(4)]
        P = TMP + 24
        th += self.TL(f"""v_and_b32 v{kc}, 31, v{vL}
v_and_b32 v{t0}, 1, v{vL}
s_mov_b32 s54, 0x80008000
v_mul_lo_u32 v{sg}, v{t0}, s54
v_cvt_f32_u32 v{kc}, v{kc}
v_mul_f32 v{inc}, {fhex(1/32)}, v{kc}
s_lshr_b32 s54, s{sXROW}, 10
v_cvt_f32_u32 v{ang}, s54
v_mul_f32 v{ang}, {fhex(1/2048)}, v{ang}
v_mul_f32 v{ang}, v{ang}, v{kc}
v_lshrrev_b32 v{t0}, 5, v{vL}
v_lshlrev_b32 v{t0}, 2, v{t0}
v_cvt_f32_u32 v{t0}, v{t0}
v_fmac_f32 v{ang}, v{t0}, v{inc}""")
        def use(q, cs):
            r = [T(f"v_cvt_pk_bf16_f32 v{P}, v{cs[0][0]}, v{cs[1][0]}"), T(f"v_cvt_pk_bf16_f32 v{P+1}, v{cs[0][1]}, v{cs[1][1]}"),
                 T(f"v_cvt_pk_bf16_f32 v{P+2}, -v{cs[0][1]}, -v{cs[1][1]}")]
            for k in range(3): r.append(T(f"v_xor_b32 v{P+3+k}, v{P+k}, v{sg}"))
            for k in range(3): r += [T(f"v_accvgpr_write_b32 a{aG1+8*k+q}, v{P+k}"), T(f"v_accvgpr_write_b32 a{aG1+8*k+4+q}, v{P+3+k}")]
            return r
        th += self.trig(8, ang, inc, lambda i: 5 if (i & 3) == 3 else 1, regs, use, group=2)
        return th

    def csum_chunk(self, t, addrs, slot_off, ntile, first, single=False):
        T = self.T
        rd, mm = [], []
        for dt in range(ntile):
            for eh in range(2):
                rd.append(T(f"ds_read_b64_tr_b16 {vr(vCSF[dt]+2*eh,2)}, v{addrs[dt]} offset:{slot_off + eh*(256 if single else 512)}", f"cs{t}"))
        mm.append(lambda: self.e.wait(lg=f"cs{t}"))
        for eh in range(2):
            for dt in range(ntile):
                c = "0" if (first and eh == 0) else vr(vCSA[dt], 4)
                mm.append(T(f"v_mfma_f32_4x4x4_16b_bf16 {vr(vCSA[dt],4)}, {vr(vONES,2)}, {vr(vCSF[dt]+2*eh,2)}, {c}"))
        return rd, mm

    def csum_publish(self, ntile, ps):
        e = self.e
        e(f"s_lshl_b32 s50, s{sW}, 2\nv_add_u32 v{vTMP}, s50, v{vL16}")
        for dt in range(ntile):
            e(f"ds_write_b32 v{vTMP}, v{vCSA[dt]} offset:{L_CS + ps*2048 + dt*1024}", "csw")
        e.wait(lg="csw")
    def csum_fetch(self, ntile, ps):
        for dt in range(ntile):
            self.e(f"ds_read_b128 {vr(vCSF[dt],4)}, v{vL16} offset:{L_CS + ps*2048 + dt*1024}", "csr")
    def csum_finish(self, ntile, acc):
        e = self.e
        e.wait(lg="csr")
        for dt in range(ntile):
            F, A = vCSF[dt], vAX[dt]
            e(f"v_add_f32 v{F}, v{F}, v{F+1}\nv_add_f32 v{F+2}, v{F+2}, v{F+3}\nv_add_f32 v{F}, v{F}, v{F+2}")
            e(f"v_cvt_pk_bf16_f32 v{A+1}, v{F}, v{F}\nv_and_b32 v{F+1}, 0xffff0000, v{A+1}\nv_sub_f32 v{F+2}, v{F}, v{F+1}\nv_cvt_pk_bf16_f32 v{A}, v{F+1}, v{F+2}")
        for dt in range(ntile):
            e(f"v_mfma_f32_32x32x16_bf16 {vr(acc+16*dt,16)}, {vr(vAX[dt],4)}, {vr(vBX,4)}, {vr(acc+16*dt,16)}")

    def stats_fetch(self):
        e = self.e
        e(f"s_lshr_b32 s53, s{sXROW}, 1\ns_add_u32 s53, s53, {WS_STATS}\nv_and_b32 v{vTMP+4}, 31, v{vL}\nv_lshlrev_b32 v{vTMP+4}, 4, v{vTMP+4}")
        e(f"buffer_load_dwordx4 {vr(TMP,4)}, v{vTMP+4}, {srd(sWS)}, s53 offen sc1", "stl")
    def stats_use(self, ty):
        e = self.e
        e.wait(vm="stl")
        again, ok = e.label("sta"), e.label("sto")
        e(f"s_mov_b32 s{sPOLL}, 0")
        e(f"{again}:")
        e(f"v_cmp_ne_u32 vcc, s{sT}, v{TMP+1}\nv_cmp_ne_u32 s[54:55], s{sT}, v{TMP+3}\ns_or_b64 vcc, vcc, s[54:55]\ns_cbranch_vccz {ok}")
        e(f"s_add_u32 s{sPOLL}, s{sPOLL}, 1\ns_cmp_gt_u32 s{sPOLL}, 20000\ns_cbranch_scc1 {ok}")
        e.l.append(f"    buffer_load_dwordx4 {vr(TMP,4)}, v{vTMP+4}, {srd(sWS)}, s53 offen sc1\n    s_waitcnt vmcnt(0)".split("\n")[0])
        e.l.append("    s_waitcnt vmcnt(0)")
        e(f"s_branch {again}\n{ok}:")
        m, r = TMP, TMP + 2
        e(f"v_mul_f32 v{vNC1}, {fhex(-LOG2E)}, v{r}\nv_rcp_f32 v{vRINV}, v{r}")
        e(f"v_cvt_pk_bf16_f32 v{vBX}, -v{m}, -v{m}\nv_and_b32 v{TMP+1}, 0xffff0000, v{vBX}\nv_sub_f32 v{TMP+1}, -v{m}, v{TMP+1}")
        e(f"v_mov_b32 v{vBX+2}, 0\nv_mov_b32 v{vBX+3}, 0\nv_cvt_pk_bf16_f32 v{vBX+1}, v{TMP+1}, v{vBX+2}")
        for dt in range(2):
            e(f"v_mov_b32 v{vAX[dt]+2}, 0\nv_mov_b32 v{vAX[dt]+3}, 0")
        if ty == 1:
            e(f"s_lshl_b32 s50, s{sW}, 7\nv_lshrrev_b32 v{vTMP+4}, 2, v{vTMP+4}\nv_add_u32 v{vTMP+4}, s50, v{vTMP+4}")
            e(f"ds_write_b32 v{vTMP+4}, v{r} offset:{L_RB}", "rbw")

    def silu(self, acc, ntile, hb, pk, tagp):
        T = self.T; th = []
        for f in range(2 * ntile):
            P = TMP + 8 + 4 * (f & 1)
            for q in range(2):
                a = acc + 8*f + 4*q
                u = TMP + 4 * (q & 1)
                if pk: th += [T(f"v_pk_mul_f32 {vr(u+k,2)}, {vr(a+k,2)}, {vr(vTMP,2)}") for k in (0, 2)]
                else: th += [T(f"v_mul_f32 v{u+k}, v{a+k}, v{vNC1}") for k in range(4)]
                th += [T(f"v_exp_f32 v{u+k}, v{u+k}") for k in range(4)]
                if pk: th += [T(f"v_pk_fma_f32 {vr(u+k,2)}, {vr(u+k,2)}, {vr(vTMP+2,2)}, {vr(vTMP+2,2)}") for k in (0, 2)]
                else: th += [T(f"v_fma_f32 v{u+k}, v{u+k}, v{vRINV}, v{vRINV}") for k in range(4)]
                th += [T(f"v_rcp_f32 v{u+k}, v{u+k}") for k in range(4)]
                if pk: th += [T(f"v_pk_mul_f32 {vr(u+k,2)}, {vr(u+k,2)}, {vr(a+k,2)}") for k in (0, 2)]
                else: th += [T(f"v_mul_f32 v{u+k}, v{u+k}, v{a+k}") for k in range(4)]
                th += [T(f"v_cvt_pk_bf16_f32 v{P+2*q+k}, v{u+2*k}, v{u+2*k+1}") for k in range(2)]
            th.append(T(f"buffer_store_dwordx4 {vr(P,4)}, v{vL16}, {srd(sWS)}, s{hb} offen offset:{f*1024} sc1", tagp))
        return th

    def gemm_pass(self, ps, ty, streams, at_boundary, pinned, jobs):
        e = self.e; LA = 2
        pinned = pinned or {}
        nt = 2 if (ps == 1 or ty == 0) else 1
        dft = (ps == 0 and ty == 1)
        nm = 3 if dft else 2
        acc = ACCA if ps == 0 else ACC2
        def slot(t):
            if ps == 1: return t * 8192
            return (t % 6) * 8192 if ty == 0 else S1B_OFF[t % 6]
        def reads(n):
            t, ks = n >> 2, n & 3
            fb = aFB + 12 * (n % 3); r = []
            T = lambda x: self.T(x, f"r{n}")
            if ps == 0 and ks < 2:
                for k2 in (2*ks, 2*ks + 1):
                    if t % 3 < 2: r.append(T(f"ds_read_b128 {ar(aX+16*t+4*k2,4)}, v{vXR[k2]} offset:{(t%3)*4096}"))
                    else: r.append(T(f"ds_read_b128 {ar(aX+16*t+4*k2,4)}, v{vXR2[k2]}"))
            if nt == 2:
                ad = vT1 if ps == 0 else vT2
                for dt in range(2):
                    for eh in range(2):
                        r.append(T(f"ds_read_b64_tr_b16 {ar(fb+4*dt+2*eh,2)}, v{ad[dt]} offset:{slot(t)+ks*2048+eh*512}"))
            else:
                for eh in range(2):
                    r.append(T(f"ds_read_b64_tr_b16 {vr(ACCA+16+4*(n%3)+2*eh,2)}, v{vTS} offset:{slot(t)+ks*1024+eh*256}"))
                if not t & 1:
                    for cs in range(2):
                        r.append(T(f"ds_read_b128 {ar(aFB+8*ks+4*cs,4)}, v{vFD} offset:{(t>>1)*8192+ks*2048+cs*1024}"))
            if ks == 2:
                ad = (vC1 if nt == 2 else [vC1[0]]) if ps == 0 else vC2
                rd, mm = self.csum_chunk(f"{ps}_{t}", ad, slot(t), nt, t == 0, single=(nt == 1))
                r += rd; self.pend_cs = mm
            return r
        reg = f"p{ps}"
        self.dbegin(reg, list(range(64, 92, 2)) if ps == 0 else [64, 66, 68, 70, 72, 74, 86, 88, 90])
        def boundary(t):
            sel = self.o.get('dsel', (0, 1, 2))
            if t in self.o.get('dt', range(8)) and 0 in sel: self.dst(reg)
            e.wait(vm=[f"x{t}", f"s1_{t}"] if ps == 0 else f"s2_{t}")
            if t in self.o.get('dt', range(8)) and 1 in sel: self.dst(reg)
            run(at_boundary.get(t, []))
            e("s_barrier")
            if t in self.o.get('dt', range(8)) and 2 in sel: self.dst(reg)
        gaps = {}
        for n in range(32):
            m = n + LA
            nrd = 0 if m >= 32 else ((2 if (dft and (m >> 2) & 1) else 4) + (2 if (ps == 0 and (m & 3) < 2) else 0) + (2*nt if (m & 3) == 2 else 0))
            for g in range(nm): gaps[(n, g)] = max(0.5, 6.0 - nrd / nm)
        fills = {k: [] for k in gaps}; mem = {}
        o_early = lambda js: min(len(js), 3)
        for th, n0, n1 in streams:
            keys = [(n, g) for n in range(n0, n1 + 1) for g in range(nm)]
            for k, grp in zip(keys, spread(th, [gaps[k] for k in keys])): fills[k] += grp
        order = [(n, g) for n in range(32) for g in range(nm)]
        early = []
        for t, js in jobs.items():
            if t == 0: early = js[:o_early(js)]; js = js[len(early):]; k0 = 0
            else: k0 = order.index((4*t - LA, 0))
            step = max(1, (4*nm - 1) // max(1, len(js))) if t else 1
            for i, th in enumerate(js): fills[order[min(k0 + i*step, len(order) - 1)]].insert(0, th) if False else mem.setdefault(order[min(k0 + i*step, len(order) - 1)], []).append(th)
        cs_q = {}
        for n in range(-LA, 32):
            m = n + LA
            if n < 0:
                if m % 4 == 0: boundary(m >> 2)
                run(reads(m))
                if n == -1: run(early)
                continue
            e.wait(lg=f"r{n}")
            fb = aFB + 12 * (n % 3)
            mf = []
            for dt in range(nt):
                c = "0" if n == 0 else vr(acc+16*dt, 16)
                A = vr(ACCA+16+4*(n%3), 4) if dft else ar(fb+4*dt, 4)
                mf.append(f"v_mfma_f32_32x32x16_bf16 {vr(acc+16*dt,16)}, {A}, {ar(aX+4*n,4)}, {c}")
            if dft:
                par = (n >> 2) & 1
                for cs in range(2):
                    d = ACCD + 32*par + 16*cs
                    c = "0" if n in (0, 4) else vr(d, 16)
                    mf.append(f"v_mfma_f32_32x32x16_bf16 {vr(d,16)}, {ar(aX+4*n,4)}, {ar(aFB+8*(n&3)+4*cs,4)}, {c}")
            rds = []
            for g in range(nm):
                e(mf[g])
                if g == 0 and m < 32:
                    if m % 4 == 0: boundary(m >> 2)
                    rds = reads(m)
                    if (m & 3) == 2: cs_q[m] = self.pend_cs
                k = -(-len(rds) // (nm - g))
                run(rds[:k]); rds = rds[k:]
                run(mem.get((n, g), []))
                run(fills[(n, g)])
            if n in cs_q: run(cs_q[n])
            run(pinned.get(n, []))
        self.dend(reg)

    def z1_prep(self):
        T = self.T; th = []
        R = TMP + 16
        t = [TMP + 32 + i for i in range(4)]
        th.append(self.W(lg="rbw"))
        th += self.TL(f"s_lshl_b32 s60, s{sW}, 7\nv_lshrrev_b32 v{t[0]}, 5, v{vL}\nv_lshlrev_b32 v{t[0]}, 4, v{t[0]}\nv_add_u32 v{t[0]}, s60, v{t[0]}")
        th += [T(f"ds_read_b128 {vr(R+4*j,4)}, v{t[0]} offset:{L_RB + j*32}", "rbr") for j in range(4)]
        th += self.TL(f"v_and_b32 v{t[1]}, 31, v{vL}\nv_or_b32 v{t[1]}, s{sBLK}, v{t[1]}\nv_mov_b32 v{t[2]}, {fhex(2.0**-19)}\nv_mov_b32 v{t[3]}, {fhex(2.0**-20)}")
        th.append(T(f"v_cmp_eq_u32 vcc, 0, v{t[1]}\nv_cndmask_b32 v{t[2]}, v{t[2]}, v{t[3]}, vcc"))
        th += [T(f"v_fmac_f32 v{ACCD+i}, v{vSIG}, v{ACCD+32+i}") for i in range(32)]
        th.append(self.W(lg="rbr"))
        th += [T(f"v_mul_f32 v{R+i}, v{R+i}, v{t[2]}") for i in range(16)]
        th += [T(f"v_mul_f32 v{ACCD+i}, v{ACCD+i}, v{R+(i&15)}") for i in range(32)]
        th += [T(f"v_cvt_pk_bf16_f32 v{ACCD+32+i}, v{ACCD+2*i}, v{ACCD+2*i+1}") for i in range(16)]
        return th
    def z1_mfma(self):
        PT = ACCD + 32; Zr, Zi = ACCD, ACCD + 16
        C = lambda j: ar(aG1+4*j, 4); S = lambda j: ar(aG1+8+4*j, 4); N = lambda j: ar(aG1+16+4*j, 4)
        Tr = lambda j: vr(PT+4*j, 4); Ti = lambda j: vr(PT+8+4*j, 4)
        seq = [(Zr, C(0), Tr(0)), (Zi, N(0), Tr(0)), (Zr, C(1), Tr(1)), (Zi, N(1), Tr(1)), (Zr, S(0), Ti(0)), (Zi, C(0), Ti(0)), (Zr, S(1), Ti(1)), (Zi, C(1), Ti(1))]
        return [self.T(f"v_mfma_f32_32x32x16_bf16 {vr(d,16)}, {a}, {b}, {'0' if i < 2 else vr(d,16)}") for i, (d, a, b) in enumerate(seq)]
    def z1_gather_write(self):
        T = self.T; th = []
        Zr, Zi, PT = ACCD, ACCD + 16, ACCD + 32
        t0, t1 = TMP + 32, TMP + 33
        th += self.TL(f"v_lshrrev_b32 v{t0}, 5, v{vL}\nv_and_b32 v{t1}, 31, v{vL}\nv_lshlrev_b32 v{t1}, 4, v{t1}\nv_lshl_add_u32 v{t0}, v{t0}, 11, v{t1}")
        th.append(T(f"s_lshl_b32 s60, s{sW}, 2\ns_add_u32 s60, s60, {L_FD}\nv_add_u32 v{t0}, s60, v{t0}"))
        for i in range(16):
            th.append(T(f"v_cvt_pk_bf16_f32 v{PT+i}, v{Zr+i}, v{Zi+i}"))
            th.append(T(f"ds_write_b32 v{t0}, v{PT+i} offset:{(8*(i>>2) + (i&3))*512}", "z1w"))
        return th
    def z1_gather_read(self):
        e = self.e
        e(f"v_lshlrev_b32 v{TMP+32}, 4, v0")
        for k in range(4):
            e(f"ds_read_b128 {vr(ACCD+4*k,4)}, v{TMP+32} offset:{L_FD + k*4096}", "z1r")
    def z1_store(self):
        e = self.e
        t0, t1 = TMP + 32, TMP + 33
        e(f"v_lshrrev_b32 v{t0}, 5, v0\nv_and_b32 v{t1}, 31, v0\nv_lshlrev_b32 v{t1}, 4, v{t1}\nv_lshl_add_u32 v{t0}, v{t0}, 13, v{t1}")
        e(f"s_lshl_b32 s50, s{sBLK}, 18\ns_lshl_b32 s51, s{sRB}, 9\ns_add_u32 s50, s50, s51\ns_add_u32 s50, s50, {WS_Z1}")
        e.wait(lg="z1r")
        for k in range(4):
            e(f"buffer_store_dwordx4 {vr(ACCD+4*k,4)}, v{t0}, {srd(sWS)}, s50 offen sc1", "z1s")
            if k < 3: e(f"s_add_u32 s50, s50, 65536")
    def flag_store(self, soff, tag):
        e = self.e
        e(f"v_mov_b32 v{vTMP+4}, 0\nv_mov_b32 v{vTMP+5}, s{sT}\ns_mov_b64 exec, 1")
        e(f"buffer_store_dword v{vTMP+5}, v{vTMP+4}, {srd(sWS)}, s{soff} offen sc1", tag)
        e(f"s_mov_b64 exec, -1")
    def z1_flag(self):
        e = self.e
        e.wait(vm="z1s")
        e(f"s_lshl_b32 s50, s{sBLK}, 10\ns_lshl_b32 s51, s{sW}, 8\ns_add_u32 s50, s50, s51\ns_lshl_b32 s51, s{sRB}, 4\ns_add_u32 s50, s50, s51\ns_add_u32 s50, s50, {WS_Z1F}")
        self.flag_store(50, "z1f")

    def g2_setup(self):
        T = self.T; t0, t1 = TMP + 12, TMP + 13
        th = self.TL(f"""v_add_u32 v{t0}, s{sROT}, v{vL}
v_subrev_u32 v{t1}, 28, v{t0}
v_min_u32 v{t0}, v{t0}, v{t1}
v_subrev_u32 v{t1}, 28, v{t0}
v_min_u32 v{t0}, v{t0}, v{t1}
s_lshl_b32 s50, s{sW}, 4
s_mul_i32 s51, s{sW}, 12
s_add_u32 s51, s51, 48
v_mov_b32 v{t1}, s50
v_cmp_le_u32 vcc, 16, v{t0}
v_mov_b32 v{t1+1}, s51
v_cndmask_b32 v{t1}, v{t1}, v{t1+1}, vcc
v_add_lshl_u32 v{t0}, v{t0}, v{t1}, 10""")
        th += [T(f"v_readlane_b32 s{sKS+n}, v{t0}, {n}") for n in range(28)]
        th += self.TL(f"s_lshl_b32 s{sQB}, s{sQ}, 7\ns_lshl_b32 s56, s{sW}, 14\ns_mul_i32 s57, s{sW}, 12288")
        return th
    def w2_addr_setup(self):
        t0, t1 = vTMP + 4, vTMP + 5
        return self.TL(f"""v_lshrrev_b32 v{t0}, 3, v{vL}
v_and_b32 v{t1}, 7, v{vL}
v_lshlrev_b32 v{t1}, 4, v{t1}
v_lshl_add_u32 v{t0}, v{t0}, 10, v{t1}
v_and_b32 v{t1}, 16, v{vL}
v_lshlrev_b32 v{t1}, 2, v{t1}
v_xor_b32 v{vXD[0]}, v{t0}, v{t1}
v_add_u32 v{vXD[1]}, {8192-1024}, v{vXD[0]}""")
    def w2_lds(self, n):
        if n < 8: return (16384, L_S2 + n * 2048)
        if n < 12: return (8192, L_XS + (n - 8) * 2048)
        g = n - 12
        if g < 4: return (8192, L_XS + g * 2048)
        if g < 10: return (12288, L_S1 + (g - 4) * 2048)
        return (12288, L_S1 + (g - 10) * 2048)
    def dma_w2(self, n):
        mul, base = self.w2_lds(n)
        sb = {16384: 56, 8192: sXSW, 12288: 57}[mul]
        return [self.T(f"s_lshl4_add_u32 s55, s{sKS+n}, s{sQB}\ns_add_u32 m0, s{sb}, {base}\nbuffer_load_dwordx4 v{vXD[0]}, {srd(sW2)}, s55 offen lds", f"w2_{n}"),
                self.T(f"buffer_load_dwordx4 v{vXD[1]}, {srd(sW2)}, s55 offen offset:1024 lds", f"w2_{n}")]
    vU = {8192: [9, 10], 12288: [11, 12], 16384: [13, 14]}
    def w2_tr_setup(self):
        t0, t1, t3 = vTMP + 3, vTMP + 4, vTMP + 5
        th = self.TL(f"""v_lshrrev_b32 v{t1}, 5, v{vL}
v_bfe_u32 v{t0}, v{vL}, 2, 2
v_lshl_add_u32 v{t0}, v{t1}, 2, v{t0}
v_and_b32 v{t3}, 3, v{vL}
v_lshlrev_b32 v{t3}, 3, v{t3}
v_and_b32 v{t1}, 16, v{vL}
v_lshl_add_u32 v{t3}, v{t1}, 1, v{t3}
v_lshl_add_u32 v{t3}, v{t0}, 7, v{t3}
v_and_b32 v{t1}, 8, v{vL}
v_lshl_add_u32 v{t3}, v{t1}, 3, v{t3}""")
        for mul, sb, base in ((8192, sXSW, L_XS), (12288, 57, L_S1), (16384, 56, L_S2)):
            a = self.vU[mul]
            th += self.TL(f"s_add_u32 s55, s{sb}, {base}\nv_add_u32 v{a[0]}, s55, v{t3}\nv_xor_b32 v{a[1]}, 64, v{a[0]}")
        return th
    def w2_tr(self, n, dst, tag):
        mul, base = self.w2_lds(n)
        off = base - {8192: L_XS, 12288: L_S1, 16384: L_S2}[mul]
        return [self.T(f"ds_read_b64_tr_b16 {ar(dst+4*dt+2*eh,2)}, v{self.vU[mul][dt]} offset:{off+eh*1024}", tag) for dt in range(2) for eh in range(2)]

    def w_loads(self):
        T = self.T; th = []
        t0, t1 = vTMP + 2, vTMP + 3
        th.append(T(f"""v_and_b32 v{t0}, 31, v{vL}
s_lshl_b32 s59, s{sCG}, 5
v_add_u32 v{t0}, s59, v{t0}
v_mov_b32 v{t1}, 0x100
v_cmp_eq_u32 vcc, 0, v{t0}
v_cndmask_b32 v{t0}, v{t0}, v{t1}, vcc
v_lshrrev_b32 v{t1}, 5, v{vL}
v_mul_u32_u24 v{t1}, {128*514}, v{t1}
v_lshl_add_u32 v{vTMP+4}, v{t0}, 1, v{t1}
s_lshl_b32 s58, s{sW}, 9
s_add_u32 s58, s58, s{sK1}
s_mul_i32 s58, s58, 514"""))
        for i in range(16): th.append(T(f"v_mov_b32 v{vW+i}, 0"))
        nt = " nt" if self.o['ntw'] else ""
        for z in range(8):
            th.append(T(f"s_add_u32 s59, s58, {16448*(8*(z>>2)+(z&3))}\nbuffer_load_short_d16_hi v{vW+2*z}, v{vTMP+4}, {srd(sWR)}, s59 offen{nt}", "wl"))
            th.append(T(f"buffer_load_short_d16_hi v{vW+2*z+1}, v{vTMP+4}, {srd(sWI)}, s59 offen{nt}", "wl"))
        return th

    def f1(self, ty):
        e = self.e; o = self.o
        run(self.dma_s1(ty, 0)); run(self.dma_s1(ty, 1))
        self.addr_setup()
        if ty == 0: e(f"v_add_u32 v{vC1[0]}, s50, v{vT1[0]}\nv_add_u32 v{vC1[1]}, s50, v{vT1[1]}")
        else: e(f"s_lshl_b32 s50, s{sW}, 10\nv_add_u32 v{vC1[0]}, s50, v{vTS}")
        a23 = self.gen_a2a3()
        run(self.gen_fd() if ty == 1 else a23)
        self.stamp(1)
        e.wait(vm="stat")
        run(self.dma_x(1))
        self.stats()
        self.stamp(2)
        rest = self.g2_setup() + (self.pf_setup() if o['pfw2'] else [])
        k = self.n_a2 if o['a2b'] else 0
        if ty == 1: rest = self.gen_g1() + rest + a23[:k]
        run(merge(rest, self.w_loads()))
        self.stamp(3)
        jobs = {}
        for t in range(6): jobs[t] = self.dma_x(t + 2) + self.dma_s1(ty, t + 2)
        for t, lst in o['s2at'].items():
            for u in lst: jobs.setdefault(t, []).extend(self.dma_s2(u))
        if o['pfw2']:
            for t in range(8): jobs.setdefault(t, []).extend(self.pf_w2(t))
        streams = []
        if ty == 1: streams.append((a23[k:], 0, 30))
        self.gemm_pass(0, ty, streams, {}, {24: [self.stats_fetch]}, jobs)
        self.stamp(4)
        nt1 = 2 if ty == 0 else 1
        self.csum_publish(nt1, 0)
        self.xs("p1 cspub")
        self.stats_use(ty)
        self.xs("p1 stats")
        e("s_barrier")
        self.xs("p1 bar")
        self.csum_fetch(nt1, 0)
        run(self.dma_s2(6)); run(self.dma_s2(7))
        self.xs("p1 s2dma")
        run(self.w2_addr_setup())
        self.csum_finish(nt1, ACCA)
        self.stamp(5)
        dm = []
        for g in range(o['w2p2']): dm += self.dma_w2(12 + g)
        streams = [(dm, o['dm'][ty][0], o['dm'][ty][1])]
        pinned = {}; ab = {}
        if ty == 0:
            streams.append((self.silu(ACCA, 2, sHB1, False, "h1"), 1, 31))
        else:
            streams.append((self.z1_prep(), 0, 4))
            for i, m in enumerate(self.z1_mfma()): pinned.setdefault(5 + i // 4, []).append(m)
            streams.append((self.z1_gather_write(), 8, 9))
            ab[3] = [self.W(lg="z1w")]
            pinned[10] = [self.z1_gather_read]
            pinned[11] = [self.z1_store]
            pinned[o['z1f']] = [self.z1_flag]
            streams.append((self.silu(ACCA, 1, sHB1, False, "h1"), 12, 31))
        self.gemm_pass(1, ty, streams, ab, pinned, {})

    def poll_issue(self, addr_v, soff, dst, tag):
        self.e(f"buffer_load_dword v{dst}, v{addr_v}, {srd(sWS)}, s{soff} offen sc1", tag)
    def poll_check(self, addr_v, soff, dst, tag):
        e = self.e
        e.wait(vm=tag)
        again, ok = e.label("pa"), e.label("po")
        e(f"s_mov_b32 s{sPOLL}, 0\n{again}:")
        e(f"v_cmp_ne_u32 vcc, s{sT}, v{dst}")
        e(f"s_cbranch_vccz {ok}\ns_add_u32 s{sPOLL}, s{sPOLL}, 1\ns_cmp_gt_u32 s{sPOLL}, 20000\ns_cbranch_scc1 {ok}")
        e.l.append(f"    buffer_load_dword v{dst}, v{addr_v}, {srd(sWS)}, s{soff} offen sc1"); e.l.append("    s_waitcnt vmcnt(0)")
        e(f"s_branch {again}\n{ok}:")

    IFD, S4R, S4I = 128, 192, 208
    def gen_s4(self):
        T = self.T; th = []
        n1, inc, ang, sg = 32, 33, 34, 35
        regs = [(36, 37), (38, 39)]
        th += self.TL(f"""v_and_b32 v{n1}, 1, v{vL}
s_mov_b32 s60, 0x80008000
v_mul_lo_u32 v{sg}, v{n1}, s60
v_and_b32 v{n1}, 31, v{vL}
v_cvt_f32_u32 v{n1}, v{n1}
v_mul_f32 v{inc}, {fhex(1/32)}, v{n1}
v_lshrrev_b32 v{n1}, 5, v{vL}
v_lshlrev_b32 v{n1}, 2, v{n1}
v_cvt_f32_u32 v{n1}, v{n1}
v_mul_f32 v{ang}, v{n1}, v{inc}""")
        def use(g, cs):
            c, s_ = cs[0]
            return [T(f"v_cvt_pk_bf16_f32 v{self.S4R+g}, v{c}, -v{s_}"), T(f"v_cvt_pk_bf16_f32 v{self.S4I+g}, v{s_}, v{c}"),
                    T(f"v_xor_b32 v{self.S4R+8+g}, v{self.S4R+g}, v{sg}"), T(f"v_xor_b32 v{self.S4I+8+g}, v{self.S4I+g}, v{sg}")]
        th += self.trig(8, ang, inc, lambda i: 1 if (i & 3) < 3 else 5, regs, use)
        return th
    def gen_ifd(self, dt):
        T = self.T; th = []
        d, inc, ang, t0, a0 = 40, 41, 42, 43, 44
        regs = [(45, 46), (47, 56)]
        th.append(T(f"""v_and_b32 v{d}, 31, v{vL}
s_lshl_b32 s60, s{sQ}, 6
s_add_u32 s60, s60, {32*dt}
v_add_u32 v{d}, s60, v{d}
v_lshrrev_b32 v{t0}, 5, v{vL}
v_lshlrev_b32 v{t0}, 1, v{t0}
s_lshl_b32 s60, s{sW}, 6
v_add_u32 v{t0}, s60, v{t0}
v_cmp_eq_u32 vcc, 0, v{t0}
v_mul_u32_u24 v{t0}, v{t0}, v{d}
v_and_b32 v{t0}, 511, v{t0}
v_cvt_f32_u32 v{ang}, v{t0}
v_mul_f32 v{ang}, {fhex(1/512)}, v{ang}
v_cvt_f32_u32 v{inc}, v{d}
v_mul_f32 v{a0}, 0.5, v{inc}
v_fract_f32 v{a0}, v{a0}
v_cndmask_b32 v{a0}, v{ang}, v{a0}, vcc
v_mul_f32 v{inc}, {fhex(1/512)}, v{inc}"""))
        use = lambda i, cs: [T(f"v_cvt_pk_bf16_f32 v{self.IFD + ((i>>2)*2+dt)*4 + (i&3)}, v{cs[0][0]}, -v{cs[0][1]}")]
        th += self.trig(32, ang, inc, lambda i: 3 if (i & 1) else 1, regs, use, first=a0)
        return th

    def post(self):
        e = self.e; T = self.T; o = self.o
        self.stamp(6)
        self.csum_publish(2, 1)
        vPA, vPD = 6, 7
        e(f"s_lshr_b32 s50, s{sK1}, 1\ns_and_b32 s50, s50, 3\ns_lshl_b32 s50, s50, 8\ns_lshl_b32 s51, s{sCG}, 10\ns_add_u32 s50, s50, s51\ns_add_u32 s58, s50, {WS_Z1F}")
        e(f"v_and_b32 v{vPA}, 15, v{vL}\nv_lshlrev_b32 v{vPA}, 4, v{vPA}")
        e("s_barrier")
        self.xs("p2 bar")
        self.csum_fetch(2, 1)
        run(self.w2_tr_setup())
        self.csum_finish(2, ACC2)
        self.xs("p2 csfin")
        e(f"v_mov_b32 v{vTMP}, v{vNC1}\nv_mov_b32 v{vTMP+1}, v{vNC1}\nv_mov_b32 v{vTMP+2}, v{vRINV}\nv_mov_b32 v{vTMP+3}, v{vRINV}")
        side = []
        for g in range(o['w2p2'], o['gep']): side += self.dma_w2(12 + g)
        sil = merge(self.silu(ACC2, 2, sHB2, True, "h2"), side)
        for i in range(4):
            run(sil[i*len(sil)//4:(i+1)*len(sil)//4]); self.xs(f"sil{i}")
        self.stamp(7)
        self.dbegin('post', [64, 66, 68, 70, 72, 74] if False else [98, 100])
        self.poll_issue(vPA, 58, vPD, "pz1")
        q1 = []
        for g in range(o['gep'], 10): q1 += self.dma_w2(12 + g)
        for n in range(8): q1 += self.dma_w2(n)
        run(q1[:6]); q1 = q1[6:]
        e(f"s_lshl_b32 s50, s{sRB}, 1\ns_lshr_b32 s51, s{sW}, 1\ns_add_u32 s50, s50, s51\ns_lshl_b32 s50, s50, 2\ns_lshr_b32 s51, s{sBLK}, 1\ns_add_u32 s50, s50, s51\ns_lshl_b32 s50, s50, 3")
        e(f"s_lshl_b32 s51, s{sTY}, 2\ns_add_u32 s50, s50, s51\ns_and_b32 s51, s{sBLK}, 1\ns_lshl_b32 s51, s51, 1\ns_add_u32 s50, s50, s51\ns_and_b32 s51, s{sW}, 1\ns_add_u32 s50, s50, s51")
        e(f"s_lshl_b32 s50, s50, 4\ns_add_u32 s50, s50, {WS_HF}")
        self.xs("pre h2 wait")
        e.wait(vm="h2")
        self.xs("h2 done")
        self.flag_store(50, "hf")
        self.poll_check(vPA, 58, vPD, "pz1")
        self.stamp(8)
        e(f"s_lshl_b32 s50, s{sCG}, 5\ns_add_u32 s50, s50, s{sK1}\ns_lshl_b32 s50, s50, 13\ns_lshl_b32 s51, s{sW}, 11\ns_add_u32 s50, s50, s51\ns_add_u32 s50, s50, {WS_Z1}\ns_add_u32 m0, s51, {L_ZB}")
        for i in range(2): e(f"buffer_load_dwordx4 v{vL16}, {srd(sWS)}, s50 offen offset:{i*1024} sc1 lds", "zb")
        side = []
        for g in range(o['gep']):
            side.append(self.W(vm=f"w2_{12+g}"))
            side += self.w2_tr(12 + g, aX + 8*g, f"g{g}")
            if g >= 2: side.append(self.W(lg=f"g{g-2}"))
        run(merge(side, q1[:6])); q1 = q1[6:]
        e.wait(vm="zb"); self.xs("zb landed"); e("s_barrier"); self.xs("bar1")
        ZF = 192
        for t in range(8): e(f"ds_read_b128 {ar(ZF+4*t,4)}, v{vL16} offset:{L_ZB + t*1024}", f"zf{t}")
        D = 64
        for t in range(8):
            e.wait(lg=f"zf{t}")
            e(f"v_mfma_f32_32x32x16_bf16 {vr(D,16)}, {ar(aA2+4*t,4)}, {ar(ZF+4*t,4)}, {'0' if t == 0 else vr(D,16)}")
            if t & 1: run(q1[:1]); q1 = q1[1:]
        for g in range(o['gep'], 10):
            e.wait(vm=f"w2_{12+g}"); run(self.w2_tr(12 + g, aX + 8*g, f"g{g}"))
        self.xs("st2 issued")
        P = 96
        ops = []
        for z in range(8):
            xr, xi, wr_, wi_ = D + 2*z, D + 2*z + 1, vW + 2*z, vW + 2*z + 1
            u = 80 + 2*z
            ops.append([f"v_mul_f32 v{u}, v{xr}, v{wr_}", f"v_mul_f32 v{u+1}, v{xr}, v{wi_}", f"v_fma_f32 v{u}, -v{xi}, v{wi_}, v{u}", f"v_fmac_f32 v{u+1}, v{xi}, v{wr_}", f"v_cvt_pk_bf16_f32 v{P+z}, v{u}, v{u+1}"])
        for z0 in (0, 2, 4, 6):
            for k in range(5): e(ops[z0][k]); e(ops[z0+1][k])
            run(q1[:1]); q1 = q1[1:]
        e(f"s_lshl_b32 s50, s{sW}, 11\nv_add_u32 v{vTMP}, s50, v{vL16}")
        for jj in range(2): e(f"ds_write_b128 v{vTMP}, {vr(P+4*jj,4)} offset:{L_ZX + jj*1024}", "zxw")
        run(q1)
        e.wait(lg="zxw"); self.xs("zx written"); e("s_barrier"); self.xs("bar2")
        q2 = []
        for n in range(8, 12): q2 += self.dma_w2(n)
        for g in range(10, 16): q2 += self.dma_w2(12 + g)
        for t in range(8): e(f"ds_read_b128 {ar(ZF+4*t,4)}, v{vL16} offset:{L_ZX + t*1024}", f"zg{t}")
        for t in range(8):
            e.wait(lg=f"zg{t}")
            e(f"v_mfma_f32_32x32x16_bf16 {vr(D,16)}, {ar(aA3+4*t,4)}, {ar(ZF+4*t,4)}, {'0' if t == 0 else vr(D,16)}")
            if t & 1: run(q2[:1]); q2 = q2[1:]
        e(f"""v_lshrrev_b32 v{vTMP+1}, 5, v{vL}
v_bfe_u32 v{vTMP+2}, v{vL}, 3, 1
v_lshl_add_u32 v{vTMP+1}, v{vTMP+1}, 1, v{vTMP+2}
v_bfe_u32 v{vTMP+2}, v{vL}, 4, 1
v_lshlrev_b32 v{vTMP+2}, 10, v{vTMP+2}
v_lshl_add_u32 v{vTMP+1}, v{vTMP+1}, 16, v{vTMP+2}
v_and_b32 v{vTMP+2}, 7, v{vL}
v_lshl_add_u32 v{vTMP+1}, v{vTMP+2}, 4, v{vTMP+1}
s_lshl_b32 s51, s{sW}, 19
s_lshl_b32 s52, s{sK1}, 11
s_add_u32 s51, s51, s52
s_lshl_b32 s52, s{sCG}, 7
s_add_u32 s51, s51, s52
s_add_u32 s51, s51, {WS_Z3}
s_add_u32 s52, s51, {4*65536}
s_add_u32 m0, s50, {L_ZB}""")
        for k in range(8):
            e(f"v_cvt_pk_bf16_f32 v{P+k}, v{D+2*k}, v{D+2*k+1}")
            e(f"ds_write_addtid_b32 v{P+k} offset:{k*256}", "zww")
        e.wait(lg="zww")
        self.xs("st3 packed")
        for k in range(2): e(f"ds_read_b128 {vr(D+4*k,4)}, v{vTMP} offset:{L_ZB + k*1024}", "zwr")
        e(f"s_lshl_b32 s50, s{sP}, 2\ns_add_u32 s50, s50, s{sW}\ns_lshl_b32 s50, s50, 7\ns_add_u32 s58, s50, {WS_HF}")
        e(f"v_and_b32 v{vPA}, 7, v{vL}\nv_lshlrev_b32 v{vPA}, 4, v{vPA}")
        e.wait(lg="zwr")
        for k in range(2): e(f"buffer_store_dwordx4 {vr(D+4*k,4)}, v{vTMP+1}, {srd(sWS)}, s{51+k} offen sc1", "z3s")
        self.poll_issue(vPA, 58, vPD, "phf")
        self.stamp(9)
        run(merge(self.gen_s4(), q2[:8])); q2 = q2[8:]
        self.g2_addr()
        self.xs("pre hpoll")
        self.poll_check(vPA, 58, vPD, "phf")
        e(f"s_lshl_b32 s50, s{sW}, 3\ns_add_u32 s50, s50, s{sCG}\ns_lshl_b32 s50, s50, 5\ns_add_u32 s50, s50, s{sK1}\ns_lshl_b32 s50, s50, 4\ns_add_u32 s50, s50, {WS_Z3F}")
        self.flag_store(50, "z3f")
        self.stamp(10)
        self.g2(q2)

    vH, vO, vRD, vZD, vZ, XR = [19, 20], 4, 5, 8, [15, 16, 17, 18], 48
    def g2_addr(self):
        e = self.e
        vH, vO, vZD, vZ = self.vH, self.vO, self.vZD, self.vZ
        e(f"s_mul_i32 s50, s{sP}, {2*112*1024}\ns_add_u32 s50, s50, {WS_H}\nv_add_u32 v{vH[0]}, s50, v{vL16}\nv_add_u32 v{vH[1]}, {112*1024}, v{vH[0]}")
        e(f"""v_lshrrev_b32 v{vTMP}, 3, v{vL}
v_and_b32 v{vTMP+1}, 1, v{vTMP}
v_bfe_u32 v{vTMP+2}, v{vTMP}, 1, 1
v_lshrrev_b32 v{vTMP+3}, 2, v{vTMP}
v_lshl_add_u32 v{vTMP+1}, v{vTMP+3}, 1, v{vTMP+1}
v_lshl_add_u32 v{vTMP+3}, v{vTMP+2}, 2, v{vTMP+1}
v_and_b32 v{vTMP+4}, 7, v{vL}
v_lshlrev_b32 v{vO}, 4, v{vTMP+4}
v_lshl_add_u32 v{vO}, v{vTMP+3}, 16, v{vO}
v_lshlrev_b32 v5, 8, v{vTMP+1}
v_lshl_add_u32 v5, v{vTMP+2}, 7, v5
v_and_b32 v{vTMP+1}, 3, v{vL}
v_lshl_add_u32 v5, v{vTMP+1}, 5, v5
v_bfe_u32 v{vTMP+1}, v{vL}, 2, 1
v_mul_u32_u24 v{vTMP+1}, {RED_TS}, v{vTMP+1}
v_add_u32 v5, v5, v{vTMP+1}
s_lshl_b32 s50, s{sW}, 10
v_add_u32 v5, s50, v5
s_lshl_b32 s59, s{sW}, 19
s_lshl_b32 s50, s{sP}, 11
s_add_u32 s59, s59, s50
s_add_u32 s59, s59, s{sQB}""")
        e(f"""v_lshrrev_b32 v{vTMP}, 4, v{vL}
v_and_b32 v{vTMP+1}, 15, v{vL}
v_lshlrev_b32 v{vTMP+2}, 2, v{vTMP}
v_xor_b32 v{vTMP+1}, v{vTMP+1}, v{vTMP+2}
v_lshlrev_b32 v{vTMP+1}, 4, v{vTMP+1}
v_lshl_add_u32 v{vZD}, v{vTMP}, 10, v{vTMP+1}
v_lshrrev_b32 v{vTMP}, 5, v{vL}
v_bfe_u32 v{vTMP+1}, v{vL}, 2, 2
v_lshl_add_u32 v{vTMP}, v{vTMP}, 3, v{vTMP+1}
v_lshlrev_b32 v{vTMP}, 8, v{vTMP}
v_lshl_add_u32 v{vTMP}, v{vTMP+1}, 6, v{vTMP}
v_and_b32 v{vTMP+1}, 3, v{vL}
v_lshl_add_u32 v{vTMP}, v{vTMP+1}, 3, v{vTMP}
v_and_b32 v{vTMP+1}, 16, v{vL}
v_lshl_add_u32 v{vTMP}, v{vTMP+1}, 1, v{vTMP}
s_add_u32 s50, s56, {L_S2}
v_add_u32 v{vZ[0]}, s50, v{vTMP}
v_xor_b32 v{vZ[1]}, 64, v{vZ[0]}
v_xor_b32 v{vZ[2]}, 128, v{vZ[0]}
v_xor_b32 v{vZ[3]}, 192, v{vZ[0]}""")

    def g2(self, q2):
        e = self.e; T = self.T; o = self.o
        HB, HD = 192, o['hd']
        LB = 160
        ZF = 128
        ACC = 64
        vH, vO, vZD, vZ, XR = self.vH, self.vO, self.vZD, self.vZ, self.XR
        def hload(n):
            return [T(f"buffer_load_dwordx4 {ar(HB + 8*(n % HD) + 4*rt, 4)}, v{vH[rt]}, {srd(sWS)}, s{sKS+n} offen sc1", f"h{n}") for rt in range(2)]
        for n in range(HD): run(hload(n))
        late = list(q2)
        ifd = spread(self.gen_ifd(0) + self.gen_ifd(1), [1] * (o['t0'] - 1))
        e.wait(vm="w2_11")
        lreads = lambda n: self.w2_tr(n, LB + 8*(n % 3), f"l{n}")
        run(lreads(0)); run(lreads(1))
        e(f"s_lshr_b32 s50, s{sP}, 3\ns_lshl_b32 s50, s50, 3\ns_lshl_b32 s51, s{sW}, 1\ns_add_u32 s50, s50, s51\ns_lshl_b32 s50, s50, 9\ns_add_u32 s58, s50, {WS_Z3F}")
        e(f"s_lshl_b32 s50, s{sP}, 16\ns_lshl_b32 s51, s{sW}, 8\ns_add_u32 s50, s50, s51\ns_add_u32 s50, s50, {WS_Z3}\ns_add_u32 s51, s56, {L_S2}")
        z3d = [T(f"s_mov_b32 m0, s51\ns_add_u32 s51, s51, 1024\nbuffer_load_dwordx4 v{vZD}, {srd(sWS)}, s50 offen sc1 lds\ns_add_u32 s50, s50, 4096", "z3d") for n in range(16)]
        z3d += [T(f"buffer_load_dwordx4 {vr(XR+4*rt,4)}, v{vO}, {srd(sX)}, s59 offen offset:{rt*1024}", "xr") for rt in range(2)]
        DR, DI, PK = 224, 240, 32
        def zreads(mt):
            return [T(f"ds_read_b64_tr_b16 {ar(ZF + 16*(mt&1) + 4*ks + 2*eh, 2)}, v{vZ[mt]} offset:{ks*4096 + eh*1024}", f"z{mt}_{ks}") for ks in range(4) for eh in range(2)]
        def tail_a(mt):
            for ks in range(4):
                e.wait(lg=f"z{mt}_{ks}")
                fr = ar(ZF + 16*(mt&1) + 4*ks, 4)
                e(f"v_mfma_f32_32x32x16_bf16 {vr(DR,16)}, {fr}, {vr(self.S4R+4*ks,4)}, {'0' if ks == 0 else vr(DR,16)}")
                e(f"v_mfma_f32_32x32x16_bf16 {vr(DI,16)}, {fr}, {vr(self.S4I+4*ks,4)}, {'0' if ks == 0 else vr(DI,16)}")
        def tail_cvt(mt):
            return [T(f"v_cvt_pk_bf16_f32 v{PK + (jj*2+rt)*4 + q}, v{DR + 8*jj + 4*(q>>1) + 2*(q&1) + rt}, v{DI + 8*jj + 4*(q>>1) + 2*(q&1) + rt}") for jj in range(2) for rt in range(2) for q in range(4)]
        def tail_b(mt):
            for jj in range(2):
                for rt in range(2):
                    for dt in range(2):
                        A = ACC + (rt*2+dt)*16
                        e(f"v_mfma_f32_32x32x16_bf16 {vr(A,16)}, {vr(PK+(jj*2+rt)*4,4)}, {vr(self.IFD+((mt*2+jj)*2+dt)*4,4)}, {vr(A,16)}")
        ZP, ZC, T0 = o['zp'], o['zc'], o['t0']
        nz = T0 - 1 - ZC
        zgrp = spread(z3d, [1]*nz)
        for n in range(28):
            side = []
            if n + 2 < 12: side += lreads(n + 2)
            if n < 4: side += late[2*n:2*n+2]
            if 10 <= n < 16: side += [self.W(lg=f"g{n-2}"), self.W(vm=f"w2_{12+n}")] + self.w2_tr(12 + n, aX + 8*n, f"g{n}")
            if n < len(ifd): side = merge(ifd[n], side)
            if n == ZP: side.append(lambda: self.poll_issue(vL16, 58, 7, "pz3"))
            if ZC <= n < ZC + nz: side += zgrp[n - ZC]
            tb = n - T0
            mt = tb // 2 if 0 <= tb < 8 else None
            if mt is not None and tb % 2 == 0: side += tail_cvt(mt)
            if n == T0 - 1: side += [self.W(vm="z3d")] + zreads(0)
            if mt is not None and tb % 2 == 1 and mt < 3: side += zreads(mt + 1)
            if n in (1, 2, 4, 6, 8, 16, 20, 22, 24, 26): self.xs(f"g2 n{n}")
            if n == ZC:
                self.stamp(11); self.poll_check(vL16, 58, 7, "pz3"); self.stamp(12)
            if mt is not None and tb % 2 == 0: tail_a(mt)
            e.wait(vm=f"h{n}")
            if n < 12: e.wait(lg=f"l{n}")
            else: e.wait(lg=f"g{n-12}")
            grp = spread(side, [1, 1, 1, 1])
            if mt is not None and tb % 2 == 0: grp = [[]] + spread(side, [1, 1, 1])
            for i, (rt, dt) in enumerate(((0, 0), (0, 1), (1, 0), (1, 1))):
                A = ACC + (rt*2+dt)*16
                B = ar(LB + 8*(n % 3) + 4*dt, 4) if n < 12 else ar(aX + 8*(n-12) + 4*dt, 4)
                e(f"v_mfma_f32_32x32x16_bf16 {vr(A,16)}, {ar(HB + 8*(n % HD) + 4*rt, 4)}, {B}, {'0' if n == 0 else vr(A,16)}")
                if n + HD < 28 and dt == 1: run(hload(n + HD)[rt:rt+1])
                run(grp[i])
            if mt is not None and tb % 2 == 0: tail_b(mt)
        self.stamp(13)
        e("s_barrier")
        self.xs("red bar1")
        e(f"s_mul_i32 m0, s{sW}, {RED_WS}")
        for i in range(64):
            e(f"ds_write_addtid_b32 v{ACC+i} offset:{(i>>4)*RED_TS + (i&15)*256}", "rw")
        e.wait(lg="all"); self.xs("red written"); e("s_barrier"); self.xs("red bar2")
        R = 128
        for rt in range(2):
            for pw in range(4):
                for k in range(2):
                    e(f"ds_read_b128 {vr(R + rt*32 + pw*8 + 4*k, 4)}, v5 offset:{pw*RED_WS + rt*2*RED_TS + 16*k}", f"rr{rt}_{pw}")
        e.wait(vm="xr")
        for rt in range(2):
            X = 64 + 8*rt
            for i in range(4):
                e(f"v_lshlrev_b32 v{X+2*i}, 16, v{XR+4*rt+i}\nv_and_b32 v{X+2*i+1}, 0xffff0000, v{XR+4*rt+i}")
            for pw in range(4):
                e.wait(lg=f"rr{rt}_{pw}")
                for i in range(4):
                    e(f"v_pk_add_f32 {vr(X+2*i,2)}, {vr(X+2*i,2)}, {vr(R + rt*32 + pw*8 + 2*i, 2)}")
            for i in range(4):
                e(f"v_cvt_pk_bf16_f32 v{80+4*rt+i}, v{X+2*i}, v{X+2*i+1}")
            e(f"buffer_store_dwordx4 {vr(80+4*rt,4)}, v{vO}, {srd(sOUT)}, s59 offen offset:{rt*1024}")
        done = e.label("nq")
        e(f"s_or_b32 s50, s2, s{sW}\ns_cmp_lg_u32 s50, 0\ns_cbranch_scc1 {done}\ns_mov_b32 s50, {WS_Q}")
        self.flag_store(50, "q")
        e(f"{done}:")
        if self.stamps:
            self.stamp(14)
            e(f"v_writelane_b32 v{vSTAMP}, s96, 0\nv_writelane_b32 v{vSTAMP}, s94, 15")
            e(f"s_memrealtime s[94:95]"); e.l.append("    s_waitcnt lgkmcnt(0)")
            e(f"v_writelane_b32 v{vSTAMP}, s94, 16")
            e(f"s_lshl_b32 s50, s2, 2\ns_add_u32 s50, s50, s{sW}\ns_lshl_b32 s50, s50, 8\ns_add_u32 s50, s50, {WS_DBG}\nv_lshlrev_b32 v{vTMP}, 2, v{vL}")
            e(f"buffer_store_dword v{vSTAMP}, v{vTMP}, {srd(sWS)}, s50 offen")

    def build(self):
        e = self.e
        self.prologue()
        snap = e.snapshot()
        e(f"s_cmp_eq_u32 s{sTY}, 1\ns_cbranch_scc1 L_typeB")
        self.f1(0)
        endA = e.snapshot()
        e("s_branch L_join\nL_typeB:")
        e.restore(snap)
        self.f1(1)
        endB = e.snapshot()
        self.e.vm = self.join(endA[0], endB[0]); self.e.lg = self.join(endA[1], endB[1])
        e("L_join:")
        self.post()
        e("L_end:\ns_endpgm")
        lines, nn = pad_hazards(e.l)
        hdr = open("parallel_sum__spectral_gfnet__dense_activation_silu__prompt.s.ref").read().split("; Override")[0]
        out = hdr + "; @launch grid=(256,1,1) block=(256,1,1) lds=163840\n"
        out += '.amdgcn_target "amdgcn-amd-amdhsa--gfx950"\n.text\n'
        out += f".globl {KNAME}\n.p2align 8\n.type {KNAME},@function\n{KNAME}:\n"
        out += "\n".join(lines) + "\n"
        out += f""".section .rodata,"a"
.p2align 6
.amdhsa_kernel {KNAME}
  .amdhsa_next_free_vgpr 512
  .amdhsa_next_free_sgpr 102
  .amdhsa_accum_offset 256
  .amdhsa_group_segment_fixed_size 0
  .amdhsa_kernarg_size 72
  .amdhsa_user_sgpr_count 2
  .amdhsa_user_sgpr_kernarg_segment_ptr 1
  .amdhsa_system_sgpr_workgroup_id_x 1
.end_amdhsa_kernel
"""
        return out, nn, len(lines)
    @staticmethod
    def join(a, b):
        def after(l):
            d = {}
            for i, t in enumerate(l): d[t] = len(l) - 1 - i
            return d
        da, db = after(a), after(b)
        n = {t: min(da.get(t, 10**9), db.get(t, 10**9)) for t in set(da) | set(db) if t is not None}
        m = max(n.values()) + 1 if n else 0
        q = [None] * m
        res = []
        for pos in range(m - 1, -1, -1):
            tags = [t for t, v in n.items() if v == pos]
            res.append(MultiTag(tags))
        return res

class MultiTag:
    def __init__(self, tags): self.tags = set(tags)
    def __eq__(self, o): return (o in self.tags) if not isinstance(o, MultiTag) else self is o
    def __hash__(self): return id(self)

if __name__ == "__main__":
    import argparse
    ap = argparse.ArgumentParser()
    ap.add_argument("-o", default="parallel_sum__spectral_gfnet__dense_activation_silu__prompt.s")
    ap.add_argument("--stamps", action="store_true")
    ap.add_argument("--opt", action="append", default=[])
    a = ap.parse_args()
    opts = {}
    for kv in a.opt:
        k, v = kv.split("="); opts[k] = eval(v)
    g = Gen(a.stamps, opts)
    txt, nn, nl = g.build()
    import json; open(a.o + ".names", "w").write(json.dumps(g.xnames))
    open(a.o, "w").write(txt)
    print("lines", nl, "nops added", nn)
```

```python
import re, copy

REG_RE = re.compile(r'^(-|abs\()?([vas])(\d+)\)?$')
RNG_RE = re.compile(r'^(-)?([vas])\[(\d+):(\d+)\]$')
TRANS = ('v_exp_f32', 'v_log_f32', 'v_rcp_f32', 'v_rsq_f32', 'v_sqrt_f32', 'v_sin_f32', 'v_cos_f32')

def regs_of(tok):
    tok = tok.strip()
    m = REG_RE.match(tok)
    if m: return [(m.group(2), int(m.group(3)))]
    m = RNG_RE.match(tok)
    if m: return [(m.group(2), i) for i in range(int(m.group(3)), int(m.group(4)) + 1)]
    if tok == 'vcc': return [('s', 'vcc')]
    if tok == 'm0': return [('s', 'm0')]
    if tok == 'exec': return [('s', 'exec')]
    return []

class Ins:
    __slots__ = ('text', 'mn', 'kind', 'w', 'r', 'srcc', 'ab', 'passes', 'dpp')
    def __init__(self, text):
        self.text = text
        t = text.split(';')[0].strip()
        t = re.sub(r'\s+(op_sel|op_sel_hi|neg_lo|neg_hi):\[[^\]]*\]', '', t)
        self.w, self.r, self.srcc, self.ab, self.passes, self.dpp = [], [], [], [], 0, False
        if not t or t.startswith('.'):
            self.mn, self.kind = '', 'none'; return
        if t.endswith(':'):
            self.mn, self.kind = t, 'label'; return
        p = t.split(None, 1)
        mn = p[0]; self.mn = mn
        rest = p[1] if len(p) > 1 else ''
        ops = [o.strip() for o in rest.split(',')] if rest else []
        mods = ''
        if ops:
            lp = ops[-1].split(None, 1)
            ops[-1] = lp[0]
            mods = lp[1] if len(lp) > 1 else ''
        R = [regs_of(o) for o in ops]
        flat = lambda L: [x for l in L for x in l]
        base = mn.replace('_e32', '').replace('_e64', '').replace('_dpp', '')
        if mn.startswith('v_mfma'):
            self.kind = 'mfma'; self.w = R[0]; self.ab = R[1] + R[2]; self.srcc = R[3]; self.r = self.ab + self.srcc
            self.passes = 2 if '4x4x4' in mn else (8 if '32x32' in mn else 4)
        elif mn.startswith('ds_'):
            self.kind = 'ds'
            if mn.startswith('ds_read') or mn.startswith('ds_bpermute') or mn.startswith('ds_swizzle'):
                self.w = R[0]; self.r = flat(R[1:])
            else:
                self.r = flat(R)
            if 'addtid' in mn: self.r = self.r + [('s', 'm0')]
        elif mn.startswith('buffer_') or mn.startswith('global_'):
            self.kind = 'vmem'
            islds = re.search(r'\blds\b', mods) is not None or '_lds_' in mn
            if islds:
                self.r = flat(R) + [('s', 'm0')]
            elif '_load' in mn:
                self.w = R[0]; self.r = flat(R[1:])
            else:
                self.r = flat(R)
        elif mn.startswith('s_'):
            if mn in ('s_waitcnt', 's_barrier', 's_endpgm', 's_sleep', 's_setprio'): self.kind = 'misc'
            elif mn == 's_nop': self.kind = 'nop'; self.passes = int(ops[0], 0) + 1
            elif mn.startswith('s_cbranch') or mn == 's_branch': self.kind = 'branch'
            elif mn.startswith('s_cmp'): self.kind = 'salu'; self.r = flat(R)
            elif mn.startswith('s_load') or mn.startswith('s_mem'): self.kind = 'smem'; self.w = R[0]; self.r = flat(R[1:])
            else:
                self.kind = 'salu'; self.w = R[0]; self.r = flat(R[1:])
                if 'saveexec' in mn: self.w = self.w + [('s', 'exec')]
        elif mn.startswith('v_'):
            self.kind = 'trans' if base in TRANS else 'valu'
            self.dpp = '_dpp' in mn
            if 'permlane' in mn and 'swap' in mn:
                self.w = R[0] + R[1]; self.r = R[0] + R[1]
            elif base.startswith('v_cmp'):
                self.w = R[0]; self.r = flat(R[1:])
            elif '_co_' in base:
                self.w = R[0] + R[1]; self.r = flat(R[2:])
            else:
                self.w = R[0]; self.r = flat(R[1:])
                if base in ('v_fmac_f32', 'v_dot2c_f32_bf16') or self.dpp: self.r = self.r + R[0]
        else:
            raise ValueError('cannot parse: ' + text)

def pad_hazards(lines):
    out = []
    pos = 0
    last = {}
    def need(key, n):
        if key in last:
            p = last[key]
            return max(0, n - (pos - p[0] - 1))
        return 0
    nops_added = 0
    for text in lines:
        I = Ins(text)
        if I.kind == 'none':
            out.append(text); continue
        req = 0
        soft = '; soft' in text
        if I.kind in ('label', 'branch') and not soft:
            for (cl, rg), p in last.items():
                lim = {'valu': 2, 'valus': 5, 'trans': 1, 'm0': 1, 'store': 2}.get(cl)
                if cl == 'mfma': lim = {2: 5, 4: 8, 8: 12}[p[1]]
                if cl == 'srcc': lim = {2: 1, 4: 3, 8: 7}[p[1]]
                req = max(req, lim - (pos - p[0] - 1))
        isv = I.kind in ('valu', 'trans')
        if I.kind == 'mfma':
            for rg in I.r: req = max(req, need(('valu', rg), 2))
            for rg in I.ab:
                if ('mfma', rg) in last: req = max(req, need(('mfma', rg), {2: 5, 4: 8, 8: 12}[last[('mfma', rg)][1]]))
            for rg in I.srcc:
                if ('mfma', rg) in last:
                    p = last[('mfma', rg)]
                    same = p[2] == tuple(I.srcc) and p[1] == I.passes
                    req = max(req, need(('mfma', rg), ({2: 2, 4: 0, 8: 0} if same else {2: 4, 4: 6, 8: 10})[p[1]]))
            for rg in I.w:
                if rg not in I.srcc and ('mfma', rg) in last:
                    p = last[('mfma', rg)]
                    req = max(req, need(('mfma', rg), {2: 4, 4: 6, 8: 10}[p[1]]))
            req = max(req, need(('valus', ('s', 'exec')), 4))
        if isv or I.kind in ('ds', 'vmem'):
            for rg in I.r + I.w:
                if ('mfma', rg) in last: req = max(req, need(('mfma', rg), {2: 5, 4: 8, 8: 12}[last[('mfma', rg)][1]]))
        if isv:
            for rg in I.w:
                if ('srcc', rg) in last: req = max(req, need(('srcc', rg), {2: 1, 4: 3, 8: 7}[last[('srcc', rg)][1]]))
                req = max(req, need(('store', rg), 2))
            for rg in I.r:
                if I.kind != 'trans': req = max(req, need(('trans', rg), 1))
                if rg[0] == 's': req = max(req, need(('valus', rg), 4 if 'lane' in I.mn else 2))
                if 'readfirstlane' in I.mn or 'readlane' in I.mn: req = max(req, need(('valu', rg), 1))
                if 'permlane' in I.mn or I.dpp: req = max(req, need(('valu', rg), 2))
            if I.dpp: req = max(req, need(('valus', ('s', 'exec')), 5))
        if I.kind in ('ds', 'vmem'):
            for rg in I.w: req = max(req, need(('store', rg), 1))
            for rg in I.r:
                req = max(req, need(('trans', rg), 1))
                if rg == ('s', 'm0'): req = max(req, need(('m0', rg), 1))
                if rg[0] == 's' and I.kind == 'vmem': req = max(req, need(('valus', rg), 5))
        if I.kind in ('salu', 'smem', 'branch'):
            for rg in I.r: req = max(req, need(('valus', rg), 2))
            if 'vcc' in I.mn: req = max(req, need(('valus', ('s', 'vcc')), 2))
        while req > 0:
            n = min(req, 16)
            out.append(f'    s_nop {n-1}'); pos += n; req -= n; nops_added += 1
        out.append(text)
        if I.kind == 'label':
            if not soft: last = {}
            continue
        if isv:
            for rg in I.w:
                if rg[0] == 's': last[('valus', rg)] = (pos,)
                else:
                    last[('valu', rg)] = (pos,)
                    last.pop(('trans', rg), None)
                    if I.kind == 'trans': last[('trans', rg)] = (pos,)
                last.pop(('mfma', rg), None)
        if I.kind == 'mfma':
            for rg in I.w: last[('mfma', rg)] = (pos, I.passes, tuple(I.w))
            for rg in I.srcc: last[('srcc', rg)] = (pos, I.passes)
        if I.kind == 'salu':
            for rg in I.w:
                if rg == ('s', 'm0'): last[('m0', rg)] = (pos,)
                last.pop(('valus', rg), None)
        if I.kind == 'vmem' and '_store' in I.mn and ('x4' in I.mn or 'x3' in I.mn):
            for rg in I.r:
                if rg[0] != 's': last[('store', rg)] = (pos,)
        pos += I.passes if I.kind == 'nop' else 1
        if I.kind == 'branch' and not soft: last = {}
    return out, nops_added

class E:
    def __init__(self):
        self.l = []
        self.vm = []
        self.lg = []
        self.uid = 0
        self.cold = []
    def __call__(self, s, tag=None):
        for x in s.split('\n'):
            x = x.strip()
            if not x: continue
            self.l.append(x if x.split(';')[0].strip().endswith(':') or x.startswith('.') or x.startswith(';') else '    ' + x)
            mn = x.split()[0]
            if mn.startswith('buffer_') or mn.startswith('global_'):
                self.vm.append(tag)
                if len(self.vm) > 63: print('WARN vm outstanding', len(self.vm), x)
            elif mn.startswith('ds_'):
                self.lg.append(tag)
                if len(self.lg) > 15: print('WARN lgkm outstanding', len(self.lg), x)
    def _cnt(self, lst, tags, mx):
        tags = tags if isinstance(tags, (list, tuple, set)) else [tags]
        idx = [i for i, t in enumerate(lst) if t in tags]
        if not idx: return None
        n = len(lst) - 1 - max(idx)
        return min(n, mx)
    def wait(self, vm=None, lg=None):
        parts = []
        if vm is not None:
            n = 0 if vm == 'all' else self._cnt(self.vm, vm, 63)
            if n is not None and (vm != 'all' or self.vm):
                parts.append(f'vmcnt({n})'); self.vm = self.vm[len(self.vm) - n:] if n else []
        if lg is not None:
            n = 0 if lg == 'all' else self._cnt(self.lg, lg, 15)
            if n is not None and (lg != 'all' or self.lg):
                parts.append(f'lgkmcnt({n})'); self.lg = self.lg[len(self.lg) - n:] if n else []
        if parts: self.l.append('    s_waitcnt ' + ' '.join(parts))
    def label(self, base):
        self.uid += 1
        return f'L_{base}_{self.uid}'
    def snapshot(self): return (list(self.vm), list(self.lg))
    def restore(self, s): self.vm, self.lg = list(s[0]), list(s[1])
```

```python
import sys
from emit import E, pad_hazards

KNAME = "parallel_sum__spectral_gfnet__dense_activation_silu__prompt_kernel"

WS_Q     = 0
WS_STATS = 0x10000
WS_Z1F   = 0x20000
WS_HF    = 0x24000
WS_Z3F   = 0x28000
WS_CSG   = 0xD00000
WS_Z1    = 0x100000
WS_Z3    = 0x300000
WS_H     = 0x500000
WS_DBG   = 0xC00000
WS_SIZE  = 0x1000000

L_XS, L_MISC, L_S1, L_S2 = 0, 32768, 49152, 98304
L_CS = L_MISC + 8192
L_RB = L_MISC + 8192 + 5120
L_ZB = L_MISC
L_ZX = L_MISC + 8192
L_FD = L_S1
PAIR = [L_S1 + i*8192 for i in range(6)] + [L_S2 + 4096, L_S2 + 16384 + 4096]
SING = [L_S2 + 12288, L_S2 + 16384 + 12288, L_S2 + 2*16384 + 4096, L_S2 + 3*16384 + 4096]
BSLOT = [L_S2 + i*16384 + 4096 for i in range(4)] + [L_S1 + 32768, L_S1 + 40960]
RED_TS = 4096 + 16
RED_WS = 4 * RED_TS

sX, sW1, sW2, sWS, sWR, sWI, sOUT = 4, 8, 12, 16, 20, 24, 28
sT, sW, sRB, sBLK, sTY, sC0, sK1, sCG, sP, sQ = 32, 33, 34, 35, 36, 37, 38, 39, 40, 41
sXROW, sCOL1, sCOL2, sHB1, sHB2, sXSW, sQB, sPOLL = 42, 43, 44, 45, 46, 47, 48, 49
sCSG = 57
sXS3, sW2K, sROT = 61, 62, 63
sKS = 64
sSTAMP = 92
def srd(n): return f"s[{n}:{n+3}]"

vTID, vL = 0, 1
vXD = [2, 3, 4, 5]; vSD = [6, 7]; vS1D = 8
vXR = [9, 10, 11, 12]; vT1 = [13, 14]; vT2 = [15, 16]; vTS = 17; vFD = 18
vC1 = [19, 20]; vC2 = [21, 22]; vCS = 8 + 224
vNC1, vRINV, vSIG, vL16 = 23, 24, 25, 26
vSTAMP = 27
vBX = 28; vAX = [32, 36, 160, 164, 176]; vCSA = [40, 44, 168, 172, 180]; vCSF = [48, 52, 144, 148, 152]
vONES = 56
vTMP = 58
vSD2 = 236; vCSS = 237; vW2D = [238, 239]; vPF = [112, 113, 114, 115]
vXR2 = [232, 233, 234, 235]
ACCA, ACCD = 64, 128
vW = 240
TMP = 192
aX, aG1, aFB = 0, 192, 216
aA2, aA3 = 128, 160

TRANS_ = ('v_exp_f32', 'v_rcp_f32', 'v_sin_f32', 'v_cos_f32', 'v_rsq_f32')
LOG2E = 1.4426950408889634
def fhex(f):
    import struct
    return "0x%08x" % struct.unpack("<I", struct.pack("<f", f))[0]
def vr(a, n): return f"v[{a}:{a+n-1}]"
def ar(a, n): return f"a[{a}:{a+n-1}]"

def merge(main, side, start=0, end=None):
    end = len(main) if end is None else end
    out = list(main[:start]); n = end - start; k = len(side); j = 0
    for i in range(n):
        out.append(main[start + i])
        while j < k and (j + 1) * n <= (i + 1) * k:
            out.append(side[j]); j += 1
    out += side[j:]
    out += main[end:]
    return out
def run(ths):
    for t in ths: t()
def cost(th): return getattr(th, 'cost', 1)
def spread(fill, caps):
    tot = sum(cost(t) for t in fill); cap = sum(caps)
    out = [[] for _ in caps]; acc = 0.0; g = 0; lim = caps[0] * tot / cap if cap else 0
    for t in fill:
        while g < len(caps) - 1 and acc + cost(t) / 2 > lim:
            g += 1; lim += caps[g] * tot / cap
        out[g].append(t); acc += cost(t)
    return out

class Gen:
    def __init__(self, stamps=False, opts=None):
        self.e = E(); self.stamps = stamps; self.nst = 0; self.xnames = []
        self.o = dict(ntw=False, pf=True, s2at={6: [0, 1, 2], 7: [3, 4, 5]}, w2p2=5, z1f=34, h0=6, pfw2=True, pfat=None, xrot=True, lep=[4, 4], hd=8, zp=6, zc=8, zd=(8, 12, 16, 20), tt=(12, 16, 20, 24), ga=(8, 10, 12), xat=22, nsh=8, hpe=0, w11=2, csA=(112, 134, 142), csB=(36, 50, 55), h1=0, wA=94, warm2=63, z3fat=0.45, ifdw=1.0, hfat=0, lamax=6, lamin=3, vcap=0, epl=0, st2d=8, epfrom=0.3, nown=7, ownA=(116, 124, 140), ownB=28, share=[1, 0], w1b=45, prel=4, nlate=4, zpoll=[(0.25, 0.65), (0.25, 0.65)], z1g=2)
        self.o.update(opts or {})
    def stamp(self, i):
        if not self.stamps or (self.o.get('only') is not None and i not in self.o['only']): return
        e = self.e
        e(f"{'s_memrealtime' if self.o.get('rt', 1) else 's_memtime'} s[{sSTAMP}:{sSTAMP+1}]"); e.l.append("    s_waitcnt lgkmcnt(0)"); e.lg = []
        e(f"v_writelane_b32 v{vSTAMP}, s{sSTAMP}, {i if i < 15 else i + 5}")
    def light(self):
        if self.nl < 5: self.e(f"s_memtime s[{92+2*self.nl}:{93+2*self.nl}]"); self.nl += 1
    def light_dump(self):
        if not self.o.get('lst'): return
        self.e.l.append("    s_waitcnt lgkmcnt(0)"); self.e.lg = []
        for i in range(self.nl): self.e(f"v_writelane_b32 v{vSTAMP}, s{92+2*i}, {58+i}")
    def xs(self, name):
        if not (self.stamps and self.o.get('xs')): return
        if name not in self.xnames: self.xnames.append(name)
        self.stamp(15 + self.xnames.index(name))
    def dst(self, region):
        if self.o.get('detail') != region: return
        pairs = self.dpairs
        if self.nd < len(pairs):
            self.e(f"s_memtime s[{pairs[self.nd]}:{pairs[self.nd]+1}]"); self.nd += 1
    def dbegin(self, region, pairs):
        if self.o.get('detail') == region: self.nd = 0; self.dpairs = pairs
    def dend(self, region):
        if self.o.get('detail') != region: return
        self.e.l.append("    s_waitcnt lgkmcnt(0)"); self.e.lg = []
        for i in range(self.nd): self.e(f"v_writelane_b32 v{vSTAMP}, s{self.dpairs[i]}, {20+i}")
        run(self.g2_setup())
    def T(self, s, tag=None):
        f = lambda: self.e(s, tag)
        f.cost = sum(2 if x.split()[0] in TRANS_ else 1 for x in s.split("\n") if x.strip()); f.txt = s
        return f
    def W(self, vm=None, lg=None):
        f = lambda: self.e.wait(vm=vm, lg=lg)
        f.cost = 0.5
        return f
    def TL(self, s):
        return [self.T(x) for x in s.split("\n") if x.strip()]

    def prologue(self):
        e = self.e
        e("s_cmp_ge_u32 s2, 256\ns_cbranch_scc1 L_end")
        e(f"s_load_dwordx2 s[{sX}:{sX+1}], s[0:1], 0\ns_load_dwordx4 s[52:55], s[0:1], 32\ns_load_dwordx2 s[{sWS}:{sWS+1}], s[0:1], 64")
        e(f"s_load_dwordx4 s[56:59], s[0:1], 8\ns_load_dwordx2 s[{sOUT}:{sOUT+1}], s[0:1], 48")
        if self.stamps:
            e(f"s_memrealtime s[94:95]\ns_memtime s[96:97]")
            self.start_saved = False
        e(f"v_and_b32 v{vL}, 63, v0\nv_lshrrev_b32 v{vTMP}, 6, v0\nv_lshlrev_b32 v{vL16}, 4, v{vL}\nv_readfirstlane_b32 s{sW}, v{vTMP}")
        if self.o['pf']:
            e(f"s_getpc_b64 s[50:51]\ns_lshr_b32 s60, s2, 3\ns_lshl_b32 s60, s60, 11")
            e(f"s_and_b32 s61, s{sW}, 1\ns_lshl_b32 s61, s61, 10\ns_add_u32 s60, s60, s61\ns_min_u32 s60, s60, L_end-{KNAME}-1280")
            e(f"s_add_u32 s50, s50, s60\ns_addc_u32 s51, s51, 0")
            e(f"v_mov_b32 v{vTMP+1}, s51\nv_add_co_u32 v{vTMP}, vcc, s50, v{vL16}\nv_addc_co_u32 v{vTMP+1}, vcc, 0, v{vTMP+1}, vcc")
            e(f"global_load_dwordx4 {vr(TMP+8,4)}, {vr(vTMP,2)}, off", "pf")
        e(f"""s_and_b32 s50, s2, 7
s_lshr_b32 s51, s2, 3
s_lshr_b32 s60, s50, 1
s_lshl_b32 s60, s60, 2
s_lshr_b32 s61, s51, 3
s_add_u32 s{sRB}, s60, s61
s_and_b32 s62, s51, 7
s_and_b32 s{sTY}, s62, 1
s_and_b32 s63, s50, 1
s_lshl_b32 s{sBLK}, s63, 2
s_lshr_b32 s60, s62, 1
s_add_u32 s{sBLK}, s{sBLK}, s60
s_add_u32 s{sC0}, s62, s61
s_and_b32 s{sC0}, s{sC0}, 7
s_lshl_b32 s{sK1}, s50, 2
s_add_u32 s{sK1}, s{sK1}, s61
s_mov_b32 s{sCG}, s62
s_mov_b32 s{sP}, s{sK1}
s_mov_b32 s{sQ}, s62
s_lshl_b32 s63, s63, 3
s_add_u32 s63, s63, s62""")
        e(f"s_lshl_b32 s60, s{sRB}, 2\ns_add_u32 s60, s60, s{sW}\ns_lshl_b32 s{sXROW}, s60, 10\ns_lshl_b32 s{sXSW}, s{sW}, 13")
        e(f"""s_mul_i32 s60, s{sBLK}, 320
s_and_b32 s50, s{sBLK}, 1
s_lshl_b32 s51, s50, 6
s_add_u32 s51, s51, s60
s_lshl_b32 s50, s50, 8
s_sub_u32 s{sCOL1}, s60, s50
s_add_u32 s{sCOL1}, s{sCOL1}, 256
s_lshl_b32 s61, s{sBLK}, 7
s_add_u32 s61, s61, 2560
s_cmp_eq_u32 s{sTY}, 0
s_cselect_b32 s{sCOL2}, s51, s61""")
        e(f"s_mul_i32 s60, s{sXROW}, 112\ns_add_u32 s60, s60, {WS_H}\ns_lshl_b32 s61, s{sCOL1}, 5\ns_add_u32 s{sHB1}, s60, s61\ns_lshl_b32 s61, s{sCOL2}, 5\ns_add_u32 s{sHB2}, s60, s61")
        t0, t1, t2 = vTMP, vTMP+1, vTMP+2
        e(f"""v_lshrrev_b32 v{t0}, 3, v{vL}
v_and_b32 v{t1}, 7, v{vL}
v_lshrrev_b32 v{t2}, 4, v{vL}
v_xor_b32 v{t1}, v{t1}, v{t2}
v_lshlrev_b32 v{t1}, 4, v{t1}
v_lshl_add_u32 v{vXD[0]}, v{t0}, 16, v{t1}
v_xor_b32 v{vXD[1]}, 64, v{vXD[0]}
v_add_u32 v{vXD[2]}, {2*(524288-1024)}, v{vXD[0]}
v_add_u32 v{vXD[3]}, {3*(524288-1024)}, v{vXD[1]}
v_add_u32 v{vXD[1]}, {524288-1024}, v{vXD[1]}""")
        e(f"""v_lshrrev_b32 v{t1}, 5, v{vL}
v_and_b32 v{t2}, 31, v{vL}
v_lshlrev_b32 v{t2}, 4, v{t2}
v_lshl_add_u32 v{t2}, v{t1}, 16, v{t2}
s_lshl_b32 s60, s63, 17
s_add_u32 s60, s60, s{sXROW}""")
        e(f"""s_lshl_b32 s61, s{sW}, 4
v_add_u32 v{t0}, s61, v{t0}
v_mul_u32_u24 v{t0}, 3584, v{t0}
v_and_b32 v{t1}, 7, v{vL}
v_lshlrev_b32 v{t1}, 4, v{t1}
v_and_b32 v{vTMP+3}, 16, v{vL}
v_lshlrev_b32 v{vTMP+3}, 2, v{vTMP+3}
v_xor_b32 v{t1}, v{t1}, v{vTMP+3}
v_add_u32 v{vSD[0]}, v{t0}, v{t1}
v_add_u32 v{vSD[1]}, {8*3584-1024}, v{vSD[0]}
v_lshrrev_b32 v{t0}, 2, v{vL}
v_add_u32 v{t0}, s61, v{t0}
v_mul_u32_u24 v{t0}, 3584, v{t0}
v_and_b32 v{t1}, 3, v{vL}
v_lshl_add_u32 v{vS1D}, v{t1}, 4, v{t0}""")
        e.l.append("    s_waitcnt lgkmcnt(0)")
        if self.stamps: e(f"v_writelane_b32 v{vSTAMP}, s96, 0\nv_writelane_b32 v{vSTAMP}, s94, 15")
        e(f"s_mov_b32 s{sX+2}, 2097152\ns_mov_b32 s{sX+3}, 0x20000")
        e(f"buffer_load_dwordx4 {vr(TMP,4)}, v{t2}, {srd(sX)}, s60 offen", "stat")
        e(f"buffer_load_dwordx4 {vr(TMP+4,4)}, v{t2}, {srd(sX)}, s60 offen offset:512", "stat")
        e(f"s_load_dword s{sT}, s[{sWS}:{sWS+1}], {WS_Q}")
        e(f"s_mov_b32 s{sW1}, s52\ns_mov_b32 s{sW1+1}, s53\ns_mov_b32 s{sW1+2}, 1835008\ns_mov_b32 s{sW1+3}, 0x20000")
        run(self.dma_x(0))
        e(f"s_mov_b32 s{sW2}, s54\ns_mov_b32 s{sW2+1}, s55\ns_mov_b32 s{sW2+2}, 1835008\ns_mov_b32 s{sW2+3}, 0x20000")
        e(f"s_mov_b32 s{sWS+2}, {WS_SIZE}\ns_mov_b32 s{sWS+3}, 0x20000")
        e(f"s_mov_b32 s{sWR}, s56\ns_mov_b32 s{sWR+1}, s57\ns_mov_b32 s{sWR+2}, 1052672\ns_mov_b32 s{sWR+3}, 0x20000")
        e(f"s_mov_b32 s{sWI}, s58\ns_mov_b32 s{sWI+1}, s59\ns_mov_b32 s{sWI+2}, 1052672\ns_mov_b32 s{sWI+3}, 0x20000")
        e(f"s_mov_b32 s{sOUT+2}, 2097152\ns_mov_b32 s{sOUT+3}, 0x20000")
        e(f"s_mov_b32 s{sPOLL}, s63")
        e(f"s_lshl_b32 s{sXS3}, s{sW}, 10\ns_lshl_b32 s{sW2K}, s{sW}, 11\ns_lshl_b32 s{sQB}, s{sQ}, 7\ns_lshl_b32 s56, s{sW}, 14")
        e(f"s_lshr_b32 s50, s{sRB}, 2\ns_lshl_b32 s50, s50, 4\ns_add_u32 s50, s50, s63\ns_lshl_b32 s50, s50, 2\ns_add_u32 s50, s50, s{sW}\ns_lshl_b32 s50, s50, 12\ns_add_u32 s{sCSG}, s50, {WS_CSG}")
        e(f"s_mul_i32 s50, s{sQ}, 7\ns_lshr_b32 s50, s50, 1\ns_and_b32 s51, s{sP}, 3\ns_mul_i32 s51, s51, 7\ns_add_u32 s{sROT}, s50, s51")
        if self.o['xrot']: e(f"s_and_b32 s50, s2, 7\ns_add_u32 s{sROT}, s{sROT}, s50\ns_cmp_ge_u32 s{sROT}, 28\ns_cselect_b32 s50, 28, 0\ns_sub_u32 s{sROT}, s{sROT}, s50")

    def chunk(self, t, d):
        return f"s_add_u32 s{d}, s{sC0}, {(t>>1) + 4*(t&1)}\ns_and_b32 s{d}, s{d}, 7\n"
    XSLOT = staticmethod(lambda t: (t + 1) % 3)
    def dma_x(self, t):
        sl = self.XSLOT(t)
        pre = self.chunk(t, 50) + f"s_lshl_b32 s50, s50, 7\ns_add_u32 s50, s50, s{sXROW}\n"
        m0 = f"s_add_u32 m0, s{sXSW}, {L_XS + sl*4096}\n" if sl < 2 else f"s_add_u32 m0, s56, {L_S2}\n"
        return [self.T((m0 + pre if i == 0 else m0) + f"buffer_load_dwordx4 v{vXD[i]}, {srd(sX)}, s50 offen offset:{i*1024} lds", f"x{t}") for i in range(4)]
    def dma_w1(self, ty, t):
        pre = self.chunk(t, 51) + f"s_mul_i32 s51, s51, {64*3584}\ns_add_u32 s52, s51, s{sCOL1}\ns_add_u32 s51, s51, s{sCOL2}\n"
        T = lambda x: self.T(x, f"w1_{t}")
        th = []
        for pr in range(2 - ty):
            p = PAIR[2*(t % 4) + pr] if ty == 0 else BSLOT[t % 6]
            so = "s51" if pr == 0 else "s53"
            th += [T((pre if pr == 0 else "s_add_u32 s53, s51, 128\n") + f"s_add_u32 m0, s{sW2K}, {p}\nbuffer_load_dwordx4 v{vSD[0]}, {srd(sW1)}, {so} offen lds"),
                   T(f"s_add_u32 m0, s{sW2K}, {p}\nbuffer_load_dwordx4 v{vSD[1]}, {srd(sW1)}, {so} offen offset:1024 lds")]
        if ty == 0:
            th.append(T(f"s_add_u32 m0, s{sXS3}, {SING[t % 4]}\nbuffer_load_dwordx4 v{vS1D}, {srd(sW1)}, s52 offen lds"))
        return th

    def addr_setup(self):
        e = self.e
        t0, t1, t2, t3 = vTMP, vTMP+1, vTMP+2, vTMP+3
        e(f"""v_and_b32 v{t0}, 31, v{vL}
v_lshrrev_b32 v{t1}, 5, v{vL}
v_bfe_u32 v{t2}, v{vL}, 1, 3
v_xor_b32 v{t2}, v{t2}, v{t1}
v_lshlrev_b32 v{t2}, 4, v{t2}
v_lshl_add_u32 v{t2}, v{t0}, 7, v{t2}
v_add_u32 v{vXR[0]}, s{sXSW}, v{t2}
v_xor_b32 v{vXR[1]}, 32, v{vXR[0]}
v_xor_b32 v{vXR[2]}, 64, v{vXR[0]}
v_xor_b32 v{vXR[3]}, 96, v{vXR[0]}
s_add_u32 s50, s56, {L_S2}
v_add_u32 v{vXR2[0]}, s50, v{t2}
v_xor_b32 v{vXR2[1]}, 32, v{vXR2[0]}
v_xor_b32 v{vXR2[2]}, 64, v{vXR2[0]}
v_xor_b32 v{vXR2[3]}, 96, v{vXR2[0]}""")
        e(f"""v_bfe_u32 v{t0}, v{vL}, 2, 2
v_lshl_add_u32 v{t2}, v{t1}, 3, v{t0}
v_and_b32 v{t3}, 3, v{vL}
v_lshlrev_b32 v{t3}, 3, v{t3}
v_and_b32 v{vTMP+4}, 16, v{vL}
v_lshl_add_u32 v{t3}, v{vTMP+4}, 1, v{t3}
v_lshl_add_u32 v{vTS}, v{t2}, 6, v{t3}
v_add_u32 v{vTS}, {L_S2}, v{vTS}
v_lshl_add_u32 v{t3}, v{t2}, 7, v{t3}
v_and_b32 v{vTMP+4}, 8, v{vL}
v_lshl_add_u32 v{t3}, v{vTMP+4}, 3, v{t3}
v_add_u32 v{vT1[0]}, {L_S1}, v{t3}
v_xor_b32 v{vT1[1]}, 64, v{vT1[0]}
v_add_u32 v{vT2[0]}, {L_S2}, v{t3}
v_xor_b32 v{vT2[1]}, 64, v{vT2[0]}
s_lshl_b32 s50, s{sW}, 11
v_add_u32 v{vC2[0]}, s50, v{vT2[0]}
v_add_u32 v{vC2[1]}, s50, v{vT2[1]}
v_add_u32 v{vC1[0]}, s50, v{vT1[0]}
v_add_u32 v{vC1[1]}, s50, v{vT1[1]}
v_add_u32 v{vCSS}, s{sXS3}, v{vTS}
v_add_u32 v{vFD}, {L_FD}, v{vL16}
v_mov_b32 v{vONES}, 0x3f803f80
v_mov_b32 v{vONES+1}, 0x3f803f80""")

    def stats(self):
        e = self.e
        U = TMP + 16
        for i in range(8):
            e(f"v_lshlrev_b32 v{U+2*i}, 16, v{TMP+i}\nv_and_b32 v{U+2*i+1}, 0xffff0000, v{TMP+i}")
        def reduce(src, n, acc):
            e(f"v_add_f32 v{acc}, v{src}, v{src+1}\nv_add_f32 v{acc+1}, v{src+2}, v{src+3}")
            for i in range(4, n, 2):
                e(f"v_add_f32 v{acc}, v{acc}, v{src+i}\nv_add_f32 v{acc+1}, v{acc+1}, v{src+i+1}")
            e(f"v_add_f32 v{acc}, v{acc}, v{acc+1}")
            for k in (8, 4, 2, 1):
                e(f"v_add_f32_dpp v{acc}, v{acc}, v{acc} row_ror:{k} row_mask:0xf bank_mask:0xf")
            e(f"v_mov_b32 v{acc+1}, v{acc}\nv_permlane16_swap_b32 v{acc}, v{acc+1}\nv_add_f32 v{acc}, v{acc}, v{acc+1}")
        M = TMP + 32
        reduce(U, 16, M)
        e(f"v_mul_f32 v{M}, {fhex(1/512)}, v{M}")
        for i in range(16):
            e(f"v_sub_f32 v{U+i}, v{U+i}, v{M}")
        for i in range(16):
            e(f"v_mul_f32 v{U+i}, v{U+i}, v{U+i}")
        reduce(U, 16, M+2)
        e(f"v_mov_b32 v{M+3}, {fhex(1e-5)}\nv_fmac_f32 v{M+3}, {fhex(1/512)}, v{M+2}\nv_rsq_f32 v{M+2}, v{M+3}")
        e.l.append("    s_waitcnt lgkmcnt(0)"); e.lg = []
        e(f"s_mul_i32 s{sT}, s{sT}, 0x9E3779B1\ns_add_u32 s{sT}, s{sT}, 0x7F4A7C15")
        e(f"v_mov_b32 v{M+1}, s{sT}\nv_mov_b32 v{M+3}, s{sT}")
        e(f"s_lshr_b32 s54, s{sXROW}, 1\ns_lshl_b32 s60, s{sPOLL}, 5\ns_add_u32 s54, s54, s60\ns_add_u32 s54, s54, {WS_STATS}")
        e(f"v_lshrrev_b32 v{vTMP}, 5, v{vL}\nv_lshlrev_b32 v{vTMP}, 4, v{vTMP}\nv_and_b32 v{vTMP+1}, 31, v{vL}\nv_cmp_eq_u32 vcc, 0, v{vTMP+1}")
        e(f"s_and_saveexec_b64 s[58:59], vcc")
        e(f"buffer_store_dwordx4 {vr(M,4)}, v{vTMP}, {srd(sWS)}, s54 offen sc1", "statst")
        e(f"s_mov_b64 exec, s[58:59]")

    def trig(self, n, ang, inc, step, regs, use, group=1, first=None):
        T = self.T; th = []; pend = []
        for g in range(n // group):
            cs = []
            for b in range(group):
                i = g*group + b
                c, s_ = regs[(g & 1)*group + b]
                a = first if (first is not None and i == 0) else ang
                th += [T(f"v_cos_f32 v{c}, v{a}"), T(f"v_sin_f32 v{s_}, v{a}")]
                if i < n - 1:
                    k = step(i)
                    th.append(T(f"v_add_f32 v{ang}, v{ang}, v{inc}") if k == 1 else T(f"v_fmac_f32 v{ang}, {fhex(float(k))}, v{inc}"))
                cs.append((c, s_))
            th += pend
            pend = use(g, cs)
        return th + pend

    def rot(self, zs, rho, tmp):
        T = self.T
        return ([T(f"v_pk_mul_f32 {vr(tmp+2*i,2)}, {vr(z,2)}, {vr(rho,2)} op_sel_hi:[1,0]") for i, z in enumerate(zs)] +
                [T(f"v_pk_fma_f32 {vr(z,2)}, {vr(z,2)}, {vr(rho,2)}, {vr(tmp+2*i,2)} op_sel:[1,1,0] op_sel_hi:[0,1,1] neg_lo:[0,1,0]") for i, z in enumerate(zs)])
    def gen_a2a3(self):
        T = self.T; th = []
        t0, t1, t2, t3, k2, n2, sg = [TMP + 16 + i for i in range(7)]
        ang, inc = TMP + 24, TMP + 25
        regs = [(TMP + 26, TMP + 27), (TMP + 28, TMP + 29)]
        pk = TMP + 26
        th += self.TL(f"""v_bfe_u32 v{t0}, v{vL}, 4, 1
v_bfe_u32 v{t1}, v{vL}, 3, 1
v_bfe_u32 v{t2}, v{vL}, 2, 1
v_bfe_u32 v{t3}, v{vL}, 1, 1
v_lshl_add_u32 v{k2}, v{t1}, 1, v{t3}
v_lshl_add_u32 v{k2}, v{t2}, 2, v{k2}
v_lshl_add_u32 v{k2}, v{t0}, 3, v{k2}
s_lshl_b32 s54, s{sW}, 4
v_add_u32 v{k2}, s54, v{k2}
v_and_b32 v{n2}, 1, v{vL}
v_cvt_f32_u32 v{ang}, v{n2}
v_mul_f32 v{ang}, 0x3e800000, v{ang}
v_cvt_f32_u32 v{inc}, v{k2}
v_mul_f32 v{inc}, {fhex(1/64)}, v{inc}
v_lshrrev_b32 v{k2}, 5, v{vL}
v_lshlrev_b32 v{k2}, 2, v{k2}
v_cvt_f32_u32 v{k2}, v{k2}
v_fmac_f32 v{ang}, v{k2}, v{inc}
s_mov_b32 s54, 0x80008000
v_mul_lo_u32 v{sg}, v{t3}, s54""")
        def use(dst, neg):
            def f(g, cs):
                c, s_ = cs[0]; p = TMP + 30 + 2*(g & 1)
                return [T(f"v_cvt_pk_bf16_f32 v{p}, v{c}, {'-' if neg else ''}v{s_}"), T(f"v_xor_b32 v{p+1}, v{p}, v{sg}"),
                        T(f"v_accvgpr_write_b32 a{dst+g}, v{p}"), T(f"v_accvgpr_write_b32 a{dst+16+g}, v{p+1}")]
            return f
        st4 = lambda i: 1 if (i & 3) < 3 else 5
        th += self.trig(16, ang, inc, st4, regs, use(aA2, False))
        self.n_a2 = len(th)
        th += self.TL(f"""v_bfe_u32 v{n2}, v{vL}, 3, 2
v_lshl_add_u32 v{n2}, v{n2}, 1, v{t2}
v_and_b32 v{t0}, 1, v{vL}
v_lshl_add_u32 v{n2}, v{n2}, 1, v{t0}
s_mov_b32 s54, 0x80008000
v_mul_lo_u32 v{sg}, v{t0}, s54
s_lshl_b32 s54, s{sW}, 4
v_add_u32 v{n2}, s54, v{n2}
v_cvt_f32_u32 v{n2}, v{n2}
v_mul_f32 v{inc}, {fhex(1/64)}, v{n2}
v_cvt_f32_u32 v{ang}, v{t3}
v_mul_f32 v{ang}, 0xbe800000, v{ang}
v_cvt_f32_u32 v{t0}, s{sK1}
v_mul_f32 v{t0}, {fhex(1/2048)}, v{t0}
v_fmac_f32 v{ang}, v{t0}, v{n2}
v_fmac_f32 v{ang}, v{k2}, v{inc}""")
        th += self.trig(16, ang, inc, st4, regs, use(aA3, True))
        return th

    def gen_fd(self):
        T = self.T; th = []
        kc, inc, ang, t0 = TMP + 12, TMP + 13, TMP + 14, TMP + 15
        regs = [(TMP + 16 + 2*i, TMP + 17 + 2*i) for i in range(4)]
        PC, PS = TMP + 24, TMP + 32
        th += self.TL(f"""v_and_b32 v{kc}, 31, v{vL}
s_lshl_b32 s50, s{sBLK}, 5
v_add_u32 v{kc}, s50, v{kc}
v_and_b32 v{t0}, 1, v{kc}
v_lshlrev_b32 v{t0}, 31, v{t0}
v_xor_b32 v{vSIG}, 1.0, v{t0}
v_mov_b32 v{t0}, 0x100
v_cmp_eq_u32 vcc, 0, v{kc}
v_cndmask_b32 v{kc}, v{kc}, v{t0}, vcc
s_add_u32 s50, s{sC0}, s{sW}
s_lshl_b32 s50, s50, 6
v_lshrrev_b32 v{t0}, 5, v{vL}
v_lshlrev_b32 v{t0}, 3, v{t0}
v_add_u32 v{t0}, s50, v{t0}
v_mul_u32_u24 v{t0}, v{t0}, v{kc}
v_and_b32 v{t0}, 511, v{t0}
v_cvt_f32_u32 v{ang}, v{t0}
v_mul_f32 v{ang}, {fhex(1/512)}, v{ang}
v_cvt_f32_u32 v{inc}, v{kc}
v_mul_f32 v{inc}, {fhex(1/512)}, v{inc}
s_lshl_b32 s50, s{sW}, 13
v_add_u32 v{t0}, s50, v{vFD}""")
        def use(g, cs):
            ks, q = g >> 2, g & 3; o = 4*(ks & 1)
            r = [T(f"v_cvt_pk_bf16_f32 v{PC+o+q}, v{cs[0][0]}, v{cs[1][0]}"), T(f"v_cvt_pk_bf16_f32 v{PS+o+q}, -v{cs[0][1]}, -v{cs[1][1]}")]
            if q == 0 and ks >= 2: r = [self.W(lg=f"fdw{ks-2}")] + r
            if q == 3:
                r += [T(f"ds_write_b128 v{t0}, {vr(PC+o,4)} offset:{ks*2048}", f"fdw{ks}"), T(f"ds_write_b128 v{t0}, {vr(PS+o,4)} offset:{ks*2048+1024}", f"fdw{ks}")]
            return r
        th += self.trig(32, ang, inc, lambda i: 9 if (i & 7) == 7 else 1, regs, use, group=2)
        th.append(self.W(lg="fdw3"))
        return th
    def gen_g1(self):
        T = self.T; th = []
        kc, inc, ang, t0, sg = TMP + 12, TMP + 13, TMP + 14, TMP + 15, TMP + 36
        regs = [(TMP + 16 + 2*i, TMP + 17 + 2*i) for i in range(4)]
        P = TMP + 24
        th += self.TL(f"""v_and_b32 v{kc}, 31, v{vL}
v_and_b32 v{t0}, 1, v{vL}
s_mov_b32 s54, 0x80008000
v_mul_lo_u32 v{sg}, v{t0}, s54
v_cvt_f32_u32 v{kc}, v{kc}
v_mul_f32 v{inc}, {fhex(1/32)}, v{kc}
s_lshr_b32 s54, s{sXROW}, 10
v_cvt_f32_u32 v{ang}, s54
v_mul_f32 v{ang}, {fhex(1/2048)}, v{ang}
v_mul_f32 v{ang}, v{ang}, v{kc}
v_lshrrev_b32 v{t0}, 5, v{vL}
v_lshlrev_b32 v{t0}, 2, v{t0}
v_cvt_f32_u32 v{t0}, v{t0}
v_fmac_f32 v{ang}, v{t0}, v{inc}""")
        def use(q, cs):
            r = [T(f"v_cvt_pk_bf16_f32 v{P}, v{cs[0][0]}, v{cs[1][0]}"), T(f"v_cvt_pk_bf16_f32 v{P+1}, v{cs[0][1]}, v{cs[1][1]}"),
                 T(f"v_cvt_pk_bf16_f32 v{P+2}, -v{cs[0][1]}, -v{cs[1][1]}")]
            for k in range(3): r.append(T(f"v_xor_b32 v{P+3+k}, v{P+k}, v{sg}"))
            for k in range(3): r += [T(f"v_accvgpr_write_b32 a{aG1+8*k+q}, v{P+k}"), T(f"v_accvgpr_write_b32 a{aG1+8*k+4+q}, v{P+3+k}")]
            return r
        th += self.trig(8, ang, inc, lambda i: 5 if (i & 3) == 3 else 1, regs, use, group=2)
        return th

    def pair_addr(self, ty, t, pr, cs=False):
        a = PAIR[2*(t % 4) + pr] if ty == 0 else BSLOT[t % 6]
        if a < L_S2: return (vC1 if cs else vT1), a - L_S1
        return (vC2 if cs else vT2), a - L_S2
    def csum_grp(self, tag, tiles, first):
        T = self.T; rd, mm = [], []
        for i, (ad, off, stp, tl) in enumerate(tiles):
            for eh in range(2):
                rd.append(T(f"ds_read_b64_tr_b16 {vr(vCSF[i]+2*eh,2)}, v{ad} offset:{off + eh*stp}", tag))
        mm.append(self.W(lg=tag))
        for eh in range(2):
            for i, (ad, off, stp, tl) in enumerate(tiles):
                c = "0" if (first and eh == 0) else vr(vCSA[tl], 4)
                mm.append(T(f"v_mfma_f32_4x4x4_16b_bf16 {vr(vCSA[tl],4)}, {vr(vONES,2)}, {vr(vCSF[i]+2*eh,2)}, {c}"))
        return rd, mm
    def csum_publish(self, nt):
        th = [self.T(f"s_lshl_b32 s60, s{sW}, 2\nv_add_u32 v{vTMP}, s60, v{vL16}")]
        th += [self.T(f"ds_write_b32 v{vTMP}, v{vCSA[dt]} offset:{L_CS + dt*1024}", "csw") for dt in range(nt)]
        return th
    def cs_tiles(self, ty):
        return [f"s_mov_b32 s60, s{sW}", "s_mov_b32 s60, 4"] if ty == 0 else [f"s_and_b32 s60, s{sW}, 1"] * 2
    def csum_send(self, ty):
        T = self.T; F = [vCSF[0], vCSF[1]]; rd, th = [], []
        for k, code in enumerate(self.cs_tiles(ty)):
            rd.append(T(f"{code}\ns_lshl_b32 s60, s60, 10\nv_add_u32 v{vTMP+1+k}, s60, v{vL16}\nds_read_b128 {vr(F[k],4)}, v{vTMP+1+k} offset:{L_CS}", "csr"))
        a, b = F
        th = [self.W(lg="csr")] + self.TL(f"""v_add_f32 v{a}, v{a}, v{a+1}
v_add_f32 v{a+2}, v{a+2}, v{a+3}
v_add_f32 v{b}, v{b}, v{b+1}
v_add_f32 v{b+2}, v{b+2}, v{b+3}
v_add_f32 v{a}, v{a}, v{a+2}
v_mov_b32 v{a+1}, s{sT}
v_add_f32 v{a+2}, v{b}, v{b+2}
v_mov_b32 v{a+3}, s{sT}
v_lshrrev_b32 v{vTMP+1}, 1, v{vTMP+1}
v_lshrrev_b32 v{vTMP+2}, 1, v{vTMP+2}""")
        st = [T(f"s_and_b32 s60, s{sRB}, 3\ns_lshl_b32 s60, s60, 10\ns_add_u32 s60, s60, s{sCSG}\nbuffer_store_dwordx4 {vr(a,4)}, v{vL16}, {srd(sWS)}, s60 offen sc1", "css")]
        return rd, th, st
    CL = TMP + 4
    def csum_load(self, ty):
        return [self.T(f"buffer_load_dwordx4 {vr(self.CL+4*i,4)}, v{vL16}, {srd(sWS)}, s{sCSG} offen offset:{1024*i} sc1", "csl") for i in range(4)]
    def csum_check(self, ty):
        e = self.e
        e.wait(vm="csl")
        tags = [self.CL + 1 + 2*j for j in range(8)]
        t = f"v_xor_b32 v{vTMP+3}, s{sT}, v{tags[0]}\nv_xor_b32 v{vTMP+5}, s{sT}, v{tags[1]}\n"
        for k in range(2, 8, 2): t += f"v_bitop3_b32 v{vTMP+3}, v{tags[k]}, s{sT}, v{vTMP+3} bitop3:0xbe\nv_bitop3_b32 v{vTMP+5}, v{tags[k+1]}, s{sT}, v{vTMP+5} bitop3:0xbe\n"
        self.spin(t + f"v_or_b32 v{vTMP+3}, v{vTMP+3}, v{vTMP+5}\nv_cmp_ne_u32 vcc, 0, v{vTMP+3}", [th.txt for th in self.csum_load(ty)], 53)
    def csum_build(self, ty):
        C = self.CL; seq = []
        for k in range(2):
            F = C + 2*k
            seq.append([f"v_add_f32 v{F}, v{F}, v{F+4}", f"v_add_f32 v{F+8}, v{F+8}, v{F+12}", f"v_add_f32 v{F}, v{F}, v{F+8}",
                        f"v_cvt_pk_bf16_f32 v{F+5}, v{F}, v{F}", f"v_and_b32 v{F+1}, 0xffff0000, v{F+5}", f"v_sub_f32 v{F+8}, v{F}, v{F+1}", f"v_cvt_pk_bf16_f32 v{F+4}, v{F+1}, v{F+8}"])
        th = [self.T(seq[k][j]) for j in range(7) for k in range(2)]
        return th + [self.T(f"ds_write_b64 v{vTMP+1+k}, {vr(C+2*k+4,2)} offset:{L_CS}", "cxw") for k in range(2)]
    def csum_get(self, nt):
        return [self.T(f"v_lshlrev_b32 v{vTMP+3}, 3, v{vL}")] + [self.T(f"ds_read_b64 {vr(vAX[dt],2)}, v{vTMP+3} offset:{L_CS + dt*512}", "cxr") for dt in range(nt)]
    def csum_fetch(self, nt):
        return [self.T(f"ds_read_b128 {vr(vCSA[dt],4)}, v{vL16} offset:{L_CS + dt*1024}", "csr") for dt in range(nt)]
    def csum_prep(self, nt):
        th = [self.W(lg="csr")]
        seq = []
        for dt in range(nt):
            F, A = vCSA[dt], vAX[dt]
            seq.append([f"v_add_f32 v{F}, v{F}, v{F+1}", f"v_add_f32 v{F+2}, v{F+2}, v{F+3}", f"v_add_f32 v{F}, v{F}, v{F+2}",
                        f"v_cvt_pk_bf16_f32 v{A+1}, v{F}, v{F}", f"v_and_b32 v{F+1}, 0xffff0000, v{A+1}", f"v_sub_f32 v{F+2}, v{F}, v{F+1}", f"v_cvt_pk_bf16_f32 v{A}, v{F+1}, v{F+2}"])
        for k in range(7):
            for dt in range(nt): th.append(self.T(seq[dt][k]))
        return th
    def csum_apply(self, nt):
        return [self.T(f"v_mfma_f32_32x32x16_bf16 {vr(ACCA+16*dt,16)}, {vr(vAX[dt],4)}, {vr(vBX,4)}, {vr(ACCA+16*dt,16)}") for dt in range(nt)]

    def stats_fetch(self):
        e = self.e
        e(f"s_lshr_b32 s63, s{sXROW}, 1\ns_add_u32 s63, s63, {WS_STATS}\nv_and_b32 v{vTMP+4}, 31, v{vL}\nv_lshlrev_b32 v{vTMP+4}, 4, v{vTMP+4}")
        e(f"buffer_load_dwordx4 {vr(TMP,4)}, v{vTMP+4}, {srd(sWS)}, s63 offen sc1", "stl")
    def stats_use(self, ty):
        e = self.e
        e.wait(vm="stl")
        self.spin(f"v_cmp_ne_u32 vcc, s{sT}, v{TMP+1}\nv_cmp_ne_u32 s[54:55], s{sT}, v{TMP+3}\ns_or_b64 vcc, vcc, s[54:55]",
                  [f"buffer_load_dwordx4 {vr(TMP,4)}, v{vTMP+4}, {srd(sWS)}, s63 offen sc1"], 57)
        m, r = TMP, TMP + 2
        e(f"v_mul_f32 v{vNC1}, {fhex(-LOG2E)}, v{r}\nv_rcp_f32 v{vRINV}, v{r}")
        e(f"v_cvt_pk_bf16_f32 v{vBX}, -v{m}, -v{m}\nv_and_b32 v{TMP+1}, 0xffff0000, v{vBX}\nv_sub_f32 v{TMP+1}, -v{m}, v{TMP+1}")
        e(f"v_mov_b32 v{vBX+2}, 0\nv_mov_b32 v{vBX+3}, 0\nv_cvt_pk_bf16_f32 v{vBX+1}, v{TMP+1}, v{vBX+2}")
        if ty == 1:
            e(f"s_lshl_b32 s60, s{sW}, 7\nv_lshrrev_b32 v{vTMP+4}, 2, v{vTMP+4}\nv_add_u32 v{vTMP+4}, s60, v{vTMP+4}")
            e(f"ds_write_b32 v{vTMP+4}, v{r} offset:{L_RB}", "rbw")

    def silu(self, tiles):
        T = self.T; th = self.TL(f"v_mov_b32 v{vTMP}, v{vNC1}\nv_mov_b32 v{vTMP+1}, v{vNC1}\nv_mov_b32 v{vTMP+2}, v{vRINV}\nv_mov_b32 v{vTMP+3}, v{vRINV}")
        for acc, hb, off in tiles:
            for f in range(2):
                P = TMP + 8 + 4 * f
                for q in range(2):
                    a = acc + 8*f + 4*q
                    u = TMP + 4 * q
                    th += [T(f"v_pk_mul_f32 {vr(u+k,2)}, {vr(a+k,2)}, {vr(vTMP,2)}") for k in (0, 2)]
                    th += [T(f"v_exp_f32 v{u+k}, v{u+k}") for k in range(4)]
                    th += [T(f"v_pk_fma_f32 {vr(u+k,2)}, {vr(u+k,2)}, {vr(vTMP+2,2)}, {vr(vTMP+2,2)}") for k in (0, 2)]
                    th += [T(f"v_rcp_f32 v{u+k}, v{u+k}") for k in range(4)]
                    th += [T(f"v_pk_mul_f32 {vr(u+k,2)}, {vr(u+k,2)}, {vr(a+k,2)}") for k in (0, 2)]
                    th += [T(f"v_cvt_pk_bf16_f32 v{P+2*q+k}, v{u+2*k}, v{u+2*k+1}") for k in range(2)]
                th.append(T(f"buffer_store_dwordx4 {vr(P,4)}, v{vL16}, {srd(sWS)}, s{hb} offen offset:{off + f*1024} {self.o.get('hst', 'sc1')}", "h2")); th[-1].st = True
        return th

    def pipeline2(self, units, LA, bounds, streams, mem, pinned, extra, early, P, between, early2):
        sel = lambda L, lo, hi: [(th, a - lo, b - lo) for th, a, b in L if lo <= a < hi]
        for L in (streams, mem, extra):
            for th, a, b in L: assert (a < P) == (b < P), (a, b)
        sh = lambda d, lo, hi: {k - lo: v for k, v in d.items() if lo <= k < hi}
        N = len(units)
        self.pipeline(units[:P], LA, sh(bounds, 0, P), sel(streams, 0, P), sel(mem, 0, P), sh(pinned, 0, P), sel(extra, 0, P), early)
        run(between)
        u2 = [(u[0], u[1]) for u in units[P:]]
        self.pipeline(u2, LA, sh(bounds, P, N + LA), sel(streams, P, N), sel(mem, P, N), sh(pinned, P, N), sel(extra, P, N), early2, off=P)
    def pipeline(self, units, LA, bounds, streams, mem, pinned, extra, early, off=0):
        e = self.e; N = len(units)
        fills = [[] for _ in range(N)]; mj = [[] for _ in range(N)]; rd = {g: [] for g in range(-LA, N)}
        for th, u0, u1 in mem:
            for i, t in enumerate(th): mj[u0 + i * (u1 - u0 + 1) // len(th)].append(t)
        dat = sorted(b for b in bounds if bounds[b][0])
        w = lambda t: 2 if 'b128' in t.txt else 1
        items = []
        for m in range(N):
            lo = max(max([b for b in dat if b <= m], default=0) - LA, m - self.o['lamax'], units[m][2] if len(units[m]) > 2 else -LA)
            items += [[lo, m - self.o['lamin'], t] for t in units[m][0]]
        ex = [[u0, u1, t] for th, u0, u1 in extra for t in th]
        for g in range(-LA, N):
            room = (2 if mj[g] else 3) if g >= 0 else 4
            room -= self.o['vcap'] * sum(1 for th, u0, u1 in streams if u0 <= g <= u1 and len(th) > 3*(u1 - u0 + 1))
            for lst in (items, ex):
                while lst and lst[0][1] <= g:
                    t = lst.pop(0)[2]; rd[g].append(t); room -= w(t)
            for lst in (items, ex):
                while lst and lst[0][0] <= g and room >= w(lst[0][2]):
                    t = lst.pop(0)[2]; rd[g].append(t); room -= w(t)
        assert not items and not ex
        cap = [max(0.5, 6.0 - len(rd[u]) - 5*len(mj[u])) for u in range(N)]
        for th, u0, u1 in streams:
            for k, grp in zip(range(u0, u1 + 1), spread(th, cap[u0:u1 + 1])): fills[k] += grp
        def boundary(m):
            if m not in bounds: return
            tags, pre = bounds[m]
            if m + off in self.o.get('bst', {}).get(self.ty, ()): self.xs(f"b{self.ty}_{m+off}")
            lt = m + off in self.o.get('lst', {}).get(self.ty, ())
            if lt: self.light()
            if tags: e.wait(vm=tags)
            if lt: self.light()
            run(pre)
            e("s_barrier")
            if lt and self.nl < 4 and not self.o.get('l2'): self.light()
        for u in range(-LA, N):
            if u >= 0:
                e.wait(lg=f"r{u+off}")
                e(units[u][1])
            boundary(u + LA)
            if u >= 0: run(mj[u])
            run(rd[u])
            if u == -1: run(early)
            if u < 0: continue
            run(fills[u]); run(pinned.get(u, []))

    def x_read(self, u, k, dst):
        t, ks = k >> 2, k & 3; sl = self.XSLOT(t)
        if sl < 2: return [self.T(f"ds_read_b128 {ar(dst,4)}, v{vXR[ks]} offset:{sl*4096}", f"r{u}")]
        return [self.T(f"ds_read_b128 {ar(dst,4)}, v{vXR2[ks]}", f"r{u}")]
    def ffn_unit(self, u, k, ad, off, stp, tile, xreg, nb):
        fb = aFB + 4 * ((u + 2) % nb); acc = ACCA + 16*tile
        r = [self.T(f"ds_read_b64_tr_b16 {ar(fb+2*eh,2)}, v{ad} offset:{off + eh*stp}", f"r{u}") for eh in range(2)]
        return r, f"v_mfma_f32_32x32x16_bf16 {vr(acc,16)}, {ar(fb,4)}, {ar(xreg,4)}, {'0' if k == 0 else vr(acc,16)}"

    def z1_rl(self):
        T = self.T; th = []
        R = TMP + 16; t = [TMP + 32 + i for i in range(4)]
        th.append(self.W(lg="rbw"))
        th.append(T(f"s_lshl_b32 s60, s{sW}, 7\nv_lshrrev_b32 v{t[0]}, 5, v{vL}\nv_lshlrev_b32 v{t[0]}, 4, v{t[0]}\nv_add_u32 v{t[0]}, s60, v{t[0]}"))
        th += [T(f"ds_read_b128 {vr(R+4*j,4)}, v{t[0]} offset:{L_RB + j*32}", "rbr") for j in range(4)]
        th += self.TL(f"v_and_b32 v{t[1]}, 31, v{vL}\nv_or_b32 v{t[1]}, s{sBLK}, v{t[1]}\nv_mov_b32 v{t[2]}, {fhex(2.0**-19)}\nv_mov_b32 v{t[3]}, {fhex(2.0**-20)}")
        th.append(T(f"v_cmp_eq_u32 vcc, 0, v{t[1]}\nv_cndmask_b32 v{t[2]}, v{t[2]}, v{t[3]}, vcc"))
        th += self.TL(f"v_mov_b32 v{vTMP}, v{vSIG}\nv_mov_b32 v{vTMP+1}, v{vSIG}")
        th.append(self.W(lg="rbr"))
        th += [T(f"v_mul_f32 v{R+i}, v{R+i}, v{t[2]}") for i in range(16)]
        return th
    def z1_prep(self):
        T = self.T; th = []; R = TMP + 16
        for h in range(2):
            th += [T(f"v_pk_fma_f32 {vr(ACCD+16*h+i,2)}, {vr(ACCD+32+16*h+i,2)}, {vr(vTMP,2)}, {vr(ACCD+16*h+i,2)}") for i in range(0, 16, 2)]
            th += [T(f"v_pk_mul_f32 {vr(ACCD+16*h+i,2)}, {vr(ACCD+16*h+i,2)}, {vr(R+i,2)}") for i in range(0, 16, 2)]
        th += [T(f"v_cvt_pk_bf16_f32 v{ACCD+32+i}, v{ACCD+2*i}, v{ACCD+2*i+1}") for i in range(16)]
        return th
    def z1_mfma(self):
        PT = ACCD + 32; Zr, Zi = ACCD, ACCD + 16
        C = lambda j: ar(aG1+4*j, 4); S = lambda j: ar(aG1+8+4*j, 4); N = lambda j: ar(aG1+16+4*j, 4)
        Tr = lambda j: vr(PT+4*j, 4); Ti = lambda j: vr(PT+8+4*j, 4)
        seq = [(Zr, C(0), Tr(0)), (Zi, N(0), Tr(0)), (Zr, C(1), Tr(1)), (Zi, N(1), Tr(1)), (Zr, S(0), Ti(0)), (Zi, C(0), Ti(0)), (Zr, S(1), Ti(1)), (Zi, C(1), Ti(1))]
        return [self.T(f"v_mfma_f32_32x32x16_bf16 {vr(d,16)}, {a}, {b}, {'0' if i < 2 else vr(d,16)}") for i, (d, a, b) in enumerate(seq)]
    def z1_gather_write(self):
        T = self.T; th = []
        Zr, Zi, PT = ACCD, ACCD + 16, ACCD + 32
        t0, t1 = TMP + 32, TMP + 33
        th += self.TL(f"v_lshrrev_b32 v{t0}, 5, v{vL}\nv_and_b32 v{t1}, 31, v{vL}\nv_lshlrev_b32 v{t1}, 4, v{t1}\nv_lshl_add_u32 v{t0}, v{t0}, 11, v{t1}")
        th.append(T(f"s_lshl_b32 s60, s{sW}, 2\ns_add_u32 s60, s60, {L_FD}\nv_add_u32 v{t0}, s60, v{t0}"))
        for i in range(20):
            if i < 16: th.append(T(f"v_cvt_pk_bf16_f32 v{PT+i}, v{Zr+i}, v{Zi+i}"))
            if i >= 4: th.append(T(f"ds_write_b32 v{t0}, v{PT+i-4} offset:{(8*((i-4)>>2) + (i&3))*512}", "z1w"))
        return th
    def z1_gather_read(self):
        e = self.e
        e(f"v_lshlrev_b32 v{TMP+32}, 4, v0")
        for k in range(4):
            e(f"ds_read_b128 {vr(ACCD+4*k,4)}, v{TMP+32} offset:{L_FD + k*4096}", "z1r")
    def z1_store(self):
        e = self.e
        t0, t1 = TMP + 32, TMP + 33
        e(f"v_lshrrev_b32 v{t0}, 5, v0\nv_and_b32 v{t1}, 31, v0\nv_lshlrev_b32 v{t1}, 4, v{t1}\nv_lshl_add_u32 v{t0}, v{t0}, 13, v{t1}")
        e(f"s_lshl_b32 s60, s{sBLK}, 18\ns_lshl_b32 s54, s{sRB}, 9\ns_add_u32 s60, s60, s54\ns_add_u32 s60, s60, {WS_Z1}")
        e.wait(lg="z1r")
        for k in range(4):
            e(f"buffer_store_dwordx4 {vr(ACCD+4*k,4)}, v{t0}, {srd(sWS)}, s60 offen sc1", "z1s")
            if k < 3: e(f"s_add_u32 s60, s60, 65536")
    def flag_store(self, soff, tag):
        e = self.e
        e(f"v_mov_b32 v{vTMP+4}, 0\nv_mov_b32 v{vTMP+5}, s{sT}\ns_mov_b64 exec, 1")
        e(f"buffer_store_dword v{vTMP+5}, v{vTMP+4}, {srd(sWS)}, s{soff} offen sc1", tag)
        e(f"s_mov_b64 exec, -1")
    def z1_flag(self):
        e = self.e
        e.wait(vm="z1s")
        e(f"s_lshl_b32 s60, s{sBLK}, 10\ns_lshl_b32 s54, s{sW}, 8\ns_add_u32 s60, s60, s54\ns_lshl_b32 s54, s{sRB}, 4\ns_add_u32 s60, s60, s54\ns_add_u32 s60, s60, {WS_Z1F}")
        self.flag_store(60, "z1f")

    def g2_setup(self):
        T = self.T; t0, t1 = TMP + 12, TMP + 13
        th = self.TL(f"""v_add_u32 v{t0}, s{sROT}, v{vL}
v_subrev_u32 v{t1}, 28, v{t0}
v_min_u32 v{t0}, v{t0}, v{t1}
v_subrev_u32 v{t1}, 28, v{t0}
v_min_u32 v{t0}, v{t0}, v{t1}
s_mul_i32 s50, s{sW}, 20
s_lshl_b32 s51, s{sW}, 3
s_add_u32 s51, s51, 60
v_mov_b32 v{t1}, s50
v_cmp_le_u32 vcc, 20, v{t0}
v_mov_b32 v{t1+1}, s51
v_cndmask_b32 v{t1}, v{t1}, v{t1+1}, vcc
v_add_lshl_u32 v{t0}, v{t0}, v{t1}, 10""")
        th += [T(f"v_readlane_b32 s{sKS+n}, v{t0}, {n}") for n in range(28)]
        return th
    def w2_addr_setup(self):
        t0, t1 = TMP + 36, TMP + 37
        return self.TL(f"""v_lshrrev_b32 v{t0}, 3, v{vL}
v_and_b32 v{t1}, 7, v{vL}
v_lshlrev_b32 v{t1}, 4, v{t1}
v_lshl_add_u32 v{t0}, v{t0}, 10, v{t1}
v_and_b32 v{t1}, 16, v{vL}
v_lshlrev_b32 v{t1}, 2, v{t1}
v_xor_b32 v{vW2D[0]}, v{t0}, v{t1}
v_add_u32 v{vW2D[1]}, {8192-1024}, v{vW2D[0]}""")
    def w2_lds(self, n):
        if n < 8: return (16384, L_S2 + n * 2048)
        if n < 12: return (8192, L_XS + (n - 8) * 2048)
        g = n - 12
        if g < 4: return (8192, L_XS + g * 2048)
        if g < 10: return (12288, L_S1 + (g - 4) * 8192)
        return (12288, L_S1 + (g - 10) * 8192)
    def dma_w2(self, n):
        mul, base = self.w2_lds(n)
        sb = {16384: 56, 8192: sXSW, 12288: sW2K}[mul]
        return [self.T(f"s_add_u32 m0, s{sb}, {base}\ns_lshl4_add_u32 s55, s{sKS+n}, s{sQB}\nbuffer_load_dwordx4 v{vW2D[0]}, {srd(sW2)}, s55 offen lds", f"w2_{n}"),
                self.T(f"s_add_u32 m0, s{sb}, {base}\ns_lshl4_add_u32 s55, s{sKS+n}, s{sQB}\nbuffer_load_dwordx4 v{vW2D[1]}, {srd(sW2)}, s55 offen offset:1024 lds", f"w2_{n}")]
    vU = {8192: [9, 10], 12288: [11, 12], 16384: [13, 14]}
    def w2_tr_setup(self):
        t0, t1, t3 = vTMP + 3, vTMP + 4, vTMP + 5
        th = self.TL(f"""v_lshrrev_b32 v{t1}, 5, v{vL}
v_bfe_u32 v{t0}, v{vL}, 2, 2
v_lshl_add_u32 v{t0}, v{t1}, 2, v{t0}
v_and_b32 v{t3}, 3, v{vL}
v_lshlrev_b32 v{t3}, 3, v{t3}
v_and_b32 v{t1}, 16, v{vL}
v_lshl_add_u32 v{t3}, v{t1}, 1, v{t3}
v_lshl_add_u32 v{t3}, v{t0}, 7, v{t3}
v_and_b32 v{t1}, 8, v{vL}
v_lshl_add_u32 v{t3}, v{t1}, 3, v{t3}""")
        for mul, sb, base in ((8192, sXSW, L_XS), (12288, sW2K, L_S1), (16384, 56, L_S2)):
            a = self.vU[mul]
            th += self.TL(f"s_add_u32 s55, s{sb}, {base}\nv_add_u32 v{a[0]}, s55, v{t3}\nv_xor_b32 v{a[1]}, 64, v{a[0]}")
        return th
    def w2_tr(self, n, dst, tag):
        mul, base = self.w2_lds(n)
        off = base - {8192: L_XS, 12288: L_S1, 16384: L_S2}[mul]
        return [self.T(f"ds_read_b64_tr_b16 {ar(dst+4*dt+2*eh,2)}, v{self.vU[mul][dt]} offset:{off+eh*1024}", tag) for dt in range(2) for eh in range(2)]

    def w_base(self, ty, d):
        if ty == 1: return f"s_add_u32 s{d}, s56, {L_S2 + 12288}"
        return f"s_and_b32 s{d}, s{sW}, 1\ns_lshl_b32 s{d}, s{d}, 12\ns_lshr_b32 s54, s{sW}, 1\ns_lshl_b32 s54, s54, 14\ns_add_u32 s{d}, s{d}, s54\ns_add_u32 s{d}, s{d}, {L_S2 + 2*16384 + 8192}"
    def w_dma(self, ty):
        T = self.T
        t0, t1, t2 = TMP + 38, TMP + 39, TMP + 35
        nb = f"v_subrev_u32 v{t2}, 64, v{t1}\nv_cmp_eq_u32 vcc, 6, v{t0}\nv_cndmask_b32 v{t1}, v{t1}, v{t2}, vcc\n" if ty == 1 else ""
        th = [T(f"""v_and_b32 v{t0}, 7, v{vL}
v_cmp_gt_u32 vcc, 5, v{t0}
v_lshlrev_b32 v{t1}, 4, v{t0}
v_cndmask_b32 v{t1}, 0, v{t1}, vcc
s_lshl_b32 s59, s{sCG}, 6
v_add_u32 v{t1}, s59, v{t1}
s_cmp_eq_u32 s{sCG}, 0
s_cselect_b32 s59, 5, 8
v_mov_b32 v{t2}, 0x200
v_cmp_eq_u32 vcc, s59, v{t0}
v_cndmask_b32 v{t1}, v{t1}, v{t2}, vcc
{nb}v_lshrrev_b32 v{t0}, 3, v{vL}
v_mul_u32_u24 v{t0}, 16448, v{t0}
v_add_u32 v{vSD2}, v{t0}, v{t1}
s_lshl_b32 s58, s{sW}, 9
s_add_u32 s58, s58, s{sK1}
s_mul_i32 s58, s58, 514
s_and_b32 s58, s58, -16
{self.w_base(ty, 59)}""")]
        nt = " nt" if self.o['ntw'] else ""
        th.append(T(f"s_mov_b32 m0, s59\ns_nop 0\nbuffer_load_dwordx4 v{vSD2}, {srd(sWR)}, s58 offen{nt} lds", "wl"))
        th.append(T(f"s_add_u32 m0, s59, 2048\ns_nop 0\nbuffer_load_dwordx4 v{vSD2}, {srd(sWI)}, s58 offen{nt} lds", "wl"))
        th.append(T(f"s_add_u32 m0, s59, 1024\ns_add_u32 s58, s58, {8*16448}\nbuffer_load_dwordx4 v{vSD2}, {srd(sWR)}, s58 offen{nt} lds", "wl"))
        th.append(T(f"s_add_u32 m0, s59, 3072\ns_nop 0\nbuffer_load_dwordx4 v{vSD2}, {srd(sWI)}, s58 offen{nt} lds", "wl"))
        return th
    def w_read_prep(self):
        t0, t1 = TMP + 38, TMP + 39
        th = [self.T(f"""v_and_b32 v{t0}, 31, v{vL}
v_or_b32 v{t1}, s{sCG}, v{t0}
v_cmp_eq_u32 vcc, 0, v{t1}
v_lshlrev_b32 v{t0}, 1, v{t0}
v_mov_b32 v{t1}, 80
v_cndmask_b32 v{t0}, v{t0}, v{t1}, vcc
v_lshrrev_b32 v{t1}, 5, v{vL}
v_lshl_add_u32 v{t0}, v{t1}, 9, v{t0}
s_lshl_b32 s54, s{sK1}, 1
s_and_b32 s54, s54, 15
s_add_u32 s54, s54, s59
v_add_u32 v{vSD2}, s54, v{t0}""")]
        return th + [self.T(f"v_mov_b32 v{vW+i}, 0") for i in range(16)]
    def w_read(self):
        th = []
        for z in range(8):
            for a in range(2):
                th.append(self.T(f"ds_read_u16_d16_hi v{vW+2*z+a}, v{vSD2} offset:{(8*(z>>2) + (z&3))*128 + a*2048}", "wr"))
        return th
    def pf_setup(self):
        return self.TL(f"v_and_b32 v{vPF[1]}, 15, v{vL}\nv_lshlrev_b32 v{vPF[1]}, 10, v{vPF[1]}\nv_and_b32 v{vPF[2]}, 16, v{vL}\nv_lshlrev_b32 v{vPF[2]}, 3, v{vPF[2]}\nv_xor_b32 v{vPF[2]}, s{sQB}, v{vPF[2]}\nv_add_u32 v{vPF[1]}, v{vPF[1]}, v{vPF[2]}")
    def pf_w2(self, r):
        return [self.T(f"s_lshl_b32 s54, s{sKS + 12 + r}, 4\nbuffer_load_dword v{vPF[3]}, v{vPF[1]}, {srd(sW2)}, s54 offen", f"pf{r}")]

    def f1(self, ty):
        e = self.e; o = self.o; self.ty = ty; self.nl = 0
        if ty == 0: run(self.dma_w1(ty, 0))
        else:
            run(self.dma_x(1))
            if not o['w1b']: run(self.dma_w1(1, 0) + self.dma_w1(1, 1))
        self.addr_setup()
        if ty == 1: run(self.gen_fd())
        else: run(self.g2_setup()); run(self.gen_a2a3()); run(self.w2_addr_setup()); run(self.dma_w1(ty, 1)[:o['w11']])
        self.stamp(1)
        e.wait(vm="stat")
        self.stats()
        wd = self.w_dma(ty)
        if ty == 0: run(self.dma_w1(ty, 1)[o['w11']:])
        self.stamp(2)
        if ty == 1: run(self.gen_g1() + self.g2_setup() + self.w2_addr_setup() + self.pf_setup())
        self.stamp(3)
        units, bounds, streams, mem, pinned, extra = [], {}, [], [], {}, []
        def pin(n, th): pinned.setdefault(n, []).extend(th)
        def csum(u0, u1, um, tag, tiles, first):
            rd, mm = self.csum_grp(tag, tiles, first)
            extra.append((rd, u0, u1)); pin(um, mm)
        zero_ax = lambda nt: sum([self.TL(f"v_mov_b32 v{vAX[dt]+2}, 0\nv_mov_b32 v{vAX[dt]+3}, 0") for dt in range(nt)], [])
        own = lambda a, b: sum([self.dma_w2(12 + g) for g in range(a, b)], [])
        wrd = self.w_read_prep() + [self.W(vm='wl')]
        aXB = 192
        LA, NB = 4, 8
        share = o['share'][ty]
        vPA, vPD = TMP + 36, TMP + 37
        def zpoll():
            e(f"s_lshr_b32 s60, s{sK1}, 1\ns_and_b32 s60, s60, 3\ns_lshl_b32 s60, s60, 8\ns_lshl_b32 s54, s{sCG}, 10\ns_add_u32 s60, s60, s54\ns_add_u32 s63, s60, {WS_Z1F}")
            e(f"v_and_b32 v{vPA}, 15, v{vL}\nv_lshlrev_b32 v{vPA}, 4, v{vPA}")
            self.poll_issue(vPA, 63, vPD, "pz1")
        def zcheck():
            self.xs("z1 check")
            self.poll_check(vPA, 63, vPD, "pz1")
            self.xs("z1 seen")
            e(f"s_lshl_b32 s60, s{sCG}, 5\ns_add_u32 s60, s60, s{sK1}\ns_lshl_b32 s60, s60, 13\ns_add_u32 s60, s60, s{sW2K}\ns_add_u32 s60, s60, {WS_Z1}\ns_add_u32 m0, s{sW2K}, {L_ZB}")
            for i in range(2): e(f"buffer_load_dwordx4 v{vL16}, {srd(sWS)}, s60 offen offset:{i*1024} sc1 lds", "zb")
        if ty == 0:
            nt = 5
            for k in range(32):
                t, ks = k >> 2, k & 3
                for tl in range(5):
                    u = 5*k + tl
                    if tl < 4:
                        ad, off = self.pair_addr(0, t, tl >> 1)
                        r, mf = self.ffn_unit(u, k, ad[tl & 1], off + ks*2048, 512, tl, aXB + 4*(k % 3), NB)
                    else: r, mf = self.ffn_unit(u, k, vTS, SING[t % 4] - L_S2 + ks*1024, 256, 4, aXB + 4*(k % 3), NB)
                    if tl == 0: r = self.x_read(u, k, aXB + 4*(k % 3)) + r
                    units.append((r, mf))
            for t in range(8):
                b = 20*t
                bounds[b] = ([f"x{t}", f"w1_{t}"], [])
                u0 = max(0, b - LA + 1)
                tiles = []
                for pr in range(2):
                    ad, off = self.pair_addr(0, t, pr, True)
                    tiles += [(ad[i], off, 512, 2*pr + i) for i in range(2)]
                tiles.append((vCSS, SING[t % 4] - L_S2, 256, 4))
                if t < 2 or (t < 7 and not share): csum(u0, u0 + 12, u0 + 15, f"c{t}", tiles, t == 0)
                elif not share: csum(u0, u0 + 7, u0 + 10, f"c{t}", tiles, False)
            jobs = [self.dma_x(t + 2) + self.dma_w1(0, t + 2) for t in range(6)]
            x1 = self.dma_x(1); early = x1[:2]; mem.append((x1[2:] + jobs[0], 0, 16))
            for t in range(1, 6): mem.append((jobs[t], 20*t - LA + 1, 20*t + 14))
            pin(110, [self.stats_fetch]); pin(126, [lambda: self.stats_use(0)])
            C0, CB, C1, C2, C3 = 36, 60, o['csA'][0], o['csA'][1], o['csA'][2]
            streams.append((zero_ax(5), 100, 110))
            a = o['wA']
            mem.append((wd[:1], a, a)); pin(a + 1, wd[1:3]); pin(a + 2, wd[3:])
            streams.append((wrd, 118, 128)); extra.append((self.w_read(), 129, 146))
            a, b, c = o['ownA']
            mem.append((own(0, 2), a, b - 1)); mem.append((own(4, 6), b, c - 1)); mem.append((own(2, 4) + own(6, o['nown']), c, 159))
            htiles = [(ACCA + 16*i, sHB2, 2048*i) for i in range(2)] + [(ACCA + 32 + 16*i, 53, 2048*i) for i in range(2)] + [(ACCA + 64, sHB1, 0)]
        else:
            nt = 2; P0 = 64
            for k in range(32):
                t, ks = k >> 2, k & 3
                for cs in range(2):
                    u = 2*k + cs
                    r = self.x_read(u, k, aX + 4*k) if cs == 0 else []
                    if not t & 1:
                        r.append(self.T(f"ds_read_b128 {ar(aFB+8*ks+4*cs,4)}, v{vFD} offset:{(t>>1)*8192+ks*2048+cs*1024}", f"r{u}"))
                    d = ACCD + 32*(t & 1) + 16*cs
                    units.append((r, f"v_mfma_f32_32x32x16_bf16 {vr(d,16)}, {ar(aX+4*k,4)}, {ar(aFB+8*ks+4*cs,4)}, {'0' if k in (0, 4) else vr(d,16)}", u - 6))
            for t in range(8): bounds[8*t] = ([f"x{t}"], [])
            jobs = [self.dma_x(t + 2) for t in range(6)]
            early = jobs[0][:1]; mem.append((jobs[0][1:], 0, 4))
            for t in range(1, 6): mem.append((jobs[t], 8*t - LA + 1, 8*t + 4))
            mem.append(((self.dma_w1(1, 0) + self.dma_w1(1, 1) if o['w1b'] else []) + wd, 45, 54)); mem.append((self.dma_w1(1, 2) + self.dma_w1(1, 3), 55, 62)); mem.append((self.dma_w1(1, 4) + self.dma_w1(1, 5), 64, 71))
            pin(44, [self.stats_fetch]); pin(54, [lambda: self.stats_use(1)])
            streams.append((zero_ax(2), P0 + 12, P0 + 20))
            P = 64
            for k in range(32):
                t, ks = k >> 2, k & 3
                ad, off = self.pair_addr(1, t, 0)
                for tl in range(2): units.append(self.ffn_unit(P + 2*k + tl, k, ad[tl], off + ks*2048, 512, tl, aX + 4*k, NB) + (P + 2*k + tl - (4 if k < 4 else 6),))
            for t in range(8):
                b = P + 8*t
                bounds[b] = ([f"w1_{t}"], [])
                ad, off = self.pair_addr(1, t, 0, True)
                if t < 2 or not share: csum(max(P, b - LA + 1), max(P + 1, b - LA + 2), b + (3 if t == 0 else (1 if t < 7 else 0)), f"c{t}", [(ad[i], off, 512, i) for i in range(2)], t == 0)
                if 2 <= t < 4: mem.append((self.dma_w1(1, t + 4), b - 1, b + 2))
            streams.append((self.z1_rl(), 55, 62))
            gb = P + 8 * o['z1g']
            streams.append((self.z1_gather_write(), P, gb - LA - 1))
            bounds[gb] = (bounds[gb][0], [self.W(lg="z1w")])
            pin(gb - LA, [self.z1_gather_read]); pin(gb - LA + 2, [self.z1_store])
            if o['warm2']:
                t0 = TMP + 36
                mem.append(([self.T(f"v_min_u32 v{t0}, 27, v{vL}\nv_lshlrev_b32 v{t0}, 7, v{t0}\ns_lshr_b32 s54, s2, 4\ns_lshl_b32 s54, s54, 3\ns_and_b32 s60, s2, 7\ns_add_u32 s54, s54, s60\ns_lshl_b32 s54, s54, 2\ns_add_u32 s54, s54, s{sW}\ns_mul_i32 s54, s54, 3584\nbuffer_load_dword v{t0+1}, v{t0}, {srd(sW2)}, s54 offen", "warm")], o['warm2'], o['warm2']))
            for r, u in enumerate(o['pfat'] or []): mem.append((self.pf_w2(r), u, u))
            streams.append((wrd, P + 18, P + 26)); extra.append((self.w_read(), P + 27, P + 40))
            mem.append((own(0, o['nown']), P + o['ownB'], P + 63))
            C0, CB, C1, C2, C3 = P + 11, P + 16, P + o['csB'][0], P + o['csB'][1], P + o['csB'][2]
            pin(P + o['z1f'], [self.z1_flag])
            htiles = [(ACCA, sHB2, 0), (ACCA + 16, sHB2, 2048)]
        if share:
            pin(C0, self.csum_publish(nt))
            bounds[CB] = (bounds[CB][0], bounds[CB][1] + [self.W(lg="csw")])
            rd, th, st = self.csum_send(ty)
            pin(CB - LA, rd); streams.append((th, CB - LA + 2, CB + 1)); mem.append((st, CB + 2, CB + 2))
            mem.append((self.csum_load(ty), C1, C1 + 3))
            pin(C2, [lambda: self.csum_check(ty)])
            streams.append((self.csum_build(ty), C2 + 1, C3 - 1))
            bounds[C3 + LA] = ([], [self.W(lg="cxw")])
            pin(C3, self.csum_get(nt))
            for i, m in enumerate(self.csum_apply(nt)): pin(C3 + 3 + i, ([self.W(lg="cxr")] if i == 0 else []) + [m])
            assert C3 + 3 + nt <= len(units)
        else:
            Y = 148 if ty == 0 else P + 57
            pin(Y, self.csum_publish(nt))
            bounds[Y + 2 + LA] = ([], [self.W(lg="csw")])
            pin(Y + 2, self.csum_fetch(nt))
            streams.append((self.csum_prep(nt), Y + 3, len(units) - 2))
            pin(len(units) - 1, self.csum_apply(nt))
        if ty == 0: self.pipeline(units, LA, bounds, streams, mem, pinned, extra, early)
        else:
            zm = self.z1_mfma()
            self.pipeline2(units, LA, bounds, streams, mem, pinned, extra, early, P, self.z1_prep() + zm[:4], zm[4:])
        self.light_dump()
        self.stamp(6)
        e("s_barrier")
        self.xs("E bar")
        e(f"s_add_u32 s53, s{sHB2}, 4096")
        side = own(o['nown'], 10)
        for n in range(o['epl']): side += self.dma_w2(n)
        sil = self.silu(htiles)
        if ty == 1: sil += self.gen_a2a3()
        sil = merge(sil, side, int(len(sil) * o['epfrom']))
        sil += self.w2_tr_setup()
        if o.get('silst'):
            for i in (3, 2, 1): sil.insert(len(sil)*i//4, lambda i=i: self.xs(f'sil{i}'))
        k1, k2 = [int(len(sil) * f) for f in o['zpoll'][ty]]
        run(sil[:k1]); zpoll(); run(sil[k1:k2]); zcheck(); run(sil[k2:])
    def greads(self, g):
        return [self.W(vm=f"w2_{12+g}")] + self.w2_tr(12 + g, aX + 8*g, f"g{g}") + ([self.W(lg=f"g{g-2}")] if g >= 2 else [])
    vPA, vPD = 6, 7

    def spin(self, test, loads, lane):
        e = self.e
        again, back = e.label("again"), e.label("back")
        if self.stamps: e(f"s_mov_b32 s{sPOLL}, 0")
        e(test)
        e(f"s_cbranch_vccnz {again} ; soft")
        e(f"{back}: ; soft")
        if self.stamps: e(f"v_writelane_b32 v{vSTAMP}, s{sPOLL}, {lane}")
        loop = e.label("loop")
        e.cold += [f"{again}:", f"    s_mov_b32 s{sPOLL}, 0", f"{loop}:"] + ["    " + l for l in loads] + ["    s_waitcnt vmcnt(0)"]
        e.cold += ["    " + l for l in test.split("\n")]
        e.cold += [f"    s_add_u32 s{sPOLL}, s{sPOLL}, 1", f"    s_cbranch_vccz {back}", f"    s_cmp_gt_u32 s{sPOLL}, 20000", f"    s_cbranch_scc0 {loop}", f"    s_branch {back}"]
    def poll_issue(self, addr_v, soff, dst, tag):
        self.e(f"buffer_load_dword v{dst}, v{addr_v}, {srd(sWS)}, s{soff} offen sc1", tag)
    def poll_check(self, addr_v, soff, dst, tag):
        e = self.e
        e.wait(vm=tag)
        self.spin(f"v_cmp_ne_u32 vcc, s{sT}, v{dst}", [f"buffer_load_dword v{dst}, v{addr_v}, {srd(sWS)}, s{soff} offen sc1"], {'pz1': 54, 'phf': 55, 'pz3': 56}[tag])

    IFD, S4R, S4I = 128, 192, 208
    def gen_s4(self):
        T = self.T; th = []
        n1, inc, ang, sg = 32, 33, 34, 35
        regs = [(36, 37), (38, 39)]
        th += self.TL(f"""v_and_b32 v{n1}, 1, v{vL}
s_mov_b32 s60, 0x80008000
v_mul_lo_u32 v{sg}, v{n1}, s60
v_and_b32 v{n1}, 31, v{vL}
v_cvt_f32_u32 v{n1}, v{n1}
v_mul_f32 v{inc}, {fhex(1/32)}, v{n1}
v_lshrrev_b32 v{n1}, 5, v{vL}
v_lshlrev_b32 v{n1}, 2, v{n1}
v_cvt_f32_u32 v{n1}, v{n1}
v_mul_f32 v{ang}, v{n1}, v{inc}""")
        def use(g, cs):
            c, s_ = cs[0]
            return [T(f"v_cvt_pk_bf16_f32 v{self.S4R+g}, v{c}, -v{s_}"), T(f"v_cvt_pk_bf16_f32 v{self.S4I+g}, v{s_}, v{c}"),
                    T(f"v_xor_b32 v{self.S4R+8+g}, v{self.S4R+g}, v{sg}"), T(f"v_xor_b32 v{self.S4I+8+g}, v{self.S4I+g}, v{sg}")]
        th += self.trig(8, ang, inc, lambda i: 1 if (i & 3) < 3 else 5, regs, use)
        return th
    def gen_ifd(self, dt):
        T = self.T; th = []
        d, inc, ang, t0 = 40, 41, 42, 43
        Z = [96, 98, 100, 102]; RHO, TM, SP = 104, 106, 114
        th.append(T(f"""v_and_b32 v{d}, 31, v{vL}
s_lshl_b32 s60, s{sQ}, 6
s_add_u32 s60, s60, {32*dt}
v_add_u32 v{d}, s60, v{d}
v_lshrrev_b32 v{t0}, 5, v{vL}
v_lshlrev_b32 v{t0}, 1, v{t0}
s_lshl_b32 s60, s{sW}, 6
v_add_u32 v{t0}, s60, v{t0}
v_cmp_eq_u32 vcc, 0, v{t0}
v_mul_u32_u24 v{t0}, v{t0}, v{d}
v_and_b32 v{t0}, 511, v{t0}
v_cvt_f32_u32 v{ang}, v{t0}
v_mul_f32 v{ang}, {fhex(1/512)}, v{ang}
v_cvt_f32_u32 v{inc}, v{d}
v_and_b32 v{t0}, 1, v{d}
v_lshlrev_b32 v{t0}, 15, v{t0}
v_xor_b32 v{SP}, 0x3f80, v{t0}
v_mul_f32 v{t0}, {fhex(1/64)}, v{inc}
v_mul_f32 v{inc}, {fhex(1/512)}, v{inc}
v_cos_f32 v{RHO}, v{t0}
v_sin_f32 v{RHO+1}, v{t0}"""))
        for q in range(4):
            th += [T(f"v_cos_f32 v{Z[q]}, v{ang}"), T(f"v_sin_f32 v{Z[q]+1}, v{ang}")]
            if q < 3: th.append(T(f"v_add_f32 v{ang}, v{ang}, v{inc}") if not q & 1 else T(f"v_fmac_f32 v{ang}, {fhex(3.0)}, v{inc}"))
        for g in range(8):
            r = self.rot(Z, RHO, TM) if g < 7 else []
            cv = [T(f"v_cvt_pk_bf16_f32 v{self.IFD + (g*2+dt)*4 + q}, v{Z[q]}, -v{Z[q]+1}") for q in range(4)]
            th += cv + r
            if g == 0: th.append(T(f"v_cndmask_b32 v{self.IFD + dt*4}, v{self.IFD + dt*4}, v{SP}, vcc"))
        return th

    def post(self):
        e = self.e; T = self.T; o = self.o
        vPA, vPD = self.vPA, self.vPD
        self.stamp(7)
        q = sum([self.dma_w2(n) for n in range(o['epl'], 8)], [])
        def dma(k):
            nonlocal q
            r = q[:k]; q = q[k:]; return r
        gr = lambda g: self.greads(g)[:5]
        e(f"s_lshl_b32 s50, s{sRB}, 1\ns_lshr_b32 s51, s{sW}, 1\ns_add_u32 s50, s50, s51\ns_lshl_b32 s50, s50, 2\ns_lshr_b32 s51, s{sBLK}, 1\ns_add_u32 s50, s50, s51\ns_lshl_b32 s50, s50, 3")
        e(f"s_lshl_b32 s51, s{sTY}, 2\ns_add_u32 s50, s50, s51\ns_and_b32 s51, s{sBLK}, 1\ns_lshl_b32 s51, s51, 1\ns_add_u32 s50, s50, s51\ns_and_b32 s51, s{sW}, 1\ns_add_u32 s50, s50, s51")
        e(f"s_lshl_b32 s50, s50, 4\ns_add_u32 s50, s50, {WS_HF}")
        e.wait(vm="zb"); self.xs("zb landed"); e("s_barrier"); self.xs("bar1")
        ZF = 192
        for t in range(8): e(f"ds_read_b128 {ar(ZF+4*t,4)}, v{vL16} offset:{L_ZB + t*1024}", f"zf{t}")
        D = 64
        for t in range(8):
            e.wait(lg=f"zf{t}")
            e(f"v_mfma_f32_32x32x16_bf16 {vr(D,16)}, {ar(aA2+4*t,4)}, {ar(ZF+4*t,4)}, {'0' if t == 0 else vr(D,16)}")
            if t < o['st2d']: run(dma(1))
            if t >= 4: run(gr(t - 4))
        self.xs("st2 issued")
        def hflag():
            self.xs("pre h2 wait"); e.wait(vm="h2"); self.xs("h2 done"); self.flag_store(50, "hf")
        if o['hfat'] == 0: hflag()
        P = 96
        ops = []
        for z in range(8):
            xr, xi, wr_, wi_ = D + 2*z, D + 2*z + 1, vW + 2*z, vW + 2*z + 1
            u = 80 + 2*z
            ops.append([f"v_mul_f32 v{u}, v{xr}, v{wr_}", f"v_mul_f32 v{u+1}, v{xr}, v{wi_}", f"v_fma_f32 v{u}, -v{xi}, v{wi_}, v{u}", f"v_fmac_f32 v{u+1}, v{xi}, v{wr_}", f"v_cvt_pk_bf16_f32 v{P+z}, v{u}, v{u+1}"])
        e(f"v_add_u32 v{vTMP}, s{sW2K}, v{vL16}")
        for z0 in (0, 2, 4, 6):
            for k in range(5): e(ops[z0][k]); e(ops[z0+1][k])
            if o['hfat'] == 0: run(dma(1))
            if z0 == 4: e(f"ds_write_b128 v{vTMP}, {vr(P,4)} offset:{L_ZX}", "zxw")
        run(dma(1))
        e(f"ds_write_b128 v{vTMP}, {vr(P+4,4)} offset:{L_ZX + 1024}", "zxw")
        if o['hfat'] == 1: hflag()
        run(dma(2))
        e.wait(lg="zxw"); e("s_barrier"); self.xs("bar2")
        q += sum([self.dma_w2(n) for n in range(8, 12)], [])
        for t in range(8): e(f"ds_read_b128 {ar(ZF+4*t,4)}, v{vL16} offset:{L_ZX + t*1024}", f"zg{t}")
        adr = self.TL(f"""v_lshrrev_b32 v{vTMP+1}, 4, v{vL}
v_bfe_u32 v{vTMP+2}, v{vL}, 3, 1
v_lshlrev_b32 v{vTMP+2}, 12, v{vTMP+2}
v_lshl_add_u32 v{vTMP+2}, v{vTMP+1}, 16, v{vTMP+2}
v_and_b32 v{vTMP+3}, 15, v{vL}
v_lshlrev_b32 v{vTMP+3}, 2, v{vTMP+3}
v_lshl_add_u32 v{vTMP+3}, v{vTMP+1}, 7, v{vTMP+3}
v_add_u32 v{vTMP+3}, s{sW2K}, v{vTMP+3}
v_and_b32 v{vTMP+1}, 7, v{vL}
v_lshl_add_u32 v{vTMP+1}, v{vTMP+1}, 4, v{vTMP+2}
s_lshl_b32 s51, s{sW}, 19
s_lshl_b32 s52, s{sK1}, 7
s_add_u32 s51, s51, s52
s_lshl_b32 s52, s{sCG}, 13
s_add_u32 s51, s51, s52
s_add_u32 s51, s51, {WS_Z3}
s_add_u32 s52, s51, {4*65536}""")
        hadr = self.TL(f"""s_lshl_b32 s50, s{sP}, 2
s_add_u32 s50, s50, s{sW}
s_lshl_b32 s50, s50, 7
s_add_u32 s58, s50, {WS_HF}
v_and_b32 v{vPA}, 7, v{vL}
v_lshlrev_b32 v{vPA}, 4, v{vPA}""")
        run(hadr)
        if o['hpe']: self.poll_issue(vPA, 58, vPD, "phf")
        adr = spread(adr, [0.5] + [1]*8); run(adr[0])
        for t in range(8):
            e.wait(lg=f"zg{t}")
            e(f"v_mfma_f32_32x32x16_bf16 {vr(D,16)}, {ar(aA3+4*t,4)}, {ar(ZF+4*t,4)}, {'0' if t == 0 else vr(D,16)}")
            run(dma(1) + adr[t + 1])
        self.xs('st3 issued')
        for k in range(8): e(f"v_cvt_pk_bf16_f32 v{P+k}, v{D+2*k}, v{D+2*k+1}")
        for k in range(8): e(f"ds_write_b32 v{vTMP+3}, v{P+k} offset:{L_ZB + (k>>1)*512 + (k&1)*64}", "zww")
        e.wait(lg="zww")
        self.xs('zww')
        e("s_barrier")
        self.xs("st3 packed")
        for k in range(2): e(f"ds_read_b128 {vr(D+4*k,4)}, v{vTMP} offset:{L_ZB + k*1024}", "zwr")
        e.wait(lg="zwr")
        for k in range(2): e(f"buffer_store_dwordx4 {vr(D+4*k,4)}, v{vTMP+1}, {srd(sWS)}, s{51+k} offen sc1", "z3s")
        if not o['hpe']: self.poll_issue(vPA, 58, vPD, "phf")
        self.stamp(9)
        vH = self.vH
        e(f"s_mul_i32 s50, s{sP}, {2*112*1024}\ns_add_u32 s50, s50, {WS_H}\nv_add_u32 v{vH[0]}, s50, v{vL16}\nv_add_u32 v{vH[1]}, {112*1024}, v{vH[0]}")
        run(merge(sum([self.greads(g) for g in range(4, 10)], []), q))
        self.xs("pre hpoll")
        self.poll_check(vPA, 58, vPD, "phf")
        e(f"s_lshl_b32 s50, s{sW}, 3\ns_add_u32 s50, s50, s{sCG}\ns_lshl_b32 s50, s50, 5\ns_add_u32 s50, s50, s{sK1}\ns_lshl_b32 s50, s50, 4\ns_add_u32 s50, s50, {WS_Z3F}")
        self.stamp(10)
        self.g2(None)

    vH, vO, vRD, vZD, vZ, XR = [19, 20], 4, 5, 8, [15, 16, 17, 18], 48
    def g2_addr(self):
        e = self.e
        vH, vO, vZD, vZ = self.vH, self.vO, self.vZD, self.vZ
        th = []
        class _E:
            def __call__(_, x): th.extend(self.TL(x))
        e = _E()
        e(f"""v_lshrrev_b32 v{vTMP}, 3, v{vL}
v_and_b32 v{vTMP+1}, 1, v{vTMP}
v_bfe_u32 v{vTMP+2}, v{vTMP}, 1, 1
v_lshrrev_b32 v{vTMP+3}, 2, v{vTMP}
v_lshl_add_u32 v{vTMP+1}, v{vTMP+3}, 1, v{vTMP+1}
v_lshl_add_u32 v{vTMP+3}, v{vTMP+2}, 2, v{vTMP+1}
v_and_b32 v{vTMP+4}, 7, v{vL}
v_lshlrev_b32 v{vO}, 4, v{vTMP+4}
v_lshl_add_u32 v{vO}, v{vTMP+3}, 16, v{vO}
v_lshlrev_b32 v5, 8, v{vTMP+1}
v_lshl_add_u32 v5, v{vTMP+2}, 7, v5
v_and_b32 v{vTMP+1}, 3, v{vL}
v_lshl_add_u32 v5, v{vTMP+1}, 5, v5
v_bfe_u32 v{vTMP+1}, v{vL}, 2, 1
v_mul_u32_u24 v{vTMP+1}, {RED_TS}, v{vTMP+1}
v_add_u32 v5, v5, v{vTMP+1}
s_lshl_b32 s60, s{sW}, 10
v_add_u32 v5, s60, v5
s_lshl_b32 s59, s{sW}, 19
s_lshl_b32 s60, s{sP}, 11
s_add_u32 s59, s59, s60
s_add_u32 s59, s59, s{sQB}""")
        e(f"""v_lshrrev_b32 v{vTMP}, 5, v{vL}
v_bfe_u32 v{vTMP+1}, v{vL}, 2, 2
v_lshl_add_u32 v{vTMP}, v{vTMP}, 3, v{vTMP+1}
v_lshlrev_b32 v{vTMP}, 6, v{vTMP}
v_and_b32 v{vTMP+1}, 3, v{vL}
v_lshl_add_u32 v{vTMP}, v{vTMP+1}, 3, v{vTMP}
v_and_b32 v{vTMP+1}, 16, v{vL}
v_lshl_add_u32 v{vTMP}, v{vTMP+1}, 1, v{vTMP}
s_add_u32 s60, s{sW2K}, {L_MISC}
v_add_u32 v{vZ[0]}, s60, v{vTMP}""")
        return th

    def g2(self, q2):
        e = self.e; T = self.T; o = self.o
        HB, HD = 192, o['hd']
        LB = 160
        ZF = 128
        ACC = 64
        vH, vO, vZD, vZ, XR = self.vH, self.vO, self.vZD, self.vZ, self.XR
        def hload(n):
            return [T(f"buffer_load_dwordx4 {ar(HB + 8*(n % HD) + 4*rt, 4)}, v{vH[rt]}, {srd(sWS)}, s{sKS+n} offen sc1", f"h{n}") for rt in range(2)]
        H0 = o['h0']
        if not o['hpe']: self.flag_store(50, "z3f")
        for n in range(H0): run(hload(n))
        rest = sum([hload(n) for n in range(H0, HD)], [])
        ifd = merge(self.gen_ifd(0) + self.gen_ifd(1), rest)
        k = int(len(ifd) * o['z3fat'])
        run(ifd[:k])
        if o['hpe']: e.wait(vm="z3s"); self.flag_store(50, "z3f")
        run(ifd[k:])
        shadow = spread(self.g2_addr() + self.gen_s4(), [1] * o['nsh'])
        late = sum([self.dma_w2(12 + g) for g in range(10, 16)], [])
        e.wait(lg="g9")
        self.xs("ifd done")
        lreads = lambda n: [self.W(vm=f"w2_{n}")] + self.w2_tr(n, LB + 8*(n % 3), f"l{n}")
        run(lreads(0)); run(lreads(1))
        e(f"s_lshr_b32 s50, s{sP}, 3\ns_lshl_b32 s50, s50, 3\ns_lshl_b32 s51, s{sW}, 1\ns_add_u32 s50, s50, s51\ns_lshl_b32 s50, s50, 9\ns_add_u32 s58, s50, {WS_Z3F}")
        e(f"s_lshl_b32 s50, s{sP}, 16\ns_add_u32 s50, s50, s56\ns_add_u32 s50, s50, {WS_Z3}")
        z3d = lambda mt: [T(f"s_add_u32 m0, s{sW2K}, {L_MISC + (2*mt + (i >> 1))*8192 + (i & 1)*1024}\ns_add_u32 s51, s50, {mt*4096 + i*1024}\nbuffer_load_dwordx4 v{vL16}, {srd(sWS)}, s51 offen sc1 lds", f"z3d{mt}") for i in range(4)]
        xres = [T(f"buffer_load_dwordx4 {vr(XR+4*rt,4)}, v{vO}, {srd(sX)}, s59 offen offset:{rt*1024}", "xr") for rt in range(2)]
        DR, DI, PK = 224, 240, 32
        def zreads(mt):
            return [T(f"ds_read_b64_tr_b16 {ar(ZF + 16*(mt&1) + 4*ks + 2*eh, 2)}, v{vZ[0]} offset:{(2*mt + (ks >> 1))*8192 + (ks & 1)*1024 + eh*256}", f"z{mt}_{ks}") for ks in range(4) for eh in range(2)]
        def tail_a(mt):
            for ks in range(4):
                e.wait(lg=f"z{mt}_{ks}")
                fr = ar(ZF + 16*(mt&1) + 4*ks, 4)
                e(f"v_mfma_f32_32x32x16_bf16 {vr(DR,16)}, {fr}, {vr(self.S4R+4*ks,4)}, {'0' if ks == 0 else vr(DR,16)}")
                e(f"v_mfma_f32_32x32x16_bf16 {vr(DI,16)}, {fr}, {vr(self.S4I+4*ks,4)}, {'0' if ks == 0 else vr(DI,16)}")
        def tail_cvt(mt):
            return [T(f"v_cvt_pk_bf16_f32 v{PK + (jj*2+rt)*4 + q}, v{DR + 8*jj + 4*(q>>1) + 2*(q&1) + rt}, v{DI + 8*jj + 4*(q>>1) + 2*(q&1) + rt}") for jj in range(2) for rt in range(2) for q in range(4)]
        def tail_b(mt):
            for jj in range(2):
                for rt in range(2):
                    for dt in range(2):
                        A = ACC + (rt*2+dt)*16
                        e(f"v_mfma_f32_32x32x16_bf16 {vr(A,16)}, {vr(PK+(jj*2+rt)*4,4)}, {vr(self.IFD+((mt*2+jj)*2+dt)*4,4)}, {vr(A,16)}")
        ZP, ZC, ZD, TT, GA = o['zp'], o['zc'], o['zd'], o['tt'], o['ga']
        for n in range(28):
            side = []
            if n + 2 < 12: side += lreads(n + 2)
            side += late[2*n:2*n + 2]
            if n in GA: side += self.greads(10 + 2*GA.index(n))[:5] + self.greads(11 + 2*GA.index(n))[:5]
            if n < len(shadow): side = merge(shadow[n], side)
            if n == ZP: side.append(lambda: self.poll_issue(vL16, 58, 7, "pz3"))
            for mt in range(4):
                if n == ZD[mt]: side += ([self.W(lg=f"g{9 + 2*mt}")] if mt else []) + z3d(mt)[:2]
                if n == ZD[mt] + 1: side += z3d(mt)[2:]
                if n == TT[mt] - 1: side += [self.W(vm=f"z3d{mt}")] + zreads(mt)
            if n == o['xat']: side += xres
            mt = TT.index(n) if n in TT else None
            TS, tb = 1, 0
            if mt is not None: side += tail_cvt(mt)
            if n in o.get('g2st', (1, 4, 8, 12, 16, 20, 24)): self.xs(f"g2 n{n}")
            if n == ZC:
                self.stamp(11); self.poll_check(vL16, 58, 7, "pz3"); self.stamp(12)
            if mt is not None:
                tail_a(mt)
                if mt == 3: e('s_barrier')
            e.wait(vm=f"h{n}")
            if n < 12: e.wait(lg=f"l{n}")
            grp = spread(side, [1, 1, 1, 1])
            if mt is not None and tb % TS == 0: grp = [[]] + spread(side, [1, 1, 1])
            for i, (rt, dt) in enumerate(((0, 0), (0, 1), (1, 0), (1, 1))):
                A = ACC + (rt*2+dt)*16
                B = ar(LB + 8*(n % 3) + 4*dt, 4) if n < 12 else ar(aX + 8*(n-12) + 4*dt, 4)
                e(f"v_mfma_f32_32x32x16_bf16 {vr(A,16)}, {ar(HB + 8*(n % HD) + 4*rt, 4)}, {B}, {'0' if n == 0 else vr(A,16)}")
                if n + HD < 28 and dt == 1: run(hload(n + HD)[rt:rt+1])
                run(grp[i])
            if mt is not None and tb % TS == 0: tail_b(mt)
        self.stamp(13)
        e(f"s_mul_i32 m0, s{sW}, {RED_WS}")
        for i in range(64):
            e(f"ds_write_addtid_b32 v{ACC+i} offset:{(i>>4)*RED_TS + (i&15)*256}", "rw")
        e.wait(lg="all"); self.xs("red written"); e("s_barrier"); self.xs("red bar2")
        R = 128
        for rt in range(2):
            for pw in range(4):
                for k in range(2):
                    e(f"ds_read_b128 {vr(R + rt*32 + pw*8 + 4*k, 4)}, v5 offset:{pw*RED_WS + rt*2*RED_TS + 16*k}", f"rr{rt}_{pw}")
        e.wait(vm="xr")
        for rt in range(2):
            X = 64 + 8*rt
            for i in range(4):
                e(f"v_lshlrev_b32 v{X+2*i}, 16, v{XR+4*rt+i}\nv_and_b32 v{X+2*i+1}, 0xffff0000, v{XR+4*rt+i}")
            for pw in range(4):
                e.wait(lg=f"rr{rt}_{pw}")
                for i in range(4):
                    e(f"v_pk_add_f32 {vr(X+2*i,2)}, {vr(X+2*i,2)}, {vr(R + rt*32 + pw*8 + 2*i, 2)}")
            for i in range(4):
                e(f"v_cvt_pk_bf16_f32 v{80+4*rt+i}, v{X+2*i}, v{X+2*i+1}")
            e(f"buffer_store_dwordx4 {vr(80+4*rt,4)}, v{vO}, {srd(sOUT)}, s59 offen offset:{rt*1024} {o.get('ost', '')}")
        done = e.label("nq")
        e(f"s_or_b32 s50, s2, s{sW}\ns_cmp_lg_u32 s50, 0\ns_cbranch_scc1 {done}\ns_mov_b32 s50, {WS_Q}")
        self.flag_store(50, "q")
        e(f"{done}:")
        if self.stamps:
            self.stamp(14)
            e(f"s_memrealtime s[94:95]"); e.l.append("    s_waitcnt lgkmcnt(0)")
            e(f"v_writelane_b32 v{vSTAMP}, s94, 16")
            e(f"s_lshl_b32 s50, s2, 2\ns_add_u32 s50, s50, s{sW}\ns_lshl_b32 s50, s50, 8\ns_add_u32 s50, s50, {WS_DBG}\nv_lshlrev_b32 v{vTMP}, 2, v{vL}")
            e(f"buffer_store_dword v{vSTAMP}, v{vTMP}, {srd(sWS)}, s50 offen")

    def build(self):
        e = self.e
        self.prologue()
        snap = e.snapshot()
        e(f"s_cmp_eq_u32 s{sTY}, 1\ns_cbranch_scc1 L_typeB")
        self.f1(0)
        endA = e.snapshot()
        e("s_branch L_join\nL_typeB:")
        e.restore(snap)
        self.f1(1)
        endB = e.snapshot()
        self.e.vm = self.join(endA[0], endB[0]); self.e.lg = self.join(endA[1], endB[1])
        e("L_join:")
        self.post()
        e("L_end:\ns_endpgm")
        e.l += e.cold
        lines, nn = pad_hazards(e.l)
        hdr = open("parallel_sum__spectral_gfnet__dense_activation_silu__prompt.s.ref").read().split("; Override")[0]
        out = hdr + "; @launch grid=(256,1,1) block=(256,1,1) lds=163840\n"
        out += '.amdgcn_target "amdgcn-amd-amdhsa--gfx950"\n.text\n'
        out += f".globl {KNAME}\n.p2align 8\n.type {KNAME},@function\n{KNAME}:\n"
        out += "\n".join(lines) + "\n"
        out += f""".section .rodata,"a"
.p2align 6
.amdhsa_kernel {KNAME}
  .amdhsa_next_free_vgpr 512
  .amdhsa_next_free_sgpr 102
  .amdhsa_accum_offset 256
  .amdhsa_group_segment_fixed_size 0
  .amdhsa_kernarg_size 72
  .amdhsa_user_sgpr_count 2
  .amdhsa_user_sgpr_kernarg_segment_ptr 1
  .amdhsa_system_sgpr_workgroup_id_x 1
.end_amdhsa_kernel
"""
        return out, nn, len(lines)
    @staticmethod
    def join(a, b):
        def after(l):
            d = {}
            for i, t in enumerate(l): d[t] = len(l) - 1 - i
            return d
        da, db = after(a), after(b)
        n = {t: min(da.get(t, 10**9), db.get(t, 10**9)) for t in set(da) | set(db) if t is not None}
        m = max(n.values()) + 1 if n else 0
        q = [None] * m
        res = []
        for pos in range(m - 1, -1, -1):
            tags = [t for t, v in n.items() if v == pos]
            res.append(MultiTag(tags))
        return res

class MultiTag:
    def __init__(self, tags): self.tags = set(tags)
    def __eq__(self, o): return (o in self.tags) if not isinstance(o, MultiTag) else self is o
    def __hash__(self): return id(self)

if __name__ == "__main__":
    import argparse
    ap = argparse.ArgumentParser()
    ap.add_argument("-o", default="parallel_sum__spectral_gfnet__dense_activation_silu__prompt.s")
    ap.add_argument("--stamps", action="store_true")
    ap.add_argument("--opt", action="append", default=[])
    a = ap.parse_args()
    opts = {}
    for kv in a.opt:
        k, v = kv.split("="); opts[k] = eval(v)
    g = Gen(a.stamps, opts)
    txt, nn, nl = g.build()
    import json; open(a.o + ".names", "w").write(json.dumps(g.xnames))
    open(a.o, "w").write(txt)
    print("lines", nl, "nops added", nn)
```

```python
import sys
from emit import E, pad_hazards

KNAME = "parallel_sum__spectral_gfnet__dense_activation_silu__prompt_kernel"

WS_Q     = 0
WS_STATS = 0x10000
WS_Z1F   = 0x20000
WS_HF    = 0x24000
WS_Z3F   = 0x28000
WS_CSG   = 0xD00000
WS_Z1    = 0x100000
WS_Z3    = 0x300000
WS_H     = 0x500000
WS_DBG   = 0xC00000
WS_SIZE  = 0x1000000

L_XS, L_MISC, L_S1, L_S2 = 0, 32768, 49152, 98304
L_CS = L_MISC + 8192
L_RB = L_MISC + 8192 + 5120
L_ZB = L_MISC
L_ZX = L_MISC + 8192
L_FD = L_S1
PAIR = [L_S1 + i*8192 for i in range(6)] + [L_S2 + 4096, L_S2 + 16384 + 4096]
SING = [L_S2 + 12288, L_S2 + 16384 + 12288, L_S2 + 2*16384 + 4096, L_S2 + 3*16384 + 4096]
BSLOT = [L_S2 + i*16384 + 4096 for i in range(4)] + [L_S1 + 32768, L_S1 + 40960]
RED_TS = 4096 + 16
RED_WS = 4 * RED_TS

sX, sW1, sW2, sWS, sWR, sWI, sOUT = 4, 8, 12, 16, 20, 24, 28
sT, sW, sRB, sBLK, sTY, sC0, sK1, sCG, sP, sQ = 32, 33, 34, 35, 36, 37, 38, 39, 40, 41
sXROW, sCOL1, sCOL2, sHB1, sHB2, sXSW, sQB, sPOLL = 42, 43, 44, 45, 46, 47, 48, 49
sCSG = 57
sXS3, sW2K, sROT = 61, 62, 63
sKS = 64
sSTAMP = 92
def srd(n): return f"s[{n}:{n+3}]"

vTID, vL = 0, 1
vXD = [2, 3, 4, 5]; vSD = [6, 7]; vS1D = 8
vXR = [9, 10, 11, 12]; vT1 = [13, 14]; vT2 = [15, 16]; vTS = 17; vFD = 18
vC1 = [19, 20]; vC2 = [21, 22]; vCS = 8 + 224
vNC1, vRINV, vSIG, vL16 = 23, 24, 25, 26
vSTAMP = 27
vBX = 28; vAX = [32, 36, 160, 164, 176]; vCSA = [40, 44, 168, 172, 180]; vCSF = [48, 52, 144, 148, 152]
vONES = 56
vTMP = 58
vSD2 = 236; vCSS = 237; vW2D = [238, 239]; vPF = [112, 113, 114, 115]
vXR2 = [232, 233, 234, 235]
ACCA, ACCD = 64, 128
vW = 240
TMP = 192
aX, aG1, aFB = 0, 192, 216
aA2, aA3 = 128, 160

TRANS_ = ('v_exp_f32', 'v_rcp_f32', 'v_sin_f32', 'v_cos_f32', 'v_rsq_f32')
LOG2E = 1.4426950408889634
def fhex(f):
    import struct
    return "0x%08x" % struct.unpack("<I", struct.pack("<f", f))[0]
def vr(a, n): return f"v[{a}:{a+n-1}]"
def ar(a, n): return f"a[{a}:{a+n-1}]"

def merge(main, side, start=0, end=None):
    end = len(main) if end is None else end
    out = list(main[:start]); n = end - start; k = len(side); j = 0
    for i in range(n):
        out.append(main[start + i])
        while j < k and (j + 1) * n <= (i + 1) * k:
            out.append(side[j]); j += 1
    out += side[j:]
    out += main[end:]
    return out
def run(ths):
    for t in ths: t()
def cost(th): return getattr(th, 'cost', 1)
def spread(fill, caps):
    tot = sum(cost(t) for t in fill); cap = sum(caps)
    out = [[] for _ in caps]; acc = 0.0; g = 0; lim = caps[0] * tot / cap if cap else 0
    for t in fill:
        while g < len(caps) - 1 and acc + cost(t) / 2 > lim:
            g += 1; lim += caps[g] * tot / cap
        out[g].append(t); acc += cost(t)
    return out

class Gen:
    def __init__(self, stamps=False, opts=None):
        self.e = E(); self.stamps = stamps; self.nst = 0; self.xnames = []
        self.o = dict(ntw=False, pf=True, s2at={6: [0, 1, 2], 7: [3, 4, 5]}, w2p2=5, z1f=34, h0=6, pfw2=True, pfat=None, xrot=True, lep=[4, 4], hd=8, zp=6, zc=8, zd=(8, 12, 16, 20), tt=(12, 16, 20, 24), ga=(8, 10, 12), xat=22, nsh=8, hpe=0, w11=2, csA=(112, 134, 142), csB=(36, 50, 55), h1=0, wA=94, warm2=63, z3fat=0.45, ifdw=1.0, hfat=0, lamax=6, lamin=3, vcap=0, epl=0, st2d=8, epfrom=0.3, nown=7, ownA=(116, 124, 140), ownB=28, share=[1, 0], w1b=45, prel=4, nlate=4, zpoll=[(0.25, 0.65), (0.25, 0.65)], z1g=2)
        self.o.update(opts or {})
    def stamp(self, i):
        if not self.stamps or (self.o.get('only') is not None and i not in self.o['only']): return
        e = self.e
        e(f"{'s_memrealtime' if self.o.get('rt', 1) else 's_memtime'} s[{sSTAMP}:{sSTAMP+1}]"); e.l.append("    s_waitcnt lgkmcnt(0)"); e.lg = []
        e(f"v_writelane_b32 v{vSTAMP}, s{sSTAMP}, {i if i < 15 else i + 5}")
    def light(self):
        if self.nl < 5: self.e(f"s_memtime s[{92+2*self.nl}:{93+2*self.nl}]"); self.nl += 1
    def light_dump(self):
        if not self.o.get('lst'): return
        self.e.l.append("    s_waitcnt lgkmcnt(0)"); self.e.lg = []
        for i in range(self.nl): self.e(f"v_writelane_b32 v{vSTAMP}, s{92+2*i}, {58+i}")
    def xs(self, name):
        if not (self.stamps and self.o.get('xs')): return
        if name not in self.xnames: self.xnames.append(name)
        self.stamp(15 + self.xnames.index(name))
    def dst(self, region):
        if self.o.get('detail') != region: return
        pairs = self.dpairs
        if self.nd < len(pairs):
            self.e(f"s_memtime s[{pairs[self.nd]}:{pairs[self.nd]+1}]"); self.nd += 1
    def dbegin(self, region, pairs):
        if self.o.get('detail') == region: self.nd = 0; self.dpairs = pairs
    def dend(self, region):
        if self.o.get('detail') != region: return
        self.e.l.append("    s_waitcnt lgkmcnt(0)"); self.e.lg = []
        for i in range(self.nd): self.e(f"v_writelane_b32 v{vSTAMP}, s{self.dpairs[i]}, {20+i}")
        run(self.g2_setup())
    def T(self, s, tag=None):
        f = lambda: self.e(s, tag)
        f.cost = sum(2 if x.split()[0] in TRANS_ else 1 for x in s.split("\n") if x.strip()); f.txt = s
        return f
    def W(self, vm=None, lg=None):
        f = lambda: self.e.wait(vm=vm, lg=lg)
        f.cost = 0.5
        return f
    def TL(self, s):
        return [self.T(x) for x in s.split("\n") if x.strip()]

    def prologue(self):
        e = self.e
        e("s_cmp_ge_u32 s2, 256\ns_cbranch_scc1 L_end")
        e(f"s_load_dwordx2 s[{sX}:{sX+1}], s[0:1], 0\ns_load_dwordx4 s[52:55], s[0:1], 32\ns_load_dwordx2 s[{sWS}:{sWS+1}], s[0:1], 64")
        e(f"s_load_dwordx4 s[56:59], s[0:1], 8\ns_load_dwordx2 s[{sOUT}:{sOUT+1}], s[0:1], 48")
        if self.stamps:
            e(f"s_memrealtime s[94:95]\ns_memtime s[96:97]")
            self.start_saved = False
        e(f"v_and_b32 v{vL}, 63, v0\nv_lshrrev_b32 v{vTMP}, 6, v0\nv_lshlrev_b32 v{vL16}, 4, v{vL}\nv_readfirstlane_b32 s{sW}, v{vTMP}")
        if self.o['pf']:
            e(f"s_getpc_b64 s[50:51]\ns_lshr_b32 s60, s2, 3\ns_lshl_b32 s60, s60, 11")
            e(f"s_and_b32 s61, s{sW}, 1\ns_lshl_b32 s61, s61, 10\ns_add_u32 s60, s60, s61\ns_min_u32 s60, s60, L_end-{KNAME}-1280")
            e(f"s_add_u32 s50, s50, s60\ns_addc_u32 s51, s51, 0")
            e(f"v_mov_b32 v{vTMP+1}, s51\nv_add_co_u32 v{vTMP}, vcc, s50, v{vL16}\nv_addc_co_u32 v{vTMP+1}, vcc, 0, v{vTMP+1}, vcc")
            e(f"global_load_dwordx4 {vr(TMP+8,4)}, {vr(vTMP,2)}, off", "pf")
        e(f"""s_and_b32 s50, s2, 7
s_lshr_b32 s51, s2, 3
s_lshr_b32 s60, s50, 1
s_lshl_b32 s60, s60, 2
s_lshr_b32 s61, s51, 3
s_add_u32 s{sRB}, s60, s61
s_and_b32 s62, s51, 7
s_and_b32 s{sTY}, s62, 1
s_and_b32 s63, s50, 1
s_lshl_b32 s{sBLK}, s63, 2
s_lshr_b32 s60, s62, 1
s_add_u32 s{sBLK}, s{sBLK}, s60
s_add_u32 s{sC0}, s62, s61
s_and_b32 s{sC0}, s{sC0}, 7
s_lshl_b32 s{sK1}, s50, 2
s_add_u32 s{sK1}, s{sK1}, s61
s_mov_b32 s{sCG}, s62
s_mov_b32 s{sP}, s{sK1}
s_mov_b32 s{sQ}, s62
s_lshl_b32 s63, s63, 3
s_add_u32 s63, s63, s62""")
        e(f"s_lshl_b32 s60, s{sRB}, 2\ns_add_u32 s60, s60, s{sW}\ns_lshl_b32 s{sXROW}, s60, 10\ns_lshl_b32 s{sXSW}, s{sW}, 13")
        e(f"""s_mul_i32 s60, s{sBLK}, 320
s_and_b32 s50, s{sBLK}, 1
s_lshl_b32 s51, s50, 6
s_add_u32 s51, s51, s60
s_lshl_b32 s50, s50, 8
s_sub_u32 s{sCOL1}, s60, s50
s_add_u32 s{sCOL1}, s{sCOL1}, 256
s_lshl_b32 s61, s{sBLK}, 7
s_add_u32 s61, s61, 2560
s_cmp_eq_u32 s{sTY}, 0
s_cselect_b32 s{sCOL2}, s51, s61""")
        e(f"s_mul_i32 s60, s{sXROW}, 112\ns_add_u32 s60, s60, {WS_H}\ns_lshl_b32 s61, s{sCOL1}, 5\ns_add_u32 s{sHB1}, s60, s61\ns_lshl_b32 s61, s{sCOL2}, 5\ns_add_u32 s{sHB2}, s60, s61")
        t0, t1, t2 = vTMP, vTMP+1, vTMP+2
        e(f"""v_lshrrev_b32 v{t0}, 3, v{vL}
v_and_b32 v{t1}, 7, v{vL}
v_lshrrev_b32 v{t2}, 4, v{vL}
v_xor_b32 v{t1}, v{t1}, v{t2}
v_lshlrev_b32 v{t1}, 4, v{t1}
v_lshl_add_u32 v{vXD[0]}, v{t0}, 16, v{t1}
v_xor_b32 v{vXD[1]}, 64, v{vXD[0]}
v_add_u32 v{vXD[2]}, {2*(524288-1024)}, v{vXD[0]}
v_add_u32 v{vXD[3]}, {3*(524288-1024)}, v{vXD[1]}
v_add_u32 v{vXD[1]}, {524288-1024}, v{vXD[1]}""")
        e(f"""v_lshrrev_b32 v{t1}, 5, v{vL}
v_and_b32 v{t2}, 31, v{vL}
v_lshlrev_b32 v{t2}, 4, v{t2}
v_lshl_add_u32 v{t2}, v{t1}, 16, v{t2}
s_lshl_b32 s60, s63, 17
s_add_u32 s60, s60, s{sXROW}""")
        e(f"""s_lshl_b32 s61, s{sW}, 4
v_add_u32 v{t0}, s61, v{t0}
v_mul_u32_u24 v{t0}, 3584, v{t0}
v_and_b32 v{t1}, 7, v{vL}
v_lshlrev_b32 v{t1}, 4, v{t1}
v_and_b32 v{vTMP+3}, 16, v{vL}
v_lshlrev_b32 v{vTMP+3}, 2, v{vTMP+3}
v_xor_b32 v{t1}, v{t1}, v{vTMP+3}
v_add_u32 v{vSD[0]}, v{t0}, v{t1}
v_add_u32 v{vSD[1]}, {8*3584-1024}, v{vSD[0]}
v_lshrrev_b32 v{t0}, 2, v{vL}
v_add_u32 v{t0}, s61, v{t0}
v_mul_u32_u24 v{t0}, 3584, v{t0}
v_and_b32 v{t1}, 3, v{vL}
v_lshl_add_u32 v{vS1D}, v{t1}, 4, v{t0}""")
        e.l.append("    s_waitcnt lgkmcnt(0)")
        if self.stamps: e(f"v_writelane_b32 v{vSTAMP}, s96, 0\nv_writelane_b32 v{vSTAMP}, s94, 15")
        e(f"s_mov_b32 s{sX+2}, 2097152\ns_mov_b32 s{sX+3}, 0x20000")
        e(f"buffer_load_dwordx4 {vr(TMP,4)}, v{t2}, {srd(sX)}, s60 offen", "stat")
        e(f"buffer_load_dwordx4 {vr(TMP+4,4)}, v{t2}, {srd(sX)}, s60 offen offset:512", "stat")
        e(f"s_load_dword s{sT}, s[{sWS}:{sWS+1}], {WS_Q}")
        e(f"s_mov_b32 s{sW1}, s52\ns_mov_b32 s{sW1+1}, s53\ns_mov_b32 s{sW1+2}, 1835008\ns_mov_b32 s{sW1+3}, 0x20000")
        run(self.dma_x(0))
        e(f"s_mov_b32 s{sW2}, s54\ns_mov_b32 s{sW2+1}, s55\ns_mov_b32 s{sW2+2}, 1835008\ns_mov_b32 s{sW2+3}, 0x20000")
        e(f"s_mov_b32 s{sWS+2}, {WS_SIZE}\ns_mov_b32 s{sWS+3}, 0x20000")
        e(f"s_mov_b32 s{sWR}, s56\ns_mov_b32 s{sWR+1}, s57\ns_mov_b32 s{sWR+2}, 1052672\ns_mov_b32 s{sWR+3}, 0x20000")
        e(f"s_mov_b32 s{sWI}, s58\ns_mov_b32 s{sWI+1}, s59\ns_mov_b32 s{sWI+2}, 1052672\ns_mov_b32 s{sWI+3}, 0x20000")
        e(f"s_mov_b32 s{sOUT+2}, 2097152\ns_mov_b32 s{sOUT+3}, 0x20000")
        e(f"s_mov_b32 s{sPOLL}, s63")
        e(f"s_lshl_b32 s{sXS3}, s{sW}, 10\ns_lshl_b32 s{sW2K}, s{sW}, 11\ns_lshl_b32 s{sQB}, s{sQ}, 7\ns_lshl_b32 s56, s{sW}, 14")
        e(f"s_lshr_b32 s50, s{sRB}, 2\ns_lshl_b32 s50, s50, 4\ns_add_u32 s50, s50, s63\ns_lshl_b32 s50, s50, 2\ns_add_u32 s50, s50, s{sW}\ns_lshl_b32 s50, s50, 12\ns_add_u32 s{sCSG}, s50, {WS_CSG}")
        e(f"s_mul_i32 s50, s{sQ}, 7\ns_lshr_b32 s50, s50, 1\ns_and_b32 s51, s{sP}, 3\ns_mul_i32 s51, s51, 7\ns_add_u32 s{sROT}, s50, s51")
        if self.o['xrot']: e(f"s_and_b32 s50, s2, 7\ns_add_u32 s{sROT}, s{sROT}, s50\ns_cmp_ge_u32 s{sROT}, 28\ns_cselect_b32 s50, 28, 0\ns_sub_u32 s{sROT}, s{sROT}, s50")

    def chunk(self, t, d):
        return f"s_add_u32 s{d}, s{sC0}, {(t>>1) + 4*(t&1)}\ns_and_b32 s{d}, s{d}, 7\n"
    XSLOT = staticmethod(lambda t: (t + 1) % 3)
    def dma_x(self, t):
        sl = self.XSLOT(t)
        pre = self.chunk(t, 50) + f"s_lshl_b32 s50, s50, 7\ns_add_u32 s50, s50, s{sXROW}\n"
        m0 = f"s_add_u32 m0, s{sXSW}, {L_XS + sl*4096}\n" if sl < 2 else f"s_add_u32 m0, s56, {L_S2}\n"
        return [self.T((m0 + pre if i == 0 else m0) + f"buffer_load_dwordx4 v{vXD[i]}, {srd(sX)}, s50 offen offset:{i*1024} lds", f"x{t}") for i in range(4)]
    def dma_w1(self, ty, t):
        pre = self.chunk(t, 51) + f"s_mul_i32 s51, s51, {64*3584}\ns_add_u32 s52, s51, s{sCOL1}\ns_add_u32 s51, s51, s{sCOL2}\n"
        T = lambda x: self.T(x, f"w1_{t}")
        th = []
        for pr in range(2 - ty):
            p = PAIR[2*(t % 4) + pr] if ty == 0 else BSLOT[t % 6]
            so = "s51" if pr == 0 else "s53"
            th += [T((pre if pr == 0 else "s_add_u32 s53, s51, 128\n") + f"s_add_u32 m0, s{sW2K}, {p}\nbuffer_load_dwordx4 v{vSD[0]}, {srd(sW1)}, {so} offen lds"),
                   T(f"s_add_u32 m0, s{sW2K}, {p}\nbuffer_load_dwordx4 v{vSD[1]}, {srd(sW1)}, {so} offen offset:1024 lds")]
        if ty == 0:
            th.append(T(f"s_add_u32 m0, s{sXS3}, {SING[t % 4]}\nbuffer_load_dwordx4 v{vS1D}, {srd(sW1)}, s52 offen lds"))
        return th

    def addr_setup(self):
        e = self.e
        t0, t1, t2, t3 = vTMP, vTMP+1, vTMP+2, vTMP+3
        e(f"""v_and_b32 v{t0}, 31, v{vL}
v_lshrrev_b32 v{t1}, 5, v{vL}
v_bfe_u32 v{t2}, v{vL}, 1, 3
v_xor_b32 v{t2}, v{t2}, v{t1}
v_lshlrev_b32 v{t2}, 4, v{t2}
v_lshl_add_u32 v{t2}, v{t0}, 7, v{t2}
v_add_u32 v{vXR[0]}, s{sXSW}, v{t2}
v_xor_b32 v{vXR[1]}, 32, v{vXR[0]}
v_xor_b32 v{vXR[2]}, 64, v{vXR[0]}
v_xor_b32 v{vXR[3]}, 96, v{vXR[0]}
s_add_u32 s50, s56, {L_S2}
v_add_u32 v{vXR2[0]}, s50, v{t2}
v_xor_b32 v{vXR2[1]}, 32, v{vXR2[0]}
v_xor_b32 v{vXR2[2]}, 64, v{vXR2[0]}
v_xor_b32 v{vXR2[3]}, 96, v{vXR2[0]}""")
        e(f"""v_bfe_u32 v{t0}, v{vL}, 2, 2
v_lshl_add_u32 v{t2}, v{t1}, 3, v{t0}
v_and_b32 v{t3}, 3, v{vL}
v_lshlrev_b32 v{t3}, 3, v{t3}
v_and_b32 v{vTMP+4}, 16, v{vL}
v_lshl_add_u32 v{t3}, v{vTMP+4}, 1, v{t3}
v_lshl_add_u32 v{vTS}, v{t2}, 6, v{t3}
v_add_u32 v{vTS}, {L_S2}, v{vTS}
v_lshl_add_u32 v{t3}, v{t2}, 7, v{t3}
v_and_b32 v{vTMP+4}, 8, v{vL}
v_lshl_add_u32 v{t3}, v{vTMP+4}, 3, v{t3}
v_add_u32 v{vT1[0]}, {L_S1}, v{t3}
v_xor_b32 v{vT1[1]}, 64, v{vT1[0]}
v_add_u32 v{vT2[0]}, {L_S2}, v{t3}
v_xor_b32 v{vT2[1]}, 64, v{vT2[0]}
s_lshl_b32 s50, s{sW}, 11
v_add_u32 v{vC2[0]}, s50, v{vT2[0]}
v_add_u32 v{vC2[1]}, s50, v{vT2[1]}
v_add_u32 v{vC1[0]}, s50, v{vT1[0]}
v_add_u32 v{vC1[1]}, s50, v{vT1[1]}
v_add_u32 v{vCSS}, s{sXS3}, v{vTS}
v_add_u32 v{vFD}, {L_FD}, v{vL16}
v_mov_b32 v{vONES}, 0x3f803f80
v_mov_b32 v{vONES+1}, 0x3f803f80""")

    def stats(self):
        e = self.e
        U = TMP + 16
        for i in range(8):
            e(f"v_lshlrev_b32 v{U+2*i}, 16, v{TMP+i}\nv_and_b32 v{U+2*i+1}, 0xffff0000, v{TMP+i}")
        def reduce(src, n, acc):
            e(f"v_add_f32 v{acc}, v{src}, v{src+1}\nv_add_f32 v{acc+1}, v{src+2}, v{src+3}")
            for i in range(4, n, 2):
                e(f"v_add_f32 v{acc}, v{acc}, v{src+i}\nv_add_f32 v{acc+1}, v{acc+1}, v{src+i+1}")
            e(f"v_add_f32 v{acc}, v{acc}, v{acc+1}")
            for k in (8, 4, 2, 1):
                e(f"v_add_f32_dpp v{acc}, v{acc}, v{acc} row_ror:{k} row_mask:0xf bank_mask:0xf")
            e(f"v_mov_b32 v{acc+1}, v{acc}\nv_permlane16_swap_b32 v{acc}, v{acc+1}\nv_add_f32 v{acc}, v{acc}, v{acc+1}")
        M = TMP + 32
        reduce(U, 16, M)
        e(f"v_mul_f32 v{M}, {fhex(1/512)}, v{M}")
        for i in range(16):
            e(f"v_sub_f32 v{U+i}, v{U+i}, v{M}")
        for i in range(16):
            e(f"v_mul_f32 v{U+i}, v{U+i}, v{U+i}")
        reduce(U, 16, M+2)
        e(f"v_mov_b32 v{M+3}, {fhex(1e-5)}\nv_fmac_f32 v{M+3}, {fhex(1/512)}, v{M+2}\nv_rsq_f32 v{M+2}, v{M+3}")
        e.l.append("    s_waitcnt lgkmcnt(0)"); e.lg = []
        e(f"s_mul_i32 s{sT}, s{sT}, 0x9E3779B1\ns_add_u32 s{sT}, s{sT}, 0x7F4A7C15")
        e(f"v_mov_b32 v{M+1}, s{sT}\nv_mov_b32 v{M+3}, s{sT}")
        e(f"s_lshr_b32 s54, s{sXROW}, 1\ns_lshl_b32 s60, s{sPOLL}, 5\ns_add_u32 s54, s54, s60\ns_add_u32 s54, s54, {WS_STATS}")
        e(f"v_lshrrev_b32 v{vTMP}, 5, v{vL}\nv_lshlrev_b32 v{vTMP}, 4, v{vTMP}\nv_and_b32 v{vTMP+1}, 31, v{vL}\nv_cmp_eq_u32 vcc, 0, v{vTMP+1}")
        e(f"s_and_saveexec_b64 s[58:59], vcc")
        e(f"buffer_store_dwordx4 {vr(M,4)}, v{vTMP}, {srd(sWS)}, s54 offen sc1", "statst")
        e(f"s_mov_b64 exec, s[58:59]")

    def trig(self, n, ang, inc, step, regs, use, group=1, first=None):
        T = self.T; th = []; pend = []
        for g in range(n // group):
            cs = []
            for b in range(group):
                i = g*group + b
                c, s_ = regs[(g & 1)*group + b]
                a = first if (first is not None and i == 0) else ang
                th += [T(f"v_cos_f32 v{c}, v{a}"), T(f"v_sin_f32 v{s_}, v{a}")]
                if i < n - 1:
                    k = step(i)
                    th.append(T(f"v_add_f32 v{ang}, v{ang}, v{inc}") if k == 1 else T(f"v_fmac_f32 v{ang}, {fhex(float(k))}, v{inc}"))
                cs.append((c, s_))
            th += pend
            pend = use(g, cs)
        return th + pend

    def rot(self, zs, rho, tmp):
        T = self.T
        return ([T(f"v_pk_mul_f32 {vr(tmp+2*i,2)}, {vr(z,2)}, {vr(rho,2)} op_sel_hi:[1,0]") for i, z in enumerate(zs)] +
                [T(f"v_pk_fma_f32 {vr(z,2)}, {vr(z,2)}, {vr(rho,2)}, {vr(tmp+2*i,2)} op_sel:[1,1,0] op_sel_hi:[0,1,1] neg_lo:[0,1,0]") for i, z in enumerate(zs)])
    def gen_a2a3(self):
        T = self.T; th = []
        t0, t1, t2, t3, k2, n2, sg = [TMP + 16 + i for i in range(7)]
        ang, inc = TMP + 24, TMP + 25
        regs = [(TMP + 26, TMP + 27), (TMP + 28, TMP + 29)]
        pk = TMP + 26
        th += self.TL(f"""v_bfe_u32 v{t0}, v{vL}, 4, 1
v_bfe_u32 v{t1}, v{vL}, 3, 1
v_bfe_u32 v{t2}, v{vL}, 2, 1
v_bfe_u32 v{t3}, v{vL}, 1, 1
v_lshl_add_u32 v{k2}, v{t1}, 1, v{t3}
v_lshl_add_u32 v{k2}, v{t2}, 2, v{k2}
v_lshl_add_u32 v{k2}, v{t0}, 3, v{k2}
s_lshl_b32 s54, s{sW}, 4
v_add_u32 v{k2}, s54, v{k2}
v_and_b32 v{n2}, 1, v{vL}
v_cvt_f32_u32 v{ang}, v{n2}
v_mul_f32 v{ang}, 0x3e800000, v{ang}
v_cvt_f32_u32 v{inc}, v{k2}
v_mul_f32 v{inc}, {fhex(1/64)}, v{inc}
v_lshrrev_b32 v{k2}, 5, v{vL}
v_lshlrev_b32 v{k2}, 2, v{k2}
v_cvt_f32_u32 v{k2}, v{k2}
v_fmac_f32 v{ang}, v{k2}, v{inc}
s_mov_b32 s54, 0x80008000
v_mul_lo_u32 v{sg}, v{t3}, s54""")
        def use(dst, neg):
            def f(g, cs):
                c, s_ = cs[0]; p = TMP + 30 + 2*(g & 1)
                return [T(f"v_cvt_pk_bf16_f32 v{p}, v{c}, {'-' if neg else ''}v{s_}"), T(f"v_xor_b32 v{p+1}, v{p}, v{sg}"),
                        T(f"v_accvgpr_write_b32 a{dst+g}, v{p}"), T(f"v_accvgpr_write_b32 a{dst+16+g}, v{p+1}")]
            return f
        st4 = lambda i: 1 if (i & 3) < 3 else 5
        th += self.trig(16, ang, inc, st4, regs, use(aA2, False))
        self.n_a2 = len(th)
        th += self.TL(f"""v_bfe_u32 v{n2}, v{vL}, 3, 2
v_lshl_add_u32 v{n2}, v{n2}, 1, v{t2}
v_and_b32 v{t0}, 1, v{vL}
v_lshl_add_u32 v{n2}, v{n2}, 1, v{t0}
s_mov_b32 s54, 0x80008000
v_mul_lo_u32 v{sg}, v{t0}, s54
s_lshl_b32 s54, s{sW}, 4
v_add_u32 v{n2}, s54, v{n2}
v_cvt_f32_u32 v{n2}, v{n2}
v_mul_f32 v{inc}, {fhex(1/64)}, v{n2}
v_cvt_f32_u32 v{ang}, v{t3}
v_mul_f32 v{ang}, 0xbe800000, v{ang}
v_cvt_f32_u32 v{t0}, s{sK1}
v_mul_f32 v{t0}, {fhex(1/2048)}, v{t0}
v_fmac_f32 v{ang}, v{t0}, v{n2}
v_fmac_f32 v{ang}, v{k2}, v{inc}""")
        th += self.trig(16, ang, inc, st4, regs, use(aA3, True))
        return th

    def gen_fd(self):
        T = self.T; th = []
        kc, inc, ang, t0 = TMP + 12, TMP + 13, TMP + 14, TMP + 15
        regs = [(TMP + 16 + 2*i, TMP + 17 + 2*i) for i in range(4)]
        PC, PS = TMP + 24, TMP + 32
        th += self.TL(f"""v_and_b32 v{kc}, 31, v{vL}
s_lshl_b32 s50, s{sBLK}, 5
v_add_u32 v{kc}, s50, v{kc}
v_and_b32 v{t0}, 1, v{kc}
v_lshlrev_b32 v{t0}, 31, v{t0}
v_xor_b32 v{vSIG}, 1.0, v{t0}
v_mov_b32 v{t0}, 0x100
v_cmp_eq_u32 vcc, 0, v{kc}
v_cndmask_b32 v{kc}, v{kc}, v{t0}, vcc
s_add_u32 s50, s{sC0}, s{sW}
s_lshl_b32 s50, s50, 6
v_lshrrev_b32 v{t0}, 5, v{vL}
v_lshlrev_b32 v{t0}, 3, v{t0}
v_add_u32 v{t0}, s50, v{t0}
v_mul_u32_u24 v{t0}, v{t0}, v{kc}
v_and_b32 v{t0}, 511, v{t0}
v_cvt_f32_u32 v{ang}, v{t0}
v_mul_f32 v{ang}, {fhex(1/512)}, v{ang}
v_cvt_f32_u32 v{inc}, v{kc}
v_mul_f32 v{inc}, {fhex(1/512)}, v{inc}
s_lshl_b32 s50, s{sW}, 13
v_add_u32 v{t0}, s50, v{vFD}""")
        def use(g, cs):
            ks, q = g >> 2, g & 3; o = 4*(ks & 1)
            r = [T(f"v_cvt_pk_bf16_f32 v{PC+o+q}, v{cs[0][0]}, v{cs[1][0]}"), T(f"v_cvt_pk_bf16_f32 v{PS+o+q}, -v{cs[0][1]}, -v{cs[1][1]}")]
            if q == 0 and ks >= 2: r = [self.W(lg=f"fdw{ks-2}")] + r
            if q == 3:
                r += [T(f"ds_write_b128 v{t0}, {vr(PC+o,4)} offset:{ks*2048}", f"fdw{ks}"), T(f"ds_write_b128 v{t0}, {vr(PS+o,4)} offset:{ks*2048+1024}", f"fdw{ks}")]
            return r
        th += self.trig(32, ang, inc, lambda i: 9 if (i & 7) == 7 else 1, regs, use, group=2)
        th.append(self.W(lg="fdw3"))
        return th
    def gen_g1(self):
        T = self.T; th = []
        kc, inc, ang, t0, sg = TMP + 12, TMP + 13, TMP + 14, TMP + 15, TMP + 36
        regs = [(TMP + 16 + 2*i, TMP + 17 + 2*i) for i in range(4)]
        P = TMP + 24
        th += self.TL(f"""v_and_b32 v{kc}, 31, v{vL}
v_and_b32 v{t0}, 1, v{vL}
s_mov_b32 s54, 0x80008000
v_mul_lo_u32 v{sg}, v{t0}, s54
v_cvt_f32_u32 v{kc}, v{kc}
v_mul_f32 v{inc}, {fhex(1/32)}, v{kc}
s_lshr_b32 s54, s{sXROW}, 10
v_cvt_f32_u32 v{ang}, s54
v_mul_f32 v{ang}, {fhex(1/2048)}, v{ang}
v_mul_f32 v{ang}, v{ang}, v{kc}
v_lshrrev_b32 v{t0}, 5, v{vL}
v_lshlrev_b32 v{t0}, 2, v{t0}
v_cvt_f32_u32 v{t0}, v{t0}
v_fmac_f32 v{ang}, v{t0}, v{inc}""")
        def use(q, cs):
            r = [T(f"v_cvt_pk_bf16_f32 v{P}, v{cs[0][0]}, v{cs[1][0]}"), T(f"v_cvt_pk_bf16_f32 v{P+1}, v{cs[0][1]}, v{cs[1][1]}"),
                 T(f"v_cvt_pk_bf16_f32 v{P+2}, -v{cs[0][1]}, -v{cs[1][1]}")]
            for k in range(3): r.append(T(f"v_xor_b32 v{P+3+k}, v{P+k}, v{sg}"))
            for k in range(3): r += [T(f"v_accvgpr_write_b32 a{aG1+8*k+q}, v{P+k}"), T(f"v_accvgpr_write_b32 a{aG1+8*k+4+q}, v{P+3+k}")]
            return r
        th += self.trig(8, ang, inc, lambda i: 5 if (i & 3) == 3 else 1, regs, use, group=2)
        return th

    def pair_addr(self, ty, t, pr, cs=False):
        a = PAIR[2*(t % 4) + pr] if ty == 0 else BSLOT[t % 6]
        if a < L_S2: return (vC1 if cs else vT1), a - L_S1
        return (vC2 if cs else vT2), a - L_S2
    def csum_grp(self, tag, tiles, first):
        T = self.T; rd, mm = [], []
        for i, (ad, off, stp, tl) in enumerate(tiles):
            for eh in range(2):
                rd.append(T(f"ds_read_b64_tr_b16 {vr(vCSF[i]+2*eh,2)}, v{ad} offset:{off + eh*stp}", tag))
        mm.append(self.W(lg=tag))
        for eh in range(2):
            for i, (ad, off, stp, tl) in enumerate(tiles):
                c = "0" if (first and eh == 0) else vr(vCSA[tl], 4)
                mm.append(T(f"v_mfma_f32_4x4x4_16b_bf16 {vr(vCSA[tl],4)}, {vr(vONES,2)}, {vr(vCSF[i]+2*eh,2)}, {c}"))
        return rd, mm
    def csum_publish(self, nt):
        th = [self.T(f"s_lshl_b32 s60, s{sW}, 2\nv_add_u32 v{vTMP}, s60, v{vL16}")]
        th += [self.T(f"ds_write_b32 v{vTMP}, v{vCSA[dt]} offset:{L_CS + dt*1024}", "csw") for dt in range(nt)]
        return th
    def cs_tiles(self, ty):
        return [f"s_mov_b32 s60, s{sW}", "s_mov_b32 s60, 4"] if ty == 0 else [f"s_and_b32 s60, s{sW}, 1"] * 2
    def csum_send(self, ty):
        T = self.T; F = [vCSF[0], vCSF[1]]; rd, th = [], []
        for k, code in enumerate(self.cs_tiles(ty)):
            rd.append(T(f"{code}\ns_lshl_b32 s60, s60, 10\nv_add_u32 v{vTMP+1+k}, s60, v{vL16}\nds_read_b128 {vr(F[k],4)}, v{vTMP+1+k} offset:{L_CS}", "csr"))
        a, b = F
        th = [self.W(lg="csr")] + self.TL(f"""v_add_f32 v{a}, v{a}, v{a+1}
v_add_f32 v{a+2}, v{a+2}, v{a+3}
v_add_f32 v{b}, v{b}, v{b+1}
v_add_f32 v{b+2}, v{b+2}, v{b+3}
v_add_f32 v{a}, v{a}, v{a+2}
v_mov_b32 v{a+1}, s{sT}
v_add_f32 v{a+2}, v{b}, v{b+2}
v_mov_b32 v{a+3}, s{sT}
v_lshrrev_b32 v{vTMP+1}, 1, v{vTMP+1}
v_lshrrev_b32 v{vTMP+2}, 1, v{vTMP+2}""")
        st = [T(f"s_and_b32 s60, s{sRB}, 3\ns_lshl_b32 s60, s60, 10\ns_add_u32 s60, s60, s{sCSG}\nbuffer_store_dwordx4 {vr(a,4)}, v{vL16}, {srd(sWS)}, s60 offen sc1", "css")]
        return rd, th, st
    CL = TMP + 4
    def csum_load(self, ty):
        return [self.T(f"buffer_load_dwordx4 {vr(self.CL+4*i,4)}, v{vL16}, {srd(sWS)}, s{sCSG} offen offset:{1024*i} sc1", "csl") for i in range(4)]
    def csum_check(self, ty):
        e = self.e
        e.wait(vm="csl")
        tags = [self.CL + 1 + 2*j for j in range(8)]
        t = f"v_xor_b32 v{vTMP+3}, s{sT}, v{tags[0]}\nv_xor_b32 v{vTMP+5}, s{sT}, v{tags[1]}\n"
        for k in range(2, 8, 2): t += f"v_bitop3_b32 v{vTMP+3}, v{tags[k]}, s{sT}, v{vTMP+3} bitop3:0xbe\nv_bitop3_b32 v{vTMP+5}, v{tags[k+1]}, s{sT}, v{vTMP+5} bitop3:0xbe\n"
        self.spin(t + f"v_or_b32 v{vTMP+3}, v{vTMP+3}, v{vTMP+5}\nv_cmp_ne_u32 vcc, 0, v{vTMP+3}", [th.txt for th in self.csum_load(ty)], 53)
    def csum_build(self, ty):
        C = self.CL; seq = []
        for k in range(2):
            F = C + 2*k
            seq.append([f"v_add_f32 v{F}, v{F}, v{F+4}", f"v_add_f32 v{F+8}, v{F+8}, v{F+12}", f"v_add_f32 v{F}, v{F}, v{F+8}",
                        f"v_cvt_pk_bf16_f32 v{F+5}, v{F}, v{F}", f"v_and_b32 v{F+1}, 0xffff0000, v{F+5}", f"v_sub_f32 v{F+8}, v{F}, v{F+1}", f"v_cvt_pk_bf16_f32 v{F+4}, v{F+1}, v{F+8}"])
        th = [self.T(seq[k][j]) for j in range(7) for k in range(2)]
        return th + [self.T(f"ds_write_b64 v{vTMP+1+k}, {vr(C+2*k+4,2)} offset:{L_CS}", "cxw") for k in range(2)]
    def csum_get(self, nt):
        return [self.T(f"v_lshlrev_b32 v{vTMP+3}, 3, v{vL}")] + [self.T(f"ds_read_b64 {vr(vAX[dt],2)}, v{vTMP+3} offset:{L_CS + dt*512}", "cxr") for dt in range(nt)]
    def csum_fetch(self, nt):
        return [self.T(f"ds_read_b128 {vr(vCSA[dt],4)}, v{vL16} offset:{L_CS + dt*1024}", "csr") for dt in range(nt)]
    def csum_prep(self, nt):
        th = [self.W(lg="csr")]
        seq = []
        for dt in range(nt):
            F, A = vCSA[dt], vAX[dt]
            seq.append([f"v_add_f32 v{F}, v{F}, v{F+1}", f"v_add_f32 v{F+2}, v{F+2}, v{F+3}", f"v_add_f32 v{F}, v{F}, v{F+2}",
                        f"v_cvt_pk_bf16_f32 v{A+1}, v{F}, v{F}", f"v_and_b32 v{F+1}, 0xffff0000, v{A+1}", f"v_sub_f32 v{F+2}, v{F}, v{F+1}", f"v_cvt_pk_bf16_f32 v{A}, v{F+1}, v{F+2}"])
        for k in range(7):
            for dt in range(nt): th.append(self.T(seq[dt][k]))
        return th
    def csum_apply(self, nt):
        return [self.T(f"v_mfma_f32_32x32x16_bf16 {vr(ACCA+16*dt,16)}, {vr(vAX[dt],4)}, {vr(vBX,4)}, {vr(ACCA+16*dt,16)}") for dt in range(nt)]

    def stats_fetch(self):
        e = self.e
        e(f"s_lshr_b32 s63, s{sXROW}, 1\ns_add_u32 s63, s63, {WS_STATS}\nv_and_b32 v{vTMP+4}, 31, v{vL}\nv_lshlrev_b32 v{vTMP+4}, 4, v{vTMP+4}")
        e(f"buffer_load_dwordx4 {vr(TMP,4)}, v{vTMP+4}, {srd(sWS)}, s63 offen sc1", "stl")
    def stats_use(self, ty):
        e = self.e
        e.wait(vm="stl")
        self.spin(f"v_cmp_ne_u32 vcc, s{sT}, v{TMP+1}\nv_cmp_ne_u32 s[54:55], s{sT}, v{TMP+3}\ns_or_b64 vcc, vcc, s[54:55]",
                  [f"buffer_load_dwordx4 {vr(TMP,4)}, v{vTMP+4}, {srd(sWS)}, s63 offen sc1"], 57)
        m, r = TMP, TMP + 2
        e(f"v_mul_f32 v{vNC1}, {fhex(-LOG2E)}, v{r}\nv_rcp_f32 v{vRINV}, v{r}")
        e(f"v_cvt_pk_bf16_f32 v{vBX}, -v{m}, -v{m}\nv_and_b32 v{TMP+1}, 0xffff0000, v{vBX}\nv_sub_f32 v{TMP+1}, -v{m}, v{TMP+1}")
        e(f"v_mov_b32 v{vBX+2}, 0\nv_mov_b32 v{vBX+3}, 0\nv_cvt_pk_bf16_f32 v{vBX+1}, v{TMP+1}, v{vBX+2}")
        if ty == 1:
            e(f"s_lshl_b32 s60, s{sW}, 7\nv_lshrrev_b32 v{vTMP+4}, 2, v{vTMP+4}\nv_add_u32 v{vTMP+4}, s60, v{vTMP+4}")
            e(f"ds_write_b32 v{vTMP+4}, v{r} offset:{L_RB}", "rbw")

    def silu(self, tiles):
        T = self.T; th = self.TL(f"v_mov_b32 v{vTMP}, v{vNC1}\nv_mov_b32 v{vTMP+1}, v{vNC1}\nv_mov_b32 v{vTMP+2}, v{vRINV}\nv_mov_b32 v{vTMP+3}, v{vRINV}")
        for acc, hb, off in tiles:
            for f in range(2):
                P = TMP + 8 + 4 * f
                for q in range(2):
                    a = acc + 8*f + 4*q
                    u = TMP + 4 * q
                    th += [T(f"v_pk_mul_f32 {vr(u+k,2)}, {vr(a+k,2)}, {vr(vTMP,2)}") for k in (0, 2)]
                    th += [T(f"v_exp_f32 v{u+k}, v{u+k}") for k in range(4)]
                    th += [T(f"v_pk_fma_f32 {vr(u+k,2)}, {vr(u+k,2)}, {vr(vTMP+2,2)}, {vr(vTMP+2,2)}") for k in (0, 2)]
                    th += [T(f"v_rcp_f32 v{u+k}, v{u+k}") for k in range(4)]
                    th += [T(f"v_pk_mul_f32 {vr(u+k,2)}, {vr(u+k,2)}, {vr(a+k,2)}") for k in (0, 2)]
                    th += [T(f"v_cvt_pk_bf16_f32 v{P+2*q+k}, v{u+2*k}, v{u+2*k+1}") for k in range(2)]
                th.append(T(f"buffer_store_dwordx4 {vr(P,4)}, v{vL16}, {srd(sWS)}, s{hb} offen offset:{off + f*1024} {self.o.get('hst', 'sc1')}", "h2")); th[-1].st = True
        return th

    def pipeline2(self, units, LA, bounds, streams, mem, pinned, extra, early, P, between, early2):
        sel = lambda L, lo, hi: [(th, a - lo, b - lo) for th, a, b in L if lo <= a < hi]
        for L in (streams, mem, extra):
            for th, a, b in L: assert (a < P) == (b < P), (a, b)
        sh = lambda d, lo, hi: {k - lo: v for k, v in d.items() if lo <= k < hi}
        N = len(units)
        self.pipeline(units[:P], LA, sh(bounds, 0, P), sel(streams, 0, P), sel(mem, 0, P), sh(pinned, 0, P), sel(extra, 0, P), early)
        run(between)
        u2 = [(u[0], u[1]) for u in units[P:]]
        self.pipeline(u2, LA, sh(bounds, P, N + LA), sel(streams, P, N), sel(mem, P, N), sh(pinned, P, N), sel(extra, P, N), early2, off=P)
    def pipeline(self, units, LA, bounds, streams, mem, pinned, extra, early, off=0):
        e = self.e; N = len(units)
        fills = [[] for _ in range(N)]; mj = [[] for _ in range(N)]; rd = {g: [] for g in range(-LA, N)}
        for th, u0, u1 in mem:
            for i, t in enumerate(th): mj[u0 + i * (u1 - u0 + 1) // len(th)].append(t)
        dat = sorted(b for b in bounds if bounds[b][0])
        w = lambda t: 2 if 'b128' in t.txt else 1
        items = []
        for m in range(N):
            lo = max(max([b for b in dat if b <= m], default=0) - LA, m - self.o['lamax'], units[m][2] if len(units[m]) > 2 else -LA)
            items += [[lo, m - self.o['lamin'], t] for t in units[m][0]]
        ex = [[u0, u1, t] for th, u0, u1 in extra for t in th]
        for g in range(-LA, N):
            room = (2 if mj[g] else 3) if g >= 0 else 4
            room -= self.o['vcap'] * sum(1 for th, u0, u1 in streams if u0 <= g <= u1 and len(th) > 3*(u1 - u0 + 1))
            for lst in (items, ex):
                while lst and lst[0][1] <= g:
                    t = lst.pop(0)[2]; rd[g].append(t); room -= w(t)
            for lst in (items, ex):
                while lst and lst[0][0] <= g and room >= w(lst[0][2]):
                    t = lst.pop(0)[2]; rd[g].append(t); room -= w(t)
        assert not items and not ex
        cap = [max(0.5, 6.0 - len(rd[u]) - 5*len(mj[u])) for u in range(N)]
        for th, u0, u1 in streams:
            for k, grp in zip(range(u0, u1 + 1), spread(th, cap[u0:u1 + 1])): fills[k] += grp
        def boundary(m):
            if m not in bounds: return
            tags, pre = bounds[m]
            if m + off in self.o.get('bst', {}).get(self.ty, ()): self.xs(f"b{self.ty}_{m+off}")
            lt = m + off in self.o.get('lst', {}).get(self.ty, ())
            if lt: self.light()
            if tags: e.wait(vm=tags)
            if lt: self.light()
            run(pre)
            e("s_barrier")
            if lt and self.nl < 4 and not self.o.get('l2'): self.light()
        for u in range(-LA, N):
            if u >= 0:
                e.wait(lg=f"r{u+off}")
                e(units[u][1])
            boundary(u + LA)
            if u >= 0: run(mj[u])
            run(rd[u])
            if u == -1: run(early)
            if u < 0: continue
            run(fills[u]); run(pinned.get(u, []))

    def x_read(self, u, k, dst):
        t, ks = k >> 2, k & 3; sl = self.XSLOT(t)
        if sl < 2: return [self.T(f"ds_read_b128 {ar(dst,4)}, v{vXR[ks]} offset:{sl*4096}", f"r{u}")]
        return [self.T(f"ds_read_b128 {ar(dst,4)}, v{vXR2[ks]}", f"r{u}")]
    def ffn_unit(self, u, k, ad, off, stp, tile, xreg, nb):
        fb = aFB + 4 * ((u + 2) % nb); acc = ACCA + 16*tile
        r = [self.T(f"ds_read_b64_tr_b16 {ar(fb+2*eh,2)}, v{ad} offset:{off + eh*stp}", f"r{u}") for eh in range(2)]
        return r, f"v_mfma_f32_32x32x16_bf16 {vr(acc,16)}, {ar(fb,4)}, {ar(xreg,4)}, {'0' if k == 0 else vr(acc,16)}"

    def z1_rl(self):
        T = self.T; th = []
        R = TMP + 16; t = [TMP + 32 + i for i in range(4)]
        th.append(self.W(lg="rbw"))
        th.append(T(f"s_lshl_b32 s60, s{sW}, 7\nv_lshrrev_b32 v{t[0]}, 5, v{vL}\nv_lshlrev_b32 v{t[0]}, 4, v{t[0]}\nv_add_u32 v{t[0]}, s60, v{t[0]}"))
        th += [T(f"ds_read_b128 {vr(R+4*j,4)}, v{t[0]} offset:{L_RB + j*32}", "rbr") for j in range(4)]
        th += self.TL(f"v_and_b32 v{t[1]}, 31, v{vL}\nv_or_b32 v{t[1]}, s{sBLK}, v{t[1]}\nv_mov_b32 v{t[2]}, {fhex(2.0**-19)}\nv_mov_b32 v{t[3]}, {fhex(2.0**-20)}")
        th.append(T(f"v_cmp_eq_u32 vcc, 0, v{t[1]}\nv_cndmask_b32 v{t[2]}, v{t[2]}, v{t[3]}, vcc"))
        th += self.TL(f"v_mov_b32 v{vTMP}, v{vSIG}\nv_mov_b32 v{vTMP+1}, v{vSIG}")
        th.append(self.W(lg="rbr"))
        th += [T(f"v_mul_f32 v{R+i}, v{R+i}, v{t[2]}") for i in range(16)]
        return th
    def z1_prep(self):
        T = self.T; th = []; R = TMP + 16
        for h in range(2):
            th += [T(f"v_pk_fma_f32 {vr(ACCD+16*h+i,2)}, {vr(ACCD+32+16*h+i,2)}, {vr(vTMP,2)}, {vr(ACCD+16*h+i,2)}") for i in range(0, 16, 2)]
            th += [T(f"v_pk_mul_f32 {vr(ACCD+16*h+i,2)}, {vr(ACCD+16*h+i,2)}, {vr(R+i,2)}") for i in range(0, 16, 2)]
        th += [T(f"v_cvt_pk_bf16_f32 v{ACCD+32+i}, v{ACCD+2*i}, v{ACCD+2*i+1}") for i in range(16)]
        return th
    def z1_mfma(self):
        PT = ACCD + 32; Zr, Zi = ACCD, ACCD + 16
        C = lambda j: ar(aG1+4*j, 4); S = lambda j: ar(aG1+8+4*j, 4); N = lambda j: ar(aG1+16+4*j, 4)
        Tr = lambda j: vr(PT+4*j, 4); Ti = lambda j: vr(PT+8+4*j, 4)
        seq = [(Zr, C(0), Tr(0)), (Zi, N(0), Tr(0)), (Zr, C(1), Tr(1)), (Zi, N(1), Tr(1)), (Zr, S(0), Ti(0)), (Zi, C(0), Ti(0)), (Zr, S(1), Ti(1)), (Zi, C(1), Ti(1))]
        return [self.T(f"v_mfma_f32_32x32x16_bf16 {vr(d,16)}, {a}, {b}, {'0' if i < 2 else vr(d,16)}") for i, (d, a, b) in enumerate(seq)]
    def z1_gather_write(self):
        T = self.T; th = []
        Zr, Zi, PT = ACCD, ACCD + 16, ACCD + 32
        t0, t1 = TMP + 32, TMP + 33
        th += self.TL(f"v_lshrrev_b32 v{t0}, 5, v{vL}\nv_and_b32 v{t1}, 31, v{vL}\nv_lshlrev_b32 v{t1}, 4, v{t1}\nv_lshl_add_u32 v{t0}, v{t0}, 11, v{t1}")
        th.append(T(f"s_lshl_b32 s60, s{sW}, 2\ns_add_u32 s60, s60, {L_FD}\nv_add_u32 v{t0}, s60, v{t0}"))
        for i in range(20):
            if i < 16: th.append(T(f"v_cvt_pk_bf16_f32 v{PT+i}, v{Zr+i}, v{Zi+i}"))
            if i >= 4: th.append(T(f"ds_write_b32 v{t0}, v{PT+i-4} offset:{(8*((i-4)>>2) + (i&3))*512}", "z1w"))
        return th
    def z1_gather_read(self):
        e = self.e
        e(f"v_lshlrev_b32 v{TMP+32}, 4, v0")
        for k in range(4):
            e(f"ds_read_b128 {vr(ACCD+4*k,4)}, v{TMP+32} offset:{L_FD + k*4096}", "z1r")
    def z1_store(self):
        e = self.e
        t0, t1 = TMP + 32, TMP + 33
        e(f"v_lshrrev_b32 v{t0}, 5, v0\nv_and_b32 v{t1}, 31, v0\nv_lshlrev_b32 v{t1}, 4, v{t1}\nv_lshl_add_u32 v{t0}, v{t0}, 13, v{t1}")
        e(f"s_lshl_b32 s60, s{sBLK}, 18\ns_lshl_b32 s54, s{sRB}, 9\ns_add_u32 s60, s60, s54\ns_add_u32 s60, s60, {WS_Z1}")
        e.wait(lg="z1r")
        for k in range(4):
            e(f"buffer_store_dwordx4 {vr(ACCD+4*k,4)}, v{t0}, {srd(sWS)}, s60 offen sc1", "z1s")
            if k < 3: e(f"s_add_u32 s60, s60, 65536")
    def flag_store(self, soff, tag):
        e = self.e
        e(f"v_mov_b32 v{vTMP+4}, 0\nv_mov_b32 v{vTMP+5}, s{sT}\ns_mov_b64 exec, 1")
        e(f"buffer_store_dword v{vTMP+5}, v{vTMP+4}, {srd(sWS)}, s{soff} offen sc1", tag)
        e(f"s_mov_b64 exec, -1")
    def z1_flag(self):
        e = self.e
        e.wait(vm="z1s")
        e(f"s_lshl_b32 s60, s{sBLK}, 10\ns_lshl_b32 s54, s{sW}, 8\ns_add_u32 s60, s60, s54\ns_lshl_b32 s54, s{sRB}, 4\ns_add_u32 s60, s60, s54\ns_add_u32 s60, s60, {WS_Z1F}")
        self.flag_store(60, "z1f")

    def g2_setup(self):
        T = self.T; t0, t1 = TMP + 12, TMP + 13
        th = self.TL(f"""v_add_u32 v{t0}, s{sROT}, v{vL}
v_subrev_u32 v{t1}, 28, v{t0}
v_min_u32 v{t0}, v{t0}, v{t1}
v_subrev_u32 v{t1}, 28, v{t0}
v_min_u32 v{t0}, v{t0}, v{t1}
s_mul_i32 s50, s{sW}, 20
s_lshl_b32 s51, s{sW}, 3
s_add_u32 s51, s51, 60
v_mov_b32 v{t1}, s50
v_cmp_le_u32 vcc, 20, v{t0}
v_mov_b32 v{t1+1}, s51
v_cndmask_b32 v{t1}, v{t1}, v{t1+1}, vcc
v_add_lshl_u32 v{t0}, v{t0}, v{t1}, 10""")
        th += [T(f"v_readlane_b32 s{sKS+n}, v{t0}, {n}") for n in range(28)]
        return th
    def w2_addr_setup(self):
        t0, t1 = TMP + 36, TMP + 37
        return self.TL(f"""v_lshrrev_b32 v{t0}, 3, v{vL}
v_and_b32 v{t1}, 7, v{vL}
v_lshlrev_b32 v{t1}, 4, v{t1}
v_lshl_add_u32 v{t0}, v{t0}, 10, v{t1}
v_and_b32 v{t1}, 16, v{vL}
v_lshlrev_b32 v{t1}, 2, v{t1}
v_xor_b32 v{vW2D[0]}, v{t0}, v{t1}
v_add_u32 v{vW2D[1]}, {8192-1024}, v{vW2D[0]}""")
    def w2_lds(self, n):
        if n < 8: return (16384, L_S2 + n * 2048)
        if n < 12: return (8192, L_XS + (n - 8) * 2048)
        g = n - 12
        if g < 4: return (8192, L_XS + g * 2048)
        if g < 10: return (12288, L_S1 + (g - 4) * 8192)
        return (12288, L_S1 + (g - 10) * 8192)
    def dma_w2(self, n):
        mul, base = self.w2_lds(n)
        sb = {16384: 56, 8192: sXSW, 12288: sW2K}[mul]
        return [self.T(f"s_add_u32 m0, s{sb}, {base}\ns_lshl4_add_u32 s55, s{sKS+n}, s{sQB}\nbuffer_load_dwordx4 v{vW2D[0]}, {srd(sW2)}, s55 offen lds", f"w2_{n}"),
                self.T(f"s_add_u32 m0, s{sb}, {base}\ns_lshl4_add_u32 s55, s{sKS+n}, s{sQB}\nbuffer_load_dwordx4 v{vW2D[1]}, {srd(sW2)}, s55 offen offset:1024 lds", f"w2_{n}")]
    vU = {8192: [9, 10], 12288: [11, 12], 16384: [13, 14]}
    def w2_tr_setup(self):
        t0, t1, t3 = vTMP + 3, vTMP + 4, vTMP + 5
        th = self.TL(f"""v_lshrrev_b32 v{t1}, 5, v{vL}
v_bfe_u32 v{t0}, v{vL}, 2, 2
v_lshl_add_u32 v{t0}, v{t1}, 2, v{t0}
v_and_b32 v{t3}, 3, v{vL}
v_lshlrev_b32 v{t3}, 3, v{t3}
v_and_b32 v{t1}, 16, v{vL}
v_lshl_add_u32 v{t3}, v{t1}, 1, v{t3}
v_lshl_add_u32 v{t3}, v{t0}, 7, v{t3}
v_and_b32 v{t1}, 8, v{vL}
v_lshl_add_u32 v{t3}, v{t1}, 3, v{t3}""")
        for mul, sb, base in ((8192, sXSW, L_XS), (12288, sW2K, L_S1), (16384, 56, L_S2)):
            a = self.vU[mul]
            th += self.TL(f"s_add_u32 s55, s{sb}, {base}\nv_add_u32 v{a[0]}, s55, v{t3}\nv_xor_b32 v{a[1]}, 64, v{a[0]}")
        return th
    def w2_tr(self, n, dst, tag):
        mul, base = self.w2_lds(n)
        off = base - {8192: L_XS, 12288: L_S1, 16384: L_S2}[mul]
        return [self.T(f"ds_read_b64_tr_b16 {ar(dst+4*dt+2*eh,2)}, v{self.vU[mul][dt]} offset:{off+eh*1024}", tag) for dt in range(2) for eh in range(2)]

    def w_base(self, ty, d):
        if ty == 1: return f"s_add_u32 s{d}, s56, {L_S2 + 12288}"
        return f"s_and_b32 s{d}, s{sW}, 1\ns_lshl_b32 s{d}, s{d}, 12\ns_lshr_b32 s54, s{sW}, 1\ns_lshl_b32 s54, s54, 14\ns_add_u32 s{d}, s{d}, s54\ns_add_u32 s{d}, s{d}, {L_S2 + 2*16384 + 8192}"
    def w_dma(self, ty):
        T = self.T
        t0, t1, t2 = TMP + 38, TMP + 39, TMP + 35
        nb = f"v_subrev_u32 v{t2}, 64, v{t1}\nv_cmp_eq_u32 vcc, 6, v{t0}\nv_cndmask_b32 v{t1}, v{t1}, v{t2}, vcc\n" if ty == 1 else ""
        th = [T(f"""v_and_b32 v{t0}, 7, v{vL}
v_cmp_gt_u32 vcc, 5, v{t0}
v_lshlrev_b32 v{t1}, 4, v{t0}
v_cndmask_b32 v{t1}, 0, v{t1}, vcc
s_lshl_b32 s59, s{sCG}, 6
v_add_u32 v{t1}, s59, v{t1}
s_cmp_eq_u32 s{sCG}, 0
s_cselect_b32 s59, 5, 8
v_mov_b32 v{t2}, 0x200
v_cmp_eq_u32 vcc, s59, v{t0}
v_cndmask_b32 v{t1}, v{t1}, v{t2}, vcc
{nb}v_lshrrev_b32 v{t0}, 3, v{vL}
v_mul_u32_u24 v{t0}, 16448, v{t0}
v_add_u32 v{vSD2}, v{t0}, v{t1}
s_lshl_b32 s58, s{sW}, 9
s_add_u32 s58, s58, s{sK1}
s_mul_i32 s58, s58, 514
s_and_b32 s58, s58, -16
{self.w_base(ty, 59)}""")]
        nt = " nt" if self.o['ntw'] else ""
        th.append(T(f"s_mov_b32 m0, s59\ns_nop 0\nbuffer_load_dwordx4 v{vSD2}, {srd(sWR)}, s58 offen{nt} lds", "wl"))
        th.append(T(f"s_add_u32 m0, s59, 2048\ns_nop 0\nbuffer_load_dwordx4 v{vSD2}, {srd(sWI)}, s58 offen{nt} lds", "wl"))
        th.append(T(f"s_add_u32 m0, s59, 1024\ns_add_u32 s58, s58, {8*16448}\nbuffer_load_dwordx4 v{vSD2}, {srd(sWR)}, s58 offen{nt} lds", "wl"))
        th.append(T(f"s_add_u32 m0, s59, 3072\ns_nop 0\nbuffer_load_dwordx4 v{vSD2}, {srd(sWI)}, s58 offen{nt} lds", "wl"))
        return th
    def w_read_prep(self):
        t0, t1 = TMP + 38, TMP + 39
        th = [self.T(f"""v_and_b32 v{t0}, 31, v{vL}
v_or_b32 v{t1}, s{sCG}, v{t0}
v_cmp_eq_u32 vcc, 0, v{t1}
v_lshlrev_b32 v{t0}, 1, v{t0}
v_mov_b32 v{t1}, 80
v_cndmask_b32 v{t0}, v{t0}, v{t1}, vcc
v_lshrrev_b32 v{t1}, 5, v{vL}
v_lshl_add_u32 v{t0}, v{t1}, 9, v{t0}
s_lshl_b32 s54, s{sK1}, 1
s_and_b32 s54, s54, 15
s_add_u32 s54, s54, s59
v_add_u32 v{vSD2}, s54, v{t0}""")]
        return th + [self.T(f"v_mov_b32 v{vW+i}, 0") for i in range(16)]
    def w_read(self):
        th = []
        for z in range(8):
            for a in range(2):
                th.append(self.T(f"ds_read_u16_d16_hi v{vW+2*z+a}, v{vSD2} offset:{(8*(z>>2) + (z&3))*128 + a*2048}", "wr"))
        return th
    def pf_setup(self):
        return self.TL(f"v_and_b32 v{vPF[1]}, 15, v{vL}\nv_lshlrev_b32 v{vPF[1]}, 10, v{vPF[1]}\nv_and_b32 v{vPF[2]}, 16, v{vL}\nv_lshlrev_b32 v{vPF[2]}, 3, v{vPF[2]}\nv_xor_b32 v{vPF[2]}, s{sQB}, v{vPF[2]}\nv_add_u32 v{vPF[1]}, v{vPF[1]}, v{vPF[2]}")
    def pf_w2(self, r):
        return [self.T(f"s_lshl_b32 s54, s{sKS + 12 + r}, 4\nbuffer_load_dword v{vPF[3]}, v{vPF[1]}, {srd(sW2)}, s54 offen", f"pf{r}")]

    def f1(self, ty):
        e = self.e; o = self.o; self.ty = ty; self.nl = 0
        if ty == 0: run(self.dma_w1(ty, 0))
        else:
            run(self.dma_x(1))
            if not o['w1b']: run(self.dma_w1(1, 0) + self.dma_w1(1, 1))
        self.addr_setup()
        if ty == 1: run(self.gen_fd())
        else: run(self.g2_setup()); run(self.gen_a2a3()); run(self.w2_addr_setup()); run(self.dma_w1(ty, 1)[:o['w11']])
        self.stamp(1)
        e.wait(vm="stat")
        self.stats()
        wd = self.w_dma(ty)
        if ty == 0: run(self.dma_w1(ty, 1)[o['w11']:])
        self.stamp(2)
        if ty == 1: run(self.gen_g1() + self.g2_setup() + self.w2_addr_setup() + self.pf_setup())
        self.stamp(3)
        units, bounds, streams, mem, pinned, extra = [], {}, [], [], {}, []
        def pin(n, th): pinned.setdefault(n, []).extend(th)
        def csum(u0, u1, um, tag, tiles, first):
            rd, mm = self.csum_grp(tag, tiles, first)
            extra.append((rd, u0, u1)); pin(um, mm)
        zero_ax = lambda nt: sum([self.TL(f"v_mov_b32 v{vAX[dt]+2}, 0\nv_mov_b32 v{vAX[dt]+3}, 0") for dt in range(nt)], [])
        own = lambda a, b: sum([self.dma_w2(12 + g) for g in range(a, b)], [])
        wrd = self.w_read_prep() + [self.W(vm='wl')]
        aXB = 192
        LA, NB = 4, 8
        share = o['share'][ty]
        vPA, vPD = TMP + 36, TMP + 37
        def zpoll():
            e(f"s_lshr_b32 s60, s{sK1}, 1\ns_and_b32 s60, s60, 3\ns_lshl_b32 s60, s60, 8\ns_lshl_b32 s54, s{sCG}, 10\ns_add_u32 s60, s60, s54\ns_add_u32 s63, s60, {WS_Z1F}")
            e(f"v_and_b32 v{vPA}, 15, v{vL}\nv_lshlrev_b32 v{vPA}, 4, v{vPA}")
            self.poll_issue(vPA, 63, vPD, "pz1")
        def zcheck():
            self.xs("z1 check")
            self.poll_check(vPA, 63, vPD, "pz1")
            self.xs("z1 seen")
            e(f"s_lshl_b32 s60, s{sCG}, 5\ns_add_u32 s60, s60, s{sK1}\ns_lshl_b32 s60, s60, 13\ns_add_u32 s60, s60, s{sW2K}\ns_add_u32 s60, s60, {WS_Z1}\ns_add_u32 m0, s{sW2K}, {L_ZB}")
            for i in range(2): e(f"buffer_load_dwordx4 v{vL16}, {srd(sWS)}, s60 offen offset:{i*1024} sc1 lds", "zb")
        if ty == 0:
            nt = 5
            for k in range(32):
                t, ks = k >> 2, k & 3
                for tl in range(5):
                    u = 5*k + tl
                    if tl < 4:
                        ad, off = self.pair_addr(0, t, tl >> 1)
                        r, mf = self.ffn_unit(u, k, ad[tl & 1], off + ks*2048, 512, tl, aXB + 4*(k % 3), NB)
                    else: r, mf = self.ffn_unit(u, k, vTS, SING[t % 4] - L_S2 + ks*1024, 256, 4, aXB + 4*(k % 3), NB)
                    if tl == 0: r = self.x_read(u, k, aXB + 4*(k % 3)) + r
                    units.append((r, mf))
            for t in range(8):
                b = 20*t
                bounds[b] = ([f"x{t}", f"w1_{t}"], [])
                u0 = max(0, b - LA + 1)
                tiles = []
                for pr in range(2):
                    ad, off = self.pair_addr(0, t, pr, True)
                    tiles += [(ad[i], off, 512, 2*pr + i) for i in range(2)]
                tiles.append((vCSS, SING[t % 4] - L_S2, 256, 4))
                if t < 2 or (t < 7 and not share): csum(u0, u0 + 12, u0 + 15, f"c{t}", tiles, t == 0)
                elif not share: csum(u0, u0 + 7, u0 + 10, f"c{t}", tiles, False)
            jobs = [self.dma_x(t + 2) + self.dma_w1(0, t + 2) for t in range(6)]
            x1 = self.dma_x(1); early = x1[:2]; mem.append((x1[2:] + jobs[0], 0, 16))
            for t in range(1, 6): mem.append((jobs[t], 20*t - LA + 1, 20*t + 14))
            pin(110, [self.stats_fetch]); pin(126, [lambda: self.stats_use(0)])
            C0, CB, C1, C2, C3 = 36, 60, o['csA'][0], o['csA'][1], o['csA'][2]
            streams.append((zero_ax(5), 100, 110))
            a = o['wA']
            mem.append((wd[:1], a, a)); pin(a + 1, wd[1:3]); pin(a + 2, wd[3:])
            streams.append((wrd, 118, 128)); extra.append((self.w_read(), 129, 146))
            a, b, c = o['ownA']
            mem.append((own(0, 2), a, b - 1)); mem.append((own(4, 6), b, c - 1)); mem.append((own(2, 4) + own(6, o['nown']), c, 159))
            htiles = [(ACCA + 16*i, sHB2, 2048*i) for i in range(2)] + [(ACCA + 32 + 16*i, 53, 2048*i) for i in range(2)] + [(ACCA + 64, sHB1, 0)]
        else:
            nt = 2; P0 = 64
            for k in range(32):
                t, ks = k >> 2, k & 3
                for cs in range(2):
                    u = 2*k + cs
                    r = self.x_read(u, k, aX + 4*k) if cs == 0 else []
                    if not t & 1:
                        r.append(self.T(f"ds_read_b128 {ar(aFB+8*ks+4*cs,4)}, v{vFD} offset:{(t>>1)*8192+ks*2048+cs*1024}", f"r{u}"))
                    d = ACCD + 32*(t & 1) + 16*cs
                    units.append((r, f"v_mfma_f32_32x32x16_bf16 {vr(d,16)}, {ar(aX+4*k,4)}, {ar(aFB+8*ks+4*cs,4)}, {'0' if k in (0, 4) else vr(d,16)}", u - 6))
            for t in range(8): bounds[8*t] = ([f"x{t}"], [])
            jobs = [self.dma_x(t + 2) for t in range(6)]
            early = jobs[0][:1]; mem.append((jobs[0][1:], 0, 4))
            for t in range(1, 6): mem.append((jobs[t], 8*t - LA + 1, 8*t + 4))
            mem.append(((self.dma_w1(1, 0) + self.dma_w1(1, 1) if o['w1b'] else []) + wd, 45, 54)); mem.append((self.dma_w1(1, 2) + self.dma_w1(1, 3), 55, 62)); mem.append((self.dma_w1(1, 4) + self.dma_w1(1, 5), 64, 71))
            pin(44, [self.stats_fetch]); pin(54, [lambda: self.stats_use(1)])
            streams.append((zero_ax(2), P0 + 12, P0 + 20))
            P = 64
            for k in range(32):
                t, ks = k >> 2, k & 3
                ad, off = self.pair_addr(1, t, 0)
                for tl in range(2): units.append(self.ffn_unit(P + 2*k + tl, k, ad[tl], off + ks*2048, 512, tl, aX + 4*k, NB) + (P + 2*k + tl - (4 if k < 4 else 6),))
            for t in range(8):
                b = P + 8*t
                bounds[b] = ([f"w1_{t}"], [])
                ad, off = self.pair_addr(1, t, 0, True)
                if t < 2 or not share: csum(max(P, b - LA + 1), max(P + 1, b - LA + 2), b + (3 if t == 0 else (1 if t < 7 else 0)), f"c{t}", [(ad[i], off, 512, i) for i in range(2)], t == 0)
                if 2 <= t < 4: mem.append((self.dma_w1(1, t + 4), b - 1, b + 2))
            streams.append((self.z1_rl(), 55, 62))
            gb = P + 8 * o['z1g']
            streams.append((self.z1_gather_write(), P, gb - LA - 1))
            bounds[gb] = (bounds[gb][0], [self.W(lg="z1w")])
            pin(gb - LA, [self.z1_gather_read]); pin(gb - LA + 2, [self.z1_store])
            if o['warm2']:
                t0 = TMP + 36
                mem.append(([self.T(f"v_min_u32 v{t0}, 27, v{vL}\nv_lshlrev_b32 v{t0}, 7, v{t0}\ns_lshr_b32 s54, s2, 4\ns_lshl_b32 s54, s54, 3\ns_and_b32 s60, s2, 7\ns_add_u32 s54, s54, s60\ns_lshl_b32 s54, s54, 2\ns_add_u32 s54, s54, s{sW}\ns_mul_i32 s54, s54, 3584\nbuffer_load_dword v{t0+1}, v{t0}, {srd(sW2)}, s54 offen", "warm")], o['warm2'], o['warm2']))
            for r, u in enumerate(o['pfat'] or []): mem.append((self.pf_w2(r), u, u))
            streams.append((wrd, P + 18, P + 26)); extra.append((self.w_read(), P + 27, P + 40))
            mem.append((own(0, o['nown']), P + o['ownB'], P + 63))
            C0, CB, C1, C2, C3 = P + 11, P + 16, P + o['csB'][0], P + o['csB'][1], P + o['csB'][2]
            pin(P + o['z1f'], [self.z1_flag])
            htiles = [(ACCA, sHB2, 0), (ACCA + 16, sHB2, 2048)]
        if share:
            pin(C0, self.csum_publish(nt))
            bounds[CB] = (bounds[CB][0], bounds[CB][1] + [self.W(lg="csw")])
            rd, th, st = self.csum_send(ty)
            pin(CB - LA, rd); streams.append((th, CB - LA + 2, CB + 1)); mem.append((st, CB + 2, CB + 2))
            mem.append((self.csum_load(ty), C1, C1 + 3))
            pin(C2, [lambda: self.csum_check(ty)])
            streams.append((self.csum_build(ty), C2 + 1, C3 - 1))
            bounds[C3 + LA] = ([], [self.W(lg="cxw")])
            pin(C3, self.csum_get(nt))
            for i, m in enumerate(self.csum_apply(nt)): pin(C3 + 3 + i, ([self.W(lg="cxr")] if i == 0 else []) + [m])
            assert C3 + 3 + nt <= len(units)
        else:
            Y = 148 if ty == 0 else P + 57
            pin(Y, self.csum_publish(nt))
            bounds[Y + 2 + LA] = ([], [self.W(lg="csw")])
            pin(Y + 2, self.csum_fetch(nt))
            streams.append((self.csum_prep(nt), Y + 3, len(units) - 2))
            pin(len(units) - 1, self.csum_apply(nt))
        if ty == 0: self.pipeline(units, LA, bounds, streams, mem, pinned, extra, early)
        else:
            zm = self.z1_mfma()
            self.pipeline2(units, LA, bounds, streams, mem, pinned, extra, early, P, self.z1_prep() + zm[:4], zm[4:])
        self.light_dump()
        self.stamp(6)
        e("s_barrier")
        self.xs("E bar")
        e(f"s_add_u32 s53, s{sHB2}, 4096")
        side = own(o['nown'], 10)
        for n in range(o['epl']): side += self.dma_w2(n)
        sil = self.silu(htiles)
        if ty == 1: sil += self.gen_a2a3()
        sil = merge(sil, side, int(len(sil) * o['epfrom']))
        sil += self.w2_tr_setup()
        if o.get('silst'):
            for i in (3, 2, 1): sil.insert(len(sil)*i//4, lambda i=i: self.xs(f'sil{i}'))
        k1, k2 = [int(len(sil) * f) for f in o['zpoll'][ty]]
        run(sil[:k1]); zpoll(); run(sil[k1:k2]); zcheck(); run(sil[k2:])
    def greads(self, g):
        return [self.W(vm=f"w2_{12+g}")] + self.w2_tr(12 + g, aX + 8*g, f"g{g}") + ([self.W(lg=f"g{g-2}")] if g >= 2 else [])
    vPA, vPD = 6, 7

    def spin(self, test, loads, lane):
        e = self.e
        again, back = e.label("again"), e.label("back")
        if self.stamps: e(f"s_mov_b32 s{sPOLL}, 0")
        e(test)
        e(f"s_cbranch_vccnz {again} ; soft")
        e(f"{back}: ; soft")
        if self.stamps: e(f"v_writelane_b32 v{vSTAMP}, s{sPOLL}, {lane}")
        loop = e.label("loop")
        e.cold += [f"{again}:", f"    s_mov_b32 s{sPOLL}, 0", f"{loop}:"] + ["    " + l for l in loads] + ["    s_waitcnt vmcnt(0)"]
        e.cold += ["    " + l for l in test.split("\n")]
        e.cold += [f"    s_add_u32 s{sPOLL}, s{sPOLL}, 1", f"    s_cbranch_vccz {back}", f"    s_cmp_gt_u32 s{sPOLL}, 20000", f"    s_cbranch_scc0 {loop}", f"    s_branch {back}"]
    def poll_issue(self, addr_v, soff, dst, tag):
        self.e(f"buffer_load_dword v{dst}, v{addr_v}, {srd(sWS)}, s{soff} offen sc1", tag)
    def poll_check(self, addr_v, soff, dst, tag):
        e = self.e
        e.wait(vm=tag)
        self.spin(f"v_cmp_ne_u32 vcc, s{sT}, v{dst}", [f"buffer_load_dword v{dst}, v{addr_v}, {srd(sWS)}, s{soff} offen sc1"], {'pz1': 54, 'phf': 55, 'pz3': 56}[tag])

    IFD, S4R, S4I = 128, 192, 208
    def gen_s4(self):
        T = self.T; th = []
        n1, inc, ang, sg = 32, 33, 34, 35
        regs = [(36, 37), (38, 39)]
        th += self.TL(f"""v_and_b32 v{n1}, 1, v{vL}
s_mov_b32 s60, 0x80008000
v_mul_lo_u32 v{sg}, v{n1}, s60
v_and_b32 v{n1}, 31, v{vL}
v_cvt_f32_u32 v{n1}, v{n1}
v_mul_f32 v{inc}, {fhex(1/32)}, v{n1}
v_lshrrev_b32 v{n1}, 5, v{vL}
v_lshlrev_b32 v{n1}, 2, v{n1}
v_cvt_f32_u32 v{n1}, v{n1}
v_mul_f32 v{ang}, v{n1}, v{inc}""")
        def use(g, cs):
            c, s_ = cs[0]
            return [T(f"v_cvt_pk_bf16_f32 v{self.S4R+g}, v{c}, -v{s_}"), T(f"v_cvt_pk_bf16_f32 v{self.S4I+g}, v{s_}, v{c}"),
                    T(f"v_xor_b32 v{self.S4R+8+g}, v{self.S4R+g}, v{sg}"), T(f"v_xor_b32 v{self.S4I+8+g}, v{self.S4I+g}, v{sg}")]
        th += self.trig(8, ang, inc, lambda i: 1 if (i & 3) < 3 else 5, regs, use)
        return th
    def gen_ifd(self, dt):
        T = self.T; th = []
        d, inc, ang, t0 = 40, 41, 42, 43
        Z = [96, 98, 100, 102]; RHO, TM, SP = 104, 106, 114
        th.append(T(f"""v_and_b32 v{d}, 31, v{vL}
s_lshl_b32 s60, s{sQ}, 6
s_add_u32 s60, s60, {32*dt}
v_add_u32 v{d}, s60, v{d}
v_lshrrev_b32 v{t0}, 5, v{vL}
v_lshlrev_b32 v{t0}, 1, v{t0}
s_lshl_b32 s60, s{sW}, 6
v_add_u32 v{t0}, s60, v{t0}
v_cmp_eq_u32 vcc, 0, v{t0}
v_mul_u32_u24 v{t0}, v{t0}, v{d}
v_and_b32 v{t0}, 511, v{t0}
v_cvt_f32_u32 v{ang}, v{t0}
v_mul_f32 v{ang}, {fhex(1/512)}, v{ang}
v_cvt_f32_u32 v{inc}, v{d}
v_and_b32 v{t0}, 1, v{d}
v_lshlrev_b32 v{t0}, 15, v{t0}
v_xor_b32 v{SP}, 0x3f80, v{t0}
v_mul_f32 v{t0}, {fhex(1/64)}, v{inc}
v_mul_f32 v{inc}, {fhex(1/512)}, v{inc}
v_cos_f32 v{RHO}, v{t0}
v_sin_f32 v{RHO+1}, v{t0}"""))
        for q in range(4):
            th += [T(f"v_cos_f32 v{Z[q]}, v{ang}"), T(f"v_sin_f32 v{Z[q]+1}, v{ang}")]
            if q < 3: th.append(T(f"v_add_f32 v{ang}, v{ang}, v{inc}") if not q & 1 else T(f"v_fmac_f32 v{ang}, {fhex(3.0)}, v{inc}"))
        for g in range(8):
            r = self.rot(Z, RHO, TM) if g < 7 else []
            cv = [T(f"v_cvt_pk_bf16_f32 v{self.IFD + (g*2+dt)*4 + q}, v{Z[q]}, -v{Z[q]+1}") for q in range(4)]
            th += cv + r
            if g == 0: th.append(T(f"v_cndmask_b32 v{self.IFD + dt*4}, v{self.IFD + dt*4}, v{SP}, vcc"))
        return th

    def post(self):
        e = self.e; T = self.T; o = self.o
        vPA, vPD = self.vPA, self.vPD
        self.stamp(7)
        q = sum([self.dma_w2(n) for n in range(o['epl'], 8)], [])
        def dma(k):
            nonlocal q
            r = q[:k]; q = q[k:]; return r
        gr = lambda g: self.greads(g)[:5]
        e(f"s_lshl_b32 s50, s{sRB}, 1\ns_lshr_b32 s51, s{sW}, 1\ns_add_u32 s50, s50, s51\ns_lshl_b32 s50, s50, 2\ns_lshr_b32 s51, s{sBLK}, 1\ns_add_u32 s50, s50, s51\ns_lshl_b32 s50, s50, 3")
        e(f"s_lshl_b32 s51, s{sTY}, 2\ns_add_u32 s50, s50, s51\ns_and_b32 s51, s{sBLK}, 1\ns_lshl_b32 s51, s51, 1\ns_add_u32 s50, s50, s51\ns_and_b32 s51, s{sW}, 1\ns_add_u32 s50, s50, s51")
        e(f"s_lshl_b32 s50, s50, 4\ns_add_u32 s50, s50, {WS_HF}")
        e.wait(vm="zb"); self.xs("zb landed"); e("s_barrier"); self.xs("bar1")
        ZF = 192
        for t in range(8): e(f"ds_read_b128 {ar(ZF+4*t,4)}, v{vL16} offset:{L_ZB + t*1024}", f"zf{t}")
        D = 64
        for t in range(8):
            e.wait(lg=f"zf{t}")
            e(f"v_mfma_f32_32x32x16_bf16 {vr(D,16)}, {ar(aA2+4*t,4)}, {ar(ZF+4*t,4)}, {'0' if t == 0 else vr(D,16)}")
            if t < o['st2d']: run(dma(1))
            if t >= 4: run(gr(t - 4))
        self.xs("st2 issued")
        def hflag():
            self.xs("pre h2 wait"); e.wait(vm="h2"); self.xs("h2 done"); self.flag_store(50, "hf")
        if o['hfat'] == 0: hflag()
        P = 96
        ops = []
        for z in range(8):
            xr, xi, wr_, wi_ = D + 2*z, D + 2*z + 1, vW + 2*z, vW + 2*z + 1
            u = 80 + 2*z
            ops.append([f"v_mul_f32 v{u}, v{xr}, v{wr_}", f"v_mul_f32 v{u+1}, v{xr}, v{wi_}", f"v_fma_f32 v{u}, -v{xi}, v{wi_}, v{u}", f"v_fmac_f32 v{u+1}, v{xi}, v{wr_}", f"v_cvt_pk_bf16_f32 v{P+z}, v{u}, v{u+1}"])
        e(f"v_add_u32 v{vTMP}, s{sW2K}, v{vL16}")
        for z0 in (0, 2, 4, 6):
            for k in range(5): e(ops[z0][k]); e(ops[z0+1][k])
            if o['hfat'] == 0: run(dma(1))
            if z0 == 4: e(f"ds_write_b128 v{vTMP}, {vr(P,4)} offset:{L_ZX}", "zxw")
        run(dma(1))
        e(f"ds_write_b128 v{vTMP}, {vr(P+4,4)} offset:{L_ZX + 1024}", "zxw")
        if o['hfat'] == 1: hflag()
        run(dma(2))
        e.wait(lg="zxw"); e("s_barrier"); self.xs("bar2")
        q += sum([self.dma_w2(n) for n in range(8, 12)], [])
        for t in range(8): e(f"ds_read_b128 {ar(ZF+4*t,4)}, v{vL16} offset:{L_ZX + t*1024}", f"zg{t}")
        adr = self.TL(f"""v_lshrrev_b32 v{vTMP+1}, 4, v{vL}
v_bfe_u32 v{vTMP+2}, v{vL}, 3, 1
v_lshlrev_b32 v{vTMP+2}, 12, v{vTMP+2}
v_lshl_add_u32 v{vTMP+2}, v{vTMP+1}, 16, v{vTMP+2}
v_and_b32 v{vTMP+3}, 15, v{vL}
v_lshlrev_b32 v{vTMP+3}, 2, v{vTMP+3}
v_lshl_add_u32 v{vTMP+3}, v{vTMP+1}, 7, v{vTMP+3}
v_add_u32 v{vTMP+3}, s{sW2K}, v{vTMP+3}
v_and_b32 v{vTMP+1}, 7, v{vL}
v_lshl_add_u32 v{vTMP+1}, v{vTMP+1}, 4, v{vTMP+2}
s_lshl_b32 s51, s{sW}, 19
s_lshl_b32 s52, s{sK1}, 7
s_add_u32 s51, s51, s52
s_lshl_b32 s52, s{sCG}, 13
s_add_u32 s51, s51, s52
s_add_u32 s51, s51, {WS_Z3}
s_add_u32 s52, s51, {4*65536}""")
        hadr = self.TL(f"""s_lshl_b32 s50, s{sP}, 2
s_add_u32 s50, s50, s{sW}
s_lshl_b32 s50, s50, 7
s_add_u32 s58, s50, {WS_HF}
v_and_b32 v{vPA}, 7, v{vL}
v_lshlrev_b32 v{vPA}, 4, v{vPA}""")
        run(hadr)
        if o['hpe']: self.poll_issue(vPA, 58, vPD, "phf")
        adr = spread(adr, [0.5] + [1]*8); run(adr[0])
        for t in range(8):
            e.wait(lg=f"zg{t}")
            e(f"v_mfma_f32_32x32x16_bf16 {vr(D,16)}, {ar(aA3+4*t,4)}, {ar(ZF+4*t,4)}, {'0' if t == 0 else vr(D,16)}")
            run(dma(1) + adr[t + 1])
        self.xs('st3 issued')
        for k in range(8): e(f"v_cvt_pk_bf16_f32 v{P+k}, v{D+2*k}, v{D+2*k+1}")
        for k in range(8): e(f"ds_write_b32 v{vTMP+3}, v{P+k} offset:{L_ZB + (k>>1)*512 + (k&1)*64}", "zww")
        e.wait(lg="zww")
        self.xs('zww')
        e("s_barrier")
        self.xs("st3 packed")
        for k in range(2): e(f"ds_read_b128 {vr(D+4*k,4)}, v{vTMP} offset:{L_ZB + k*1024}", "zwr")
        e.wait(lg="zwr")
        for k in range(2): e(f"buffer_store_dwordx4 {vr(D+4*k,4)}, v{vTMP+1}, {srd(sWS)}, s{51+k} offen sc1", "z3s")
        if not o['hpe']: self.poll_issue(vPA, 58, vPD, "phf")
        self.stamp(9)
        vH = self.vH
        e(f"s_mul_i32 s50, s{sP}, {2*112*1024}\ns_add_u32 s50, s50, {WS_H}\nv_add_u32 v{vH[0]}, s50, v{vL16}\nv_add_u32 v{vH[1]}, {112*1024}, v{vH[0]}")
        run(merge(sum([self.greads(g) for g in range(4, 10)], []), q))
        self.xs("pre hpoll")
        self.poll_check(vPA, 58, vPD, "phf")
        e(f"s_lshl_b32 s50, s{sW}, 3\ns_add_u32 s50, s50, s{sCG}\ns_lshl_b32 s50, s50, 5\ns_add_u32 s50, s50, s{sK1}\ns_lshl_b32 s50, s50, 4\ns_add_u32 s50, s50, {WS_Z3F}")
        self.stamp(10)
        self.g2(None)

    vH, vO, vRD, vZD, vZ, XR = [19, 20], 4, 5, 8, [15, 16, 17, 18], 48
    def g2_addr(self):
        e = self.e
        vH, vO, vZD, vZ = self.vH, self.vO, self.vZD, self.vZ
        th = []
        class _E:
            def __call__(_, x): th.extend(self.TL(x))
        e = _E()
        e(f"""v_lshrrev_b32 v{vTMP}, 3, v{vL}
v_and_b32 v{vTMP+1}, 1, v{vTMP}
v_bfe_u32 v{vTMP+2}, v{vTMP}, 1, 1
v_lshrrev_b32 v{vTMP+3}, 2, v{vTMP}
v_lshl_add_u32 v{vTMP+1}, v{vTMP+3}, 1, v{vTMP+1}
v_lshl_add_u32 v{vTMP+3}, v{vTMP+2}, 2, v{vTMP+1}
v_and_b32 v{vTMP+4}, 7, v{vL}
v_lshlrev_b32 v{vO}, 4, v{vTMP+4}
v_lshl_add_u32 v{vO}, v{vTMP+3}, 16, v{vO}
v_lshlrev_b32 v5, 8, v{vTMP+1}
v_lshl_add_u32 v5, v{vTMP+2}, 7, v5
v_and_b32 v{vTMP+1}, 3, v{vL}
v_lshl_add_u32 v5, v{vTMP+1}, 5, v5
v_bfe_u32 v{vTMP+1}, v{vL}, 2, 1
v_mul_u32_u24 v{vTMP+1}, {RED_TS}, v{vTMP+1}
v_add_u32 v5, v5, v{vTMP+1}
s_lshl_b32 s60, s{sW}, 10
v_add_u32 v5, s60, v5
s_lshl_b32 s59, s{sW}, 19
s_lshl_b32 s60, s{sP}, 11
s_add_u32 s59, s59, s60
s_add_u32 s59, s59, s{sQB}""")
        e(f"""v_lshrrev_b32 v{vTMP}, 5, v{vL}
v_bfe_u32 v{vTMP+1}, v{vL}, 2, 2
v_lshl_add_u32 v{vTMP}, v{vTMP}, 3, v{vTMP+1}
v_lshlrev_b32 v{vTMP}, 6, v{vTMP}
v_and_b32 v{vTMP+1}, 3, v{vL}
v_lshl_add_u32 v{vTMP}, v{vTMP+1}, 3, v{vTMP}
v_and_b32 v{vTMP+1}, 16, v{vL}
v_lshl_add_u32 v{vTMP}, v{vTMP+1}, 1, v{vTMP}
s_add_u32 s60, s{sW2K}, {L_MISC}
v_add_u32 v{vZ[0]}, s60, v{vTMP}""")
        return th

    def g2(self, q2):
        e = self.e; T = self.T; o = self.o
        HB, HD = 192, o['hd']
        LB = 160
        ZF = 128
        ACC = 64
        vH, vO, vZD, vZ, XR = self.vH, self.vO, self.vZD, self.vZ, self.XR
        def hload(n):
            return [T(f"buffer_load_dwordx4 {ar(HB + 8*(n % HD) + 4*rt, 4)}, v{vH[rt]}, {srd(sWS)}, s{sKS+n} offen sc1", f"h{n}") for rt in range(2)]
        H0 = o['h0']
        if not o['hpe']: self.flag_store(50, "z3f")
        for n in range(H0): run(hload(n))
        rest = sum([hload(n) for n in range(H0, HD)], [])
        ifd = merge(self.gen_ifd(0) + self.gen_ifd(1), rest)
        k = int(len(ifd) * o['z3fat'])
        run(ifd[:k])
        if o['hpe']: e.wait(vm="z3s"); self.flag_store(50, "z3f")
        run(ifd[k:])
        shadow = spread(self.g2_addr() + self.gen_s4(), [1] * o['nsh'])
        late = sum([self.dma_w2(12 + g) for g in range(10, 16)], [])
        e.wait(lg="g9")
        self.xs("ifd done")
        lreads = lambda n: [self.W(vm=f"w2_{n}")] + self.w2_tr(n, LB + 8*(n % 3), f"l{n}")
        run(lreads(0)); run(lreads(1))
        e(f"s_lshr_b32 s50, s{sP}, 3\ns_lshl_b32 s50, s50, 3\ns_lshl_b32 s51, s{sW}, 1\ns_add_u32 s50, s50, s51\ns_lshl_b32 s50, s50, 9\ns_add_u32 s58, s50, {WS_Z3F}")
        e(f"s_lshl_b32 s50, s{sP}, 16\ns_add_u32 s50, s50, s56\ns_add_u32 s50, s50, {WS_Z3}")
        z3d = lambda mt: [T(f"s_add_u32 m0, s{sW2K}, {L_MISC + (2*mt + (i >> 1))*8192 + (i & 1)*1024}\ns_add_u32 s51, s50, {mt*4096 + i*1024}\nbuffer_load_dwordx4 v{vL16}, {srd(sWS)}, s51 offen sc1 lds", f"z3d{mt}") for i in range(4)]
        xres = [T(f"buffer_load_dwordx4 {vr(XR+4*rt,4)}, v{vO}, {srd(sX)}, s59 offen offset:{rt*1024}", "xr") for rt in range(2)]
        DR, DI, PK = 224, 240, 32
        def zreads(mt):
            return [T(f"ds_read_b64_tr_b16 {ar(ZF + 16*(mt&1) + 4*ks + 2*eh, 2)}, v{vZ[0]} offset:{(2*mt + (ks >> 1))*8192 + (ks & 1)*1024 + eh*256}", f"z{mt}_{ks}") for ks in range(4) for eh in range(2)]
        def tail_a(mt):
            for ks in range(4):
                e.wait(lg=f"z{mt}_{ks}")
                fr = ar(ZF + 16*(mt&1) + 4*ks, 4)
                e(f"v_mfma_f32_32x32x16_bf16 {vr(DR,16)}, {fr}, {vr(self.S4R+4*ks,4)}, {'0' if ks == 0 else vr(DR,16)}")
                e(f"v_mfma_f32_32x32x16_bf16 {vr(DI,16)}, {fr}, {vr(self.S4I+4*ks,4)}, {'0' if ks == 0 else vr(DI,16)}")
        def tail_cvt(mt):
            return [T(f"v_cvt_pk_bf16_f32 v{PK + (jj*2+rt)*4 + q}, v{DR + 8*jj + 4*(q>>1) + 2*(q&1) + rt}, v{DI + 8*jj + 4*(q>>1) + 2*(q&1) + rt}") for jj in range(2) for rt in range(2) for q in range(4)]
        def tail_b(mt):
            for jj in range(2):
                for rt in range(2):
                    for dt in range(2):
                        A = ACC + (rt*2+dt)*16
                        e(f"v_mfma_f32_32x32x16_bf16 {vr(A,16)}, {vr(PK+(jj*2+rt)*4,4)}, {vr(self.IFD+((mt*2+jj)*2+dt)*4,4)}, {vr(A,16)}")
        ZP, ZC, ZD, TT, GA = o['zp'], o['zc'], o['zd'], o['tt'], o['ga']
        for n in range(28):
            side = []
            if n + 2 < 12: side += lreads(n + 2)
            side += late[2*n:2*n + 2]
            if n in GA: side += self.greads(10 + 2*GA.index(n))[:5] + self.greads(11 + 2*GA.index(n))[:5]
            if n < len(shadow): side = merge(shadow[n], side)
            if n == ZP: side.append(lambda: self.poll_issue(vL16, 58, 7, "pz3"))
            for mt in range(4):
                if n == ZD[mt]: side += ([self.W(lg=f"g{9 + 2*mt}")] if mt else []) + z3d(mt)[:2]
                if n == ZD[mt] + 1: side += z3d(mt)[2:]
                if n == TT[mt] - 1: side += [self.W(vm=f"z3d{mt}")] + zreads(mt)
            if n == o['xat']: side += xres
            mt = TT.index(n) if n in TT else None
            TS, tb = 1, 0
            if mt is not None: side += tail_cvt(mt)
            if n in o.get('g2st', (1, 4, 8, 12, 16, 20, 24)): self.xs(f"g2 n{n}")
            if n == ZC:
                self.stamp(11); self.poll_check(vL16, 58, 7, "pz3"); self.stamp(12)
            if mt is not None:
                tail_a(mt)
                if mt == 3: e('s_barrier')
            e.wait(vm=f"h{n}")
            if n < 12: e.wait(lg=f"l{n}")
            grp = spread(side, [1, 1, 1, 1])
            if mt is not None and tb % TS == 0: grp = [[]] + spread(side, [1, 1, 1])
            for i, (rt, dt) in enumerate(((0, 0), (0, 1), (1, 0), (1, 1))):
                A = ACC + (rt*2+dt)*16
                B = ar(LB + 8*(n % 3) + 4*dt, 4) if n < 12 else ar(aX + 8*(n-12) + 4*dt, 4)
                e(f"v_mfma_f32_32x32x16_bf16 {vr(A,16)}, {ar(HB + 8*(n % HD) + 4*rt, 4)}, {B}, {'0' if n == 0 else vr(A,16)}")
                if n + HD < 28 and dt == 1: run(hload(n + HD)[rt:rt+1])
                run(grp[i])
            if mt is not None and tb % TS == 0: tail_b(mt)
        self.stamp(13)
        e(f"s_mul_i32 m0, s{sW}, {RED_WS}")
        for i in range(64):
            e(f"ds_write_addtid_b32 v{ACC+i} offset:{(i>>4)*RED_TS + (i&15)*256}", "rw")
        e.wait(lg="all"); self.xs("red written"); e("s_barrier"); self.xs("red bar2")
        R = 128
        for rt in range(2):
            for pw in range(4):
                for k in range(2):
                    e(f"ds_read_b128 {vr(R + rt*32 + pw*8 + 4*k, 4)}, v5 offset:{pw*RED_WS + rt*2*RED_TS + 16*k}", f"rr{rt}_{pw}")
        e.wait(vm="xr")
        for rt in range(2):
            X = 64 + 8*rt
            for i in range(4):
                e(f"v_lshlrev_b32 v{X+2*i}, 16, v{XR+4*rt+i}\nv_and_b32 v{X+2*i+1}, 0xffff0000, v{XR+4*rt+i}")
            for pw in range(4):
                e.wait(lg=f"rr{rt}_{pw}")
                for i in range(4):
                    e(f"v_pk_add_f32 {vr(X+2*i,2)}, {vr(X+2*i,2)}, {vr(R + rt*32 + pw*8 + 2*i, 2)}")
            for i in range(4):
                e(f"v_cvt_pk_bf16_f32 v{80+4*rt+i}, v{X+2*i}, v{X+2*i+1}")
            e(f"buffer_store_dwordx4 {vr(80+4*rt,4)}, v{vO}, {srd(sOUT)}, s59 offen offset:{rt*1024} {o.get('ost', 'sc1')}")
        done = e.label("nq")
        e(f"s_or_b32 s50, s2, s{sW}\ns_cmp_lg_u32 s50, 0\ns_cbranch_scc1 {done}\ns_mov_b32 s50, {WS_Q}")
        self.flag_store(50, "q")
        e(f"{done}:")
        if self.stamps:
            self.stamp(14)
            e(f"s_memrealtime s[94:95]"); e.l.append("    s_waitcnt lgkmcnt(0)")
            e(f"v_writelane_b32 v{vSTAMP}, s94, 16")
            e(f"s_lshl_b32 s50, s2, 2\ns_add_u32 s50, s50, s{sW}\ns_lshl_b32 s50, s50, 8\ns_add_u32 s50, s50, {WS_DBG}\nv_lshlrev_b32 v{vTMP}, 2, v{vL}")
            e(f"buffer_store_dword v{vSTAMP}, v{vTMP}, {srd(sWS)}, s50 offen")
            if o.get('dbgout'):
                e(f"s_load_dwordx2 s[64:65], s[0:1], 56"); e.l.append("    s_waitcnt lgkmcnt(0)")
                e(f"s_mov_b32 s66, 256\ns_mov_b32 s67, 0x20000")
                e(f"v_not_b32 v2, v{vSTAMP}\nv_cmp_eq_u32 vcc, 15, v{vL}\nv_cndmask_b32 v2, v{vSTAMP}, v2, vcc\nv_readlane_b32 s68, v{vSTAMP}, 16\nv_mov_b32 v3, s68\nv_cmp_eq_u32 vcc, 0, v{vL}\nv_cndmask_b32 v2, v2, v3, vcc")
                e(f"s_mov_b64 exec, 0xffff\nbuffer_atomic_umax v2, v{vTMP}, s[64:67], 0 offen sc1\ns_mov_b64 exec, -1")

    def build(self):
        e = self.e
        self.prologue()
        snap = e.snapshot()
        e(f"s_cmp_eq_u32 s{sTY}, 1\ns_cbranch_scc1 L_typeB")
        self.f1(0)
        endA = e.snapshot()
        e("s_branch L_join\nL_typeB:")
        e.restore(snap)
        self.f1(1)
        endB = e.snapshot()
        self.e.vm = self.join(endA[0], endB[0]); self.e.lg = self.join(endA[1], endB[1])
        e("L_join:")
        self.post()
        e("L_end:\ns_endpgm")
        e.l += e.cold
        lines, nn = pad_hazards(e.l)
        hdr = open("parallel_sum__spectral_gfnet__dense_activation_silu__prompt.s.ref").read().split("; Override")[0]
        out = hdr + "; @launch grid=(256,1,1) block=(256,1,1) lds=163840\n"
        out += '.amdgcn_target "amdgcn-amd-amdhsa--gfx950"\n.text\n'
        out += f".globl {KNAME}\n.p2align 8\n.type {KNAME},@function\n{KNAME}:\n"
        out += "\n".join(lines) + "\n"
        out += f""".section .rodata,"a"
.p2align 6
.amdhsa_kernel {KNAME}
  .amdhsa_next_free_vgpr 512
  .amdhsa_next_free_sgpr 102
  .amdhsa_accum_offset 256
  .amdhsa_group_segment_fixed_size 0
  .amdhsa_kernarg_size 72
  .amdhsa_user_sgpr_count 2
  .amdhsa_user_sgpr_kernarg_segment_ptr 1
  .amdhsa_system_sgpr_workgroup_id_x 1
.end_amdhsa_kernel
"""
        return out, nn, len(lines)
    @staticmethod
    def join(a, b):
        def after(l):
            d = {}
            for i, t in enumerate(l): d[t] = len(l) - 1 - i
            return d
        da, db = after(a), after(b)
        n = {t: min(da.get(t, 10**9), db.get(t, 10**9)) for t in set(da) | set(db) if t is not None}
        m = max(n.values()) + 1 if n else 0
        q = [None] * m
        res = []
        for pos in range(m - 1, -1, -1):
            tags = [t for t, v in n.items() if v == pos]
            res.append(MultiTag(tags))
        return res

class MultiTag:
    def __init__(self, tags): self.tags = set(tags)
    def __eq__(self, o): return (o in self.tags) if not isinstance(o, MultiTag) else self is o
    def __hash__(self): return id(self)

if __name__ == "__main__":
    import argparse
    ap = argparse.ArgumentParser()
    ap.add_argument("-o", default="parallel_sum__spectral_gfnet__dense_activation_silu__prompt.s")
    ap.add_argument("--stamps", action="store_true")
    ap.add_argument("--opt", action="append", default=[])
    a = ap.parse_args()
    opts = {}
    for kv in a.opt:
        k, v = kv.split("="); opts[k] = eval(v)
    g = Gen(a.stamps, opts)
    txt, nn, nl = g.build()
    import json; open(a.o + ".names", "w").write(json.dumps(g.xnames))
    open(a.o, "w").write(txt)
    print("lines", nl, "nops added", nn)
```

```python
import sys
from emit import E, pad_hazards

KNAME = "parallel_sum__spectral_gfnet__dense_activation_silu__prompt_kernel"

WS_Q     = 0
WS_STATS = 0x10000
WS_Z1F   = 0x20000
WS_HF    = 0x24000
WS_Z3F   = 0x28000
WS_CSG   = 0xD00000
WS_Z1    = 0x100000
WS_Z3    = 0x300000
WS_H     = 0x500000
WS_DBG   = 0xC00000
WS_SIZE  = 0x1000000

L_XS, L_MISC, L_S1, L_S2 = 0, 32768, 49152, 98304
L_CS = L_MISC + 8192
L_RB = L_MISC + 8192 + 5120
L_ZB = L_MISC
L_ZX = L_MISC + 8192
L_FD = L_S1
PAIR = [L_S1 + i*8192 for i in range(6)] + [L_S2 + 4096, L_S2 + 16384 + 4096]
SING = [L_S2 + 12288, L_S2 + 16384 + 12288, L_S2 + 2*16384 + 4096, L_S2 + 3*16384 + 4096]
BSLOT = [L_S2 + i*16384 + 4096 for i in range(4)] + [L_S1 + 32768, L_S1 + 40960]
RED_TS = 4096 + 16
RED_WS = 4 * RED_TS

sX, sW1, sW2, sWS, sWR, sWI, sOUT = 4, 8, 12, 16, 20, 24, 28
sT, sW, sRB, sBLK, sTY, sC0, sK1, sCG, sP, sQ = 32, 33, 34, 35, 36, 37, 38, 39, 40, 41
sXROW, sCOL1, sCOL2, sHB1, sHB2, sXSW, sQB, sPOLL = 42, 43, 44, 45, 46, 47, 48, 49
sCSG = 57
sXS3, sW2K, sROT = 61, 62, 63
sKS = 64
sSTAMP = 92
def srd(n): return f"s[{n}:{n+3}]"

vTID, vL = 0, 1
vXD = [2, 3, 4, 5]; vSD = [6, 7]; vS1D = 8
vXR = [9, 10, 11, 12]; vT1 = [13, 14]; vT2 = [15, 16]; vTS = 17; vFD = 18
vC1 = [19, 20]; vC2 = [21, 22]; vCS = 8 + 224
vNC1, vRINV, vSIG, vL16 = 23, 24, 25, 26
vSTAMP = 27
vBX = 28; vAX = [32, 36, 160, 164, 176]; vCSA = [40, 44, 168, 172, 180]; vCSF = [48, 52, 144, 148, 152]
vONES = 56
vTMP = 58
vSD2 = 236; vCSS = 237; vW2D = [238, 239]; vPF = [112, 113, 114, 115]
vXR2 = [232, 233, 234, 235]
ACCA, ACCD = 64, 128
vW = 240
TMP = 192
aX, aG1, aFB = 0, 192, 216
aA2, aA3 = 128, 160

TRANS_ = ('v_exp_f32', 'v_rcp_f32', 'v_sin_f32', 'v_cos_f32', 'v_rsq_f32')
LOG2E = 1.4426950408889634
def fhex(f):
    import struct
    return "0x%08x" % struct.unpack("<I", struct.pack("<f", f))[0]
def vr(a, n): return f"v[{a}:{a+n-1}]"
def ar(a, n): return f"a[{a}:{a+n-1}]"

def merge(main, side, start=0, end=None):
    end = len(main) if end is None else end
    out = list(main[:start]); n = end - start; k = len(side); j = 0
    for i in range(n):
        out.append(main[start + i])
        while j < k and (j + 1) * n <= (i + 1) * k:
            out.append(side[j]); j += 1
    out += side[j:]
    out += main[end:]
    return out
def run(ths):
    for t in ths: t()
def cost(th): return getattr(th, 'cost', 1)
def spread(fill, caps):
    tot = sum(cost(t) for t in fill); cap = sum(caps)
    out = [[] for _ in caps]; acc = 0.0; g = 0; lim = caps[0] * tot / cap if cap else 0
    for t in fill:
        while g < len(caps) - 1 and acc + cost(t) / 2 > lim:
            g += 1; lim += caps[g] * tot / cap
        out[g].append(t); acc += cost(t)
    return out

class Gen:
    def __init__(self, stamps=False, opts=None):
        self.e = E(); self.stamps = stamps; self.nst = 0; self.xnames = []
        self.o = dict(ntw=True, pf=True, s2at={6: [0, 1, 2], 7: [3, 4, 5]}, w2p2=5, z1f=34, h0=4, pfw2=True, pfat=None, xrot=True, lep=[4, 4], hd=8, zp=5, zc=9, zd=(9, 12, 15, 19), tt=(13, 17, 21, 24), ga=(8, 10, 12), xat=22, nsh=8, hpe=0, w11=0, csA=(112, 134, 142), csB=(36, 50, 55), h1=0, wA=75, presetA=1, j0=4, j0e=0, warm2=63, z3fat=0.45, ifdw=1.0, hfat=0, lamax=6, lamin=3, vcap=0, epl=[0, 4], mixq=0, a23d=None, a23pre=0.3, w11at=0.3, stB=(36, 54), ntx='', ntw1='', ntx2='', fin=1, bw2=(1, 15, 23, 34, 43), st2d=8, epfrom=0.3, nown=7, ownA=(116, 124, 140), ownB=28, share=[1, 0], w1b=45, vq=1, allB=0, wmd=0, pre1=6, lg2=0, diag=1, hfb=0.9, gf=(0,)*7, s4w=0, xlast=1, g1pre=0, strb=1, tlbw=0, prel=0, zra=2, st3d=4, nlate=4, zpoll=[(0.25, 0.65), (0.25, 0.65)], z1g=2)
        self.o.update(opts or {})
    def stamp(self, i):
        if not self.stamps or (self.o.get('only') is not None and i not in self.o['only']): return
        e = self.e
        e(f"{'s_memrealtime' if self.o.get('rt', 1) else 's_memtime'} s[{sSTAMP}:{sSTAMP+1}]"); e.l.append("    s_waitcnt lgkmcnt(0)"); e.lg = []
        e(f"v_writelane_b32 v{vSTAMP}, s{sSTAMP}, {i if i < 15 else i + 5}")
    def light(self):
        if self.nl < 5: self.e(f"s_memtime s[{92+2*self.nl}:{93+2*self.nl}]"); self.nl += 1
    def light_dump(self):
        if not self.o.get('lst'): return
        self.e.l.append("    s_waitcnt lgkmcnt(0)"); self.e.lg = []
        for i in range(self.nl): self.e(f"v_writelane_b32 v{vSTAMP}, s{92+2*i}, {58+i}")
    def xs(self, name):
        if not (self.stamps and self.o.get('xs')): return
        if name not in self.xnames: self.xnames.append(name)
        self.stamp(15 + self.xnames.index(name))
    def dst(self, region):
        if self.o.get('detail') != region: return
        pairs = self.dpairs
        if self.nd < len(pairs):
            self.e(f"s_memtime s[{pairs[self.nd]}:{pairs[self.nd]+1}]"); self.nd += 1
    def dbegin(self, region, pairs):
        if self.o.get('detail') == region: self.nd = 0; self.dpairs = pairs
    def dend(self, region):
        if self.o.get('detail') != region: return
        self.e.l.append("    s_waitcnt lgkmcnt(0)"); self.e.lg = []
        for i in range(self.nd): self.e(f"v_writelane_b32 v{vSTAMP}, s{self.dpairs[i]}, {20+i}")
        run(self.g2_setup())
    def T(self, s, tag=None):
        f = lambda: self.e(s, tag)
        f.cost = sum(2 if x.split()[0] in TRANS_ else 1 for x in s.split("\n") if x.strip()); f.txt = s
        return f
    def W(self, vm=None, lg=None):
        f = lambda: self.e.wait(vm=vm, lg=lg)
        f.cost = 0.5
        return f
    def TL(self, s):
        return [self.T(x) for x in s.split("\n") if x.strip()]

    def prologue(self):
        e = self.e
        e("s_cmp_ge_u32 s2, 256\ns_cbranch_scc1 L_end")
        e(f"s_load_dwordx2 s[{sX}:{sX+1}], s[0:1], 0\ns_load_dwordx4 s[52:55], s[0:1], 32\ns_load_dwordx2 s[{sWS}:{sWS+1}], s[0:1], 64")
        e(f"s_load_dwordx4 s[56:59], s[0:1], 8\ns_load_dwordx2 s[{sOUT}:{sOUT+1}], s[0:1], 48")
        if self.stamps:
            e(f"s_memrealtime s[94:95]\ns_memtime s[96:97]")
            self.start_saved = False
        e(f"v_and_b32 v{vL}, 63, v0\nv_lshrrev_b32 v{vTMP}, 6, v0\nv_lshlrev_b32 v{vL16}, 4, v{vL}\nv_readfirstlane_b32 s{sW}, v{vTMP}")
        if self.o['pf']:
            if self.o.get('pfB'): e(f"s_bitcmp1_b32 s2, 3\ns_cbranch_scc0 L_nopf")
            e(f"s_getpc_b64 s[50:51]\ns_lshr_b32 s60, s2, {4 if self.o.get('pfB') else 3}\ns_lshl_b32 s60, s60, {12 if self.o.get('pfB') else 11}")
            e(f"s_and_b32 s61, s{sW}, {3 if self.o.get('pfB') else 1}\ns_lshl_b32 s61, s61, 10\ns_add_u32 s60, s60, s61\ns_min_u32 s60, s60, L_end-{KNAME}-1280")
            e(f"s_add_u32 s50, s50, s60\ns_addc_u32 s51, s51, 0")
            e(f"v_mov_b32 v{vTMP+1}, s51\nv_add_co_u32 v{vTMP}, vcc, s50, v{vL16}\nv_addc_co_u32 v{vTMP+1}, vcc, 0, v{vTMP+1}, vcc")
            e(f"global_load_dwordx4 {vr(TMP+8,4)}, {vr(vTMP,2)}, off", "pf")
            if self.o.get('pfB'): e("L_nopf:"); e.vm.pop()
        e(f"""s_and_b32 s50, s2, 7
s_lshr_b32 s51, s2, 3
s_lshr_b32 s60, s50, 1
s_lshl_b32 s60, s60, 2
s_lshr_b32 s61, s51, 3
s_add_u32 s{sRB}, s60, s61
s_and_b32 s62, s51, 7
s_and_b32 s{sTY}, s62, 1
s_and_b32 s63, s50, 1
s_lshl_b32 s{sBLK}, s63, 2
s_lshr_b32 s60, s62, 1
s_add_u32 s{sBLK}, s{sBLK}, s60
s_add_u32 s{sC0}, s62, s61
s_add_u32 s{sC0}, s{sC0}, {self.o.get('c0add', 0)}
s_and_b32 s{sC0}, s{sC0}, 7
s_lshl_b32 s{sK1}, s50, 2
s_add_u32 s{sK1}, s{sK1}, s61
s_mov_b32 s{sCG}, s62
s_mov_b32 s{sP}, s{sK1}
s_mov_b32 s{sQ}, s{sC0 if self.o['mixq'] else 62}
s_lshl_b32 s63, s63, 3
s_add_u32 s63, s63, s62""")
        e(f"s_lshl_b32 s60, s{sRB}, 2\ns_add_u32 s60, s60, s{sW}\ns_lshl_b32 s{sXROW}, s60, 10\ns_lshl_b32 s{sXSW}, s{sW}, 13")
        e(f"""s_mul_i32 s60, s{sBLK}, 320
s_and_b32 s50, s{sBLK}, 1
s_lshl_b32 s51, s50, 6
s_add_u32 s51, s51, s60
s_lshl_b32 s50, s50, 8
s_sub_u32 s{sCOL1}, s60, s50
s_add_u32 s{sCOL1}, s{sCOL1}, 256
s_lshl_b32 s61, s{sBLK}, 7
s_add_u32 s61, s61, 2560
s_cmp_eq_u32 s{sTY}, 0
s_cselect_b32 s{sCOL2}, s51, s61""")
        e(f"s_mul_i32 s60, s{sXROW}, 112\ns_add_u32 s60, s60, {WS_H}\ns_lshl_b32 s61, s{sCOL1}, 5\ns_add_u32 s{sHB1}, s60, s61\ns_lshl_b32 s61, s{sCOL2}, 5\ns_add_u32 s{sHB2}, s60, s61")
        t0, t1, t2 = vTMP, vTMP+1, vTMP+2
        e(f"""v_lshrrev_b32 v{t0}, 3, v{vL}
v_and_b32 v{t1}, 7, v{vL}
v_lshrrev_b32 v{t2}, 4, v{vL}
v_xor_b32 v{t1}, v{t1}, v{t2}
v_lshlrev_b32 v{t1}, 4, v{t1}
v_lshl_add_u32 v{vXD[0]}, v{t0}, 16, v{t1}
v_xor_b32 v{vXD[1]}, 64, v{vXD[0]}
v_add_u32 v{vXD[2]}, {2*(524288-1024)}, v{vXD[0]}
v_add_u32 v{vXD[3]}, {3*(524288-1024)}, v{vXD[1]}
v_add_u32 v{vXD[1]}, {524288-1024}, v{vXD[1]}""")
        e(f"""v_lshrrev_b32 v{t1}, 5, v{vL}
v_and_b32 v{t2}, 31, v{vL}
v_lshlrev_b32 v{t2}, 4, v{t2}
v_lshl_add_u32 v{t2}, v{t1}, 16, v{t2}
s_lshl_b32 s60, s63, 17
s_xor_b32 s61, s{sXROW}, {4096 * self.o['strb']}
s_add_u32 s60, s60, s61""")
        e(f"""s_lshl_b32 s61, s{sW}, 4
v_add_u32 v{t0}, s61, v{t0}
v_mul_u32_u24 v{t0}, 3584, v{t0}
v_and_b32 v{t1}, 7, v{vL}
v_lshlrev_b32 v{t1}, 4, v{t1}
v_and_b32 v{vTMP+3}, 16, v{vL}
v_lshlrev_b32 v{vTMP+3}, 2, v{vTMP+3}
v_xor_b32 v{t1}, v{t1}, v{vTMP+3}
v_add_u32 v{vSD[0]}, v{t0}, v{t1}
v_add_u32 v{vSD[1]}, {8*3584-1024}, v{vSD[0]}
v_lshrrev_b32 v{t0}, 2, v{vL}
v_add_u32 v{t0}, s61, v{t0}
v_mul_u32_u24 v{t0}, 3584, v{t0}
v_and_b32 v{t1}, 3, v{vL}
v_lshl_add_u32 v{vS1D}, v{t1}, 4, v{t0}""")
        e.l.append("    s_waitcnt lgkmcnt(0)")
        if self.stamps: e(f"v_writelane_b32 v{vSTAMP}, s96, 0\nv_writelane_b32 v{vSTAMP}, s94, 15")
        self.stamp(4)
        e(f"s_mov_b32 s{sX+2}, 2097152\ns_mov_b32 s{sX+3}, 0x20000")
        if self.o.get('xfirst'): run(self.dma_x(0))
        if self.o['vq']:
            e(f"s_mov_b32 s{sWS+2}, {WS_SIZE}\ns_mov_b32 s{sWS+3}, 0x20000")
            e(f"buffer_load_dword v{vW}, off, {srd(sWS)}, 0 offset:{WS_Q}", "stat")
        e(f"buffer_load_dwordx4 {vr(TMP,4)}, v{t2}, {srd(sX)}, s60 offen {self.o.get('stf', '')}", "stat")
        e(f"buffer_load_dwordx4 {vr(TMP+4,4)}, v{t2}, {srd(sX)}, s60 offen offset:512 {self.o.get('stf', '')}", "stat")
        if not self.o['vq']: e(f"s_load_dword s{sT}, s[{sWS}:{sWS+1}], {WS_Q}")
        e(f"s_mov_b32 s{sW1}, s52\ns_mov_b32 s{sW1+1}, s53\ns_mov_b32 s{sW1+2}, 1835008\ns_mov_b32 s{sW1+3}, 0x20000")
        if not self.o.get('xfirst') and not self.o['xlast']: run(self.dma_x(0))
        e(f"s_mov_b32 s{sW2}, s54\ns_mov_b32 s{sW2+1}, s55\ns_mov_b32 s{sW2+2}, 1835008\ns_mov_b32 s{sW2+3}, 0x20000")
        e(f"s_mov_b32 s{sWS+2}, {WS_SIZE}\ns_mov_b32 s{sWS+3}, 0x20000")
        e(f"s_mov_b32 s{sWR}, s56\ns_mov_b32 s{sWR+1}, s57\ns_mov_b32 s{sWR+2}, 1052672\ns_mov_b32 s{sWR+3}, 0x20000")
        e(f"s_mov_b32 s{sWI}, s58\ns_mov_b32 s{sWI+1}, s59\ns_mov_b32 s{sWI+2}, 1052672\ns_mov_b32 s{sWI+3}, 0x20000")
        e(f"s_mov_b32 s{sOUT+2}, 2097152\ns_mov_b32 s{sOUT+3}, 0x20000")
        if self.o['tlbw']:
            skip = e.label("tw")
            e(f"s_cmp_lg_u32 s{sW}, {self.o['tlbw'] - 1}\ns_cbranch_scc1 {skip}")
            for l in (f"v_min_u32 v{vW+1}, 6, v{vL}", f"v_lshlrev_b32 v{vW+1}, 21, v{vW+1}", f"v_add_u32 v{vW+1}, 0x100000, v{vW+1}", f"v_min_u32 v{vW+2}, 1, v{vL}", f"v_mul_u32_u24 v{vW+2}, 1052000, v{vW+2}",
                      f"buffer_load_dword v{vW+3}, v{vW+1}, {srd(sWS)}, 0 offen", f"buffer_load_dword v{vW+3}, v{vW+2}, {srd(sW2)}, 0 offen", f"buffer_load_dword v{vW+3}, v{vW+2}, {srd(sWR)}, 0 offen",
                      f"buffer_load_dword v{vW+3}, v{vW+2}, {srd(sWI)}, 0 offen", f"buffer_load_dword v{vW+3}, v{vW+2}, {srd(sOUT)}, 0 offen"): e.l.append("    " + l)
            e(f"{skip}:")
        e(f"s_mov_b32 s{sPOLL}, s63")
        e(f"s_lshl_b32 s{sXS3}, s{sW}, 10\ns_lshl_b32 s{sW2K}, s{sW}, 11\ns_lshl_b32 s{sQB}, s{sQ}, 7\ns_lshl_b32 s56, s{sW}, 14")
        e(f"s_lshr_b32 s50, s{sRB}, 2\ns_lshl_b32 s50, s50, 4\ns_add_u32 s50, s50, s63\ns_lshl_b32 s50, s50, 2\ns_add_u32 s50, s50, s{sW}\ns_lshl_b32 s50, s50, 12\ns_add_u32 s{sCSG}, s50, {WS_CSG}")
        e(f"s_mul_i32 s50, s{sQ}, 7\ns_lshr_b32 s50, s50, 1\ns_and_b32 s51, s{sP}, 3\ns_mul_i32 s51, s51, 7\ns_add_u32 s{sROT}, s50, s51")
        if self.o['xrot']: e(f"s_and_b32 s50, s2, 7\ns_add_u32 s{sROT}, s{sROT}, s50\ns_cmp_ge_u32 s{sROT}, 28\ns_cselect_b32 s50, 28, 0\ns_sub_u32 s{sROT}, s{sROT}, s50")

    def chunk(self, t, d):
        return f"s_add_u32 s{d}, s{sC0}, {(t>>1) + 4*(t&1)}\ns_and_b32 s{d}, s{d}, 7\n"
    XSLOT = staticmethod(lambda t: (t + 1) % 3)
    def dma_x(self, t):
        sl = self.XSLOT(t)
        pre = self.chunk(t, 50) + f"s_lshl_b32 s50, s50, 7\ns_add_u32 s50, s50, s{sXROW}\n"
        m0 = f"s_add_u32 m0, s{sXSW}, {L_XS + sl*4096}\n" if sl < 2 else f"s_add_u32 m0, s56, {L_S2}\n"
        return [self.T((m0 + pre if i == 0 else m0) + f"buffer_load_dwordx4 v{vXD[i]}, {srd(sX)}, s50 offen offset:{i*1024} {self.o['ntx'] if t == 0 else self.o['ntx2']} lds", f"x{t}") for i in range(4)]
    def dma_w1(self, ty, t):
        pre = self.chunk(t, 51) + f"s_mul_i32 s51, s51, {64*3584}\ns_add_u32 s52, s51, s{sCOL1}\ns_add_u32 s51, s51, s{sCOL2}\n"
        T = lambda x: self.T(x, f"w1_{t}")
        th = []; fl = self.o['ntw1'] if t < 2 else self.o['ntx2']
        for pr in range(2 - ty):
            p = PAIR[2*(t % 4) + pr] if ty == 0 else BSLOT[t % 6]
            so = "s51" if pr == 0 else "s53"
            th += [T((pre if pr == 0 else "s_add_u32 s53, s51, 128\n") + f"s_add_u32 m0, s{sW2K}, {p}\nbuffer_load_dwordx4 v{vSD[0]}, {srd(sW1)}, {so} offen {fl} lds"),
                   T(f"s_add_u32 m0, s{sW2K}, {p}\nbuffer_load_dwordx4 v{vSD[1]}, {srd(sW1)}, {so} offen offset:1024 {fl} lds")]
        if ty == 0:
            th.append(T(f"s_add_u32 m0, s{sXS3}, {SING[t % 4]}\nbuffer_load_dwordx4 v{vS1D}, {srd(sW1)}, s52 offen {fl} lds"))
        return th

    def addr_setup(self):
        e = self.e
        t0, t1, t2, t3 = vTMP, vTMP+1, vTMP+2, vTMP+3
        e(f"""v_and_b32 v{t0}, 31, v{vL}
v_lshrrev_b32 v{t1}, 5, v{vL}
v_bfe_u32 v{t2}, v{vL}, 1, 3
v_xor_b32 v{t2}, v{t2}, v{t1}
v_lshlrev_b32 v{t2}, 4, v{t2}
v_lshl_add_u32 v{t2}, v{t0}, 7, v{t2}
v_add_u32 v{vXR[0]}, s{sXSW}, v{t2}
v_xor_b32 v{vXR[1]}, 32, v{vXR[0]}
v_xor_b32 v{vXR[2]}, 64, v{vXR[0]}
v_xor_b32 v{vXR[3]}, 96, v{vXR[0]}
s_add_u32 s50, s56, {L_S2}
v_add_u32 v{vXR2[0]}, s50, v{t2}
v_xor_b32 v{vXR2[1]}, 32, v{vXR2[0]}
v_xor_b32 v{vXR2[2]}, 64, v{vXR2[0]}
v_xor_b32 v{vXR2[3]}, 96, v{vXR2[0]}""")
        e(f"""v_bfe_u32 v{t0}, v{vL}, 2, 2
v_lshl_add_u32 v{t2}, v{t1}, 3, v{t0}
v_and_b32 v{t3}, 3, v{vL}
v_lshlrev_b32 v{t3}, 3, v{t3}
v_and_b32 v{vTMP+4}, 16, v{vL}
v_lshl_add_u32 v{t3}, v{vTMP+4}, 1, v{t3}
v_lshl_add_u32 v{vTS}, v{t2}, 6, v{t3}
v_add_u32 v{vTS}, {L_S2}, v{vTS}
v_lshl_add_u32 v{t3}, v{t2}, 7, v{t3}
v_and_b32 v{vTMP+4}, 8, v{vL}
v_lshl_add_u32 v{t3}, v{vTMP+4}, 3, v{t3}
v_add_u32 v{vT1[0]}, {L_S1}, v{t3}
v_xor_b32 v{vT1[1]}, 64, v{vT1[0]}
v_add_u32 v{vT2[0]}, {L_S2}, v{t3}
v_xor_b32 v{vT2[1]}, 64, v{vT2[0]}
s_lshl_b32 s50, s{sW}, 11
v_add_u32 v{vC2[0]}, s50, v{vT2[0]}
v_add_u32 v{vC2[1]}, s50, v{vT2[1]}
v_add_u32 v{vC1[0]}, s50, v{vT1[0]}
v_add_u32 v{vC1[1]}, s50, v{vT1[1]}
v_add_u32 v{vCSS}, s{sXS3}, v{vTS}
v_add_u32 v{vFD}, {L_FD}, v{vL16}
v_mov_b32 v{vONES}, 0x3f803f80
v_mov_b32 v{vONES+1}, 0x3f803f80""")

    def stats(self):
        e = self.e
        U = 96
        for i in range(8):
            e(f"v_lshlrev_b32 v{U+2*i}, 16, v{TMP+i}\nv_and_b32 v{U+2*i+1}, 0xffff0000, v{TMP+i}")
        def reduce(src, n, acc):
            e(f"v_add_f32 v{acc}, v{src}, v{src+1}\nv_add_f32 v{acc+1}, v{src+2}, v{src+3}")
            for i in range(4, n, 2):
                e(f"v_add_f32 v{acc}, v{acc}, v{src+i}\nv_add_f32 v{acc+1}, v{acc+1}, v{src+i+1}")
            e(f"v_add_f32 v{acc}, v{acc}, v{acc+1}")
            for k in (8, 4, 2, 1):
                e(f"v_add_f32_dpp v{acc}, v{acc}, v{acc} row_ror:{k} row_mask:0xf bank_mask:0xf")
            e(f"v_mov_b32 v{acc+1}, v{acc}\nv_permlane16_swap_b32 v{acc}, v{acc+1}\nv_add_f32 v{acc}, v{acc}, v{acc+1}")
        M = 112
        reduce(U, 16, M)
        e(f"v_mul_f32 v{M}, {fhex(1/512)}, v{M}")
        for i in range(16):
            e(f"v_sub_f32 v{U+i}, v{U+i}, v{M}")
        for i in range(16):
            e(f"v_mul_f32 v{U+i}, v{U+i}, v{U+i}")
        reduce(U, 16, M+2)
        e(f"v_mov_b32 v{M+3}, {fhex(1e-5)}\nv_fmac_f32 v{M+3}, {fhex(1/512)}, v{M+2}\nv_rsq_f32 v{M+2}, v{M+3}")
        if self.o['vq']: e(f"v_readfirstlane_b32 s{sT}, v{vW}")
        else: e.l.append("    s_waitcnt lgkmcnt(0)"); e.lg = []
        e(f"s_mul_i32 s{sT}, s{sT}, 0x9E3779B1\ns_add_u32 s{sT}, s{sT}, 0x7F4A7C15")
        e(f"v_mov_b32 v{M+1}, s{sT}\nv_mov_b32 v{M+3}, s{sT}")
        e(f"s_xor_b32 s54, s{sXROW}, {4096 * self.o['strb']}\ns_lshr_b32 s54, s54, 1\ns_lshl_b32 s60, s{sPOLL}, 5\ns_add_u32 s54, s54, s60\ns_add_u32 s54, s54, {WS_STATS}")
        e(f"v_lshrrev_b32 v{vTMP}, 5, v{vL}\nv_lshlrev_b32 v{vTMP}, 4, v{vTMP}\nv_and_b32 v{vTMP+1}, 31, v{vL}\nv_cmp_eq_u32 vcc, 0, v{vTMP+1}")
        e(f"s_and_saveexec_b64 s[58:59], vcc")
        e(f"buffer_store_dwordx4 {vr(M,4)}, v{vTMP}, {srd(sWS)}, s54 offen sc1", "statst")
        e(f"s_mov_b64 exec, s[58:59]")

    def trig(self, n, ang, inc, step, regs, use, group=1, first=None):
        T = self.T; th = []; pend = []
        for g in range(n // group):
            cs = []
            for b in range(group):
                i = g*group + b
                c, s_ = regs[(g & 1)*group + b]
                a = first if (first is not None and i == 0) else ang
                th += [T(f"v_cos_f32 v{c}, v{a}"), T(f"v_sin_f32 v{s_}, v{a}")]
                if i < n - 1:
                    k = step(i)
                    th.append(T(f"v_add_f32 v{ang}, v{ang}, v{inc}") if k == 1 else T(f"v_fmac_f32 v{ang}, {fhex(float(k))}, v{inc}"))
                cs.append((c, s_))
            th += pend
            pend = use(g, cs)
        return th + pend

    def rot(self, zs, rho, tmp):
        T = self.T
        return ([T(f"v_pk_mul_f32 {vr(tmp+2*i,2)}, {vr(z,2)}, {vr(rho,2)} op_sel_hi:[1,0]") for i, z in enumerate(zs)] +
                [T(f"v_pk_fma_f32 {vr(z,2)}, {vr(z,2)}, {vr(rho,2)}, {vr(tmp+2*i,2)} op_sel:[1,1,0] op_sel_hi:[0,1,1] neg_lo:[0,1,0]") for i, z in enumerate(zs)])
    def gen_a2a3(self):
        T = self.T; th = []
        t0, t1, t2, t3, k2, n2, sg = [TMP + 16 + i for i in range(7)]
        ang, inc = TMP + 24, TMP + 25
        regs = [(TMP + 26, TMP + 27), (TMP + 28, TMP + 29)]
        pk = TMP + 26
        th += self.TL(f"""v_bfe_u32 v{t0}, v{vL}, 4, 1
v_bfe_u32 v{t1}, v{vL}, 3, 1
v_bfe_u32 v{t2}, v{vL}, 2, 1
v_bfe_u32 v{t3}, v{vL}, 1, 1
v_lshl_add_u32 v{k2}, v{t1}, 1, v{t3}
v_lshl_add_u32 v{k2}, v{t2}, 2, v{k2}
v_lshl_add_u32 v{k2}, v{t0}, 3, v{k2}
s_lshl_b32 s98, s{sW}, 4
v_add_u32 v{k2}, s98, v{k2}
v_and_b32 v{n2}, 1, v{vL}
v_cvt_f32_u32 v{ang}, v{n2}
v_mul_f32 v{ang}, 0x3e800000, v{ang}
v_cvt_f32_u32 v{inc}, v{k2}
v_mul_f32 v{inc}, {fhex(1/64)}, v{inc}
v_lshrrev_b32 v{k2}, 5, v{vL}
v_lshlrev_b32 v{k2}, 2, v{k2}
v_cvt_f32_u32 v{k2}, v{k2}
v_fmac_f32 v{ang}, v{k2}, v{inc}
s_mov_b32 s98, 0x80008000
v_mul_lo_u32 v{sg}, v{t3}, s98""")
        def use(dst, neg):
            def f(g, cs):
                c, s_ = cs[0]; p = TMP + 30 + 2*(g & 1)
                return [T(f"v_cvt_pk_bf16_f32 v{p}, v{c}, {'-' if neg else ''}v{s_}"), T(f"v_xor_b32 v{p+1}, v{p}, v{sg}"),
                        T(f"v_accvgpr_write_b32 a{dst+g}, v{p}"), T(f"v_accvgpr_write_b32 a{dst+16+g}, v{p+1}")]
            return f
        st4 = lambda i: 1 if (i & 3) < 3 else 5
        th += self.trig(16, ang, inc, st4, regs, use(aA2, False))
        self.n_a2 = len(th)
        th += self.TL(f"""v_bfe_u32 v{n2}, v{vL}, 3, 2
v_lshl_add_u32 v{n2}, v{n2}, 1, v{t2}
v_and_b32 v{t0}, 1, v{vL}
v_lshl_add_u32 v{n2}, v{n2}, 1, v{t0}
s_mov_b32 s98, 0x80008000
v_mul_lo_u32 v{sg}, v{t0}, s98
s_lshl_b32 s98, s{sW}, 4
v_add_u32 v{n2}, s98, v{n2}
v_cvt_f32_u32 v{n2}, v{n2}
v_mul_f32 v{inc}, {fhex(1/64)}, v{n2}
v_cvt_f32_u32 v{ang}, v{t3}
v_mul_f32 v{ang}, 0xbe800000, v{ang}
v_cvt_f32_u32 v{t0}, s{sK1}
v_mul_f32 v{t0}, {fhex(1/2048)}, v{t0}
v_fmac_f32 v{ang}, v{t0}, v{n2}
v_fmac_f32 v{ang}, v{k2}, v{inc}""")
        th += self.trig(16, ang, inc, st4, regs, use(aA3, True))
        return th

    def gen_fd(self):
        T = self.T; th = []
        kc, inc, ang, t0 = TMP + 12, TMP + 13, TMP + 14, TMP + 15
        regs = [(TMP + 16 + 2*i, TMP + 17 + 2*i) for i in range(4)]
        PC, PS = TMP + 24, TMP + 32
        th += self.TL(f"""v_and_b32 v{kc}, 31, v{vL}
s_lshl_b32 s50, s{sBLK}, 5
v_add_u32 v{kc}, s50, v{kc}
v_and_b32 v{t0}, 1, v{kc}
v_lshlrev_b32 v{t0}, 31, v{t0}
v_xor_b32 v{vSIG}, 1.0, v{t0}
v_mov_b32 v{t0}, 0x100
v_cmp_eq_u32 vcc, 0, v{kc}
v_cndmask_b32 v{kc}, v{kc}, v{t0}, vcc
s_add_u32 s50, s{sC0}, s{sW}
s_lshl_b32 s50, s50, 6
v_lshrrev_b32 v{t0}, 5, v{vL}
v_lshlrev_b32 v{t0}, 3, v{t0}
v_add_u32 v{t0}, s50, v{t0}
v_mul_u32_u24 v{t0}, v{t0}, v{kc}
v_and_b32 v{t0}, 511, v{t0}
v_cvt_f32_u32 v{ang}, v{t0}
v_mul_f32 v{ang}, {fhex(1/512)}, v{ang}
v_cvt_f32_u32 v{inc}, v{kc}
v_mul_f32 v{inc}, {fhex(1/512)}, v{inc}
s_lshl_b32 s50, s{sW}, 13
v_add_u32 v{t0}, s50, v{vFD}""")
        C, S, TM, RC, RS = TMP + 12 + 28, 96, 104, 112, 114
        C = 120
        th += self.TL(f"v_mul_f32 v{kc}, {fhex(16.0)}, v{inc}\nv_cos_f32 v{RC}, v{kc}\nv_sin_f32 v{RS}, v{kc}")
        for e_ in range(8):
            th += [T(f"v_cos_f32 v{C+e_}, v{ang}"), T(f"v_sin_f32 v{S+e_}, v{ang}")]
            if e_ < 7: th.append(T(f"v_add_f32 v{ang}, v{ang}, v{inc}"))
        th += self.TL(f"v_mov_b32 v{RC+1}, v{RC}\nv_mov_b32 v{RS+1}, v{RS}")
        for ks in range(4):
            o = 4*(ks & 1)
            if ks >= 2: th.append(self.W(lg=f"fdw{ks-2}"))
            th += [T(f"v_cvt_pk_bf16_f32 v{PC+o+q}, v{C+2*q}, v{C+2*q+1}") for q in range(4)]
            th += [T(f"v_cvt_pk_bf16_f32 v{PS+o+q}, -v{S+2*q}, -v{S+2*q+1}") for q in range(4)]
            if ks < 3:
                th += [T(f"v_pk_mul_f32 {vr(TM+2*q,2)}, {vr(S+2*q,2)}, {vr(RS,2)}") for q in range(4)]
                th += [T(f"v_pk_mul_f32 {vr(S+2*q,2)}, {vr(S+2*q,2)}, {vr(RC,2)}") for q in range(4)]
                th += [T(f"v_pk_fma_f32 {vr(S+2*q,2)}, {vr(C+2*q,2)}, {vr(RS,2)}, {vr(S+2*q,2)}") for q in range(4)]
                th += [T(f"v_pk_fma_f32 {vr(C+2*q,2)}, {vr(C+2*q,2)}, {vr(RC,2)}, {vr(TM+2*q,2)} neg_lo:[0,0,1] neg_hi:[0,0,1]") for q in range(4)]
            th += [T(f"ds_write_b128 v{t0}, {vr(PC+o,4)} offset:{ks*2048}", f"fdw{ks}"), T(f"ds_write_b128 v{t0}, {vr(PS+o,4)} offset:{ks*2048+1024}", f"fdw{ks}")]
        th.append(self.W(lg="fdw3"))
        return th
    def gen_g1(self):
        T = self.T; th = []
        kc, inc, ang, t0, sg = TMP + 12, TMP + 13, TMP + 14, TMP + 15, TMP + 36
        regs = [(TMP + 16 + 2*i, TMP + 17 + 2*i) for i in range(4)]
        P = TMP + 24
        th += self.TL(f"""v_and_b32 v{kc}, 31, v{vL}
v_and_b32 v{t0}, 1, v{vL}
s_mov_b32 s54, 0x80008000
v_mul_lo_u32 v{sg}, v{t0}, s54
v_cvt_f32_u32 v{kc}, v{kc}
v_mul_f32 v{inc}, {fhex(1/32)}, v{kc}
s_lshr_b32 s54, s{sXROW}, 10
v_cvt_f32_u32 v{ang}, s54
v_mul_f32 v{ang}, {fhex(1/2048)}, v{ang}
v_mul_f32 v{ang}, v{ang}, v{kc}
v_lshrrev_b32 v{t0}, 5, v{vL}
v_lshlrev_b32 v{t0}, 2, v{t0}
v_cvt_f32_u32 v{t0}, v{t0}
v_fmac_f32 v{ang}, v{t0}, v{inc}""")
        def use(q, cs):
            r = [T(f"v_cvt_pk_bf16_f32 v{P}, v{cs[0][0]}, v{cs[1][0]}"), T(f"v_cvt_pk_bf16_f32 v{P+1}, v{cs[0][1]}, v{cs[1][1]}"),
                 T(f"v_cvt_pk_bf16_f32 v{P+2}, -v{cs[0][1]}, -v{cs[1][1]}")]
            for k in range(3): r.append(T(f"v_xor_b32 v{P+3+k}, v{P+k}, v{sg}"))
            for k in range(3): r += [T(f"v_accvgpr_write_b32 a{aG1+8*k+q}, v{P+k}"), T(f"v_accvgpr_write_b32 a{aG1+8*k+4+q}, v{P+3+k}")]
            return r
        th += self.trig(8, ang, inc, lambda i: 5 if (i & 3) == 3 else 1, regs, use, group=2)
        return th

    def pair_addr(self, ty, t, pr, cs=False):
        a = PAIR[2*(t % 4) + pr] if ty == 0 else BSLOT[t % 6]
        if a < L_S2: return (vC1 if cs else vT1), a - L_S1
        return (vC2 if cs else vT2), a - L_S2
    def csum_grp(self, tag, tiles, first):
        T = self.T; rd, mm = [], []
        for i, (ad, off, stp, tl) in enumerate(tiles):
            for eh in range(2):
                rd.append(T(f"ds_read_b64_tr_b16 {vr(vCSF[i]+2*eh,2)}, v{ad} offset:{off + eh*stp}", tag))
        mm.append(self.W(lg=tag))
        for eh in range(2):
            for i, (ad, off, stp, tl) in enumerate(tiles):
                c = "0" if (first and eh == 0) else vr(vCSA[tl], 4)
                mm.append(T(f"v_mfma_f32_4x4x4_16b_bf16 {vr(vCSA[tl],4)}, {vr(vONES,2)}, {vr(vCSF[i]+2*eh,2)}, {c}"))
        return rd, mm
    def csum_publish(self, nt):
        th = [self.T(f"s_lshl_b32 s60, s{sW}, 2\nv_add_u32 v{vTMP}, s60, v{vL16}")]
        th += [self.T(f"ds_write_b32 v{vTMP}, v{vCSA[dt]} offset:{L_CS + dt*1024}", "csw") for dt in range(nt)]
        return th
    def cs_tiles(self, ty):
        return [f"s_mov_b32 s60, s{sW}", "s_mov_b32 s60, 4"] if ty == 0 else [f"s_and_b32 s60, s{sW}, 1"] * 2
    def csum_send(self, ty):
        T = self.T; F = [vCSF[0], vCSF[1]]; rd, th = [], []
        for k, code in enumerate(self.cs_tiles(ty)):
            rd.append(T(f"{code}\ns_lshl_b32 s60, s60, 10\nv_add_u32 v{vTMP+1+k}, s60, v{vL16}\nds_read_b128 {vr(F[k],4)}, v{vTMP+1+k} offset:{L_CS}", "csr"))
        a, b = F
        th = [self.W(lg="csr")] + self.TL(f"""v_add_f32 v{a}, v{a}, v{a+1}
v_add_f32 v{a+2}, v{a+2}, v{a+3}
v_add_f32 v{b}, v{b}, v{b+1}
v_add_f32 v{b+2}, v{b+2}, v{b+3}
v_add_f32 v{a}, v{a}, v{a+2}
v_mov_b32 v{a+1}, s{sT}
v_add_f32 v{a+2}, v{b}, v{b+2}
v_mov_b32 v{a+3}, s{sT}
v_lshrrev_b32 v{vTMP+1}, 1, v{vTMP+1}
v_lshrrev_b32 v{vTMP+2}, 1, v{vTMP+2}""")
        st = [T(f"s_and_b32 s60, s{sRB}, 3\ns_lshl_b32 s60, s60, 10\ns_add_u32 s60, s60, s{sCSG}\nbuffer_store_dwordx4 {vr(a,4)}, v{vL16}, {srd(sWS)}, s60 offen sc1", "css")]
        return rd, th, st
    CL = TMP + 4
    def csum_load(self, ty):
        return [self.T(f"buffer_load_dwordx4 {vr(self.CL+4*i,4)}, v{vL16}, {srd(sWS)}, s{sCSG} offen offset:{1024*i} sc1", "csl") for i in range(4)]
    def csum_check(self, ty):
        e = self.e
        e.wait(vm="csl")
        tags = [self.CL + 1 + 2*j for j in range(8)]
        t = f"v_xor_b32 v{vTMP+3}, s{sT}, v{tags[0]}\nv_xor_b32 v{vTMP+5}, s{sT}, v{tags[1]}\n"
        for k in range(2, 8, 2): t += f"v_bitop3_b32 v{vTMP+3}, v{tags[k]}, s{sT}, v{vTMP+3} bitop3:0xbe\nv_bitop3_b32 v{vTMP+5}, v{tags[k+1]}, s{sT}, v{vTMP+5} bitop3:0xbe\n"
        self.spin(t + f"v_or_b32 v{vTMP+3}, v{vTMP+3}, v{vTMP+5}\nv_cmp_ne_u32 vcc, 0, v{vTMP+3}", [th.txt for th in self.csum_load(ty)], 53)
    def csum_build(self, ty):
        C = self.CL; seq = []
        for k in range(2):
            F = C + 2*k
            seq.append([f"v_add_f32 v{F}, v{F}, v{F+4}", f"v_add_f32 v{F+8}, v{F+8}, v{F+12}", f"v_add_f32 v{F}, v{F}, v{F+8}",
                        f"v_cvt_pk_bf16_f32 v{F+5}, v{F}, v{F}", f"v_and_b32 v{F+1}, 0xffff0000, v{F+5}", f"v_sub_f32 v{F+8}, v{F}, v{F+1}", f"v_cvt_pk_bf16_f32 v{F+4}, v{F+1}, v{F+8}"])
        th = [self.T(seq[k][j]) for j in range(7) for k in range(2)]
        return th + [self.T(f"ds_write_b64 v{vTMP+1+k}, {vr(C+2*k+4,2)} offset:{L_CS}", "cxw") for k in range(2)]
    def csum_get(self, nt):
        return [self.T(f"v_lshlrev_b32 v{vTMP+3}, 3, v{vL}")] + [self.T(f"ds_read_b64 {vr(vAX[dt],2)}, v{vTMP+3} offset:{L_CS + dt*512}", "cxr") for dt in range(nt)]
    def csum_fetch(self, nt):
        return [self.T(f"ds_read_b128 {vr(vCSA[dt],4)}, v{vL16} offset:{L_CS + dt*1024}", "csr") for dt in range(nt)]
    def csum_prep(self, nt):
        th = [self.W(lg="csr")]
        seq = []
        for dt in range(nt):
            F, A = vCSA[dt], vAX[dt]
            seq.append([f"v_add_f32 v{F}, v{F}, v{F+1}", f"v_add_f32 v{F+2}, v{F+2}, v{F+3}", f"v_add_f32 v{F}, v{F}, v{F+2}",
                        f"v_cvt_pk_bf16_f32 v{A+1}, v{F}, v{F}", f"v_and_b32 v{F+1}, 0xffff0000, v{A+1}", f"v_sub_f32 v{F+2}, v{F}, v{F+1}", f"v_cvt_pk_bf16_f32 v{A}, v{F+1}, v{F+2}"])
        for k in range(7):
            for dt in range(nt): th.append(self.T(seq[dt][k]))
        return th
    def csum_apply(self, nt):
        return [self.T(f"v_mfma_f32_32x32x16_bf16 {vr(ACCA+16*dt,16)}, {vr(vAX[dt],4)}, {vr(vBX,4)}, {vr(ACCA+16*dt,16)}") for dt in range(nt)]

    def stats_fetch(self):
        e = self.e
        e(f"s_lshr_b32 s63, s{sXROW}, 1\ns_add_u32 s63, s63, {WS_STATS}\nv_and_b32 v{vTMP+4}, 31, v{vL}\nv_lshlrev_b32 v{vTMP+4}, 4, v{vTMP+4}")
        e(f"buffer_load_dwordx4 {vr(TMP,4)}, v{vTMP+4}, {srd(sWS)}, s63 offen sc1", "stl")
    def stats_use(self, ty):
        e = self.e
        e.wait(vm="stl")
        self.spin(f"v_cmp_ne_u32 vcc, s{sT}, v{TMP+1}\nv_cmp_ne_u32 s[54:55], s{sT}, v{TMP+3}\ns_or_b64 vcc, vcc, s[54:55]",
                  [f"buffer_load_dwordx4 {vr(TMP,4)}, v{vTMP+4}, {srd(sWS)}, s63 offen sc1"], 57)
        m, r = TMP, TMP + 2
        e(f"v_mul_f32 v{vNC1}, {fhex(-LOG2E)}, v{r}\nv_rcp_f32 v{vRINV}, v{r}")
        e(f"v_cvt_pk_bf16_f32 v{vBX}, -v{m}, -v{m}\nv_and_b32 v{TMP+1}, 0xffff0000, v{vBX}\nv_sub_f32 v{TMP+1}, -v{m}, v{TMP+1}")
        e(f"v_mov_b32 v{vBX+2}, 0\nv_mov_b32 v{vBX+3}, 0\nv_cvt_pk_bf16_f32 v{vBX+1}, v{TMP+1}, v{vBX+2}")
        if ty == 1:
            e(f"s_lshl_b32 s60, s{sW}, 7\nv_lshrrev_b32 v{vTMP+4}, 2, v{vTMP+4}\nv_add_u32 v{vTMP+4}, s60, v{vTMP+4}")
            e(f"ds_write_b32 v{vTMP+4}, v{r} offset:{L_RB}", "rbw")

    def silu(self, tiles):
        T = self.T; th = self.TL(f"v_mov_b32 v{vTMP}, v{vNC1}\nv_mov_b32 v{vTMP+1}, v{vNC1}\nv_mov_b32 v{vTMP+2}, v{vRINV}\nv_mov_b32 v{vTMP+3}, v{vRINV}")
        for acc, hb, off in tiles:
            for f in range(2):
                P = TMP + 8 + 4 * f
                for q in range(2):
                    a = acc + 8*f + 4*q
                    u = TMP + 4 * q
                    th += [T(f"v_pk_mul_f32 {vr(u+k,2)}, {vr(a+k,2)}, {vr(vTMP,2)}") for k in (0, 2)]
                    th += [T(f"v_exp_f32 v{u+k}, v{u+k}") for k in range(4)]
                    th += [T(f"v_pk_fma_f32 {vr(u+k,2)}, {vr(u+k,2)}, {vr(vTMP+2,2)}, {vr(vTMP+2,2)}") for k in (0, 2)]
                    th += [T(f"v_rcp_f32 v{u+k}, v{u+k}") for k in range(4)]
                    th += [T(f"v_pk_mul_f32 {vr(u+k,2)}, {vr(u+k,2)}, {vr(a+k,2)}") for k in (0, 2)]
                    th += [T(f"v_cvt_pk_bf16_f32 v{P+2*q+k}, v{u+2*k}, v{u+2*k+1}") for k in range(2)]
                th.append(T(f"buffer_store_dwordx4 {vr(P,4)}, v{vL16}, {srd(sWS)}, s{hb} offen offset:{off + f*1024} {self.o.get('hst', 'sc1')}", "h2")); th[-1].st = True
        return th

    def pipeline2(self, units, LA, bounds, streams, mem, pinned, extra, early, P, between, early2):
        sel = lambda L, lo, hi: [(th, a - lo, b - lo) for th, a, b in L if lo <= a < hi]
        for L in (streams, mem, extra):
            for th, a, b in L: assert (a < P) == (b < P), (a, b)
        sh = lambda d, lo, hi: {k - lo: v for k, v in d.items() if lo <= k < hi}
        N = len(units)
        self.pipeline(units[:P], LA, sh(bounds, 0, P), sel(streams, 0, P), sel(mem, 0, P), sh(pinned, 0, P), sel(extra, 0, P), early)
        run(between)
        u2 = [(u[0], u[1]) for u in units[P:]]
        self.pipeline(u2, LA, sh(bounds, P, N + LA), sel(streams, P, N), sel(mem, P, N), sh(pinned, P, N), sel(extra, P, N), early2, off=P)
    def pipeline(self, units, LA, bounds, streams, mem, pinned, extra, early, off=0):
        e = self.e; N = len(units)
        fills = [[] for _ in range(N)]; mj = [[] for _ in range(N)]; rd = {g: [] for g in range(-LA, N)}
        for th, u0, u1 in mem:
            for i, t in enumerate(th): mj[u0 + i * (u1 - u0 + 1) // len(th)].append(t)
        dat = sorted(b for b in bounds if bounds[b][0])
        w = lambda t: 2 if 'b128' in t.txt else 1
        items = []
        for m in range(N):
            lo = max(max([b for b in dat if b <= m], default=0) - LA, m - self.o['lamax'], units[m][2] if len(units[m]) > 2 else -LA)
            items += [[lo, m - self.o['lamin'], t] for t in units[m][0]]
        ex = [[u0, u1, t] for th, u0, u1 in extra for t in th]
        for g in range(-LA, N):
            room = (2 if mj[g] else 3) if g >= 0 else 4
            room -= self.o['vcap'] * sum(1 for th, u0, u1 in streams if u0 <= g <= u1 and len(th) > 3*(u1 - u0 + 1))
            for lst in (items, ex):
                while lst and lst[0][1] <= g:
                    t = lst.pop(0)[2]; rd[g].append(t); room -= w(t)
            for lst in (items, ex):
                while lst and lst[0][0] <= g and room >= w(lst[0][2]):
                    t = lst.pop(0)[2]; rd[g].append(t); room -= w(t)
        assert not items and not ex
        cap = [max(0.5, 6.0 - len(rd[u]) - 5*len(mj[u])) for u in range(N)]
        for th, u0, u1 in streams:
            for k, grp in zip(range(u0, u1 + 1), spread(th, cap[u0:u1 + 1])): fills[k] += grp
        def boundary(m):
            if m not in bounds: return
            tags, pre = bounds[m]
            if m + off in self.o.get('bst', {}).get(self.ty, ()): self.xs(f"b{self.ty}_{m+off}")
            lt = m + off in self.o.get('lst', {}).get(self.ty, ())
            if lt: self.light()
            if tags: e.wait(vm=tags)
            if lt: self.light()
            run(pre)
            e("s_barrier")
            if lt and self.nl < 4 and not self.o.get('l2'): self.light()
        for u in range(-LA, N):
            if u >= 0:
                e.wait(lg=f"r{u+off}")
                e(units[u][1])
            boundary(u + LA)
            if u >= 0: run(mj[u])
            run(rd[u])
            if u == -1: run(early)
            if u < 0: continue
            run(fills[u]); run(pinned.get(u, []))

    def x_read(self, u, k, dst):
        t, ks = k >> 2, k & 3; sl = self.XSLOT(t)
        if sl < 2: return [self.T(f"ds_read_b128 {ar(dst,4)}, v{vXR[ks]} offset:{sl*4096}", f"r{u}")]
        return [self.T(f"ds_read_b128 {ar(dst,4)}, v{vXR2[ks]}", f"r{u}")]
    def ffn_unit(self, u, k, ad, off, stp, tile, xreg, nb):
        fb = aFB + 4 * ((u + 2) % nb); acc = ACCA + 16*tile
        r = [self.T(f"ds_read_b64_tr_b16 {ar(fb+2*eh,2)}, v{ad} offset:{off + eh*stp}", f"r{u}") for eh in range(2)]
        return r, f"v_mfma_f32_32x32x16_bf16 {vr(acc,16)}, {ar(fb,4)}, {ar(xreg,4)}, {'0' if k == 0 else vr(acc,16)}"

    def z1_rl(self):
        T = self.T; th = []
        R = TMP + 16; t = [TMP + 32 + i for i in range(4)]
        th.append(self.W(lg="rbw"))
        th.append(T(f"s_lshl_b32 s60, s{sW}, 7\nv_lshrrev_b32 v{t[0]}, 5, v{vL}\nv_lshlrev_b32 v{t[0]}, 4, v{t[0]}\nv_add_u32 v{t[0]}, s60, v{t[0]}"))
        th += [T(f"ds_read_b128 {vr(R+4*j,4)}, v{t[0]} offset:{L_RB + j*32}", "rbr") for j in range(4)]
        th += self.TL(f"v_and_b32 v{t[1]}, 31, v{vL}\nv_or_b32 v{t[1]}, s{sBLK}, v{t[1]}\nv_mov_b32 v{t[2]}, {fhex(2.0**-19)}\nv_mov_b32 v{t[3]}, {fhex(2.0**-20)}")
        th.append(T(f"v_cmp_eq_u32 vcc, 0, v{t[1]}\nv_cndmask_b32 v{t[2]}, v{t[2]}, v{t[3]}, vcc"))
        th += self.TL(f"v_mov_b32 v{vTMP}, v{vSIG}\nv_mov_b32 v{vTMP+1}, v{vSIG}")
        th.append(self.W(lg="rbr"))
        th += [T(f"v_mul_f32 v{R+i}, v{R+i}, v{t[2]}") for i in range(16)]
        return th
    def z1_prep(self):
        T = self.T; th = []; R = TMP + 16
        for h in range(2):
            th += [T(f"v_pk_fma_f32 {vr(ACCD+16*h+i,2)}, {vr(ACCD+32+16*h+i,2)}, {vr(vTMP,2)}, {vr(ACCD+16*h+i,2)}") for i in range(0, 16, 2)]
            th += [T(f"v_pk_mul_f32 {vr(ACCD+16*h+i,2)}, {vr(ACCD+16*h+i,2)}, {vr(R+i,2)}") for i in range(0, 16, 2)]
        th += [T(f"v_cvt_pk_bf16_f32 v{ACCD+32+i}, v{ACCD+2*i}, v{ACCD+2*i+1}") for i in range(16)]
        return th
    def z1_mfma(self):
        PT = ACCD + 32; Zr, Zi = ACCD, ACCD + 16
        C = lambda j: ar(aG1+4*j, 4); S = lambda j: ar(aG1+8+4*j, 4); N = lambda j: ar(aG1+16+4*j, 4)
        Tr = lambda j: vr(PT+4*j, 4); Ti = lambda j: vr(PT+8+4*j, 4)
        seq = [(Zr, C(0), Tr(0)), (Zi, N(0), Tr(0)), (Zr, C(1), Tr(1)), (Zi, N(1), Tr(1)), (Zr, S(0), Ti(0)), (Zi, C(0), Ti(0)), (Zr, S(1), Ti(1)), (Zi, C(1), Ti(1))]
        return [self.T(f"v_mfma_f32_32x32x16_bf16 {vr(d,16)}, {a}, {b}, {'0' if i < 2 else vr(d,16)}") for i, (d, a, b) in enumerate(seq)]
    def z1_gather_write(self):
        T = self.T; th = []
        Zr, Zi, PT = ACCD, ACCD + 16, ACCD + 32
        t0, t1 = TMP + 32, TMP + 33
        th += self.TL(f"v_lshrrev_b32 v{t0}, 5, v{vL}\nv_and_b32 v{t1}, 31, v{vL}\nv_lshlrev_b32 v{t1}, 4, v{t1}\nv_lshl_add_u32 v{t0}, v{t0}, 11, v{t1}")
        th.append(T(f"s_lshl_b32 s60, s{sW}, 2\ns_add_u32 s60, s60, {L_FD}\nv_add_u32 v{t0}, s60, v{t0}"))
        for i in range(20):
            if i < 16: th.append(T(f"v_cvt_pk_bf16_f32 v{PT+i}, v{Zr+i}, v{Zi+i}"))
            if i >= 4: th.append(T(f"ds_write_b32 v{t0}, v{PT+i-4} offset:{(8*((i-4)>>2) + (i&3))*512}", "z1w"))
        return th
    def z1_gather_read(self):
        e = self.e
        e(f"v_lshlrev_b32 v{TMP+32}, 4, v0")
        for k in range(4):
            e(f"ds_read_b128 {vr(ACCD+4*k,4)}, v{TMP+32} offset:{L_FD + k*4096}", "z1r")
    def z1_store(self):
        e = self.e
        t0, t1 = TMP + 32, TMP + 33
        e(f"v_lshrrev_b32 v{t0}, 5, v0\nv_and_b32 v{t1}, 31, v0\nv_lshlrev_b32 v{t1}, 4, v{t1}\nv_lshl_add_u32 v{t0}, v{t0}, 13, v{t1}")
        e(f"s_lshl_b32 s60, s{sBLK}, 18\ns_lshl_b32 s54, s{sRB}, 9\ns_add_u32 s60, s60, s54\ns_add_u32 s60, s60, {WS_Z1}")
        e.wait(lg="z1r")
        for k in range(4):
            e(f"buffer_store_dwordx4 {vr(ACCD+4*k,4)}, v{t0}, {srd(sWS)}, s60 offen sc1", "z1s")
            if k < 3: e(f"s_add_u32 s60, s60, 65536")
    def flag_store(self, soff, tag):
        e = self.e
        e(f"v_mov_b32 v{vTMP+4}, 0\nv_mov_b32 v{vTMP+5}, s{sT}\ns_mov_b64 exec, 1")
        e(f"buffer_store_dword v{vTMP+5}, v{vTMP+4}, {srd(sWS)}, s{soff} offen sc1", tag)
        e(f"s_mov_b64 exec, -1")
    def z1_flag(self):
        e = self.e
        e.wait(vm="z1s")
        e(f"s_lshl_b32 s60, s{sBLK}, 10\ns_lshl_b32 s54, s{sW}, 8\ns_add_u32 s60, s60, s54\ns_lshl_b32 s54, s{sRB}, 4\ns_add_u32 s60, s60, s54\ns_add_u32 s60, s60, {WS_Z1F}")
        self.flag_store(60, "z1f")

    def g2_setup(self):
        T = self.T; t0, t1 = TMP + 12, TMP + 13
        if self.o['diag']:
            rd = [(0, 0), (1, 0)] + [(0, j) for j in range(1, 7)] + [(2, 0)] + [(1, j) for j in range(1, 7)] + [(3, 0)] + [(2, j) for j in range(1, 7)] + [(3, j) for j in range(1, 7)]
            R = sum(r << (2*n) for n, (r, d) in enumerate(rd))
            D = [sum(d << (4*(n - b)) for n, (r, d) in enumerate(rd) if b <= n < b + 16) for b in (0, 16)]
            t2 = TMP + 16
            head = f"""s_mov_b32 s50, {hex(R & 0xffffffff)}
s_mov_b32 s51, {hex(R >> 32)}
v_lshlrev_b32 v{t0}, 1, v{vL}
v_lshrrev_b64 v[{t2}:{t2+1}], v{t0}, s[50:51]
v_add_u32 v{t2}, s{sP}, v{t2}
v_and_b32 v{t2}, 3, v{t2}
v_mul_u32_u24 v{t2+4}, 7, v{t2}
v_and_b32 v{t0}, 15, v{vL}
v_lshlrev_b32 v{t0}, 2, v{t0}
s_mov_b32 s50, {hex(D[0] & 0xffffffff)}
s_mov_b32 s51, {hex(D[0] >> 32)}
v_lshrrev_b64 v[{t2}:{t2+1}], v{t0}, s[50:51]
s_mov_b32 s50, {hex(D[1] & 0xffffffff)}
s_mov_b32 s51, {hex(D[1] >> 32)}
v_lshrrev_b64 v[{t2+2}:{t2+3}], v{t0}, s[50:51]
v_cmp_le_u32 vcc, 16, v{vL}
v_cndmask_b32 v{t2}, v{t2}, v{t2+2}, vcc
v_and_b32 v{t2}, 7, v{t2}
s_and_b32 s50, s2, 7
s_add_u32 s50, s50, s{sQ}
v_add_u32 v{t0}, s50, v{t2}
v_subrev_u32 v{t1}, 14, v{t0}
v_min_u32 v{t0}, v{t0}, v{t1}
v_subrev_u32 v{t1}, 7, v{t0}
v_min_u32 v{t0}, v{t0}, v{t1}
v_add_u32 v{t0}, v{t0}, v{t2+4}
"""
        else: head = f"""v_add_u32 v{t0}, s{sROT}, v{vL}
v_subrev_u32 v{t1}, 28, v{t0}
v_min_u32 v{t0}, v{t0}, v{t1}
v_subrev_u32 v{t1}, 28, v{t0}
v_min_u32 v{t0}, v{t0}, v{t1}
"""
        th = self.TL(head + f"""s_mul_i32 s50, s{sW}, 20
s_lshl_b32 s51, s{sW}, 3
s_add_u32 s51, s51, 60
v_mov_b32 v{t1}, s50
v_cmp_le_u32 vcc, 20, v{t0}
v_mov_b32 v{t1+1}, s51
v_cndmask_b32 v{t1}, v{t1}, v{t1+1}, vcc
v_add_lshl_u32 v{t0}, v{t0}, v{t1}, 10""")
        th += [T(f"v_readlane_b32 s{sKS+n}, v{t0}, {n}") for n in range(28)]
        return th
    def w2_addr_setup(self):
        t0, t1 = TMP + 36, TMP + 37
        return self.TL(f"""v_lshrrev_b32 v{t0}, 3, v{vL}
v_and_b32 v{t1}, 7, v{vL}
v_lshlrev_b32 v{t1}, 4, v{t1}
v_lshl_add_u32 v{t0}, v{t0}, 10, v{t1}
v_and_b32 v{t1}, 16, v{vL}
v_lshlrev_b32 v{t1}, 2, v{t1}
v_xor_b32 v{vW2D[0]}, v{t0}, v{t1}
v_add_u32 v{vW2D[1]}, {8192-1024}, v{vW2D[0]}""")
    def w2_lds(self, n):
        if n < 8: return (16384, L_S2 + n * 2048)
        if n < 12: return (8192, L_XS + (n - 8) * 2048)
        g = n - 12
        if g < 4 and self.bplan(): return (12288, L_S1 + [2, 3, 0, 1][g] * 8192)
        if g < 4: return (8192, L_XS + g * 2048)
        if g < 10: return (12288, L_S1 + (g - 4) * 8192)
        return (12288, L_S1 + (g - 10) * 8192)
    def bplan(self): return self.o['mixq'] and self.ty == 1
    def pos(self, n):
        if self.bplan() and 12 <= n < 22: return 12 + [0, 1, 2, 3, 6, 7, 4, 5, 8, 9][n - 12]
        return 12 + [3, 4, 5, 6, 7, 8, 9, 0, 1, 2][n - 12] if (self.o['diag'] and 12 <= n < 22) else n
    def dma_w2(self, n):
        mul, base = self.w2_lds(n)
        sb = {16384: 56, 8192: sXSW, 12288: sW2K}[mul]
        return [self.T(f"s_add_u32 m0, s{sb}, {base}\ns_lshl4_add_u32 s55, s{sKS+self.pos(n)}, s{sQB}\nbuffer_load_dwordx4 v{vW2D[0]}, {srd(sW2)}, s55 offen lds", f"w2_{n}"),
                self.T(f"s_add_u32 m0, s{sb}, {base}\ns_lshl4_add_u32 s55, s{sKS+self.pos(n)}, s{sQB}\nbuffer_load_dwordx4 v{vW2D[1]}, {srd(sW2)}, s55 offen offset:1024 lds", f"w2_{n}")]
    vU = {8192: [9, 10], 12288: [11, 12], 16384: [13, 14]}
    def w2_tr_setup(self, regs=(8192, 12288, 16384), tm=vTMP + 3):
        t0, t1, t3 = tm, tm + 1, tm + 2
        th = self.TL(f"""v_lshrrev_b32 v{t1}, 5, v{vL}
v_bfe_u32 v{t0}, v{vL}, 2, 2
v_lshl_add_u32 v{t0}, v{t1}, 2, v{t0}
v_and_b32 v{t3}, 3, v{vL}
v_lshlrev_b32 v{t3}, 3, v{t3}
v_and_b32 v{t1}, 16, v{vL}
v_lshl_add_u32 v{t3}, v{t1}, 1, v{t3}
v_lshl_add_u32 v{t3}, v{t0}, 7, v{t3}
v_and_b32 v{t1}, 8, v{vL}
v_lshl_add_u32 v{t3}, v{t1}, 3, v{t3}""")
        for mul, sb, base in ((8192, sXSW, L_XS), (12288, sW2K, L_S1), (16384, 56, L_S2)):
            if mul not in regs: continue
            a = self.vU[mul]
            th += self.TL(f"s_add_u32 s97, s{sb}, {base}\nv_add_u32 v{a[0]}, s97, v{t3}\nv_xor_b32 v{a[1]}, 64, v{a[0]}")
        return th
    def w2_tr(self, n, dst, tag):
        mul, base = self.w2_lds(n)
        off = base - {8192: L_XS, 12288: L_S1, 16384: L_S2}[mul]
        return [self.T(f"ds_read_b64_tr_b16 {ar(dst+4*dt+2*eh,2)}, v{self.vU[mul][dt]} offset:{off+eh*1024}", tag) for dt in range(2) for eh in range(2)]

    def w_base(self, ty, d):
        if ty == 1: return f"s_add_u32 s{d}, s56, {L_S2 + 12288}"
        return f"s_and_b32 s{d}, s{sW}, 1\ns_lshl_b32 s{d}, s{d}, 12\ns_lshr_b32 s54, s{sW}, 1\ns_lshl_b32 s54, s54, 14\ns_add_u32 s{d}, s{d}, s54\ns_add_u32 s{d}, s{d}, {L_S2 + 2*16384 + 8192}"
    def w_dma(self, ty):
        T = self.T
        t0, t1, t2 = TMP + 38, TMP + 39, TMP + 35
        nb = f"v_subrev_u32 v{t2}, 64, v{t1}\nv_cmp_eq_u32 vcc, 6, v{t0}\nv_cndmask_b32 v{t1}, v{t1}, v{t2}, vcc\n" if ty == 1 else ""
        th = [T(f"""v_and_b32 v{t0}, 7, v{vL}
v_cmp_gt_u32 vcc, 5, v{t0}
v_lshlrev_b32 v{t1}, 4, v{t0}
v_cndmask_b32 v{t1}, 0, v{t1}, vcc
s_lshl_b32 s59, s{sCG}, 6
v_add_u32 v{t1}, s59, v{t1}
s_cmp_eq_u32 s{sCG}, 0
s_cselect_b32 s59, 5, 8
v_mov_b32 v{t2}, 0x200
v_cmp_eq_u32 vcc, s59, v{t0}
v_cndmask_b32 v{t1}, v{t1}, v{t2}, vcc
{nb}v_lshrrev_b32 v{t0}, 3, v{vL}
v_mul_u32_u24 v{t0}, 16448, v{t0}
v_add_u32 v{vSD2}, v{t0}, v{t1}
s_lshl_b32 s58, s{sW}, 9
s_add_u32 s58, s58, s{sK1}
s_mul_i32 s58, s58, 514
s_and_b32 s58, s58, -16
{self.w_base(ty, 59)}""")]
        nt = " nt" if self.o['ntw'] else ""
        th.append(T(f"s_mov_b32 m0, s59\ns_nop 0\nbuffer_load_dwordx4 v{vSD2}, {srd(sWR)}, s58 offen{nt} lds", "wl"))
        th.append(T(f"s_add_u32 m0, s59, 2048\ns_nop 0\nbuffer_load_dwordx4 v{vSD2}, {srd(sWI)}, s58 offen{nt} lds", "wl"))
        th.append(T(f"s_add_u32 m0, s59, 1024\ns_add_u32 s58, s58, {8*16448}\nbuffer_load_dwordx4 v{vSD2}, {srd(sWR)}, s58 offen{nt} lds", "wl"))
        th.append(T(f"s_add_u32 m0, s59, 3072\ns_nop 0\nbuffer_load_dwordx4 v{vSD2}, {srd(sWI)}, s58 offen{nt} lds", "wl"))
        return th
    def w_read_prep(self):
        t0, t1 = TMP + 38, TMP + 39
        th = [self.T(f"""v_and_b32 v{t0}, 31, v{vL}
v_or_b32 v{t1}, s{sCG}, v{t0}
v_cmp_eq_u32 vcc, 0, v{t1}
v_lshlrev_b32 v{t0}, 1, v{t0}
v_mov_b32 v{t1}, 80
v_cndmask_b32 v{t0}, v{t0}, v{t1}, vcc
v_lshrrev_b32 v{t1}, 5, v{vL}
v_lshl_add_u32 v{t0}, v{t1}, 9, v{t0}
s_lshl_b32 s54, s{sK1}, 1
s_and_b32 s54, s54, 15
s_add_u32 s54, s54, s59
v_add_u32 v{self.vWRA}, s54, v{t0}""")]
        return th + [self.T(f"v_mov_b32 v{vW+i}, 0") for i in range(16)]
    def w_read(self):
        th = []
        for z in range(8):
            for a in range(2):
                th.append(self.T(f"ds_read_u16_d16_hi v{vW+2*z+a}, v{self.vWRA} offset:{(8*(z>>2) + (z&3))*128 + a*2048}", "wr"))
        return th
    def pf_setup(self):
        return self.TL(f"v_and_b32 v{vPF[1]}, 15, v{vL}\nv_lshlrev_b32 v{vPF[1]}, 10, v{vPF[1]}\nv_and_b32 v{vPF[2]}, 16, v{vL}\nv_lshlrev_b32 v{vPF[2]}, 3, v{vPF[2]}\nv_xor_b32 v{vPF[2]}, s{sQB}, v{vPF[2]}\nv_add_u32 v{vPF[1]}, v{vPF[1]}, v{vPF[2]}")
    def pf_w2(self, r):
        return [self.T(f"s_lshl_b32 s54, s{sKS + 12 + r}, 4\nbuffer_load_dword v{vPF[3]}, v{vPF[1]}, {srd(sW2)}, s54 offen", f"pf{r}")]

    def f1(self, ty):
        e = self.e; o = self.o; self.ty = ty; self.nl = 0; self.vWRA = 184 if ty == 0 else 116
        if ty == 0: run(self.dma_w1(ty, 0))
        if o['xlast']: run(self.dma_x(0))
        if ty == 1 and not o['xlast']: run(self.dma_x(1))
        self.stamp(5)
        self.addr_setup()
        if ty == 1:
            run(self.gen_fd())
            if o['xlast']: run(self.gen_g1()[:o['g1pre']] + self.dma_x(1))
        else:
            a23 = self.gen_a2a3(); ka = int(len(a23) * o['a23pre'])
            run(self.g2_setup()); run(self.w2_addr_setup()); run(a23[:ka]); run(self.dma_w1(ty, 1)[:o['w11']])
        self.stamp(1)
        e.wait(vm="stat")
        self.stamp(8)
        self.stats()
        zero_ax = lambda nt: sum([self.TL(f"v_mov_b32 v{vAX[dt]+2}, 0\nv_mov_b32 v{vAX[dt]+3}, 0") for dt in range(nt)], [])
        wd = self.w_dma(ty)
        wrp = self.w_read_prep()
        if ty == 0 and o['presetA']: run(wd[:1] + wrp + zero_ax(5)); wd = wd[1:]; wrp = []
        if ty == 0: run(merge(a23[ka:], self.dma_w1(ty, 1)[o['w11']:], int(len(a23[ka:]) * o['w11at'])))
        self.stamp(2)
        if ty == 1: run(self.gen_g1() + self.g2_setup() + self.w2_addr_setup() + self.pf_setup())
        self.stamp(3)
        units, bounds, streams, mem, pinned, extra = [], {}, [], [], {}, []
        def pin(n, th): pinned.setdefault(n, []).extend(th)
        def csum(u0, u1, um, tag, tiles, first):
            rd, mm = self.csum_grp(tag, tiles, first)
            extra.append((rd, u0, u1)); pin(um, mm)
        own = lambda a, b: sum([self.dma_w2(12 + g) for g in range(a, b)], [])
        wrd = wrp + [self.W(vm='wl')]
        aXB = 192
        LA, NB = 4, 8
        share = o['share'][ty]
        vPA, vPD = TMP + 36, TMP + 37
        def zpoll():
            e(f"s_lshr_b32 s60, s{sK1}, 1\ns_and_b32 s60, s60, 3\ns_lshl_b32 s60, s60, 8\ns_lshl_b32 s54, s{sCG}, 10\ns_add_u32 s60, s60, s54\ns_add_u32 s63, s60, {WS_Z1F}")
            e(f"v_and_b32 v{vPA}, 15, v{vL}\nv_lshlrev_b32 v{vPA}, 4, v{vPA}")
            self.poll_issue(vPA, 63, vPD, "pz1")
        def zcheck():
            self.xs("z1 check")
            self.poll_check(vPA, 63, vPD, "pz1")
            self.xs("z1 seen")
            e(f"s_lshl_b32 s60, s{sCG}, 5\ns_add_u32 s60, s60, s{sK1}\ns_lshl_b32 s60, s60, 13\ns_add_u32 s60, s60, s{sW2K}\ns_add_u32 s60, s60, {WS_Z1}\ns_add_u32 m0, s{sW2K}, {L_ZB}")
            for i in range(2): e(f"buffer_load_dwordx4 v{vL16}, {srd(sWS)}, s60 offen offset:{i*1024} sc1 lds", "zb")
        if ty == 0:
            nt = 5
            for k in range(32):
                t, ks = k >> 2, k & 3
                for tl in range(5):
                    u = 5*k + tl
                    if tl < 4:
                        ad, off = self.pair_addr(0, t, tl >> 1)
                        r, mf = self.ffn_unit(u, k, ad[tl & 1], off + ks*2048, 512, tl, aXB + 4*(k % 3), NB)
                    else: r, mf = self.ffn_unit(u, k, vTS, SING[t % 4] - L_S2 + ks*1024, 256, 4, aXB + 4*(k % 3), NB)
                    if tl == 0: r = self.x_read(u, k, aXB + 4*(k % 3)) + r
                    units.append((r, mf))
            for t in range(8):
                b = 20*t
                bounds[b] = ([f"x{t}", f"w1_{t}"], [])
                u0 = max(0, b - LA + 1)
                tiles = []
                for pr in range(2):
                    ad, off = self.pair_addr(0, t, pr, True)
                    tiles += [(ad[i], off, 512, 2*pr + i) for i in range(2)]
                tiles.append((vCSS, SING[t % 4] - L_S2, 256, 4))
                if t < 2 or (t < 7 and not share): csum(u0, u0 + 12, u0 + 15, f"c{t}", tiles, t == 0)
                elif not share: csum(u0, u0 + 7, u0 + 10, f"c{t}", tiles, False)
            jobs = [self.dma_x(t + 2) + self.dma_w1(0, t + 2) for t in range(6)]
            x1 = self.dma_x(1); early = x1[:2]; mem.append((x1[2:], 0, 2)); mem.append((jobs[0], o['j0'], 16 + o['j0e']))
            for t in range(1, 6): mem.append((jobs[t], 20*t - LA + 1, 20*t + 14))
            pin(110, [self.stats_fetch]); pin(126, [lambda: self.stats_use(0)])
            C0, CB, C1, C2, C3 = 36, 60, o['csA'][0], o['csA'][1], o['csA'][2]
            if not o['presetA']: streams.append((zero_ax(5), 100, 110))
            a = o['wA']
            if o['presetA']: mem.append((wd[:2], a, a + 1)); mem.append((wd[2:], a + 20, a + 21))
            else: mem.append((wd[:1], a, a)); pin(a + 1, wd[1:3]); pin(a + 2, wd[3:])
            streams.append((wrd, 118, 128)); extra.append((self.w_read(), 129, 146))
            a, b, c = o['ownA']
            mem.append((own(0, 2), a, b - 1)); mem.append((own(4, 6), b, c - 1)); mem.append((own(2, 4) + own(6, o['nown']), c, 159))
            htiles = [(ACCA + 16*i, sHB2, 2048*i) for i in range(2)] + [(ACCA + 32 + 16*i, 53, 2048*i) for i in range(2)] + [(ACCA + 64, sHB1, 0)]
        else:
            nt = 2; P0 = 64
            for k in range(32):
                t, ks = k >> 2, k & 3
                for cs in range(2):
                    u = 2*k + cs
                    r = self.x_read(u, k, aX + 4*k) if cs == 0 else []
                    if not t & 1:
                        r.append(self.T(f"ds_read_b128 {ar(aFB+8*ks+4*cs,4)}, v{vFD} offset:{(t>>1)*8192+ks*2048+cs*1024}", f"r{u}"))
                    d = ACCD + 32*(t & 1) + 16*cs
                    units.append((r, f"v_mfma_f32_32x32x16_bf16 {vr(d,16)}, {ar(aX+4*k,4)}, {ar(aFB+8*ks+4*cs,4)}, {'0' if k in (0, 4) else vr(d,16)}", u - 6))
            for t in range(8): bounds[8*t] = ([f"x{t}"], [])
            jobs = [self.dma_x(t + 2) for t in range(6)]
            early = jobs[0][:1]; mem.append((jobs[0][1:], 0, 4))
            for t in range(1, 6): mem.append((jobs[t], 8*t - LA + 1, 8*t + 4))
            mem.append(((self.dma_w1(1, 0) + self.dma_w1(1, 1) if o['w1b'] else []) + wd, 45, 54)); mem.append((self.dma_w1(1, 2) + self.dma_w1(1, 3), 55, 62)); mem.append((self.dma_w1(1, 4) + self.dma_w1(1, 5), 64, 71))
            if o['a23d']: streams.append((self.gen_a2a3(), o['a23d'][0], o['a23d'][1]))
            pin(o['stB'][0], [self.stats_fetch]); pin(o['stB'][1], [lambda: self.stats_use(1)])
            streams.append((zero_ax(2), P0 + 12, P0 + 20))
            P = 64
            for k in range(32):
                t, ks = k >> 2, k & 3
                ad, off = self.pair_addr(1, t, 0)
                for tl in range(2): units.append(self.ffn_unit(P + 2*k + tl, k, ad[tl], off + ks*2048, 512, tl, aX + 4*k, NB) + (P + 2*k + tl - (4 if k < 4 else 6),))
            for t in range(8):
                b = P + 8*t
                bounds[b] = ([f"w1_{t}"], [])
                ad, off = self.pair_addr(1, t, 0, True)
                if t < 2 or not share: csum(max(P, b - LA + 1), max(P + 1, b - LA + 2), b + (3 if t == 0 else (1 if t < 7 else 0)), f"c{t}", [(ad[i], off, 512, i) for i in range(2)], t == 0)
                if 2 <= t < 4: mem.append((self.dma_w1(1, t + 4), b - 1, b + 2))
            streams.append((self.z1_rl(), o['stB'][1] + 1, 62))
            gb = P + 8 * o['z1g']
            streams.append((self.z1_gather_write(), P, gb - LA - 1))
            bounds[gb] = (bounds[gb][0], [self.W(lg="z1w")])
            pin(gb - LA, [self.z1_gather_read]); pin(gb - LA + 2, [self.z1_store])
            if o['warm2']:
                t0 = TMP + 36
                mem.append(([self.T(f"v_min_u32 v{t0}, 27, v{vL}\nv_lshlrev_b32 v{t0}, 7, v{t0}\ns_lshr_b32 s54, s2, 4\ns_lshl_b32 s54, s54, 3\ns_and_b32 s60, s2, 7\ns_add_u32 s54, s54, s60\ns_lshl_b32 s54, s54, 2\ns_add_u32 s54, s54, s{sW}\ns_mul_i32 s54, s54, 3584\nbuffer_load_dword v{t0+1}, v{t0}, {srd(sW2)}, s54 offen", "warm")], o['warm2'], o['warm2']))
            for r, u in enumerate(o['pfat'] or []): mem.append((self.pf_w2(r), u, u))
            streams.append((wrd, P + 18, P + 26)); extra.append((self.w_read(), P + 27, P + 40))
            if o['mixq']:
                b = [P + x for x in o['bw2']]
                mem.append((sum([self.dma_w2(n) for n in range(8, 12)], []), b[0], b[1] - 1))
                mem.append((own(0, 2), b[1], b[2] - 1)); mem.append((own(2, 4), b[2], b[3] - 1))
                streams.append((self.w2_tr_setup((12288,), 117), P + 22, P + 30))
                pin(b[3], self.greads(0)[:5] + self.greads(1)[:5]); pin(b[3] + 2, [self.W(lg="g1")]); mem.append((own(6, 8), b[3] + 3, b[4] - 1))
                pin(b[4], self.greads(2)[:5] + self.greads(3)[:5]); pin(b[4] + 2, [self.W(lg="g3")]); mem.append((own(4, 6), b[4] + 3, P + 53))
                mem.append((own(8, 10), P + 54, P + 62))
            elif o['allB']:
                mem.append((own(0, 4) + own(6, 8) + own(4, 6), P + o['ownB'], P + 53)); mem.append((own(8, 10), P + 54, P + 62))
            else: mem.append((own(0, o['nown']), P + o['ownB'], P + 63))
            C0, CB, C1, C2, C3 = P + 11, P + 16, P + o['csB'][0], P + o['csB'][1], P + o['csB'][2]
            pin(P + o['z1f'], [self.z1_flag])
            htiles = [(ACCA, sHB2, 0), (ACCA + 16, sHB2, 2048)]
        if share:
            pin(C0, self.csum_publish(nt))
            bounds[CB] = (bounds[CB][0], bounds[CB][1] + [self.W(lg="csw")])
            rd, th, st = self.csum_send(ty)
            pin(CB - LA, rd); streams.append((th, CB - LA + 2, CB + 1)); mem.append((st, CB + 2, CB + 2))
            mem.append((self.csum_load(ty), C1, C1 + 3))
            pin(C2, [lambda: self.csum_check(ty)])
            streams.append((self.csum_build(ty), C2 + 1, C3 - 1))
            bounds[C3 + LA] = ([], [self.W(lg="cxw")])
            pin(C3, self.csum_get(nt))
            for i, m in enumerate(self.csum_apply(nt)): pin(C3 + 3 + i, ([self.W(lg="cxr")] if i == 0 else []) + [m])
            assert C3 + 3 + nt <= len(units)
        else:
            Y = 148 if ty == 0 else P + 57
            pin(Y, self.csum_publish(nt))
            bounds[Y + 2 + LA] = ([], [self.W(lg="csw")])
            pin(Y + 2, self.csum_fetch(nt))
            streams.append((self.csum_prep(nt), Y + 3, len(units) - 2))
            pin(len(units) - 1, self.csum_apply(nt))
        if ty == 0: self.pipeline(units, LA, bounds, streams, mem, pinned, extra, early)
        else:
            zm = self.z1_mfma()
            self.pipeline2(units, LA, bounds, streams, mem, pinned, extra, early, P, self.z1_prep() + zm[:4], zm[4:])
        self.light_dump()
        self.stamp(6)
        e("s_barrier")
        self.xs("E bar")
        e(f"s_add_u32 s53, s{sHB2}, 4096")
        side = [] if (self.bplan() or (ty == 1 and o['allB'])) else own(o['nown'], 10)
        for n in range(o['epl'][ty]): side += self.dma_w2(n)
        sil = self.silu(htiles)
        if ty == 1 and not o['a23d']: sil += self.gen_a2a3()
        sil = merge(sil, side, int(len(sil) * o['epfrom']))
        sil += self.w2_tr_setup()
        if o.get('silst'):
            for i in (3, 2, 1): sil.insert(len(sil)*i//4, lambda i=i: self.xs(f'sil{i}'))
        k1, k2 = [int(len(sil) * f) for f in o['zpoll'][ty]]
        k3 = int(len(sil) * o['hfb']) if ty == 1 else len(sil)
        if ty == 1 and o['hfb']:
            assert k3 >= k2
            run(sil[:k1]); zpoll(); run(sil[k1:k2]); zcheck(); run(sil[k2:k3]); self.hflag(); run(sil[k3:])
        else:
            run(sil[:k1]); zpoll(); run(sil[k1:k2]); zcheck(); run(sil[k2:])
    def hflag(self):
        e = self.e
        e(f"s_lshl_b32 s50, s{sRB}, 1\ns_lshr_b32 s51, s{sW}, 1\ns_add_u32 s50, s50, s51\ns_lshl_b32 s50, s50, 2\ns_lshr_b32 s51, s{sBLK}, 1\ns_add_u32 s50, s50, s51\ns_lshl_b32 s50, s50, 3")
        e(f"s_lshl_b32 s51, s{sTY}, 2\ns_add_u32 s50, s50, s51\ns_and_b32 s51, s{sBLK}, 1\ns_lshl_b32 s51, s51, 1\ns_add_u32 s50, s50, s51\ns_and_b32 s51, s{sW}, 1\ns_add_u32 s50, s50, s51")
        e(f"s_lshl_b32 s50, s50, 4\ns_add_u32 s50, s50, {WS_HF}")
        self.xs("pre h2 wait"); e.wait(vm="h2"); self.xs("h2 done"); self.flag_store(50, "hf")
    def greads(self, g):
        return [self.W(vm=f"w2_{12+g}")] + self.w2_tr(12 + g, aX + 8*(self.pos(12 + g) - 12), f"g{g}") + ([self.W(lg=f"g{g-2}")] if g >= 2 else [])
    vPA, vPD = 6, 7

    def spin(self, test, loads, lane):
        e = self.e
        again, back = e.label("again"), e.label("back")
        if self.stamps: e(f"s_mov_b32 s{sPOLL}, 0")
        e(test)
        e(f"s_cbranch_vccnz {again} ; soft")
        e(f"{back}: ; soft")
        if self.stamps: e(f"v_writelane_b32 v{vSTAMP}, s{sPOLL}, {lane}")
        loop = e.label("loop")
        e.cold += [f"{again}:", f"    s_mov_b32 s{sPOLL}, 0", f"{loop}:"] + ["    " + l for l in loads] + ["    s_waitcnt vmcnt(0)"]
        e.cold += ["    " + l for l in test.split("\n")]
        e.cold += [f"    s_add_u32 s{sPOLL}, s{sPOLL}, 1", f"    s_cbranch_vccz {back}", f"    s_cmp_gt_u32 s{sPOLL}, 20000", f"    s_cbranch_scc0 {loop}", f"    s_branch {back}"]
    def poll_issue(self, addr_v, soff, dst, tag):
        self.e(f"buffer_load_dword v{dst}, v{addr_v}, {srd(sWS)}, s{soff} offen sc1", tag)
    def poll_check(self, addr_v, soff, dst, tag):
        e = self.e
        e.wait(vm=tag)
        self.spin(f"v_cmp_ne_u32 vcc, s{sT}, v{dst}", [f"buffer_load_dword v{dst}, v{addr_v}, {srd(sWS)}, s{soff} offen sc1"], {'pz1': 54, 'phf': 55, 'pz3': 56}[tag])

    IFD, S4R, S4I = 128, 192, 208
    def gen_s4(self):
        T = self.T; th = []
        n1, inc, ang, sg = 32, 33, 34, 35
        regs = [(36, 37), (38, 39)]
        th += self.TL(f"""v_and_b32 v{n1}, 1, v{vL}
s_mov_b32 s60, 0x80008000
v_mul_lo_u32 v{sg}, v{n1}, s60
v_and_b32 v{n1}, 31, v{vL}
v_cvt_f32_u32 v{n1}, v{n1}
v_mul_f32 v{inc}, {fhex(1/32)}, v{n1}
v_lshrrev_b32 v{n1}, 5, v{vL}
v_lshlrev_b32 v{n1}, 2, v{n1}
v_cvt_f32_u32 v{n1}, v{n1}
v_mul_f32 v{ang}, v{n1}, v{inc}""")
        def use(g, cs):
            c, s_ = cs[0]
            return [T(f"v_cvt_pk_bf16_f32 v{self.S4R+g}, v{c}, -v{s_}"), T(f"v_cvt_pk_bf16_f32 v{self.S4I+g}, v{s_}, v{c}"),
                    T(f"v_xor_b32 v{self.S4R+8+g}, v{self.S4R+g}, v{sg}"), T(f"v_xor_b32 v{self.S4I+8+g}, v{self.S4I+g}, v{sg}")]
        th += self.trig(8, ang, inc, lambda i: 1 if (i & 3) < 3 else 5, regs, use)
        return th
    def gen_ifd(self, dt):
        T = self.T; th = []
        d, inc, ang, t0 = 40, 41, 42, 43
        Z = [104, 106, 108, 110]; RHO, TM, SP = 112, 114, 122
        th.append(T(f"""v_and_b32 v{d}, 31, v{vL}
s_lshl_b32 s60, s{sQ}, 6
s_add_u32 s60, s60, {32*dt}
v_add_u32 v{d}, s60, v{d}
v_lshrrev_b32 v{t0}, 5, v{vL}
v_lshlrev_b32 v{t0}, 1, v{t0}
s_lshl_b32 s60, s{sW}, 6
v_add_u32 v{t0}, s60, v{t0}
v_cmp_eq_u32 s[96:97], 0, v{t0}
v_mul_u32_u24 v{t0}, v{t0}, v{d}
v_and_b32 v{t0}, 511, v{t0}
v_cvt_f32_u32 v{ang}, v{t0}
v_mul_f32 v{ang}, {fhex(1/512)}, v{ang}
v_cvt_f32_u32 v{inc}, v{d}
v_and_b32 v{t0}, 1, v{d}
v_lshlrev_b32 v{t0}, 15, v{t0}
v_xor_b32 v{SP}, 0x3f80, v{t0}
v_mul_f32 v{t0}, {fhex(1/64)}, v{inc}
v_mul_f32 v{inc}, {fhex(1/512)}, v{inc}
v_cos_f32 v{RHO}, v{t0}
v_sin_f32 v{RHO+1}, v{t0}"""))
        for q in range(4):
            th += [T(f"v_cos_f32 v{Z[q]}, v{ang}"), T(f"v_sin_f32 v{Z[q]+1}, v{ang}")]
            if q < 3: th.append(T(f"v_add_f32 v{ang}, v{ang}, v{inc}") if not q & 1 else T(f"v_fmac_f32 v{ang}, {fhex(3.0)}, v{inc}"))
        for g in range(8):
            r = self.rot(Z, RHO, TM) if g < 7 else []
            cv = [T(f"v_cvt_pk_bf16_f32 v{self.IFD + (g*2+dt)*4 + q}, v{Z[q]}, -v{Z[q]+1}") for q in range(4)]
            th += cv + r
            if g == 0: th.append(T(f"v_cndmask_b32 v{self.IFD + dt*4}, v{self.IFD + dt*4}, v{SP}, s[96:97]"))
        return th

    def post(self):
        e = self.e; T = self.T; o = self.o
        vPA, vPD = self.vPA, self.vPD
        self.stamp(7)
        q = sum([self.dma_w2(n) for n in range(o['epl'][self.ty], 8)], [])
        def dma(k):
            nonlocal q
            r = q[:k]; q = q[k:]; return r
        gr = lambda g: self.greads(g)[:5]
        ifd = self.gen_ifd(0) + self.gen_ifd(1)
        def gen(frac):
            nonlocal ifd
            k = int(202 * frac); r = ifd[:k]; ifd = ifd[k:]; return r
        gf = o['gf']
        run(merge(gen(gf[0]), dma(o['pre1'])))
        if o['hfat'] == -1 and not (self.ty == 1 and o['hfb']): self.hflag()
        e.wait(vm="zb"); self.xs("zb landed"); e("s_barrier"); self.xs("bar1")
        ZF = 192
        for t in range(8): e(f"ds_read_b128 {ar(ZF+4*t,4)}, v{vL16} offset:{L_ZB + t*1024}", f"zf{t}")
        run(gen(gf[1]))
        D = 64
        for t in range(8):
            e.wait(lg=f"zf{t}")
            e(f"v_mfma_f32_32x32x16_bf16 {vr(D,16)}, {ar(aA2+4*t,4)}, {ar(ZF+4*t,4)}, {'0' if t == 0 else vr(D,16)}")
            if t < o['st2d']: run(dma(1))
            if t >= 4 and not self.bplan(): run(gr(t - 4))
        self.xs("st2 issued")
        hflag = self.hflag
        if self.ty == 1 and o['hfb']: hflag = lambda: None
        if o['hfat'] == 0: hflag()
        P = 96
        ops = []
        for z in range(8):
            xr, xi, wr_, wi_ = D + 2*z, D + 2*z + 1, vW + 2*z, vW + 2*z + 1
            u = 80 + 2*z
            ops.append([f"v_mul_f32 v{u}, v{xr}, v{wr_}", f"v_mul_f32 v{u+1}, v{xr}, v{wi_}", f"v_fma_f32 v{u}, -v{xi}, v{wi_}, v{u}", f"v_fmac_f32 v{u+1}, v{xi}, v{wr_}", f"v_cvt_pk_bf16_f32 v{P+z}, v{u}, v{u+1}"])
        e(f"v_add_u32 v{vTMP}, s{sW2K}, v{vL16}")
        for z0 in (0, 2, 4, 6):
            for k in range(5): e(ops[z0][k]); e(ops[z0+1][k])
            if o['wmd']: run(dma(1))
            if z0 == 4: e(f"ds_write_b128 v{vTMP}, {vr(P,4)} offset:{L_ZX}", "zxw")
        if o['wmd']: run(dma(1))
        e(f"ds_write_b128 v{vTMP}, {vr(P+4,4)} offset:{L_ZX + 1024}", "zxw")
        if o['hfat'] == 1: hflag()
        if o['wmd']: run(dma(2))
        run(gen(gf[2]))
        e.wait(lg="zxw"); e("s_barrier"); self.xs("bar2")
        if not o['lg2'] and not self.bplan(): q += sum([self.dma_w2(n) for n in range(8, 12)], [])
        for t in range(8): e(f"ds_read_b128 {ar(ZF+4*t,4)}, v{vL16} offset:{L_ZX + t*1024}", f"zg{t}")
        adr = self.TL(f"""v_lshrrev_b32 v{vTMP+1}, 4, v{vL}
v_bfe_u32 v{vTMP+2}, v{vL}, 3, 1
v_lshlrev_b32 v{vTMP+2}, 12, v{vTMP+2}
v_lshl_add_u32 v{vTMP+2}, v{vTMP+1}, 16, v{vTMP+2}
v_and_b32 v{vTMP+3}, 15, v{vL}
v_lshlrev_b32 v{vTMP+3}, 2, v{vTMP+3}
v_lshl_add_u32 v{vTMP+3}, v{vTMP+1}, 7, v{vTMP+3}
v_add_u32 v{vTMP+3}, s{sW2K}, v{vTMP+3}
v_and_b32 v{vTMP+1}, 7, v{vL}
v_lshl_add_u32 v{vTMP+1}, v{vTMP+1}, 4, v{vTMP+2}
s_lshl_b32 s51, s{sW}, 19
s_lshl_b32 s52, s{sK1}, 7
s_add_u32 s51, s51, s52
s_lshl_b32 s52, s{sCG}, 13
s_add_u32 s51, s51, s52
s_add_u32 s51, s51, {WS_Z3}
s_add_u32 s52, s51, {4*65536}""")
        hadr = self.TL(f"""s_lshl_b32 s50, s{sP}, 2
s_add_u32 s50, s50, s{sW}
s_lshl_b32 s50, s50, 7
s_add_u32 s58, s50, {WS_HF}
v_and_b32 v{vPA}, 7, v{vL}
v_lshlrev_b32 v{vPA}, 4, v{vPA}""")
        run(hadr); run(gen(gf[3]))
        if o['hpe']: self.poll_issue(vPA, 58, vPD, "phf")
        adr = spread(adr, [0.5] + [1]*8); run(adr[0])
        for t in range(8):
            e.wait(lg=f"zg{t}")
            e(f"v_mfma_f32_32x32x16_bf16 {vr(D,16)}, {ar(aA3+4*t,4)}, {ar(ZF+4*t,4)}, {'0' if t == 0 else vr(D,16)}")
            run((dma(1) if t < o['st3d'] else []) + adr[t + 1])
        self.xs('st3 issued')
        for k in range(8): e(f"v_cvt_pk_bf16_f32 v{P+k}, v{D+2*k}, v{D+2*k+1}")
        for k in range(8): e(f"ds_write_b32 v{vTMP+3}, v{P+k} offset:{L_ZB + (k>>1)*512 + (k&1)*64}", "zww")
        run(gen(gf[4]))
        e.wait(lg="zww")
        self.xs('zww')
        e("s_barrier")
        self.xs("st3 packed")
        for k in range(2): e(f"ds_read_b128 {vr(D+4*k,4)}, v{vTMP} offset:{L_ZB + k*1024}", "zwr")
        run(gen(gf[5]))
        e.wait(lg="zwr")
        for k in range(2): e(f"buffer_store_dwordx4 {vr(D+4*k,4)}, v{vTMP+1}, {srd(sWS)}, s{51+k} offen sc1", "z3s")
        if not o['hpe']: self.poll_issue(vPA, 58, vPD, "phf")
        self.stamp(9)
        vH = self.vH
        e(f"s_mul_i32 s50, s{sP}, {2*112*1024}\ns_add_u32 s50, s50, {WS_H}\nv_add_u32 v{vH[0]}, s50, v{vL16}\nv_add_u32 v{vH[1]}, {112*1024}, v{vH[0]}")
        run(merge(sum([self.greads(g) for g in range(4, 10)], []), q))
        self.late = (sum([self.dma_w2(n) for n in range(8, 12)], []) if o['lg2'] else []) + sum([self.dma_w2(12 + g) for g in range(10, 16)], [])
        if o['prel']: e.wait(lg="g9"); run(self.late[:o['prel']]); self.late = self.late[o['prel']:]
        run(gen(gf[6]))
        self.xs("pre hpoll")
        self.poll_check(vPA, 58, vPD, "phf")
        e(f"s_lshl_b32 s50, s{sW}, 3\ns_add_u32 s50, s50, s{sCG}\ns_lshl_b32 s50, s50, 5\ns_add_u32 s50, s50, s{sK1}\ns_lshl_b32 s50, s50, 4\ns_add_u32 s50, s50, {WS_Z3F}")
        self.stamp(10)
        return ifd

    vH, vO, vRD, vZD, vZ, XR = [19, 20], 4, 5, 8, [15, 16, 17, 18], 48
    def g2_addr(self):
        e = self.e
        vH, vO, vZD, vZ = self.vH, self.vO, self.vZD, self.vZ
        th = []
        class _E:
            def __call__(_, x): th.extend(self.TL(x))
        e = _E()
        e(f"""v_lshrrev_b32 v{vTMP}, 3, v{vL}
v_and_b32 v{vTMP+1}, 1, v{vTMP}
v_bfe_u32 v{vTMP+2}, v{vTMP}, 1, 1
v_lshrrev_b32 v{vTMP+3}, 2, v{vTMP}
v_lshl_add_u32 v{vTMP+1}, v{vTMP+3}, 1, v{vTMP+1}
v_lshl_add_u32 v{vTMP+3}, v{vTMP+2}, 2, v{vTMP+1}
v_and_b32 v{vTMP+4}, 7, v{vL}
v_lshlrev_b32 v{vO}, 4, v{vTMP+4}
v_lshl_add_u32 v{vO}, v{vTMP+3}, 16, v{vO}
v_lshlrev_b32 v5, 8, v{vTMP+1}
v_lshl_add_u32 v5, v{vTMP+2}, 7, v5
v_and_b32 v{vTMP+1}, 3, v{vL}
v_lshl_add_u32 v5, v{vTMP+1}, 5, v5
v_bfe_u32 v{vTMP+1}, v{vL}, 2, 1
v_mul_u32_u24 v{vTMP+1}, {RED_TS}, v{vTMP+1}
v_add_u32 v5, v5, v{vTMP+1}
s_lshl_b32 s60, s{sW}, 10
v_add_u32 v5, s60, v5
s_lshl_b32 s59, s{sW}, 19
s_lshl_b32 s60, s{sP}, 11
s_add_u32 s59, s59, s60
s_add_u32 s59, s59, s{sQB}""")
        e(f"""v_lshrrev_b32 v{vTMP}, 5, v{vL}
v_bfe_u32 v{vTMP+1}, v{vL}, 2, 2
v_lshl_add_u32 v{vTMP}, v{vTMP}, 3, v{vTMP+1}
v_lshlrev_b32 v{vTMP}, 6, v{vTMP}
v_and_b32 v{vTMP+1}, 3, v{vL}
v_lshl_add_u32 v{vTMP}, v{vTMP+1}, 3, v{vTMP}
v_and_b32 v{vTMP+1}, 16, v{vL}
v_lshl_add_u32 v{vTMP}, v{vTMP+1}, 1, v{vTMP}
s_add_u32 s60, s{sW2K}, {L_MISC}
v_add_u32 v{vZ[0]}, s60, v{vTMP}""")
        return th

    def g2(self, q2):
        e = self.e; T = self.T; o = self.o
        HB, HD = 192, o['hd']
        LB = 160
        ZF = 128
        ACC = 64
        vH, vO, vZD, vZ, XR = self.vH, self.vO, self.vZD, self.vZ, self.XR
        def hload(n):
            return [T(f"buffer_load_dwordx4 {ar(HB + 8*(n % HD) + 4*rt, 4)}, v{vH[rt]}, {srd(sWS)}, s{sKS+n} offen sc1", f"h{n}") for rt in range(2)]
        H0 = o['h0']
        if not o['hpe']: self.flag_store(50, "z3f")
        for n in range(H0): run(hload(n))
        self.xs('h0 issued')
        rest = sum([hload(n) for n in range(H0, HD)], [])
        ifd = merge(q2 + (self.g2_addr() + self.gen_s4() if o['s4w'] else []), rest)
        k = int(len(ifd) * o['z3fat'])
        run(ifd[:k])
        if o['hpe']: e.wait(vm="z3s"); self.flag_store(50, "z3f")
        run(ifd[k:])
        shadow = [] if o['s4w'] else spread(self.g2_addr() + self.gen_s4(), [1] * o['nsh'])
        late = self.late
        e.wait(lg="g9")
        self.xs("ifd done")
        lreads = lambda n: [self.W(vm=f"w2_{n}")] + self.w2_tr(n, LB + 8*(n % 3), f"l{n}")
        run(lreads(0)); run(lreads(1))
        e(f"s_lshr_b32 s50, s{sP}, 3\ns_lshl_b32 s50, s50, 3\ns_lshl_b32 s51, s{sW}, 1\ns_add_u32 s50, s50, s51\ns_lshl_b32 s50, s50, 9\ns_add_u32 s58, s50, {WS_Z3F}")
        e(f"s_lshl_b32 s50, s{sP}, 16\ns_add_u32 s50, s50, s56\ns_add_u32 s50, s50, {WS_Z3}")
        z3d = lambda mt: [T(f"s_add_u32 m0, s{sW2K}, {L_MISC + (2*mt + (i >> 1))*8192 + (i & 1)*1024}\ns_add_u32 s51, s50, {mt*4096 + i*1024}\nbuffer_load_dwordx4 v{vL16}, {srd(sWS)}, s51 offen sc1 lds", f"z3d{mt}") for i in range(4)]
        xres = [T(f"buffer_load_dwordx4 {vr(XR+4*rt,4)}, v{vO}, {srd(sX)}, s59 offen offset:{rt*1024}", "xr") for rt in range(2)]
        DR, DI, PK = 224, 240, 32
        def zreads(mt):
            return [T(f"ds_read_b64_tr_b16 {ar(ZF + 16*(mt&1) + 4*ks + 2*eh, 2)}, v{vZ[0]} offset:{(2*mt + (ks >> 1))*8192 + (ks & 1)*1024 + eh*256}", f"z{mt}_{ks}") for ks in range(4) for eh in range(2)]
        def tail_a(mt):
            for ks in range(4):
                e.wait(lg=f"z{mt}_{ks}")
                fr = ar(ZF + 16*(mt&1) + 4*ks, 4)
                e(f"v_mfma_f32_32x32x16_bf16 {vr(DR,16)}, {fr}, {vr(self.S4R+4*ks,4)}, {'0' if ks == 0 else vr(DR,16)}")
                e(f"v_mfma_f32_32x32x16_bf16 {vr(DI,16)}, {fr}, {vr(self.S4I+4*ks,4)}, {'0' if ks == 0 else vr(DI,16)}")
        def tail_cvt(mt):
            return [T(f"v_cvt_pk_bf16_f32 v{PK + (jj*2+rt)*4 + q}, v{DR + 8*jj + 4*(q>>1) + 2*(q&1) + rt}, v{DI + 8*jj + 4*(q>>1) + 2*(q&1) + rt}") for jj in range(2) for rt in range(2) for q in range(4)]
        def tail_b(mt):
            for jj in range(2):
                for rt in range(2):
                    for dt in range(2):
                        A = ACC + (rt*2+dt)*16
                        e(f"v_mfma_f32_32x32x16_bf16 {vr(A,16)}, {vr(PK+(jj*2+rt)*4,4)}, {vr(self.IFD+((mt*2+jj)*2+dt)*4,4)}, {vr(A,16)}")
        ZP, ZC, ZD, TT, GA = o['zp'], o['zc'], o['zd'], o['tt'], o['ga']
        NL = 28 - (3 if o['fin'] else 0)
        for n in range(NL):
            side = []
            if n + 2 < 12: side += lreads(n + 2)
            side += late[2*n:2*n + 2]
            if n in GA: side += self.greads(10 + 2*GA.index(n))[:5] + self.greads(11 + 2*GA.index(n))[:5]
            if n < len(shadow): side = merge(shadow[n], side)
            if n == ZP: side.append(lambda: self.poll_issue(vL16, 58, 7, "pz3"))
            for mt in range(4):
                if n == ZD[mt]: side += ([self.W(lg=f"g{9 + 2*mt}")] if mt else []) + z3d(mt)[:2]
                if n == ZD[mt] + 1: side += z3d(mt)[2:]
                if n == TT[mt] - o['zra']: side += [self.W(vm=f"z3d{mt}")] + zreads(mt)
            if n == o['xat']: side += xres
            mt = TT.index(n) if n in TT else None
            TS, tb = 1, 0
            if mt is not None: side += tail_cvt(mt)
            if n in o.get('g2st', (1, 4, 8, 12, 16, 20, 24)): self.xs(f"g2 n{n}")
            if n == ZC:
                self.stamp(11); self.poll_check(vL16, 58, 7, "pz3"); self.stamp(12)
            if mt is not None:
                tail_a(mt)
                if mt == 3: e('s_barrier')
            e.wait(vm=f"h{n}")
            if n in o.get('hst2', ()): self.xs(f"h{n} in")
            if n < 12: e.wait(lg=f"l{n}")
            grp = spread(side, [1, 1, 1, 1])
            if mt is not None and tb % TS == 0: grp = [[]] + spread(side, [1, 1, 1])
            for i, (rt, dt) in enumerate(((0, 0), (0, 1), (1, 0), (1, 1))):
                A = ACC + (rt*2+dt)*16
                B = ar(LB + 8*(n % 3) + 4*dt, 4) if n < 12 else ar(aX + 8*(n-12) + 4*dt, 4)
                e(f"v_mfma_f32_32x32x16_bf16 {vr(A,16)}, {ar(HB + 8*(n % HD) + 4*rt, 4)}, {B}, {'0' if n == 0 else vr(A,16)}")
                if n + HD < 28 and dt == 1: run(hload(n + HD)[rt:rt+1])
                run(grp[i])
            if mt is not None and tb % TS == 0: tail_b(mt)
        wr = lambda t: [T(f"ds_write_addtid_b32 v{ACC+16*t+i} offset:{t*RED_TS + i*256}", "rw") for i in range(16)]
        e(f"s_mul_i32 m0, s{sW}, {RED_WS}")
        XU = 224
        unp = [self.W(vm="xr")] + sum([self.TL(f"v_lshlrev_b32 v{XU+2*i}, 16, v{XR+i}\nv_and_b32 v{XU+2*i+1}, 0xffff0000, v{XR+i}") for i in range(8)], [])
        if o['fin']:
            assert max(TT) < NL
            e.wait(vm="h27")
            pend = unp
            for t, (rt, dt) in enumerate(((0, 0), (0, 1), (1, 0), (1, 1))):
                grp = spread(pend, [1, 1, 1]) if t != 1 else [[], [], []]
                for k, n in enumerate(range(NL, 28)):
                    e(f"v_mfma_f32_32x32x16_bf16 {vr(ACC+16*t,16)}, {ar(HB + 8*(n % HD) + 4*rt, 4)}, {ar(aX + 8*(n-12) + 4*dt, 4)}, {vr(ACC+16*t,16)}")
                    run(grp[k])
                if t >= 1: pend = wr(t - 1)
            self.stamp(13)
            run(wr(2) + wr(3))
        else:
            self.stamp(13)
            run(unp + wr(0) + wr(1) + wr(2) + wr(3))
        e.wait(lg="all"); self.xs("red written"); e("s_barrier"); self.xs("red bar2")
        R = 128
        for rt in range(2):
            for pw in range(4):
                for k in range(2):
                    e(f"ds_read_b128 {vr(R + rt*32 + pw*8 + 4*k, 4)}, v5 offset:{pw*RED_WS + rt*2*RED_TS + 16*k}", f"rr{rt}_{pw}")
        for rt in range(2):
            X = XU + 8*rt
            for pw in range(4):
                e.wait(lg=f"rr{rt}_{pw}")
                for i in range(4):
                    e(f"v_pk_add_f32 {vr(X+2*i,2)}, {vr(X+2*i,2)}, {vr(R + rt*32 + pw*8 + 2*i, 2)}")
            for i in range(4):
                e(f"v_cvt_pk_bf16_f32 v{80+4*rt+i}, v{X+2*i}, v{X+2*i+1}")
            e(f"buffer_store_dwordx4 {vr(80+4*rt,4)}, v{vO}, {srd(sOUT)}, s59 offen offset:{rt*1024} {o.get('ost', 'sc1')}")
        done = e.label("nq")
        e(f"s_or_b32 s50, s2, s{sW}\ns_cmp_lg_u32 s50, 0\ns_cbranch_scc1 {done}\ns_mov_b32 s50, {WS_Q}")
        self.flag_store(50, "q")
        e(f"{done}:")
        if self.stamps:
            self.stamp(14)
            e(f"s_memrealtime s[94:95]"); e.l.append("    s_waitcnt lgkmcnt(0)")
            e(f"v_writelane_b32 v{vSTAMP}, s94, 16")
            e(f"s_lshl_b32 s50, s2, 2\ns_add_u32 s50, s50, s{sW}\ns_lshl_b32 s50, s50, 8\ns_add_u32 s50, s50, {WS_DBG}\nv_lshlrev_b32 v{vTMP}, 2, v{vL}")
            e(f"buffer_store_dword v{vSTAMP}, v{vTMP}, {srd(sWS)}, s50 offen")
            if o.get('dbgout'):
                e(f"s_load_dwordx2 s[64:65], s[0:1], 56"); e.l.append("    s_waitcnt lgkmcnt(0)")
                e(f"s_mov_b32 s66, 256\ns_mov_b32 s67, 0x20000")
                e(f"v_not_b32 v2, v{vSTAMP}\nv_cmp_eq_u32 vcc, 15, v{vL}\nv_cndmask_b32 v2, v{vSTAMP}, v2, vcc\nv_readlane_b32 s68, v{vSTAMP}, 16\nv_mov_b32 v3, s68\nv_cmp_eq_u32 vcc, 0, v{vL}\nv_cndmask_b32 v2, v2, v3, vcc")
                e(f"s_mov_b64 exec, 0xffff\nbuffer_atomic_umax v2, v{vTMP}, s[64:67], 0 offen sc1\ns_mov_b64 exec, -1")

    def build(self):
        e = self.e
        self.prologue()
        snap = e.snapshot()
        e(f"s_cmp_eq_u32 s{sTY}, 1\ns_cbranch_scc1 L_typeB")
        self.f1(0); self.post()
        endA = e.snapshot()
        e("s_branch L_join\nL_typeB:")
        e.restore(snap)
        self.f1(1); rest = self.post()
        endB = e.snapshot()
        self.e.vm = self.join(endA[0], endB[0]); self.e.lg = self.join(endA[1], endB[1])
        e("L_join:")
        self.g2(rest)
        e("L_end:\ns_endpgm")
        e.l += e.cold
        lines, nn = pad_hazards(e.l)
        hdr = open("parallel_sum__spectral_gfnet__dense_activation_silu__prompt.s.ref").read().split("; Override")[0]
        out = hdr + "; @launch grid=(256,1,1) block=(256,1,1) lds=163840\n"
        out += '.amdgcn_target "amdgcn-amd-amdhsa--gfx950"\n.text\n'
        out += f".globl {KNAME}\n.p2align 8\n.type {KNAME},@function\n{KNAME}:\n"
        out += "\n".join(lines) + "\n"
        out += f""".section .rodata,"a"
.p2align 6
.amdhsa_kernel {KNAME}
  .amdhsa_next_free_vgpr 512
  .amdhsa_next_free_sgpr 102
  .amdhsa_accum_offset 256
  .amdhsa_group_segment_fixed_size 0
  .amdhsa_kernarg_size 72
  .amdhsa_user_sgpr_count 2
  .amdhsa_user_sgpr_kernarg_segment_ptr 1
  .amdhsa_system_sgpr_workgroup_id_x 1
.end_amdhsa_kernel
"""
        return out, nn, len(lines)
    @staticmethod
    def join(a, b):
        def after(l):
            d = {}
            for i, t in enumerate(l): d[t] = len(l) - 1 - i
            return d
        da, db = after(a), after(b)
        n = {t: min(da.get(t, 10**9), db.get(t, 10**9)) for t in set(da) | set(db) if t is not None}
        m = max(n.values()) + 1 if n else 0
        q = [None] * m
        res = []
        for pos in range(m - 1, -1, -1):
            tags = [t for t, v in n.items() if v == pos]
            res.append(MultiTag(tags))
        return res

class MultiTag:
    def __init__(self, tags): self.tags = set(tags)
    def __eq__(self, o): return (o in self.tags) if not isinstance(o, MultiTag) else self is o
    def __hash__(self): return id(self)

if __name__ == "__main__":
    import argparse
    ap = argparse.ArgumentParser()
    ap.add_argument("-o", default="parallel_sum__spectral_gfnet__dense_activation_silu__prompt.s")
    ap.add_argument("--stamps", action="store_true")
    ap.add_argument("--opt", action="append", default=[])
    a = ap.parse_args()
    opts = {}
    for kv in a.opt:
        k, v = kv.split("="); opts[k] = eval(v)
    g = Gen(a.stamps, opts)
    txt, nn, nl = g.build()
    import json; open(a.o + ".names", "w").write(json.dumps(g.xnames))
    open(a.o, "w").write(txt)
    print("lines", nl, "nops added", nn)
```

```python
import sys
from emit import E, pad_hazards

KNAME = "parallel_sum__spectral_gfnet__dense_activation_silu__prompt_kernel"

WS_Q     = 0
WS_STATS = 0x10000
WS_Z1F   = 0x20000
WS_HF    = 0x24000
WS_Z3F   = 0x28000
WS_CSG   = 0xD00000
WS_Z1    = 0x100000
WS_Z3    = 0x300000
WS_H     = 0x500000
WS_DBG   = 0xC00000
WS_SIZE  = 0x1000000

L_XS, L_MISC, L_S1, L_S2 = 0, 32768, 49152, 98304
L_CS = L_MISC + 8192
L_RB = L_MISC + 8192 + 5120
L_ZB = L_MISC
L_ZX = L_MISC + 8192
L_FD = L_S1
PAIR = [L_S1 + i*8192 for i in range(6)] + [L_S2 + 4096, L_S2 + 16384 + 4096]
SING = [L_S2 + 12288, L_S2 + 16384 + 12288, L_S2 + 2*16384 + 4096, L_S2 + 3*16384 + 4096]
BSLOT = [L_S2 + i*16384 + 4096 for i in range(4)] + [L_S1 + 32768, L_S1 + 40960]
RED_TS = 4096 + 16
RED_WS = 4 * RED_TS

sX, sW1, sW2, sWS, sWR, sWI, sOUT = 4, 8, 12, 16, 20, 24, 28
sT, sW, sRB, sBLK, sTY, sC0, sK1, sCG, sP, sQ = 32, 33, 34, 35, 36, 37, 38, 39, 40, 41
sXROW, sCOL1, sCOL2, sHB1, sHB2, sXSW, sQB, sPOLL = 42, 43, 44, 45, 46, 47, 48, 49
sCSG = 57
sXS3, sW2K, sROT = 61, 62, 63
sKS = 64
sSTAMP = 92
def srd(n): return f"s[{n}:{n+3}]"

vTID, vL = 0, 1
vXD = [2, 3, 4, 5]; vSD = [6, 7]; vS1D = 8
vXR = [9, 10, 11, 12]; vT1 = [13, 14]; vT2 = [15, 16]; vTS = 17; vFD = 18
vC1 = [19, 20]; vC2 = [21, 22]; vCS = 8 + 224
vNC1, vRINV, vSIG, vL16 = 23, 24, 25, 26
vSTAMP = 27
vBX = 28; vAX = [32, 36, 160, 164, 176]; vCSA = [40, 44, 168, 172, 180]; vCSF = [48, 52, 144, 148, 152]
vONES = 56
vTMP = 58
vSD2 = 236; vCSS = 237; vW2D = [238, 239]; vPF = [112, 113, 114, 115]
vXR2 = [232, 233, 234, 235]
ACCA, ACCD = 64, 128
vW = 240
TMP = 192
aX, aG1, aFB = 0, 192, 216
aA2, aA3 = 128, 160

TRANS_ = ('v_exp_f32', 'v_rcp_f32', 'v_sin_f32', 'v_cos_f32', 'v_rsq_f32')
LOG2E = 1.4426950408889634
def fhex(f):
    import struct
    return "0x%08x" % struct.unpack("<I", struct.pack("<f", f))[0]
def vr(a, n): return f"v[{a}:{a+n-1}]"
def ar(a, n): return f"a[{a}:{a+n-1}]"

def merge(main, side, start=0, end=None):
    end = len(main) if end is None else end
    out = list(main[:start]); n = end - start; k = len(side); j = 0
    for i in range(n):
        out.append(main[start + i])
        while j < k and (j + 1) * n <= (i + 1) * k:
            out.append(side[j]); j += 1
    out += side[j:]
    out += main[end:]
    return out
def run(ths):
    for t in ths: t()
def cost(th): return getattr(th, 'cost', 1)
def spread(fill, caps):
    tot = sum(cost(t) for t in fill); cap = sum(caps)
    out = [[] for _ in caps]; acc = 0.0; g = 0; lim = caps[0] * tot / cap if cap else 0
    for t in fill:
        while g < len(caps) - 1 and acc + cost(t) / 2 > lim:
            g += 1; lim += caps[g] * tot / cap
        out[g].append(t); acc += cost(t)
    return out

class Gen:
    def __init__(self, stamps=False, opts=None):
        self.e = E(); self.stamps = stamps; self.nst = 0; self.xnames = []
        self.o = dict(ntw=True, pf=True, s2at={6: [0, 1, 2], 7: [3, 4, 5]}, w2p2=5, z1f=34, h0=4, pfw2=True, pfat=None, xrot=True, lep=[4, 4], hd=8, zp=5, zc=9, zd=(9, 12, 15, 19), tt=(13, 17, 21, 24), ga=(8, 10, 12), xat=22, nsh=8, hpe=0, w11=0, csA=(112, 134, 142), csB=(36, 50, 55), h1=0, wA=75, presetA=1, j0=4, j0e=0, warm2=63, z3fat=0.45, ifdw=1.0, hfat=0, lamax=6, lamin=3, vcap=0, epl=[0, 4], mixq=0, a23d=None, a23pre=0.3, w11at=0.3, stB=(36, 54), ntx='', ntw1='', ntx2='', fin=1, bw2=(1, 15, 23, 34, 43), st2d=8, epfrom=0.3, nown=7, ownA=(116, 124, 140), ownB=28, share=[1, 0], w1b=45, vq=1, tlbB=0, allB=0, wmd=0, pre1=6, lg2=0, diag=1, hfb=0.9, gf=(0,)*7, s4w=0, xlast=1, g1pre=0, strb=1, tlbw=4, prel=0, zra=2, st3d=4, nlate=4, zpoll=[(0.3, 0.7), (0.3, 0.7)], z1g=2)
        self.o.update(opts or {})
    def stamp(self, i):
        if not self.stamps or (self.o.get('only') is not None and i not in self.o['only']): return
        e = self.e
        e(f"{'s_memrealtime' if self.o.get('rt', 1) else 's_memtime'} s[{sSTAMP}:{sSTAMP+1}]"); e.l.append("    s_waitcnt lgkmcnt(0)"); e.lg = []
        e(f"v_writelane_b32 v{vSTAMP}, s{sSTAMP}, {i if i < 15 else i + 5}")
    def light(self):
        if self.nl < 5: self.e(f"s_memtime s[{92+2*self.nl}:{93+2*self.nl}]"); self.nl += 1
    def light_dump(self):
        if not self.o.get('lst'): return
        self.e.l.append("    s_waitcnt lgkmcnt(0)"); self.e.lg = []
        for i in range(self.nl): self.e(f"v_writelane_b32 v{vSTAMP}, s{92+2*i}, {58+i}")
    def xs(self, name):
        if not (self.stamps and self.o.get('xs')): return
        if name not in self.xnames: self.xnames.append(name)
        self.stamp(15 + self.xnames.index(name))
    def dst(self, region):
        if self.o.get('detail') != region: return
        pairs = self.dpairs
        if self.nd < len(pairs):
            self.e(f"s_memtime s[{pairs[self.nd]}:{pairs[self.nd]+1}]"); self.nd += 1
    def dbegin(self, region, pairs):
        if self.o.get('detail') == region: self.nd = 0; self.dpairs = pairs
    def dend(self, region):
        if self.o.get('detail') != region: return
        self.e.l.append("    s_waitcnt lgkmcnt(0)"); self.e.lg = []
        for i in range(self.nd): self.e(f"v_writelane_b32 v{vSTAMP}, s{self.dpairs[i]}, {20+i}")
        run(self.g2_setup())
    def T(self, s, tag=None):
        f = lambda: self.e(s, tag)
        f.cost = sum(2 if x.split()[0] in TRANS_ else 1 for x in s.split("\n") if x.strip()); f.txt = s
        return f
    def W(self, vm=None, lg=None):
        f = lambda: self.e.wait(vm=vm, lg=lg)
        f.cost = 0.5
        return f
    def TL(self, s):
        return [self.T(x) for x in s.split("\n") if x.strip()]

    def prologue(self):
        e = self.e
        e("s_cmp_ge_u32 s2, 256\ns_cbranch_scc1 L_end")
        e(f"s_load_dwordx2 s[{sX}:{sX+1}], s[0:1], 0\ns_load_dwordx4 s[52:55], s[0:1], 32\ns_load_dwordx2 s[{sWS}:{sWS+1}], s[0:1], 64")
        e(f"s_load_dwordx4 s[56:59], s[0:1], 8\ns_load_dwordx2 s[{sOUT}:{sOUT+1}], s[0:1], 48")
        if self.stamps:
            e(f"s_memrealtime s[94:95]\ns_memtime s[96:97]")
            self.start_saved = False
        e(f"v_and_b32 v{vL}, 63, v0\nv_lshrrev_b32 v{vTMP}, 6, v0\nv_lshlrev_b32 v{vL16}, 4, v{vL}\nv_readfirstlane_b32 s{sW}, v{vTMP}")
        if self.o['pf']:
            if self.o.get('pfB'): e(f"s_bitcmp1_b32 s2, 3\ns_cbranch_scc0 L_nopf")
            e(f"s_getpc_b64 s[50:51]\ns_lshr_b32 s60, s2, {4 if self.o.get('pfB') else 3}\ns_lshl_b32 s60, s60, {12 if self.o.get('pfB') else 11}")
            e(f"s_and_b32 s61, s{sW}, {3 if self.o.get('pfB') else 1}\ns_lshl_b32 s61, s61, 10\ns_add_u32 s60, s60, s61\ns_min_u32 s60, s60, L_end-{KNAME}-1280")
            e(f"s_add_u32 s50, s50, s60\ns_addc_u32 s51, s51, 0")
            e(f"v_mov_b32 v{vTMP+1}, s51\nv_add_co_u32 v{vTMP}, vcc, s50, v{vL16}\nv_addc_co_u32 v{vTMP+1}, vcc, 0, v{vTMP+1}, vcc")
            e(f"global_load_dwordx4 {vr(TMP+8,4)}, {vr(vTMP,2)}, off", "pf")
            if self.o.get('pfB'): e("L_nopf:"); e.vm.pop()
        e(f"""s_and_b32 s50, s2, 7
s_lshr_b32 s51, s2, 3
s_lshr_b32 s60, s50, 1
s_lshl_b32 s60, s60, 2
s_lshr_b32 s61, s51, 3
s_add_u32 s{sRB}, s60, s61
s_and_b32 s62, s51, 7
s_and_b32 s{sTY}, s62, 1
s_and_b32 s63, s50, 1
s_lshl_b32 s{sBLK}, s63, 2
s_lshr_b32 s60, s62, 1
s_add_u32 s{sBLK}, s{sBLK}, s60
s_add_u32 s{sC0}, s62, s61
s_add_u32 s{sC0}, s{sC0}, {self.o.get('c0add', 0)}
s_and_b32 s{sC0}, s{sC0}, 7
s_lshl_b32 s{sK1}, s50, 2
s_add_u32 s{sK1}, s{sK1}, s61
s_mov_b32 s{sCG}, s62
s_mov_b32 s{sP}, s{sK1}
s_mov_b32 s{sQ}, s{sC0 if self.o['mixq'] else 62}
s_lshl_b32 s63, s63, 3
s_add_u32 s63, s63, s62""")
        e(f"s_lshl_b32 s60, s{sRB}, 2\ns_add_u32 s60, s60, s{sW}\ns_lshl_b32 s{sXROW}, s60, 10\ns_lshl_b32 s{sXSW}, s{sW}, 13")
        e(f"""s_mul_i32 s60, s{sBLK}, 320
s_and_b32 s50, s{sBLK}, 1
s_lshl_b32 s51, s50, 6
s_add_u32 s51, s51, s60
s_lshl_b32 s50, s50, 8
s_sub_u32 s{sCOL1}, s60, s50
s_add_u32 s{sCOL1}, s{sCOL1}, 256
s_lshl_b32 s61, s{sBLK}, 7
s_add_u32 s61, s61, 2560
s_cmp_eq_u32 s{sTY}, 0
s_cselect_b32 s{sCOL2}, s51, s61""")
        e(f"s_mul_i32 s60, s{sXROW}, 112\ns_add_u32 s60, s60, {WS_H}\ns_lshl_b32 s61, s{sCOL1}, 5\ns_add_u32 s{sHB1}, s60, s61\ns_lshl_b32 s61, s{sCOL2}, 5\ns_add_u32 s{sHB2}, s60, s61")
        t0, t1, t2 = vTMP, vTMP+1, vTMP+2
        e(f"""v_lshrrev_b32 v{t0}, 3, v{vL}
v_and_b32 v{t1}, 7, v{vL}
v_lshrrev_b32 v{t2}, 4, v{vL}
v_xor_b32 v{t1}, v{t1}, v{t2}
v_lshlrev_b32 v{t1}, 4, v{t1}
v_lshl_add_u32 v{vXD[0]}, v{t0}, 16, v{t1}
v_xor_b32 v{vXD[1]}, 64, v{vXD[0]}
v_add_u32 v{vXD[2]}, {2*(524288-1024)}, v{vXD[0]}
v_add_u32 v{vXD[3]}, {3*(524288-1024)}, v{vXD[1]}
v_add_u32 v{vXD[1]}, {524288-1024}, v{vXD[1]}""")
        e(f"""v_lshrrev_b32 v{t1}, 5, v{vL}
v_and_b32 v{t2}, 31, v{vL}
v_lshlrev_b32 v{t2}, 4, v{t2}
v_lshl_add_u32 v{t2}, v{t1}, 16, v{t2}
s_lshl_b32 s60, s63, 17
s_xor_b32 s61, s{sXROW}, {4096 * self.o['strb']}
s_add_u32 s60, s60, s61""")
        e(f"""s_lshl_b32 s61, s{sW}, 4
v_add_u32 v{t0}, s61, v{t0}
v_mul_u32_u24 v{t0}, 3584, v{t0}
v_and_b32 v{t1}, 7, v{vL}
v_lshlrev_b32 v{t1}, 4, v{t1}
v_and_b32 v{vTMP+3}, 16, v{vL}
v_lshlrev_b32 v{vTMP+3}, 2, v{vTMP+3}
v_xor_b32 v{t1}, v{t1}, v{vTMP+3}
v_add_u32 v{vSD[0]}, v{t0}, v{t1}
v_add_u32 v{vSD[1]}, {8*3584-1024}, v{vSD[0]}
v_lshrrev_b32 v{t0}, 2, v{vL}
v_add_u32 v{t0}, s61, v{t0}
v_mul_u32_u24 v{t0}, 3584, v{t0}
v_and_b32 v{t1}, 3, v{vL}
v_lshl_add_u32 v{vS1D}, v{t1}, 4, v{t0}""")
        e.l.append("    s_waitcnt lgkmcnt(0)")
        if self.stamps: e(f"v_writelane_b32 v{vSTAMP}, s96, 0\nv_writelane_b32 v{vSTAMP}, s94, 15")
        self.stamp(4)
        e(f"s_mov_b32 s{sX+2}, 2097152\ns_mov_b32 s{sX+3}, 0x20000")
        if self.o.get('xfirst'): run(self.dma_x(0))
        if self.o['vq']:
            e(f"s_mov_b32 s{sWS+2}, {WS_SIZE}\ns_mov_b32 s{sWS+3}, 0x20000")
            e(f"buffer_load_dword v{vW}, off, {srd(sWS)}, 0 offset:{WS_Q}", "stat")
        e(f"buffer_load_dwordx4 {vr(TMP,4)}, v{t2}, {srd(sX)}, s60 offen {self.o.get('stf', '')}", "stat")
        e(f"buffer_load_dwordx4 {vr(TMP+4,4)}, v{t2}, {srd(sX)}, s60 offen offset:512 {self.o.get('stf', '')}", "stat")
        if not self.o['vq']: e(f"s_load_dword s{sT}, s[{sWS}:{sWS+1}], {WS_Q}")
        e(f"s_mov_b32 s{sW1}, s52\ns_mov_b32 s{sW1+1}, s53\ns_mov_b32 s{sW1+2}, 1835008\ns_mov_b32 s{sW1+3}, 0x20000")
        if not self.o.get('xfirst') and not self.o['xlast']: run(self.dma_x(0))
        e(f"s_mov_b32 s{sW2}, s54\ns_mov_b32 s{sW2+1}, s55\ns_mov_b32 s{sW2+2}, 1835008\ns_mov_b32 s{sW2+3}, 0x20000")
        e(f"s_mov_b32 s{sWS+2}, {WS_SIZE}\ns_mov_b32 s{sWS+3}, 0x20000")
        e(f"s_mov_b32 s{sWR}, s56\ns_mov_b32 s{sWR+1}, s57\ns_mov_b32 s{sWR+2}, 1052672\ns_mov_b32 s{sWR+3}, 0x20000")
        e(f"s_mov_b32 s{sWI}, s58\ns_mov_b32 s{sWI+1}, s59\ns_mov_b32 s{sWI+2}, 1052672\ns_mov_b32 s{sWI+3}, 0x20000")
        e(f"s_mov_b32 s{sOUT+2}, 2097152\ns_mov_b32 s{sOUT+3}, 0x20000")
        if not self.o['tlbB']: self.tlb_warm()
        e(f"s_mov_b32 s{sPOLL}, s63")
        e(f"s_lshl_b32 s{sXS3}, s{sW}, 10\ns_lshl_b32 s{sW2K}, s{sW}, 11\ns_lshl_b32 s{sQB}, s{sQ}, 7\ns_lshl_b32 s56, s{sW}, 14")
        e(f"s_lshr_b32 s50, s{sRB}, 2\ns_lshl_b32 s50, s50, 4\ns_add_u32 s50, s50, s63\ns_lshl_b32 s50, s50, 2\ns_add_u32 s50, s50, s{sW}\ns_lshl_b32 s50, s50, 12\ns_add_u32 s{sCSG}, s50, {WS_CSG}")
        e(f"s_mul_i32 s50, s{sQ}, 7\ns_lshr_b32 s50, s50, 1\ns_and_b32 s51, s{sP}, 3\ns_mul_i32 s51, s51, 7\ns_add_u32 s{sROT}, s50, s51")
        if self.o['xrot']: e(f"s_and_b32 s50, s2, 7\ns_add_u32 s{sROT}, s{sROT}, s50\ns_cmp_ge_u32 s{sROT}, 28\ns_cselect_b32 s50, 28, 0\ns_sub_u32 s{sROT}, s{sROT}, s50")

    def tlb_warm(self):
        e = self.e
        if self.o['tlbw']:
            skip = e.label("tw")
            e(f"s_cmp_lg_u32 s{sW}, {self.o['tlbw'] - 1}\ns_cbranch_scc1 {skip}")
            if self.o.get('tlbfine'):
                pre = [f"s_lshr_b32 s50, s2, 3", f"v_min_u32 v{vW+1}, 7, v{vL}", f"v_lshl_add_u32 v{vW+1}, v{vW+1}, 5, s50", f"v_mul_u32_u24 v{vW+1}, 57344, v{vW+1}",
                       f"v_min_u32 v{vW+2}, 1, v{vL}", f"v_lshl_add_u32 v{vW+2}, v{vW+2}, 5, s50", f"v_lshlrev_b32 v{vW+4}, 15, v{vW+2}", f"v_mul_u32_u24 v{vW+5}, 28672, v{vW+2}", f"v_lshlrev_b32 v{vW+2}, 14, v{vW+2}"]
                a_w2, a_out = vW + 5, vW + 4
            else:
                pre = [f"v_min_u32 v{vW+1}, 6, v{vL}", f"v_lshlrev_b32 v{vW+1}, 21, v{vW+1}", f"v_add_u32 v{vW+1}, 0x100000, v{vW+1}", f"v_min_u32 v{vW+2}, 1, v{vL}", f"v_mul_u32_u24 v{vW+2}, 1052000, v{vW+2}"]
                a_w2 = a_out = vW + 2
            for l in pre + [f"buffer_load_dword v{vW+3}, v{vW+1}, {srd(sWS)}, 0 offen", f"buffer_load_dword v{vW+3}, v{a_w2}, {srd(sW2)}, 0 offen", f"buffer_load_dword v{vW+3}, v{vW+2}, {srd(sWR)}, 0 offen",
                      f"buffer_load_dword v{vW+3}, v{vW+2}, {srd(sWI)}, 0 offen", f"buffer_load_dword v{vW+3}, v{a_out}, {srd(sOUT)}, 0 offen"]: e.l.append("    " + l)
            e(f"{skip}:")
    def chunk(self, t, d):
        return f"s_add_u32 s{d}, s{sC0}, {(t>>1) + 4*(t&1)}\ns_and_b32 s{d}, s{d}, 7\n"
    XSLOT = staticmethod(lambda t: (t + 1) % 3)
    def dma_x(self, t):
        sl = self.XSLOT(t)
        pre = self.chunk(t, 50) + f"s_lshl_b32 s50, s50, 7\ns_add_u32 s50, s50, s{sXROW}\n"
        m0 = f"s_add_u32 m0, s{sXSW}, {L_XS + sl*4096}\n" if sl < 2 else f"s_add_u32 m0, s56, {L_S2}\n"
        return [self.T((m0 + pre if i == 0 else m0) + f"buffer_load_dwordx4 v{vXD[i]}, {srd(sX)}, s50 offen offset:{i*1024} {self.o['ntx'] if t == 0 else self.o['ntx2']} lds", f"x{t}") for i in range(4)]
    def dma_w1(self, ty, t):
        pre = self.chunk(t, 51) + f"s_mul_i32 s51, s51, {64*3584}\ns_add_u32 s52, s51, s{sCOL1}\ns_add_u32 s51, s51, s{sCOL2}\n"
        T = lambda x: self.T(x, f"w1_{t}")
        th = []; fl = self.o['ntw1'] if t < 2 else self.o['ntx2']
        for pr in range(2 - ty):
            p = PAIR[2*(t % 4) + pr] if ty == 0 else BSLOT[t % 6]
            so = "s51" if pr == 0 else "s53"
            th += [T((pre if pr == 0 else "s_add_u32 s53, s51, 128\n") + f"s_add_u32 m0, s{sW2K}, {p}\nbuffer_load_dwordx4 v{vSD[0]}, {srd(sW1)}, {so} offen {fl} lds"),
                   T(f"s_add_u32 m0, s{sW2K}, {p}\nbuffer_load_dwordx4 v{vSD[1]}, {srd(sW1)}, {so} offen offset:1024 {fl} lds")]
        if ty == 0:
            th.append(T(f"s_add_u32 m0, s{sXS3}, {SING[t % 4]}\nbuffer_load_dwordx4 v{vS1D}, {srd(sW1)}, s52 offen {fl} lds"))
        return th

    def addr_setup(self):
        e = self.e
        t0, t1, t2, t3 = vTMP, vTMP+1, vTMP+2, vTMP+3
        e(f"""v_and_b32 v{t0}, 31, v{vL}
v_lshrrev_b32 v{t1}, 5, v{vL}
v_bfe_u32 v{t2}, v{vL}, 1, 3
v_xor_b32 v{t2}, v{t2}, v{t1}
v_lshlrev_b32 v{t2}, 4, v{t2}
v_lshl_add_u32 v{t2}, v{t0}, 7, v{t2}
v_add_u32 v{vXR[0]}, s{sXSW}, v{t2}
v_xor_b32 v{vXR[1]}, 32, v{vXR[0]}
v_xor_b32 v{vXR[2]}, 64, v{vXR[0]}
v_xor_b32 v{vXR[3]}, 96, v{vXR[0]}
s_add_u32 s50, s56, {L_S2}
v_add_u32 v{vXR2[0]}, s50, v{t2}
v_xor_b32 v{vXR2[1]}, 32, v{vXR2[0]}
v_xor_b32 v{vXR2[2]}, 64, v{vXR2[0]}
v_xor_b32 v{vXR2[3]}, 96, v{vXR2[0]}""")
        e(f"""v_bfe_u32 v{t0}, v{vL}, 2, 2
v_lshl_add_u32 v{t2}, v{t1}, 3, v{t0}
v_and_b32 v{t3}, 3, v{vL}
v_lshlrev_b32 v{t3}, 3, v{t3}
v_and_b32 v{vTMP+4}, 16, v{vL}
v_lshl_add_u32 v{t3}, v{vTMP+4}, 1, v{t3}
v_lshl_add_u32 v{vTS}, v{t2}, 6, v{t3}
v_add_u32 v{vTS}, {L_S2}, v{vTS}
v_lshl_add_u32 v{t3}, v{t2}, 7, v{t3}
v_and_b32 v{vTMP+4}, 8, v{vL}
v_lshl_add_u32 v{t3}, v{vTMP+4}, 3, v{t3}
v_add_u32 v{vT1[0]}, {L_S1}, v{t3}
v_xor_b32 v{vT1[1]}, 64, v{vT1[0]}
v_add_u32 v{vT2[0]}, {L_S2}, v{t3}
v_xor_b32 v{vT2[1]}, 64, v{vT2[0]}
s_lshl_b32 s50, s{sW}, 11
v_add_u32 v{vC2[0]}, s50, v{vT2[0]}
v_add_u32 v{vC2[1]}, s50, v{vT2[1]}
v_add_u32 v{vC1[0]}, s50, v{vT1[0]}
v_add_u32 v{vC1[1]}, s50, v{vT1[1]}
v_add_u32 v{vCSS}, s{sXS3}, v{vTS}
v_add_u32 v{vFD}, {L_FD}, v{vL16}
v_mov_b32 v{vONES}, 0x3f803f80
v_mov_b32 v{vONES+1}, 0x3f803f80""")

    def stats(self):
        e = self.e
        U = 96
        for i in range(8):
            e(f"v_lshlrev_b32 v{U+2*i}, 16, v{TMP+i}\nv_and_b32 v{U+2*i+1}, 0xffff0000, v{TMP+i}")
        def reduce(src, n, acc):
            e(f"v_add_f32 v{acc}, v{src}, v{src+1}\nv_add_f32 v{acc+1}, v{src+2}, v{src+3}")
            for i in range(4, n, 2):
                e(f"v_add_f32 v{acc}, v{acc}, v{src+i}\nv_add_f32 v{acc+1}, v{acc+1}, v{src+i+1}")
            e(f"v_add_f32 v{acc}, v{acc}, v{acc+1}")
            for k in (8, 4, 2, 1):
                e(f"v_add_f32_dpp v{acc}, v{acc}, v{acc} row_ror:{k} row_mask:0xf bank_mask:0xf")
            e(f"v_mov_b32 v{acc+1}, v{acc}\nv_permlane16_swap_b32 v{acc}, v{acc+1}\nv_add_f32 v{acc}, v{acc}, v{acc+1}")
        M = 112
        reduce(U, 16, M)
        e(f"v_mul_f32 v{M}, {fhex(1/512)}, v{M}")
        for i in range(16):
            e(f"v_sub_f32 v{U+i}, v{U+i}, v{M}")
        for i in range(16):
            e(f"v_mul_f32 v{U+i}, v{U+i}, v{U+i}")
        reduce(U, 16, M+2)
        e(f"v_mov_b32 v{M+3}, {fhex(1e-5)}\nv_fmac_f32 v{M+3}, {fhex(1/512)}, v{M+2}\nv_rsq_f32 v{M+2}, v{M+3}")
        if self.o['vq']: e(f"v_readfirstlane_b32 s{sT}, v{vW}")
        else: e.l.append("    s_waitcnt lgkmcnt(0)"); e.lg = []
        e(f"s_mul_i32 s{sT}, s{sT}, 0x9E3779B1\ns_add_u32 s{sT}, s{sT}, 0x7F4A7C15")
        e(f"v_mov_b32 v{M+1}, s{sT}\nv_mov_b32 v{M+3}, s{sT}")
        e(f"s_xor_b32 s54, s{sXROW}, {4096 * self.o['strb']}\ns_lshr_b32 s54, s54, 1\ns_lshl_b32 s60, s{sPOLL}, 5\ns_add_u32 s54, s54, s60\ns_add_u32 s54, s54, {WS_STATS}")
        e(f"v_lshrrev_b32 v{vTMP}, 5, v{vL}\nv_lshlrev_b32 v{vTMP}, 4, v{vTMP}\nv_and_b32 v{vTMP+1}, 31, v{vL}\nv_cmp_eq_u32 vcc, 0, v{vTMP+1}")
        e(f"s_and_saveexec_b64 s[58:59], vcc")
        e(f"buffer_store_dwordx4 {vr(M,4)}, v{vTMP}, {srd(sWS)}, s54 offen sc1", "statst")
        e(f"s_mov_b64 exec, s[58:59]")

    def trig(self, n, ang, inc, step, regs, use, group=1, first=None):
        T = self.T; th = []; pend = []
        for g in range(n // group):
            cs = []
            for b in range(group):
                i = g*group + b
                c, s_ = regs[(g & 1)*group + b]
                a = first if (first is not None and i == 0) else ang
                th += [T(f"v_cos_f32 v{c}, v{a}"), T(f"v_sin_f32 v{s_}, v{a}")]
                if i < n - 1:
                    k = step(i)
                    th.append(T(f"v_add_f32 v{ang}, v{ang}, v{inc}") if k == 1 else T(f"v_fmac_f32 v{ang}, {fhex(float(k))}, v{inc}"))
                cs.append((c, s_))
            th += pend
            pend = use(g, cs)
        return th + pend

    def rot(self, zs, rho, tmp):
        T = self.T
        return ([T(f"v_pk_mul_f32 {vr(tmp+2*i,2)}, {vr(z,2)}, {vr(rho,2)} op_sel_hi:[1,0]") for i, z in enumerate(zs)] +
                [T(f"v_pk_fma_f32 {vr(z,2)}, {vr(z,2)}, {vr(rho,2)}, {vr(tmp+2*i,2)} op_sel:[1,1,0] op_sel_hi:[0,1,1] neg_lo:[0,1,0]") for i, z in enumerate(zs)])
    def gen_a2a3(self):
        T = self.T; th = []
        t0, t1, t2, t3, k2, n2, sg = [TMP + 16 + i for i in range(7)]
        ang, inc = TMP + 24, TMP + 25
        regs = [(TMP + 26, TMP + 27), (TMP + 28, TMP + 29)]
        pk = TMP + 26
        th += self.TL(f"""v_bfe_u32 v{t0}, v{vL}, 4, 1
v_bfe_u32 v{t1}, v{vL}, 3, 1
v_bfe_u32 v{t2}, v{vL}, 2, 1
v_bfe_u32 v{t3}, v{vL}, 1, 1
v_lshl_add_u32 v{k2}, v{t1}, 1, v{t3}
v_lshl_add_u32 v{k2}, v{t2}, 2, v{k2}
v_lshl_add_u32 v{k2}, v{t0}, 3, v{k2}
s_lshl_b32 s98, s{sW}, 4
v_add_u32 v{k2}, s98, v{k2}
v_and_b32 v{n2}, 1, v{vL}
v_cvt_f32_u32 v{ang}, v{n2}
v_mul_f32 v{ang}, 0x3e800000, v{ang}
v_cvt_f32_u32 v{inc}, v{k2}
v_mul_f32 v{inc}, {fhex(1/64)}, v{inc}
v_lshrrev_b32 v{k2}, 5, v{vL}
v_lshlrev_b32 v{k2}, 2, v{k2}
v_cvt_f32_u32 v{k2}, v{k2}
v_fmac_f32 v{ang}, v{k2}, v{inc}
s_mov_b32 s98, 0x80008000
v_mul_lo_u32 v{sg}, v{t3}, s98""")
        def use(dst, neg):
            def f(g, cs):
                c, s_ = cs[0]; p = TMP + 30 + 2*(g & 1)
                return [T(f"v_cvt_pk_bf16_f32 v{p}, v{c}, {'-' if neg else ''}v{s_}"), T(f"v_xor_b32 v{p+1}, v{p}, v{sg}"),
                        T(f"v_accvgpr_write_b32 a{dst+g}, v{p}"), T(f"v_accvgpr_write_b32 a{dst+16+g}, v{p+1}")]
            return f
        st4 = lambda i: 1 if (i & 3) < 3 else 5
        th += self.trig(16, ang, inc, st4, regs, use(aA2, False))
        self.n_a2 = len(th)
        th += self.TL(f"""v_bfe_u32 v{n2}, v{vL}, 3, 2
v_lshl_add_u32 v{n2}, v{n2}, 1, v{t2}
v_and_b32 v{t0}, 1, v{vL}
v_lshl_add_u32 v{n2}, v{n2}, 1, v{t0}
s_mov_b32 s98, 0x80008000
v_mul_lo_u32 v{sg}, v{t0}, s98
s_lshl_b32 s98, s{sW}, 4
v_add_u32 v{n2}, s98, v{n2}
v_cvt_f32_u32 v{n2}, v{n2}
v_mul_f32 v{inc}, {fhex(1/64)}, v{n2}
v_cvt_f32_u32 v{ang}, v{t3}
v_mul_f32 v{ang}, 0xbe800000, v{ang}
v_cvt_f32_u32 v{t0}, s{sK1}
v_mul_f32 v{t0}, {fhex(1/2048)}, v{t0}
v_fmac_f32 v{ang}, v{t0}, v{n2}
v_fmac_f32 v{ang}, v{k2}, v{inc}""")
        th += self.trig(16, ang, inc, st4, regs, use(aA3, True))
        return th

    def gen_fd(self):
        T = self.T; th = []
        kc, inc, ang, t0 = TMP + 12, TMP + 13, TMP + 14, TMP + 15
        regs = [(TMP + 16 + 2*i, TMP + 17 + 2*i) for i in range(4)]
        PC, PS = TMP + 24, TMP + 32
        th += self.TL(f"""v_and_b32 v{kc}, 31, v{vL}
s_lshl_b32 s50, s{sBLK}, 5
v_add_u32 v{kc}, s50, v{kc}
v_and_b32 v{t0}, 1, v{kc}
v_lshlrev_b32 v{t0}, 31, v{t0}
v_xor_b32 v{vSIG}, 1.0, v{t0}
v_mov_b32 v{t0}, 0x100
v_cmp_eq_u32 vcc, 0, v{kc}
v_cndmask_b32 v{kc}, v{kc}, v{t0}, vcc
s_add_u32 s50, s{sC0}, s{sW}
s_lshl_b32 s50, s50, 6
v_lshrrev_b32 v{t0}, 5, v{vL}
v_lshlrev_b32 v{t0}, 3, v{t0}
v_add_u32 v{t0}, s50, v{t0}
v_mul_u32_u24 v{t0}, v{t0}, v{kc}
v_and_b32 v{t0}, 511, v{t0}
v_cvt_f32_u32 v{ang}, v{t0}
v_mul_f32 v{ang}, {fhex(1/512)}, v{ang}
v_cvt_f32_u32 v{inc}, v{kc}
v_mul_f32 v{inc}, {fhex(1/512)}, v{inc}
s_lshl_b32 s50, s{sW}, 13
v_add_u32 v{t0}, s50, v{vFD}""")
        C, S, TM, RC, RS = TMP + 12 + 28, 96, 104, 112, 114
        C = 120
        th += self.TL(f"v_mul_f32 v{kc}, {fhex(16.0)}, v{inc}\nv_cos_f32 v{RC}, v{kc}\nv_sin_f32 v{RS}, v{kc}")
        for e_ in range(8):
            th += [T(f"v_cos_f32 v{C+e_}, v{ang}"), T(f"v_sin_f32 v{S+e_}, v{ang}")]
            if e_ < 7: th.append(T(f"v_add_f32 v{ang}, v{ang}, v{inc}"))
        th += self.TL(f"v_mov_b32 v{RC+1}, v{RC}\nv_mov_b32 v{RS+1}, v{RS}")
        for ks in range(4):
            o = 4*(ks & 1)
            if ks >= 2: th.append(self.W(lg=f"fdw{ks-2}"))
            th += [T(f"v_cvt_pk_bf16_f32 v{PC+o+q}, v{C+2*q}, v{C+2*q+1}") for q in range(4)]
            th += [T(f"v_cvt_pk_bf16_f32 v{PS+o+q}, -v{S+2*q}, -v{S+2*q+1}") for q in range(4)]
            if ks < 3:
                th += [T(f"v_pk_mul_f32 {vr(TM+2*q,2)}, {vr(S+2*q,2)}, {vr(RS,2)}") for q in range(4)]
                th += [T(f"v_pk_mul_f32 {vr(S+2*q,2)}, {vr(S+2*q,2)}, {vr(RC,2)}") for q in range(4)]
                th += [T(f"v_pk_fma_f32 {vr(S+2*q,2)}, {vr(C+2*q,2)}, {vr(RS,2)}, {vr(S+2*q,2)}") for q in range(4)]
                th += [T(f"v_pk_fma_f32 {vr(C+2*q,2)}, {vr(C+2*q,2)}, {vr(RC,2)}, {vr(TM+2*q,2)} neg_lo:[0,0,1] neg_hi:[0,0,1]") for q in range(4)]
            th += [T(f"ds_write_b128 v{t0}, {vr(PC+o,4)} offset:{ks*2048}", f"fdw{ks}"), T(f"ds_write_b128 v{t0}, {vr(PS+o,4)} offset:{ks*2048+1024}", f"fdw{ks}")]
        th.append(self.W(lg="fdw3"))
        return th
    def gen_g1(self):
        T = self.T; th = []
        kc, inc, ang, t0, sg = TMP + 12, TMP + 13, TMP + 14, TMP + 15, TMP + 36
        regs = [(TMP + 16 + 2*i, TMP + 17 + 2*i) for i in range(4)]
        P = TMP + 24
        th += self.TL(f"""v_and_b32 v{kc}, 31, v{vL}
v_and_b32 v{t0}, 1, v{vL}
s_mov_b32 s54, 0x80008000
v_mul_lo_u32 v{sg}, v{t0}, s54
v_cvt_f32_u32 v{kc}, v{kc}
v_mul_f32 v{inc}, {fhex(1/32)}, v{kc}
s_lshr_b32 s54, s{sXROW}, 10
v_cvt_f32_u32 v{ang}, s54
v_mul_f32 v{ang}, {fhex(1/2048)}, v{ang}
v_mul_f32 v{ang}, v{ang}, v{kc}
v_lshrrev_b32 v{t0}, 5, v{vL}
v_lshlrev_b32 v{t0}, 2, v{t0}
v_cvt_f32_u32 v{t0}, v{t0}
v_fmac_f32 v{ang}, v{t0}, v{inc}""")
        def use(q, cs):
            r = [T(f"v_cvt_pk_bf16_f32 v{P}, v{cs[0][0]}, v{cs[1][0]}"), T(f"v_cvt_pk_bf16_f32 v{P+1}, v{cs[0][1]}, v{cs[1][1]}"),
                 T(f"v_cvt_pk_bf16_f32 v{P+2}, -v{cs[0][1]}, -v{cs[1][1]}")]
            for k in range(3): r.append(T(f"v_xor_b32 v{P+3+k}, v{P+k}, v{sg}"))
            for k in range(3): r += [T(f"v_accvgpr_write_b32 a{aG1+8*k+q}, v{P+k}"), T(f"v_accvgpr_write_b32 a{aG1+8*k+4+q}, v{P+3+k}")]
            return r
        th += self.trig(8, ang, inc, lambda i: 5 if (i & 3) == 3 else 1, regs, use, group=2)
        return th

    def pair_addr(self, ty, t, pr, cs=False):
        a = PAIR[2*(t % 4) + pr] if ty == 0 else BSLOT[t % 6]
        if a < L_S2: return (vC1 if cs else vT1), a - L_S1
        return (vC2 if cs else vT2), a - L_S2
    def csum_grp(self, tag, tiles, first):
        T = self.T; rd, mm = [], []
        for i, (ad, off, stp, tl) in enumerate(tiles):
            for eh in range(2):
                rd.append(T(f"ds_read_b64_tr_b16 {vr(vCSF[i]+2*eh,2)}, v{ad} offset:{off + eh*stp}", tag))
        mm.append(self.W(lg=tag))
        for eh in range(2):
            for i, (ad, off, stp, tl) in enumerate(tiles):
                c = "0" if (first and eh == 0) else vr(vCSA[tl], 4)
                mm.append(T(f"v_mfma_f32_4x4x4_16b_bf16 {vr(vCSA[tl],4)}, {vr(vONES,2)}, {vr(vCSF[i]+2*eh,2)}, {c}"))
        return rd, mm
    def csum_publish(self, nt):
        th = [self.T(f"s_lshl_b32 s60, s{sW}, 2\nv_add_u32 v{vTMP}, s60, v{vL16}")]
        th += [self.T(f"ds_write_b32 v{vTMP}, v{vCSA[dt]} offset:{L_CS + dt*1024}", "csw") for dt in range(nt)]
        return th
    def cs_tiles(self, ty):
        return [f"s_mov_b32 s60, s{sW}", "s_mov_b32 s60, 4"] if ty == 0 else [f"s_and_b32 s60, s{sW}, 1"] * 2
    def csum_send(self, ty):
        T = self.T; F = [vCSF[0], vCSF[1]]; rd, th = [], []
        for k, code in enumerate(self.cs_tiles(ty)):
            rd.append(T(f"{code}\ns_lshl_b32 s60, s60, 10\nv_add_u32 v{vTMP+1+k}, s60, v{vL16}\nds_read_b128 {vr(F[k],4)}, v{vTMP+1+k} offset:{L_CS}", "csr"))
        a, b = F
        th = [self.W(lg="csr")] + self.TL(f"""v_add_f32 v{a}, v{a}, v{a+1}
v_add_f32 v{a+2}, v{a+2}, v{a+3}
v_add_f32 v{b}, v{b}, v{b+1}
v_add_f32 v{b+2}, v{b+2}, v{b+3}
v_add_f32 v{a}, v{a}, v{a+2}
v_mov_b32 v{a+1}, s{sT}
v_add_f32 v{a+2}, v{b}, v{b+2}
v_mov_b32 v{a+3}, s{sT}
v_lshrrev_b32 v{vTMP+1}, 1, v{vTMP+1}
v_lshrrev_b32 v{vTMP+2}, 1, v{vTMP+2}""")
        st = [T(f"s_and_b32 s60, s{sRB}, 3\ns_lshl_b32 s60, s60, 10\ns_add_u32 s60, s60, s{sCSG}\nbuffer_store_dwordx4 {vr(a,4)}, v{vL16}, {srd(sWS)}, s60 offen sc1", "css")]
        return rd, th, st
    CL = TMP + 4
    def csum_load(self, ty):
        return [self.T(f"buffer_load_dwordx4 {vr(self.CL+4*i,4)}, v{vL16}, {srd(sWS)}, s{sCSG} offen offset:{1024*i} sc1", "csl") for i in range(4)]
    def csum_check(self, ty):
        e = self.e
        e.wait(vm="csl")
        tags = [self.CL + 1 + 2*j for j in range(8)]
        t = f"v_xor_b32 v{vTMP+3}, s{sT}, v{tags[0]}\nv_xor_b32 v{vTMP+5}, s{sT}, v{tags[1]}\n"
        for k in range(2, 8, 2): t += f"v_bitop3_b32 v{vTMP+3}, v{tags[k]}, s{sT}, v{vTMP+3} bitop3:0xbe\nv_bitop3_b32 v{vTMP+5}, v{tags[k+1]}, s{sT}, v{vTMP+5} bitop3:0xbe\n"
        self.spin(t + f"v_or_b32 v{vTMP+3}, v{vTMP+3}, v{vTMP+5}\nv_cmp_ne_u32 vcc, 0, v{vTMP+3}", [th.txt for th in self.csum_load(ty)], 53)
    def csum_build(self, ty):
        C = self.CL; seq = []
        for k in range(2):
            F = C + 2*k
            seq.append([f"v_add_f32 v{F}, v{F}, v{F+4}", f"v_add_f32 v{F+8}, v{F+8}, v{F+12}", f"v_add_f32 v{F}, v{F}, v{F+8}",
                        f"v_cvt_pk_bf16_f32 v{F+5}, v{F}, v{F}", f"v_and_b32 v{F+1}, 0xffff0000, v{F+5}", f"v_sub_f32 v{F+8}, v{F}, v{F+1}", f"v_cvt_pk_bf16_f32 v{F+4}, v{F+1}, v{F+8}"])
        th = [self.T(seq[k][j]) for j in range(7) for k in range(2)]
        return th + [self.T(f"ds_write_b64 v{vTMP+1+k}, {vr(C+2*k+4,2)} offset:{L_CS}", "cxw") for k in range(2)]
    def csum_get(self, nt):
        return [self.T(f"v_lshlrev_b32 v{vTMP+3}, 3, v{vL}")] + [self.T(f"ds_read_b64 {vr(vAX[dt],2)}, v{vTMP+3} offset:{L_CS + dt*512}", "cxr") for dt in range(nt)]
    def csum_fetch(self, nt):
        return [self.T(f"ds_read_b128 {vr(vCSA[dt],4)}, v{vL16} offset:{L_CS + dt*1024}", "csr") for dt in range(nt)]
    def csum_prep(self, nt):
        th = [self.W(lg="csr")]
        seq = []
        for dt in range(nt):
            F, A = vCSA[dt], vAX[dt]
            seq.append([f"v_add_f32 v{F}, v{F}, v{F+1}", f"v_add_f32 v{F+2}, v{F+2}, v{F+3}", f"v_add_f32 v{F}, v{F}, v{F+2}",
                        f"v_cvt_pk_bf16_f32 v{A+1}, v{F}, v{F}", f"v_and_b32 v{F+1}, 0xffff0000, v{A+1}", f"v_sub_f32 v{F+2}, v{F}, v{F+1}", f"v_cvt_pk_bf16_f32 v{A}, v{F+1}, v{F+2}"])
        for k in range(7):
            for dt in range(nt): th.append(self.T(seq[dt][k]))
        return th
    def csum_apply(self, nt):
        return [self.T(f"v_mfma_f32_32x32x16_bf16 {vr(ACCA+16*dt,16)}, {vr(vAX[dt],4)}, {vr(vBX,4)}, {vr(ACCA+16*dt,16)}") for dt in range(nt)]

    def stats_fetch(self):
        e = self.e
        e(f"s_lshr_b32 s63, s{sXROW}, 1\ns_add_u32 s63, s63, {WS_STATS}\nv_and_b32 v{vTMP+4}, 31, v{vL}\nv_lshlrev_b32 v{vTMP+4}, 4, v{vTMP+4}")
        e(f"buffer_load_dwordx4 {vr(TMP,4)}, v{vTMP+4}, {srd(sWS)}, s63 offen sc1", "stl")
    def stats_use(self, ty):
        e = self.e
        e.wait(vm="stl")
        self.spin(f"v_cmp_ne_u32 vcc, s{sT}, v{TMP+1}\nv_cmp_ne_u32 s[54:55], s{sT}, v{TMP+3}\ns_or_b64 vcc, vcc, s[54:55]",
                  [f"buffer_load_dwordx4 {vr(TMP,4)}, v{vTMP+4}, {srd(sWS)}, s63 offen sc1"], 57)
        m, r = TMP, TMP + 2
        e(f"v_mul_f32 v{vNC1}, {fhex(-LOG2E)}, v{r}\nv_rcp_f32 v{vRINV}, v{r}")
        e(f"v_cvt_pk_bf16_f32 v{vBX}, -v{m}, -v{m}\nv_and_b32 v{TMP+1}, 0xffff0000, v{vBX}\nv_sub_f32 v{TMP+1}, -v{m}, v{TMP+1}")
        e(f"v_mov_b32 v{vBX+2}, 0\nv_mov_b32 v{vBX+3}, 0\nv_cvt_pk_bf16_f32 v{vBX+1}, v{TMP+1}, v{vBX+2}")
        if ty == 1:
            e(f"s_lshl_b32 s60, s{sW}, 7\nv_lshrrev_b32 v{vTMP+4}, 2, v{vTMP+4}\nv_add_u32 v{vTMP+4}, s60, v{vTMP+4}")
            e(f"ds_write_b32 v{vTMP+4}, v{r} offset:{L_RB}", "rbw")

    def silu(self, tiles):
        T = self.T; th = self.TL(f"v_mov_b32 v{vTMP}, v{vNC1}\nv_mov_b32 v{vTMP+1}, v{vNC1}\nv_mov_b32 v{vTMP+2}, v{vRINV}\nv_mov_b32 v{vTMP+3}, v{vRINV}")
        for acc, hb, off in tiles:
            for f in range(2):
                P = TMP + 8 + 4 * f
                for q in range(2):
                    a = acc + 8*f + 4*q
                    u = TMP + 4 * q
                    th += [T(f"v_pk_mul_f32 {vr(u+k,2)}, {vr(a+k,2)}, {vr(vTMP,2)}") for k in (0, 2)]
                    th += [T(f"v_exp_f32 v{u+k}, v{u+k}") for k in range(4)]
                    th += [T(f"v_pk_fma_f32 {vr(u+k,2)}, {vr(u+k,2)}, {vr(vTMP+2,2)}, {vr(vTMP+2,2)}") for k in (0, 2)]
                    th += [T(f"v_rcp_f32 v{u+k}, v{u+k}") for k in range(4)]
                    th += [T(f"v_pk_mul_f32 {vr(u+k,2)}, {vr(u+k,2)}, {vr(a+k,2)}") for k in (0, 2)]
                    th += [T(f"v_cvt_pk_bf16_f32 v{P+2*q+k}, v{u+2*k}, v{u+2*k+1}") for k in range(2)]
                th.append(T(f"buffer_store_dwordx4 {vr(P,4)}, v{vL16}, {srd(sWS)}, s{hb} offen offset:{off + f*1024} {self.o.get('hst', 'sc1')}", "h2")); th[-1].st = True
        return th

    def pipeline2(self, units, LA, bounds, streams, mem, pinned, extra, early, P, between, early2):
        sel = lambda L, lo, hi: [(th, a - lo, b - lo) for th, a, b in L if lo <= a < hi]
        for L in (streams, mem, extra):
            for th, a, b in L: assert (a < P) == (b < P), (a, b)
        sh = lambda d, lo, hi: {k - lo: v for k, v in d.items() if lo <= k < hi}
        N = len(units)
        self.pipeline(units[:P], LA, sh(bounds, 0, P), sel(streams, 0, P), sel(mem, 0, P), sh(pinned, 0, P), sel(extra, 0, P), early)
        run(between)
        u2 = [(u[0], u[1]) for u in units[P:]]
        self.pipeline(u2, LA, sh(bounds, P, N + LA), sel(streams, P, N), sel(mem, P, N), sh(pinned, P, N), sel(extra, P, N), early2, off=P)
    def pipeline(self, units, LA, bounds, streams, mem, pinned, extra, early, off=0):
        e = self.e; N = len(units)
        fills = [[] for _ in range(N)]; mj = [[] for _ in range(N)]; rd = {g: [] for g in range(-LA, N)}
        for th, u0, u1 in mem:
            for i, t in enumerate(th): mj[u0 + i * (u1 - u0 + 1) // len(th)].append(t)
        dat = sorted(b for b in bounds if bounds[b][0])
        w = lambda t: 2 if 'b128' in t.txt else 1
        items = []
        for m in range(N):
            lo = max(max([b for b in dat if b <= m], default=0) - LA, m - self.o['lamax'], units[m][2] if len(units[m]) > 2 else -LA)
            items += [[lo, m - self.o['lamin'], t] for t in units[m][0]]
        ex = [[u0, u1, t] for th, u0, u1 in extra for t in th]
        for g in range(-LA, N):
            room = (2 if mj[g] else 3) if g >= 0 else 4
            room -= self.o['vcap'] * sum(1 for th, u0, u1 in streams if u0 <= g <= u1 and len(th) > 3*(u1 - u0 + 1))
            for lst in (items, ex):
                while lst and lst[0][1] <= g:
                    t = lst.pop(0)[2]; rd[g].append(t); room -= w(t)
            for lst in (items, ex):
                while lst and lst[0][0] <= g and room >= w(lst[0][2]):
                    t = lst.pop(0)[2]; rd[g].append(t); room -= w(t)
        assert not items and not ex
        cap = [max(0.5, 6.0 - len(rd[u]) - 5*len(mj[u])) for u in range(N)]
        for th, u0, u1 in streams:
            for k, grp in zip(range(u0, u1 + 1), spread(th, cap[u0:u1 + 1])): fills[k] += grp
        def boundary(m):
            if m not in bounds: return
            tags, pre = bounds[m]
            if m + off in self.o.get('bst', {}).get(self.ty, ()): self.xs(f"b{self.ty}_{m+off}")
            lt = m + off in self.o.get('lst', {}).get(self.ty, ())
            if lt: self.light()
            if tags: e.wait(vm=tags)
            if lt: self.light()
            run(pre)
            e("s_barrier")
            if lt and self.nl < 4 and not self.o.get('l2'): self.light()
        for u in range(-LA, N):
            if u >= 0:
                e.wait(lg=f"r{u+off}")
                e(units[u][1])
            boundary(u + LA)
            if u >= 0: run(mj[u])
            run(rd[u])
            if u == -1: run(early)
            if u < 0: continue
            run(fills[u]); run(pinned.get(u, []))

    def x_read(self, u, k, dst):
        t, ks = k >> 2, k & 3; sl = self.XSLOT(t)
        if sl < 2: return [self.T(f"ds_read_b128 {ar(dst,4)}, v{vXR[ks]} offset:{sl*4096}", f"r{u}")]
        return [self.T(f"ds_read_b128 {ar(dst,4)}, v{vXR2[ks]}", f"r{u}")]
    def ffn_unit(self, u, k, ad, off, stp, tile, xreg, nb):
        fb = aFB + 4 * ((u + 2) % nb); acc = ACCA + 16*tile
        r = [self.T(f"ds_read_b64_tr_b16 {ar(fb+2*eh,2)}, v{ad} offset:{off + eh*stp}", f"r{u}") for eh in range(2)]
        return r, f"v_mfma_f32_32x32x16_bf16 {vr(acc,16)}, {ar(fb,4)}, {ar(xreg,4)}, {'0' if k == 0 else vr(acc,16)}"

    def z1_rl(self):
        T = self.T; th = []
        R = TMP + 16; t = [TMP + 32 + i for i in range(4)]
        th.append(self.W(lg="rbw"))
        th.append(T(f"s_lshl_b32 s60, s{sW}, 7\nv_lshrrev_b32 v{t[0]}, 5, v{vL}\nv_lshlrev_b32 v{t[0]}, 4, v{t[0]}\nv_add_u32 v{t[0]}, s60, v{t[0]}"))
        th += [T(f"ds_read_b128 {vr(R+4*j,4)}, v{t[0]} offset:{L_RB + j*32}", "rbr") for j in range(4)]
        th += self.TL(f"v_and_b32 v{t[1]}, 31, v{vL}\nv_or_b32 v{t[1]}, s{sBLK}, v{t[1]}\nv_mov_b32 v{t[2]}, {fhex(2.0**-19)}\nv_mov_b32 v{t[3]}, {fhex(2.0**-20)}")
        th.append(T(f"v_cmp_eq_u32 vcc, 0, v{t[1]}\nv_cndmask_b32 v{t[2]}, v{t[2]}, v{t[3]}, vcc"))
        th += self.TL(f"v_mov_b32 v{vTMP}, v{vSIG}\nv_mov_b32 v{vTMP+1}, v{vSIG}")
        th.append(self.W(lg="rbr"))
        th += [T(f"v_mul_f32 v{R+i}, v{R+i}, v{t[2]}") for i in range(16)]
        return th
    def z1_prep(self):
        T = self.T; th = []; R = TMP + 16
        for h in range(2):
            th += [T(f"v_pk_fma_f32 {vr(ACCD+16*h+i,2)}, {vr(ACCD+32+16*h+i,2)}, {vr(vTMP,2)}, {vr(ACCD+16*h+i,2)}") for i in range(0, 16, 2)]
            th += [T(f"v_pk_mul_f32 {vr(ACCD+16*h+i,2)}, {vr(ACCD+16*h+i,2)}, {vr(R+i,2)}") for i in range(0, 16, 2)]
        th += [T(f"v_cvt_pk_bf16_f32 v{ACCD+32+i}, v{ACCD+2*i}, v{ACCD+2*i+1}") for i in range(16)]
        return th
    def z1_mfma(self):
        PT = ACCD + 32; Zr, Zi = ACCD, ACCD + 16
        C = lambda j: ar(aG1+4*j, 4); S = lambda j: ar(aG1+8+4*j, 4); N = lambda j: ar(aG1+16+4*j, 4)
        Tr = lambda j: vr(PT+4*j, 4); Ti = lambda j: vr(PT+8+4*j, 4)
        seq = [(Zr, C(0), Tr(0)), (Zi, N(0), Tr(0)), (Zr, C(1), Tr(1)), (Zi, N(1), Tr(1)), (Zr, S(0), Ti(0)), (Zi, C(0), Ti(0)), (Zr, S(1), Ti(1)), (Zi, C(1), Ti(1))]
        return [self.T(f"v_mfma_f32_32x32x16_bf16 {vr(d,16)}, {a}, {b}, {'0' if i < 2 else vr(d,16)}") for i, (d, a, b) in enumerate(seq)]
    def z1_gather_write(self):
        T = self.T; th = []
        Zr, Zi, PT = ACCD, ACCD + 16, ACCD + 32
        t0, t1 = TMP + 32, TMP + 33
        th += self.TL(f"v_lshrrev_b32 v{t0}, 5, v{vL}\nv_and_b32 v{t1}, 31, v{vL}\nv_lshlrev_b32 v{t1}, 4, v{t1}\nv_lshl_add_u32 v{t0}, v{t0}, 11, v{t1}")
        th.append(T(f"s_lshl_b32 s60, s{sW}, 2\ns_add_u32 s60, s60, {L_FD}\nv_add_u32 v{t0}, s60, v{t0}"))
        for i in range(20):
            if i < 16: th.append(T(f"v_cvt_pk_bf16_f32 v{PT+i}, v{Zr+i}, v{Zi+i}"))
            if i >= 4: th.append(T(f"ds_write_b32 v{t0}, v{PT+i-4} offset:{(8*((i-4)>>2) + (i&3))*512}", "z1w"))
        return th
    def z1_gather_read(self):
        e = self.e
        e(f"v_lshlrev_b32 v{TMP+32}, 4, v0")
        for k in range(4):
            e(f"ds_read_b128 {vr(ACCD+4*k,4)}, v{TMP+32} offset:{L_FD + k*4096}", "z1r")
    def z1_store(self):
        e = self.e
        t0, t1 = TMP + 32, TMP + 33
        e(f"v_lshrrev_b32 v{t0}, 5, v0\nv_and_b32 v{t1}, 31, v0\nv_lshlrev_b32 v{t1}, 4, v{t1}\nv_lshl_add_u32 v{t0}, v{t0}, 13, v{t1}")
        e(f"s_lshl_b32 s60, s{sBLK}, 18\ns_lshl_b32 s54, s{sRB}, 9\ns_add_u32 s60, s60, s54\ns_add_u32 s60, s60, {WS_Z1}")
        e.wait(lg="z1r")
        for k in range(4):
            e(f"buffer_store_dwordx4 {vr(ACCD+4*k,4)}, v{t0}, {srd(sWS)}, s60 offen sc1", "z1s")
            if k < 3: e(f"s_add_u32 s60, s60, 65536")
    def flag_store(self, soff, tag):
        e = self.e
        e(f"v_mov_b32 v{vTMP+4}, 0\nv_mov_b32 v{vTMP+5}, s{sT}\ns_mov_b64 exec, 1")
        e(f"buffer_store_dword v{vTMP+5}, v{vTMP+4}, {srd(sWS)}, s{soff} offen sc1", tag)
        e(f"s_mov_b64 exec, -1")
    def z1_flag(self):
        e = self.e
        e.wait(vm="z1s")
        e(f"s_lshl_b32 s60, s{sBLK}, 10\ns_lshl_b32 s54, s{sW}, 8\ns_add_u32 s60, s60, s54\ns_lshl_b32 s54, s{sRB}, 4\ns_add_u32 s60, s60, s54\ns_add_u32 s60, s60, {WS_Z1F}")
        self.flag_store(60, "z1f")

    def g2_setup(self):
        T = self.T; t0, t1 = TMP + 12, TMP + 13
        if self.o['diag']:
            rd = [(0, 0), (1, 0)] + [(0, j) for j in range(1, 7)] + [(2, 0)] + [(1, j) for j in range(1, 7)] + [(3, 0)] + [(2, j) for j in range(1, 7)] + [(3, j) for j in range(1, 7)]
            R = sum(r << (2*n) for n, (r, d) in enumerate(rd))
            D = [sum(d << (4*(n - b)) for n, (r, d) in enumerate(rd) if b <= n < b + 16) for b in (0, 16)]
            t2 = TMP + 16
            head = f"""s_mov_b32 s50, {hex(R & 0xffffffff)}
s_mov_b32 s51, {hex(R >> 32)}
v_lshlrev_b32 v{t0}, 1, v{vL}
v_lshrrev_b64 v[{t2}:{t2+1}], v{t0}, s[50:51]
v_add_u32 v{t2}, s{sP}, v{t2}
v_and_b32 v{t2}, 3, v{t2}
v_mul_u32_u24 v{t2+4}, 7, v{t2}
v_and_b32 v{t0}, 15, v{vL}
v_lshlrev_b32 v{t0}, 2, v{t0}
s_mov_b32 s50, {hex(D[0] & 0xffffffff)}
s_mov_b32 s51, {hex(D[0] >> 32)}
v_lshrrev_b64 v[{t2}:{t2+1}], v{t0}, s[50:51]
s_mov_b32 s50, {hex(D[1] & 0xffffffff)}
s_mov_b32 s51, {hex(D[1] >> 32)}
v_lshrrev_b64 v[{t2+2}:{t2+3}], v{t0}, s[50:51]
v_cmp_le_u32 vcc, 16, v{vL}
v_cndmask_b32 v{t2}, v{t2}, v{t2+2}, vcc
v_and_b32 v{t2}, 7, v{t2}
s_and_b32 s50, s2, 7
s_add_u32 s50, s50, s{sQ}
v_add_u32 v{t0}, s50, v{t2}
v_subrev_u32 v{t1}, 14, v{t0}
v_min_u32 v{t0}, v{t0}, v{t1}
v_subrev_u32 v{t1}, 7, v{t0}
v_min_u32 v{t0}, v{t0}, v{t1}
v_add_u32 v{t0}, v{t0}, v{t2+4}
"""
        else: head = f"""v_add_u32 v{t0}, s{sROT}, v{vL}
v_subrev_u32 v{t1}, 28, v{t0}
v_min_u32 v{t0}, v{t0}, v{t1}
v_subrev_u32 v{t1}, 28, v{t0}
v_min_u32 v{t0}, v{t0}, v{t1}
"""
        th = self.TL(head + f"""s_mul_i32 s50, s{sW}, 20
s_lshl_b32 s51, s{sW}, 3
s_add_u32 s51, s51, 60
v_mov_b32 v{t1}, s50
v_cmp_le_u32 vcc, 20, v{t0}
v_mov_b32 v{t1+1}, s51
v_cndmask_b32 v{t1}, v{t1}, v{t1+1}, vcc
v_add_lshl_u32 v{t0}, v{t0}, v{t1}, 10""")
        th += [T(f"v_readlane_b32 s{sKS+n}, v{t0}, {n}") for n in range(28)]
        return th
    def w2_addr_setup(self):
        t0, t1 = TMP + 36, TMP + 37
        return self.TL(f"""v_lshrrev_b32 v{t0}, 3, v{vL}
v_and_b32 v{t1}, 7, v{vL}
v_lshlrev_b32 v{t1}, 4, v{t1}
v_lshl_add_u32 v{t0}, v{t0}, 10, v{t1}
v_and_b32 v{t1}, 16, v{vL}
v_lshlrev_b32 v{t1}, 2, v{t1}
v_xor_b32 v{vW2D[0]}, v{t0}, v{t1}
v_add_u32 v{vW2D[1]}, {8192-1024}, v{vW2D[0]}""")
    def w2_lds(self, n):
        if n < 8: return (16384, L_S2 + n * 2048)
        if n < 12: return (8192, L_XS + (n - 8) * 2048)
        g = n - 12
        if g < 4 and self.bplan(): return (12288, L_S1 + [2, 3, 0, 1][g] * 8192)
        if g < 4: return (8192, L_XS + g * 2048)
        if g < 10: return (12288, L_S1 + (g - 4) * 8192)
        return (12288, L_S1 + (g - 10) * 8192)
    def bplan(self): return self.o['mixq'] and self.ty == 1
    def pos(self, n):
        if self.bplan() and 12 <= n < 22: return 12 + [0, 1, 2, 3, 6, 7, 4, 5, 8, 9][n - 12]
        return 12 + [3, 4, 5, 6, 7, 8, 9, 0, 1, 2][n - 12] if (self.o['diag'] and 12 <= n < 22) else n
    def dma_w2(self, n):
        mul, base = self.w2_lds(n)
        sb = {16384: 56, 8192: sXSW, 12288: sW2K}[mul]
        return [self.T(f"s_add_u32 m0, s{sb}, {base}\ns_lshl4_add_u32 s55, s{sKS+self.pos(n)}, s{sQB}\nbuffer_load_dwordx4 v{vW2D[0]}, {srd(sW2)}, s55 offen lds", f"w2_{n}"),
                self.T(f"s_add_u32 m0, s{sb}, {base}\ns_lshl4_add_u32 s55, s{sKS+self.pos(n)}, s{sQB}\nbuffer_load_dwordx4 v{vW2D[1]}, {srd(sW2)}, s55 offen offset:1024 lds", f"w2_{n}")]
    vU = {8192: [9, 10], 12288: [11, 12], 16384: [13, 14]}
    def w2_tr_setup(self, regs=(8192, 12288, 16384), tm=vTMP + 3):
        t0, t1, t3 = tm, tm + 1, tm + 2
        th = self.TL(f"""v_lshrrev_b32 v{t1}, 5, v{vL}
v_bfe_u32 v{t0}, v{vL}, 2, 2
v_lshl_add_u32 v{t0}, v{t1}, 2, v{t0}
v_and_b32 v{t3}, 3, v{vL}
v_lshlrev_b32 v{t3}, 3, v{t3}
v_and_b32 v{t1}, 16, v{vL}
v_lshl_add_u32 v{t3}, v{t1}, 1, v{t3}
v_lshl_add_u32 v{t3}, v{t0}, 7, v{t3}
v_and_b32 v{t1}, 8, v{vL}
v_lshl_add_u32 v{t3}, v{t1}, 3, v{t3}""")
        for mul, sb, base in ((8192, sXSW, L_XS), (12288, sW2K, L_S1), (16384, 56, L_S2)):
            if mul not in regs: continue
            a = self.vU[mul]
            th += self.TL(f"s_add_u32 s97, s{sb}, {base}\nv_add_u32 v{a[0]}, s97, v{t3}\nv_xor_b32 v{a[1]}, 64, v{a[0]}")
        return th
    def w2_tr(self, n, dst, tag):
        mul, base = self.w2_lds(n)
        off = base - {8192: L_XS, 12288: L_S1, 16384: L_S2}[mul]
        return [self.T(f"ds_read_b64_tr_b16 {ar(dst+4*dt+2*eh,2)}, v{self.vU[mul][dt]} offset:{off+eh*1024}", tag) for dt in range(2) for eh in range(2)]

    def w_base(self, ty, d):
        if ty == 1: return f"s_add_u32 s{d}, s56, {L_S2 + 12288}"
        return f"s_and_b32 s{d}, s{sW}, 1\ns_lshl_b32 s{d}, s{d}, 12\ns_lshr_b32 s54, s{sW}, 1\ns_lshl_b32 s54, s54, 14\ns_add_u32 s{d}, s{d}, s54\ns_add_u32 s{d}, s{d}, {L_S2 + 2*16384 + 8192}"
    def w_dma(self, ty):
        T = self.T
        t0, t1, t2 = TMP + 38, TMP + 39, TMP + 35
        nb = f"v_subrev_u32 v{t2}, 64, v{t1}\nv_cmp_eq_u32 vcc, 6, v{t0}\nv_cndmask_b32 v{t1}, v{t1}, v{t2}, vcc\n" if ty == 1 else ""
        th = [T(f"""v_and_b32 v{t0}, 7, v{vL}
v_cmp_gt_u32 vcc, 5, v{t0}
v_lshlrev_b32 v{t1}, 4, v{t0}
v_cndmask_b32 v{t1}, 0, v{t1}, vcc
s_lshl_b32 s59, s{sCG}, 6
v_add_u32 v{t1}, s59, v{t1}
s_cmp_eq_u32 s{sCG}, 0
s_cselect_b32 s59, 5, 8
v_mov_b32 v{t2}, 0x200
v_cmp_eq_u32 vcc, s59, v{t0}
v_cndmask_b32 v{t1}, v{t1}, v{t2}, vcc
{nb}v_lshrrev_b32 v{t0}, 3, v{vL}
v_mul_u32_u24 v{t0}, 16448, v{t0}
v_add_u32 v{vSD2}, v{t0}, v{t1}
s_lshl_b32 s58, s{sW}, 9
s_add_u32 s58, s58, s{sK1}
s_mul_i32 s58, s58, 514
s_and_b32 s58, s58, -16
{self.w_base(ty, 59)}""")]
        nt = " nt" if self.o['ntw'] else ""
        th.append(T(f"s_mov_b32 m0, s59\ns_nop 0\nbuffer_load_dwordx4 v{vSD2}, {srd(sWR)}, s58 offen{nt} lds", "wl"))
        th.append(T(f"s_add_u32 m0, s59, 2048\ns_nop 0\nbuffer_load_dwordx4 v{vSD2}, {srd(sWI)}, s58 offen{nt} lds", "wl"))
        th.append(T(f"s_add_u32 m0, s59, 1024\ns_add_u32 s58, s58, {8*16448}\nbuffer_load_dwordx4 v{vSD2}, {srd(sWR)}, s58 offen{nt} lds", "wl"))
        th.append(T(f"s_add_u32 m0, s59, 3072\ns_nop 0\nbuffer_load_dwordx4 v{vSD2}, {srd(sWI)}, s58 offen{nt} lds", "wl"))
        return th
    def w_read_prep(self):
        t0, t1 = TMP + 38, TMP + 39
        th = [self.T(f"""v_and_b32 v{t0}, 31, v{vL}
v_or_b32 v{t1}, s{sCG}, v{t0}
v_cmp_eq_u32 vcc, 0, v{t1}
v_lshlrev_b32 v{t0}, 1, v{t0}
v_mov_b32 v{t1}, 80
v_cndmask_b32 v{t0}, v{t0}, v{t1}, vcc
v_lshrrev_b32 v{t1}, 5, v{vL}
v_lshl_add_u32 v{t0}, v{t1}, 9, v{t0}
s_lshl_b32 s54, s{sK1}, 1
s_and_b32 s54, s54, 15
s_add_u32 s54, s54, s59
v_add_u32 v{self.vWRA}, s54, v{t0}""")]
        return th + [self.T(f"v_mov_b32 v{vW+i}, 0") for i in range(16)]
    def w_read(self):
        th = []
        for z in range(8):
            for a in range(2):
                th.append(self.T(f"ds_read_u16_d16_hi v{vW+2*z+a}, v{self.vWRA} offset:{(8*(z>>2) + (z&3))*128 + a*2048}", "wr"))
        return th
    def pf_setup(self):
        return self.TL(f"v_and_b32 v{vPF[1]}, 15, v{vL}\nv_lshlrev_b32 v{vPF[1]}, 10, v{vPF[1]}\nv_and_b32 v{vPF[2]}, 16, v{vL}\nv_lshlrev_b32 v{vPF[2]}, 3, v{vPF[2]}\nv_xor_b32 v{vPF[2]}, s{sQB}, v{vPF[2]}\nv_add_u32 v{vPF[1]}, v{vPF[1]}, v{vPF[2]}")
    def pf_w2(self, r):
        return [self.T(f"s_lshl_b32 s54, s{sKS + 12 + r}, 4\nbuffer_load_dword v{vPF[3]}, v{vPF[1]}, {srd(sW2)}, s54 offen", f"pf{r}")]

    def f1(self, ty):
        e = self.e; o = self.o; self.ty = ty; self.nl = 0; self.vWRA = 184 if ty == 0 else 116
        if ty == 0: run(self.dma_w1(ty, 0))
        if o['xlast']: run(self.dma_x(0))
        if ty == 1 and not o['xlast']: run(self.dma_x(1))
        if ty == 1 and o['tlbB']: self.tlb_warm()
        self.stamp(5)
        self.addr_setup()
        if ty == 1:
            run(self.gen_fd())
            if o['xlast']: run(self.gen_g1()[:o['g1pre']] + self.dma_x(1))
        else:
            a23 = self.gen_a2a3(); ka = int(len(a23) * o['a23pre'])
            run(self.g2_setup()); run(self.w2_addr_setup()); run(a23[:ka]); run(self.dma_w1(ty, 1)[:o['w11']])
        self.stamp(1)
        e.wait(vm="stat")
        self.stamp(8)
        self.stats()
        zero_ax = lambda nt: sum([self.TL(f"v_mov_b32 v{vAX[dt]+2}, 0\nv_mov_b32 v{vAX[dt]+3}, 0") for dt in range(nt)], [])
        wd = self.w_dma(ty)
        wrp = self.w_read_prep()
        if ty == 0 and o['presetA']: run(wd[:1] + wrp + zero_ax(5)); wd = wd[1:]; wrp = []
        if ty == 0: run(merge(a23[ka:], self.dma_w1(ty, 1)[o['w11']:], int(len(a23[ka:]) * o['w11at'])))
        self.stamp(2)
        if ty == 1: run(self.gen_g1() + self.g2_setup() + self.w2_addr_setup() + self.pf_setup())
        self.stamp(3)
        units, bounds, streams, mem, pinned, extra = [], {}, [], [], {}, []
        def pin(n, th): pinned.setdefault(n, []).extend(th)
        def csum(u0, u1, um, tag, tiles, first):
            rd, mm = self.csum_grp(tag, tiles, first)
            extra.append((rd, u0, u1)); pin(um, mm)
        own = lambda a, b: sum([self.dma_w2(12 + g) for g in range(a, b)], [])
        wrd = wrp + [self.W(vm='wl')]
        aXB = 192
        LA, NB = 4, 8
        share = o['share'][ty]
        vPA, vPD = TMP + 36, TMP + 37
        def zpoll():
            e(f"s_lshr_b32 s60, s{sK1}, 1\ns_and_b32 s60, s60, 3\ns_lshl_b32 s60, s60, 8\ns_lshl_b32 s54, s{sCG}, 10\ns_add_u32 s60, s60, s54\ns_add_u32 s63, s60, {WS_Z1F}")
            e(f"v_and_b32 v{vPA}, 15, v{vL}\nv_lshlrev_b32 v{vPA}, 4, v{vPA}")
            self.poll_issue(vPA, 63, vPD, "pz1")
        def zcheck():
            self.xs("z1 check")
            self.poll_check(vPA, 63, vPD, "pz1")
            self.xs("z1 seen")
            e(f"s_lshl_b32 s60, s{sCG}, 5\ns_add_u32 s60, s60, s{sK1}\ns_lshl_b32 s60, s60, 13\ns_add_u32 s60, s60, s{sW2K}\ns_add_u32 s60, s60, {WS_Z1}\ns_add_u32 m0, s{sW2K}, {L_ZB}")
            for i in range(2): e(f"buffer_load_dwordx4 v{vL16}, {srd(sWS)}, s60 offen offset:{i*1024} sc1 lds", "zb")
        if ty == 0:
            nt = 5
            for k in range(32):
                t, ks = k >> 2, k & 3
                for tl in range(5):
                    u = 5*k + tl
                    if tl < 4:
                        ad, off = self.pair_addr(0, t, tl >> 1)
                        r, mf = self.ffn_unit(u, k, ad[tl & 1], off + ks*2048, 512, tl, aXB + 4*(k % 3), NB)
                    else: r, mf = self.ffn_unit(u, k, vTS, SING[t % 4] - L_S2 + ks*1024, 256, 4, aXB + 4*(k % 3), NB)
                    if tl == 0: r = self.x_read(u, k, aXB + 4*(k % 3)) + r
                    units.append((r, mf))
            for t in range(8):
                b = 20*t
                bounds[b] = ([f"x{t}", f"w1_{t}"], [])
                u0 = max(0, b - LA + 1)
                tiles = []
                for pr in range(2):
                    ad, off = self.pair_addr(0, t, pr, True)
                    tiles += [(ad[i], off, 512, 2*pr + i) for i in range(2)]
                tiles.append((vCSS, SING[t % 4] - L_S2, 256, 4))
                if t < 2 or (t < 7 and not share): csum(u0, u0 + 12, u0 + 15, f"c{t}", tiles, t == 0)
                elif not share: csum(u0, u0 + 7, u0 + 10, f"c{t}", tiles, False)
            jobs = [self.dma_x(t + 2) + self.dma_w1(0, t + 2) for t in range(6)]
            x1 = self.dma_x(1); early = x1[:2]; mem.append((x1[2:], 0, 2)); mem.append((jobs[0], o['j0'], 16 + o['j0e']))
            for t in range(1, 6): mem.append((jobs[t], 20*t - LA + 1, 20*t + 14))
            pin(110, [self.stats_fetch]); pin(126, [lambda: self.stats_use(0)])
            C0, CB, C1, C2, C3 = 36, 60, o['csA'][0], o['csA'][1], o['csA'][2]
            if not o['presetA']: streams.append((zero_ax(5), 100, 110))
            a = o['wA']
            if o['presetA']: mem.append((wd[:2], a, a + 1)); mem.append((wd[2:], a + 20, a + 21))
            else: mem.append((wd[:1], a, a)); pin(a + 1, wd[1:3]); pin(a + 2, wd[3:])
            streams.append((wrd, 118, 128)); extra.append((self.w_read(), 129, 146))
            a, b, c = o['ownA']
            mem.append((own(0, 2), a, b - 1)); mem.append((own(4, 6), b, c - 1)); mem.append((own(2, 4) + own(6, o['nown']), c, 159))
            htiles = [(ACCA + 16*i, sHB2, 2048*i) for i in range(2)] + [(ACCA + 32 + 16*i, 53, 2048*i) for i in range(2)] + [(ACCA + 64, sHB1, 0)]
        else:
            nt = 2; P0 = 64
            for k in range(32):
                t, ks = k >> 2, k & 3
                for cs in range(2):
                    u = 2*k + cs
                    r = self.x_read(u, k, aX + 4*k) if cs == 0 else []
                    if not t & 1:
                        r.append(self.T(f"ds_read_b128 {ar(aFB+8*ks+4*cs,4)}, v{vFD} offset:{(t>>1)*8192+ks*2048+cs*1024}", f"r{u}"))
                    d = ACCD + 32*(t & 1) + 16*cs
                    units.append((r, f"v_mfma_f32_32x32x16_bf16 {vr(d,16)}, {ar(aX+4*k,4)}, {ar(aFB+8*ks+4*cs,4)}, {'0' if k in (0, 4) else vr(d,16)}", u - 6))
            for t in range(8): bounds[8*t] = ([f"x{t}"], [])
            jobs = [self.dma_x(t + 2) for t in range(6)]
            early = jobs[0][:1]; mem.append((jobs[0][1:], 0, 4))
            for t in range(1, 6): mem.append((jobs[t], 8*t - LA + 1, 8*t + 4))
            mem.append(((self.dma_w1(1, 0) + self.dma_w1(1, 1) if o['w1b'] else []) + wd, 45, 54)); mem.append((self.dma_w1(1, 2) + self.dma_w1(1, 3), 55, 62)); mem.append((self.dma_w1(1, 4) + self.dma_w1(1, 5), 64, 71))
            if o['a23d']: streams.append((self.gen_a2a3(), o['a23d'][0], o['a23d'][1]))
            pin(o['stB'][0], [self.stats_fetch]); pin(o['stB'][1], [lambda: self.stats_use(1)])
            streams.append((zero_ax(2), P0 + 12, P0 + 20))
            P = 64
            for k in range(32):
                t, ks = k >> 2, k & 3
                ad, off = self.pair_addr(1, t, 0)
                for tl in range(2): units.append(self.ffn_unit(P + 2*k + tl, k, ad[tl], off + ks*2048, 512, tl, aX + 4*k, NB) + (P + 2*k + tl - (4 if k < 4 else 6),))
            for t in range(8):
                b = P + 8*t
                bounds[b] = ([f"w1_{t}"], [])
                ad, off = self.pair_addr(1, t, 0, True)
                if t < 2 or not share: csum(max(P, b - LA + 1), max(P + 1, b - LA + 2), b + (3 if t == 0 else (1 if t < 7 else 0)), f"c{t}", [(ad[i], off, 512, i) for i in range(2)], t == 0)
                if 2 <= t < 4: mem.append((self.dma_w1(1, t + 4), b - 1, b + 2))
            streams.append((self.z1_rl(), o['stB'][1] + 1, 62))
            gb = P + 8 * o['z1g']
            streams.append((self.z1_gather_write(), P, gb - LA - 1))
            bounds[gb] = (bounds[gb][0], [self.W(lg="z1w")])
            pin(gb - LA, [self.z1_gather_read]); pin(gb - LA + 2, [self.z1_store])
            if o['warm2']:
                t0 = TMP + 36
                mem.append(([self.T(f"v_min_u32 v{t0}, 27, v{vL}\nv_lshlrev_b32 v{t0}, 7, v{t0}\ns_lshr_b32 s54, s2, 4\ns_lshl_b32 s54, s54, 3\ns_and_b32 s60, s2, 7\ns_add_u32 s54, s54, s60\ns_lshl_b32 s54, s54, 2\ns_add_u32 s54, s54, s{sW}\ns_mul_i32 s54, s54, 3584\nbuffer_load_dword v{t0+1}, v{t0}, {srd(sW2)}, s54 offen", "warm")], o['warm2'], o['warm2']))
            for r, u in enumerate(o['pfat'] or []): mem.append((self.pf_w2(r), u, u))
            streams.append((wrd, P + 18, P + 26)); extra.append((self.w_read(), P + 27, P + 40))
            if o['mixq']:
                b = [P + x for x in o['bw2']]
                mem.append((sum([self.dma_w2(n) for n in range(8, 12)], []), b[0], b[1] - 1))
                mem.append((own(0, 2), b[1], b[2] - 1)); mem.append((own(2, 4), b[2], b[3] - 1))
                streams.append((self.w2_tr_setup((12288,), 117), P + 22, P + 30))
                pin(b[3], self.greads(0)[:5] + self.greads(1)[:5]); pin(b[3] + 2, [self.W(lg="g1")]); mem.append((own(6, 8), b[3] + 3, b[4] - 1))
                pin(b[4], self.greads(2)[:5] + self.greads(3)[:5]); pin(b[4] + 2, [self.W(lg="g3")]); mem.append((own(4, 6), b[4] + 3, P + 53))
                mem.append((own(8, 10), P + 54, P + 62))
            elif o['allB']:
                mem.append((own(0, 4) + own(6, 8) + own(4, 6), P + o['ownB'], P + 53)); mem.append((own(8, 10), P + 54, P + 62))
            else: mem.append((own(0, o['nown']), P + o['ownB'], P + 63))
            C0, CB, C1, C2, C3 = P + 11, P + 16, P + o['csB'][0], P + o['csB'][1], P + o['csB'][2]
            pin(P + o['z1f'], [self.z1_flag])
            htiles = [(ACCA, sHB2, 0), (ACCA + 16, sHB2, 2048)]
        if share:
            pin(C0, self.csum_publish(nt))
            bounds[CB] = (bounds[CB][0], bounds[CB][1] + [self.W(lg="csw")])
            rd, th, st = self.csum_send(ty)
            pin(CB - LA, rd); streams.append((th, CB - LA + 2, CB + 1)); mem.append((st, CB + 2, CB + 2))
            mem.append((self.csum_load(ty), C1, C1 + 3))
            pin(C2, [lambda: self.csum_check(ty)])
            streams.append((self.csum_build(ty), C2 + 1, C3 - 1))
            bounds[C3 + LA] = ([], [self.W(lg="cxw")])
            pin(C3, self.csum_get(nt))
            for i, m in enumerate(self.csum_apply(nt)): pin(C3 + 3 + i, ([self.W(lg="cxr")] if i == 0 else []) + [m])
            assert C3 + 3 + nt <= len(units)
        else:
            Y = 148 if ty == 0 else P + 57
            pin(Y, self.csum_publish(nt))
            bounds[Y + 2 + LA] = ([], [self.W(lg="csw")])
            pin(Y + 2, self.csum_fetch(nt))
            streams.append((self.csum_prep(nt), Y + 3, len(units) - 2))
            pin(len(units) - 1, self.csum_apply(nt))
        if ty == 0: self.pipeline(units, LA, bounds, streams, mem, pinned, extra, early)
        else:
            zm = self.z1_mfma()
            self.pipeline2(units, LA, bounds, streams, mem, pinned, extra, early, P, self.z1_prep() + zm[:4], zm[4:])
        self.light_dump()
        self.stamp(6)
        e("s_barrier")
        self.xs("E bar")
        e(f"s_add_u32 s53, s{sHB2}, 4096")
        side = [] if (self.bplan() or (ty == 1 and o['allB'])) else own(o['nown'], 10)
        for n in range(o['epl'][ty]): side += self.dma_w2(n)
        sil = self.silu(htiles)
        if ty == 1 and not o['a23d']: sil += self.gen_a2a3()
        sil = merge(sil, side, int(len(sil) * o['epfrom']))
        sil += self.w2_tr_setup()
        if o.get('silst'):
            for i in (3, 2, 1): sil.insert(len(sil)*i//4, lambda i=i: self.xs(f'sil{i}'))
        k1, k2 = [int(len(sil) * f) for f in o['zpoll'][ty]]
        k3 = int(len(sil) * o['hfb']) if ty == 1 else len(sil)
        if ty == 1 and o['hfb']:
            assert k3 >= k2
            run(sil[:k1]); zpoll(); run(sil[k1:k2]); zcheck(); run(sil[k2:k3]); self.hflag(); run(sil[k3:])
        else:
            run(sil[:k1]); zpoll(); run(sil[k1:k2]); zcheck(); run(sil[k2:])
    def hflag(self):
        e = self.e
        e(f"s_lshl_b32 s50, s{sRB}, 1\ns_lshr_b32 s51, s{sW}, 1\ns_add_u32 s50, s50, s51\ns_lshl_b32 s50, s50, 2\ns_lshr_b32 s51, s{sBLK}, 1\ns_add_u32 s50, s50, s51\ns_lshl_b32 s50, s50, 3")
        e(f"s_lshl_b32 s51, s{sTY}, 2\ns_add_u32 s50, s50, s51\ns_and_b32 s51, s{sBLK}, 1\ns_lshl_b32 s51, s51, 1\ns_add_u32 s50, s50, s51\ns_and_b32 s51, s{sW}, 1\ns_add_u32 s50, s50, s51")
        e(f"s_lshl_b32 s50, s50, 4\ns_add_u32 s50, s50, {WS_HF}")
        self.xs("pre h2 wait"); e.wait(vm="h2"); self.xs("h2 done"); self.flag_store(50, "hf")
    def greads(self, g):
        return [self.W(vm=f"w2_{12+g}")] + self.w2_tr(12 + g, aX + 8*(self.pos(12 + g) - 12), f"g{g}") + ([self.W(lg=f"g{g-2}")] if g >= 2 else [])
    vPA, vPD = 6, 7

    def spin(self, test, loads, lane):
        e = self.e
        again, back = e.label("again"), e.label("back")
        if self.stamps: e(f"s_mov_b32 s{sPOLL}, 0")
        e(test)
        e(f"s_cbranch_vccnz {again} ; soft")
        e(f"{back}: ; soft")
        if self.stamps: e(f"v_writelane_b32 v{vSTAMP}, s{sPOLL}, {lane}")
        loop = e.label("loop")
        e.cold += [f"{again}:", f"    s_mov_b32 s{sPOLL}, 0", f"{loop}:"] + ["    " + l for l in loads] + ["    s_waitcnt vmcnt(0)"]
        e.cold += ["    " + l for l in test.split("\n")]
        e.cold += [f"    s_add_u32 s{sPOLL}, s{sPOLL}, 1", f"    s_cbranch_vccz {back}", f"    s_cmp_gt_u32 s{sPOLL}, 20000", f"    s_cbranch_scc0 {loop}", f"    s_branch {back}"]
    def poll_issue(self, addr_v, soff, dst, tag):
        self.e(f"buffer_load_dword v{dst}, v{addr_v}, {srd(sWS)}, s{soff} offen sc1", tag)
    def poll_check(self, addr_v, soff, dst, tag):
        e = self.e
        e.wait(vm=tag)
        self.spin(f"v_cmp_ne_u32 vcc, s{sT}, v{dst}", [f"buffer_load_dword v{dst}, v{addr_v}, {srd(sWS)}, s{soff} offen sc1"], {'pz1': 54, 'phf': 55, 'pz3': 56}[tag])

    IFD, S4R, S4I = 128, 192, 208
    def gen_s4(self):
        T = self.T; th = []
        n1, inc, ang, sg = 32, 33, 34, 35
        regs = [(36, 37), (38, 39)]
        th += self.TL(f"""v_and_b32 v{n1}, 1, v{vL}
s_mov_b32 s60, 0x80008000
v_mul_lo_u32 v{sg}, v{n1}, s60
v_and_b32 v{n1}, 31, v{vL}
v_cvt_f32_u32 v{n1}, v{n1}
v_mul_f32 v{inc}, {fhex(1/32)}, v{n1}
v_lshrrev_b32 v{n1}, 5, v{vL}
v_lshlrev_b32 v{n1}, 2, v{n1}
v_cvt_f32_u32 v{n1}, v{n1}
v_mul_f32 v{ang}, v{n1}, v{inc}""")
        def use(g, cs):
            c, s_ = cs[0]
            return [T(f"v_cvt_pk_bf16_f32 v{self.S4R+g}, v{c}, -v{s_}"), T(f"v_cvt_pk_bf16_f32 v{self.S4I+g}, v{s_}, v{c}"),
                    T(f"v_xor_b32 v{self.S4R+8+g}, v{self.S4R+g}, v{sg}"), T(f"v_xor_b32 v{self.S4I+8+g}, v{self.S4I+g}, v{sg}")]
        th += self.trig(8, ang, inc, lambda i: 1 if (i & 3) < 3 else 5, regs, use)
        return th
    def gen_ifd(self, dt):
        T = self.T; th = []
        d, inc, ang, t0 = 40, 41, 42, 43
        Z = [104, 106, 108, 110]; RHO, TM, SP = 112, 114, 122
        th.append(T(f"""v_and_b32 v{d}, 31, v{vL}
s_lshl_b32 s60, s{sQ}, 6
s_add_u32 s60, s60, {32*dt}
v_add_u32 v{d}, s60, v{d}
v_lshrrev_b32 v{t0}, 5, v{vL}
v_lshlrev_b32 v{t0}, 1, v{t0}
s_lshl_b32 s60, s{sW}, 6
v_add_u32 v{t0}, s60, v{t0}
v_cmp_eq_u32 s[96:97], 0, v{t0}
v_mul_u32_u24 v{t0}, v{t0}, v{d}
v_and_b32 v{t0}, 511, v{t0}
v_cvt_f32_u32 v{ang}, v{t0}
v_mul_f32 v{ang}, {fhex(1/512)}, v{ang}
v_cvt_f32_u32 v{inc}, v{d}
v_and_b32 v{t0}, 1, v{d}
v_lshlrev_b32 v{t0}, 15, v{t0}
v_xor_b32 v{SP}, 0x3f80, v{t0}
v_mul_f32 v{t0}, {fhex(1/64)}, v{inc}
v_mul_f32 v{inc}, {fhex(1/512)}, v{inc}
v_cos_f32 v{RHO}, v{t0}
v_sin_f32 v{RHO+1}, v{t0}"""))
        for q in range(4):
            th += [T(f"v_cos_f32 v{Z[q]}, v{ang}"), T(f"v_sin_f32 v{Z[q]+1}, v{ang}")]
            if q < 3: th.append(T(f"v_add_f32 v{ang}, v{ang}, v{inc}") if not q & 1 else T(f"v_fmac_f32 v{ang}, {fhex(3.0)}, v{inc}"))
        for g in range(8):
            r = self.rot(Z, RHO, TM) if g < 7 else []
            cv = [T(f"v_cvt_pk_bf16_f32 v{self.IFD + (g*2+dt)*4 + q}, v{Z[q]}, -v{Z[q]+1}") for q in range(4)]
            th += cv + r
            if g == 0: th.append(T(f"v_cndmask_b32 v{self.IFD + dt*4}, v{self.IFD + dt*4}, v{SP}, s[96:97]"))
        return th

    def post(self):
        e = self.e; T = self.T; o = self.o
        vPA, vPD = self.vPA, self.vPD
        self.stamp(7)
        q = sum([self.dma_w2(n) for n in range(o['epl'][self.ty], 8)], [])
        def dma(k):
            nonlocal q
            r = q[:k]; q = q[k:]; return r
        gr = lambda g: self.greads(g)[:5]
        ifd = self.gen_ifd(0) + self.gen_ifd(1)
        def gen(frac):
            nonlocal ifd
            k = int(202 * frac); r = ifd[:k]; ifd = ifd[k:]; return r
        gf = o['gf']
        run(merge(gen(gf[0]), dma(o['pre1'])))
        if o['hfat'] == -1 and not (self.ty == 1 and o['hfb']): self.hflag()
        e.wait(vm="zb"); self.xs("zb landed"); e("s_barrier"); self.xs("bar1")
        ZF = 192
        for t in range(8): e(f"ds_read_b128 {ar(ZF+4*t,4)}, v{vL16} offset:{L_ZB + t*1024}", f"zf{t}")
        run(gen(gf[1]))
        D = 64
        for t in range(8):
            e.wait(lg=f"zf{t}")
            e(f"v_mfma_f32_32x32x16_bf16 {vr(D,16)}, {ar(aA2+4*t,4)}, {ar(ZF+4*t,4)}, {'0' if t == 0 else vr(D,16)}")
            if t < o['st2d']: run(dma(1))
            if t >= 4 and not self.bplan(): run(gr(t - 4))
        self.xs("st2 issued")
        hflag = self.hflag
        if self.ty == 1 and o['hfb']: hflag = lambda: None
        if o['hfat'] == 0: hflag()
        P = 96
        ops = []
        for z in range(8):
            xr, xi, wr_, wi_ = D + 2*z, D + 2*z + 1, vW + 2*z, vW + 2*z + 1
            u = 80 + 2*z
            ops.append([f"v_mul_f32 v{u}, v{xr}, v{wr_}", f"v_mul_f32 v{u+1}, v{xr}, v{wi_}", f"v_fma_f32 v{u}, -v{xi}, v{wi_}, v{u}", f"v_fmac_f32 v{u+1}, v{xi}, v{wr_}", f"v_cvt_pk_bf16_f32 v{P+z}, v{u}, v{u+1}"])
        e(f"v_add_u32 v{vTMP}, s{sW2K}, v{vL16}")
        for z0 in (0, 2, 4, 6):
            for k in range(5): e(ops[z0][k]); e(ops[z0+1][k])
            if o['wmd']: run(dma(1))
            if z0 == 4: e(f"ds_write_b128 v{vTMP}, {vr(P,4)} offset:{L_ZX}", "zxw")
        if o['wmd']: run(dma(1))
        e(f"ds_write_b128 v{vTMP}, {vr(P+4,4)} offset:{L_ZX + 1024}", "zxw")
        if o['hfat'] == 1: hflag()
        if o['wmd']: run(dma(2))
        run(gen(gf[2]))
        e.wait(lg="zxw"); e("s_barrier"); self.xs("bar2")
        if not o['lg2'] and not self.bplan(): q += sum([self.dma_w2(n) for n in range(8, 12)], [])
        for t in range(8): e(f"ds_read_b128 {ar(ZF+4*t,4)}, v{vL16} offset:{L_ZX + t*1024}", f"zg{t}")
        adr = self.TL(f"""v_lshrrev_b32 v{vTMP+1}, 4, v{vL}
v_bfe_u32 v{vTMP+2}, v{vL}, 3, 1
v_lshlrev_b32 v{vTMP+2}, 12, v{vTMP+2}
v_lshl_add_u32 v{vTMP+2}, v{vTMP+1}, 16, v{vTMP+2}
v_and_b32 v{vTMP+3}, 15, v{vL}
v_lshlrev_b32 v{vTMP+3}, 2, v{vTMP+3}
v_lshl_add_u32 v{vTMP+3}, v{vTMP+1}, 7, v{vTMP+3}
v_add_u32 v{vTMP+3}, s{sW2K}, v{vTMP+3}
v_and_b32 v{vTMP+1}, 7, v{vL}
v_lshl_add_u32 v{vTMP+1}, v{vTMP+1}, 4, v{vTMP+2}
s_lshl_b32 s51, s{sW}, 19
s_lshl_b32 s52, s{sK1}, 7
s_add_u32 s51, s51, s52
s_lshl_b32 s52, s{sCG}, 13
s_add_u32 s51, s51, s52
s_add_u32 s51, s51, {WS_Z3}
s_add_u32 s52, s51, {4*65536}""")
        hadr = self.TL(f"""s_lshl_b32 s50, s{sP}, 2
s_add_u32 s50, s50, s{sW}
s_lshl_b32 s50, s50, 7
s_add_u32 s58, s50, {WS_HF}
v_and_b32 v{vPA}, 7, v{vL}
v_lshlrev_b32 v{vPA}, 4, v{vPA}""")
        run(hadr); run(gen(gf[3]))
        if o['hpe']: self.poll_issue(vPA, 58, vPD, "phf")
        adr = spread(adr, [0.5] + [1]*8); run(adr[0])
        for t in range(8):
            e.wait(lg=f"zg{t}")
            e(f"v_mfma_f32_32x32x16_bf16 {vr(D,16)}, {ar(aA3+4*t,4)}, {ar(ZF+4*t,4)}, {'0' if t == 0 else vr(D,16)}")
            run((dma(1) if t < o['st3d'] else []) + adr[t + 1])
        self.xs('st3 issued')
        for k in range(8): e(f"v_cvt_pk_bf16_f32 v{P+k}, v{D+2*k}, v{D+2*k+1}")
        for k in range(8): e(f"ds_write_b32 v{vTMP+3}, v{P+k} offset:{L_ZB + (k>>1)*512 + (k&1)*64}", "zww")
        run(gen(gf[4]))
        e.wait(lg="zww")
        self.xs('zww')
        e("s_barrier")
        self.xs("st3 packed")
        for k in range(2): e(f"ds_read_b128 {vr(D+4*k,4)}, v{vTMP} offset:{L_ZB + k*1024}", "zwr")
        run(gen(gf[5]))
        e.wait(lg="zwr")
        for k in range(2): e(f"buffer_store_dwordx4 {vr(D+4*k,4)}, v{vTMP+1}, {srd(sWS)}, s{51+k} offen sc1", "z3s")
        if not o['hpe']: self.poll_issue(vPA, 58, vPD, "phf")
        self.stamp(9)
        vH = self.vH
        e(f"s_mul_i32 s50, s{sP}, {2*112*1024}\ns_add_u32 s50, s50, {WS_H}\nv_add_u32 v{vH[0]}, s50, v{vL16}\nv_add_u32 v{vH[1]}, {112*1024}, v{vH[0]}")
        run(merge(sum([self.greads(g) for g in range(4, 10)], []), q))
        self.late = (sum([self.dma_w2(n) for n in range(8, 12)], []) if o['lg2'] else []) + sum([self.dma_w2(12 + g) for g in range(10, 16)], [])
        if o['prel']: e.wait(lg="g9"); run(self.late[:o['prel']]); self.late = self.late[o['prel']:]
        run(gen(gf[6]))
        self.xs("pre hpoll")
        self.poll_check(vPA, 58, vPD, "phf")
        e(f"s_lshl_b32 s50, s{sW}, 3\ns_add_u32 s50, s50, s{sCG}\ns_lshl_b32 s50, s50, 5\ns_add_u32 s50, s50, s{sK1}\ns_lshl_b32 s50, s50, 4\ns_add_u32 s50, s50, {WS_Z3F}")
        self.stamp(10)
        return ifd

    vH, vO, vRD, vZD, vZ, XR = [19, 20], 4, 5, 8, [15, 16, 17, 18], 48
    def g2_addr(self):
        e = self.e
        vH, vO, vZD, vZ = self.vH, self.vO, self.vZD, self.vZ
        th = []
        class _E:
            def __call__(_, x): th.extend(self.TL(x))
        e = _E()
        e(f"""v_lshrrev_b32 v{vTMP}, 3, v{vL}
v_and_b32 v{vTMP+1}, 1, v{vTMP}
v_bfe_u32 v{vTMP+2}, v{vTMP}, 1, 1
v_lshrrev_b32 v{vTMP+3}, 2, v{vTMP}
v_lshl_add_u32 v{vTMP+1}, v{vTMP+3}, 1, v{vTMP+1}
v_lshl_add_u32 v{vTMP+3}, v{vTMP+2}, 2, v{vTMP+1}
v_and_b32 v{vTMP+4}, 7, v{vL}
v_lshlrev_b32 v{vO}, 4, v{vTMP+4}
v_lshl_add_u32 v{vO}, v{vTMP+3}, 16, v{vO}
v_lshlrev_b32 v5, 8, v{vTMP+1}
v_lshl_add_u32 v5, v{vTMP+2}, 7, v5
v_and_b32 v{vTMP+1}, 3, v{vL}
v_lshl_add_u32 v5, v{vTMP+1}, 5, v5
v_bfe_u32 v{vTMP+1}, v{vL}, 2, 1
v_mul_u32_u24 v{vTMP+1}, {RED_TS}, v{vTMP+1}
v_add_u32 v5, v5, v{vTMP+1}
s_lshl_b32 s60, s{sW}, 10
v_add_u32 v5, s60, v5
s_lshl_b32 s59, s{sW}, 19
s_lshl_b32 s60, s{sP}, 11
s_add_u32 s59, s59, s60
s_add_u32 s59, s59, s{sQB}""")
        e(f"""v_lshrrev_b32 v{vTMP}, 5, v{vL}
v_bfe_u32 v{vTMP+1}, v{vL}, 2, 2
v_lshl_add_u32 v{vTMP}, v{vTMP}, 3, v{vTMP+1}
v_lshlrev_b32 v{vTMP}, 6, v{vTMP}
v_and_b32 v{vTMP+1}, 3, v{vL}
v_lshl_add_u32 v{vTMP}, v{vTMP+1}, 3, v{vTMP}
v_and_b32 v{vTMP+1}, 16, v{vL}
v_lshl_add_u32 v{vTMP}, v{vTMP+1}, 1, v{vTMP}
s_add_u32 s60, s{sW2K}, {L_MISC}
v_add_u32 v{vZ[0]}, s60, v{vTMP}""")
        return th

    def g2(self, q2):
        e = self.e; T = self.T; o = self.o
        HB, HD = 192, o['hd']
        LB = 160
        ZF = 128
        ACC = 64
        vH, vO, vZD, vZ, XR = self.vH, self.vO, self.vZD, self.vZ, self.XR
        def hload(n):
            return [T(f"buffer_load_dwordx4 {ar(HB + 8*(n % HD) + 4*rt, 4)}, v{vH[rt]}, {srd(sWS)}, s{sKS+n} offen sc1", f"h{n}") for rt in range(2)]
        H0 = o['h0']
        if not o['hpe']: self.flag_store(50, "z3f")
        for n in range(H0): run(hload(n))
        self.xs('h0 issued')
        rest = sum([hload(n) for n in range(H0, HD)], [])
        ifd = merge(q2 + (self.g2_addr() + self.gen_s4() if o['s4w'] else []), rest)
        k = int(len(ifd) * o['z3fat'])
        run(ifd[:k])
        if o['hpe']: e.wait(vm="z3s"); self.flag_store(50, "z3f")
        run(ifd[k:])
        shadow = [] if o['s4w'] else spread(self.g2_addr() + self.gen_s4(), [1] * o['nsh'])
        late = self.late
        e.wait(lg="g9")
        self.xs("ifd done")
        lreads = lambda n: [self.W(vm=f"w2_{n}")] + self.w2_tr(n, LB + 8*(n % 3), f"l{n}")
        run(lreads(0)); run(lreads(1))
        e(f"s_lshr_b32 s50, s{sP}, 3\ns_lshl_b32 s50, s50, 3\ns_lshl_b32 s51, s{sW}, 1\ns_add_u32 s50, s50, s51\ns_lshl_b32 s50, s50, 9\ns_add_u32 s58, s50, {WS_Z3F}")
        e(f"s_lshl_b32 s50, s{sP}, 16\ns_add_u32 s50, s50, s56\ns_add_u32 s50, s50, {WS_Z3}")
        z3d = lambda mt: [T(f"s_add_u32 m0, s{sW2K}, {L_MISC + (2*mt + (i >> 1))*8192 + (i & 1)*1024}\ns_add_u32 s51, s50, {mt*4096 + i*1024}\nbuffer_load_dwordx4 v{vL16}, {srd(sWS)}, s51 offen sc1 lds", f"z3d{mt}") for i in range(4)]
        xres = [T(f"buffer_load_dwordx4 {vr(XR+4*rt,4)}, v{vO}, {srd(sX)}, s59 offen offset:{rt*1024}", "xr") for rt in range(2)]
        DR, DI, PK = 224, 240, 32
        def zreads(mt):
            return [T(f"ds_read_b64_tr_b16 {ar(ZF + 16*(mt&1) + 4*ks + 2*eh, 2)}, v{vZ[0]} offset:{(2*mt + (ks >> 1))*8192 + (ks & 1)*1024 + eh*256}", f"z{mt}_{ks}") for ks in range(4) for eh in range(2)]
        def tail_a(mt):
            for ks in range(4):
                e.wait(lg=f"z{mt}_{ks}")
                fr = ar(ZF + 16*(mt&1) + 4*ks, 4)
                e(f"v_mfma_f32_32x32x16_bf16 {vr(DR,16)}, {fr}, {vr(self.S4R+4*ks,4)}, {'0' if ks == 0 else vr(DR,16)}")
                e(f"v_mfma_f32_32x32x16_bf16 {vr(DI,16)}, {fr}, {vr(self.S4I+4*ks,4)}, {'0' if ks == 0 else vr(DI,16)}")
        def tail_cvt(mt):
            return [T(f"v_cvt_pk_bf16_f32 v{PK + (jj*2+rt)*4 + q}, v{DR + 8*jj + 4*(q>>1) + 2*(q&1) + rt}, v{DI + 8*jj + 4*(q>>1) + 2*(q&1) + rt}") for jj in range(2) for rt in range(2) for q in range(4)]
        def tail_b(mt):
            for jj in range(2):
                for rt in range(2):
                    for dt in range(2):
                        A = ACC + (rt*2+dt)*16
                        e(f"v_mfma_f32_32x32x16_bf16 {vr(A,16)}, {vr(PK+(jj*2+rt)*4,4)}, {vr(self.IFD+((mt*2+jj)*2+dt)*4,4)}, {vr(A,16)}")
        ZP, ZC, ZD, TT, GA = o['zp'], o['zc'], o['zd'], o['tt'], o['ga']
        NL = 28 - (3 if o['fin'] else 0)
        for n in range(NL):
            side = []
            if n + 2 < 12: side += lreads(n + 2)
            side += late[2*n:2*n + 2]
            if n in GA: side += self.greads(10 + 2*GA.index(n))[:5] + self.greads(11 + 2*GA.index(n))[:5]
            if n < len(shadow): side = merge(shadow[n], side)
            if n == ZP: side.append(lambda: self.poll_issue(vL16, 58, 7, "pz3"))
            for mt in range(4):
                if n == ZD[mt]: side += ([self.W(lg=f"g{9 + 2*mt}")] if mt else []) + z3d(mt)[:2]
                if n == ZD[mt] + 1: side += z3d(mt)[2:]
                if n == TT[mt] - o['zra']: side += [self.W(vm=f"z3d{mt}")] + zreads(mt)
            if n == o['xat']: side += xres
            mt = TT.index(n) if n in TT else None
            TS, tb = 1, 0
            if mt is not None: side += tail_cvt(mt)
            if n in o.get('g2st', (1, 4, 8, 12, 16, 20, 24)): self.xs(f"g2 n{n}")
            if n == ZC:
                self.stamp(11); self.poll_check(vL16, 58, 7, "pz3"); self.stamp(12)
            if mt is not None:
                tail_a(mt)
                if mt == 3: e('s_barrier')
            e.wait(vm=f"h{n}")
            if n in o.get('hst2', ()): self.xs(f"h{n} in")
            if n < 12: e.wait(lg=f"l{n}")
            grp = spread(side, [1, 1, 1, 1])
            if mt is not None and tb % TS == 0: grp = [[]] + spread(side, [1, 1, 1])
            for i, (rt, dt) in enumerate(((0, 0), (0, 1), (1, 0), (1, 1))):
                A = ACC + (rt*2+dt)*16
                B = ar(LB + 8*(n % 3) + 4*dt, 4) if n < 12 else ar(aX + 8*(n-12) + 4*dt, 4)
                e(f"v_mfma_f32_32x32x16_bf16 {vr(A,16)}, {ar(HB + 8*(n % HD) + 4*rt, 4)}, {B}, {'0' if n == 0 else vr(A,16)}")
                if n + HD < 28 and dt == 1: run(hload(n + HD)[rt:rt+1])
                run(grp[i])
            if mt is not None and tb % TS == 0: tail_b(mt)
        wr = lambda t: [T(f"ds_write_addtid_b32 v{ACC+16*t+i} offset:{t*RED_TS + i*256}", "rw") for i in range(16)]
        e(f"s_mul_i32 m0, s{sW}, {RED_WS}")
        XU = 224
        unp = [self.W(vm="xr")] + sum([self.TL(f"v_lshlrev_b32 v{XU+2*i}, 16, v{XR+i}\nv_and_b32 v{XU+2*i+1}, 0xffff0000, v{XR+i}") for i in range(8)], [])
        if o['fin']:
            assert max(TT) < NL
            e.wait(vm="h27")
            pend = unp
            for t, (rt, dt) in enumerate(((0, 0), (0, 1), (1, 0), (1, 1))):
                grp = spread(pend, [1, 1, 1]) if t != 1 else [[], [], []]
                for k, n in enumerate(range(NL, 28)):
                    e(f"v_mfma_f32_32x32x16_bf16 {vr(ACC+16*t,16)}, {ar(HB + 8*(n % HD) + 4*rt, 4)}, {ar(aX + 8*(n-12) + 4*dt, 4)}, {vr(ACC+16*t,16)}")
                    run(grp[k])
                if t >= 1: pend = wr(t - 1)
            self.stamp(13)
            run(wr(2) + wr(3))
        else:
            self.stamp(13)
            run(unp + wr(0) + wr(1) + wr(2) + wr(3))
        e.wait(lg="all"); self.xs("red written"); e("s_barrier"); self.xs("red bar2")
        R = 128
        for rt in range(2):
            for pw in range(4):
                for k in range(2):
                    e(f"ds_read_b128 {vr(R + rt*32 + pw*8 + 4*k, 4)}, v5 offset:{pw*RED_WS + rt*2*RED_TS + 16*k}", f"rr{rt}_{pw}")
        for rt in range(2):
            X = XU + 8*rt
            for pw in range(4):
                e.wait(lg=f"rr{rt}_{pw}")
                for i in range(4):
                    e(f"v_pk_add_f32 {vr(X+2*i,2)}, {vr(X+2*i,2)}, {vr(R + rt*32 + pw*8 + 2*i, 2)}")
            for i in range(4):
                e(f"v_cvt_pk_bf16_f32 v{80+4*rt+i}, v{X+2*i}, v{X+2*i+1}")
            e(f"buffer_store_dwordx4 {vr(80+4*rt,4)}, v{vO}, {srd(sOUT)}, s59 offen offset:{rt*1024} {o.get('ost', 'sc1')}")
        done = e.label("nq")
        e(f"s_or_b32 s50, s2, s{sW}\ns_cmp_lg_u32 s50, 0\ns_cbranch_scc1 {done}\ns_mov_b32 s50, {WS_Q}")
        self.flag_store(50, "q")
        e(f"{done}:")
        if self.stamps:
            self.stamp(14)
            e(f"s_memrealtime s[94:95]"); e.l.append("    s_waitcnt lgkmcnt(0)")
            e(f"v_writelane_b32 v{vSTAMP}, s94, 16")
            e(f"s_lshl_b32 s50, s2, 2\ns_add_u32 s50, s50, s{sW}\ns_lshl_b32 s50, s50, 8\ns_add_u32 s50, s50, {WS_DBG}\nv_lshlrev_b32 v{vTMP}, 2, v{vL}")
            e(f"buffer_store_dword v{vSTAMP}, v{vTMP}, {srd(sWS)}, s50 offen")
            if o.get('dbgout'):
                e(f"s_load_dwordx2 s[64:65], s[0:1], 56"); e.l.append("    s_waitcnt lgkmcnt(0)")
                e(f"s_mov_b32 s66, 256\ns_mov_b32 s67, 0x20000")
                e(f"v_not_b32 v2, v{vSTAMP}\nv_cmp_eq_u32 vcc, 15, v{vL}\nv_cndmask_b32 v2, v{vSTAMP}, v2, vcc\nv_readlane_b32 s68, v{vSTAMP}, 16\nv_mov_b32 v3, s68\nv_cmp_eq_u32 vcc, 0, v{vL}\nv_cndmask_b32 v2, v2, v3, vcc")
                e(f"s_mov_b64 exec, 0xffff\nbuffer_atomic_umax v2, v{vTMP}, s[64:67], 0 offen sc1\ns_mov_b64 exec, -1")

    def build(self):
        e = self.e
        self.prologue()
        snap = e.snapshot()
        e(f"s_cmp_eq_u32 s{sTY}, 1\ns_cbranch_scc1 L_typeB")
        self.f1(0); self.post()
        endA = e.snapshot()
        e("s_branch L_join\nL_typeB:")
        e.restore(snap)
        self.f1(1); rest = self.post()
        endB = e.snapshot()
        self.e.vm = self.join(endA[0], endB[0]); self.e.lg = self.join(endA[1], endB[1])
        e("L_join:")
        self.g2(rest)
        e("L_end:\ns_endpgm")
        e.l += e.cold
        lines, nn = pad_hazards(e.l)
        hdr = open("parallel_sum__spectral_gfnet__dense_activation_silu__prompt.s.ref").read().split("; Override")[0]
        out = hdr + "; @launch grid=(256,1,1) block=(256,1,1) lds=163840\n"
        out += '.amdgcn_target "amdgcn-amd-amdhsa--gfx950"\n.text\n'
        out += f".globl {KNAME}\n.p2align 8\n.type {KNAME},@function\n{KNAME}:\n"
        out += "\n".join(lines) + "\n"
        out += f""".section .rodata,"a"
.p2align 6
.amdhsa_kernel {KNAME}
  .amdhsa_next_free_vgpr 512
  .amdhsa_next_free_sgpr 102
  .amdhsa_accum_offset 256
  .amdhsa_group_segment_fixed_size 0
  .amdhsa_kernarg_size 72
  .amdhsa_user_sgpr_count 2
  .amdhsa_user_sgpr_kernarg_segment_ptr 1
  .amdhsa_system_sgpr_workgroup_id_x 1
.end_amdhsa_kernel
"""
        return out, nn, len(lines)
    @staticmethod
    def join(a, b):
        def after(l):
            d = {}
            for i, t in enumerate(l): d[t] = len(l) - 1 - i
            return d
        da, db = after(a), after(b)
        n = {t: min(da.get(t, 10**9), db.get(t, 10**9)) for t in set(da) | set(db) if t is not None}
        m = max(n.values()) + 1 if n else 0
        q = [None] * m
        res = []
        for pos in range(m - 1, -1, -1):
            tags = [t for t, v in n.items() if v == pos]
            res.append(MultiTag(tags))
        return res

class MultiTag:
    def __init__(self, tags): self.tags = set(tags)
    def __eq__(self, o): return (o in self.tags) if not isinstance(o, MultiTag) else self is o
    def __hash__(self): return id(self)

if __name__ == "__main__":
    import argparse
    ap = argparse.ArgumentParser()
    ap.add_argument("-o", default="parallel_sum__spectral_gfnet__dense_activation_silu__prompt.s")
    ap.add_argument("--stamps", action="store_true")
    ap.add_argument("--opt", action="append", default=[])
    a = ap.parse_args()
    opts = {}
    for kv in a.opt:
        k, v = kv.split("="); opts[k] = eval(v)
    g = Gen(a.stamps, opts)
    txt, nn, nl = g.build()
    import json; open(a.o + ".names", "w").write(json.dumps(g.xnames))
    open(a.o, "w").write(txt)
    print("lines", nl, "nops added", nn)
```

```python
import sys
from emit import E, pad_hazards

KNAME = "parallel_sum__spectral_gfnet__dense_activation_silu__prompt_kernel"

WS_Q     = 0
WS_STATS = 0x10000
WS_Z1F   = 0x20000
WS_HF    = 0x24000
WS_Z3F   = 0x28000
WS_CSG   = 0xD00000
WS_Z1    = 0x100000
WS_Z3    = 0x300000
WS_H     = 0x500000
WS_DBG   = 0xC00000
WS_SIZE  = 0x1000000

L_XS, L_MISC, L_S1, L_S2 = 0, 32768, 49152, 98304
L_CS = L_MISC + 8192
L_RB = L_MISC + 8192 + 5120
L_ZB = L_MISC
L_ZX = L_MISC + 8192
L_FD = L_S1
PAIR = [L_S1 + i*8192 for i in range(6)] + [L_S2 + 4096, L_S2 + 16384 + 4096]
SING = [L_S2 + 12288, L_S2 + 16384 + 12288, L_S2 + 2*16384 + 4096, L_S2 + 3*16384 + 4096]
BSLOT = [L_S2 + i*16384 + 4096 for i in range(4)] + [L_S1 + 32768, L_S1 + 40960]
RED_TS = 4096 + 16
RED_WS = 4 * RED_TS

sX, sW1, sW2, sWS, sWR, sWI, sOUT = 4, 8, 12, 16, 20, 24, 28
sT, sW, sRB, sBLK, sTY, sC0, sK1, sCG, sP, sQ = 32, 33, 34, 35, 36, 37, 38, 39, 40, 41
sXROW, sCOL1, sCOL2, sHB1, sHB2, sXSW, sQB, sPOLL = 42, 43, 44, 45, 46, 47, 48, 49
sCSG = 57
sXS3, sW2K, sROT = 61, 62, 63
sKS = 64
sSTAMP = 92
def srd(n): return f"s[{n}:{n+3}]"

vTID, vL = 0, 1
vXD = [2, 3, 4, 5]; vSD = [6, 7]; vS1D = 8
vXR = [9, 10, 11, 12]; vT1 = [13, 14]; vT2 = [15, 16]; vTS = 17; vFD = 18
vC1 = [19, 20]; vC2 = [21, 22]; vCS = 8 + 224
vNC1, vRINV, vSIG, vL16 = 23, 24, 25, 26
vSTAMP = 27
vBX = 28; vAX = [32, 36, 160, 164, 176]; vCSA = [40, 44, 168, 172, 180]; vCSF = [48, 52, 144, 148, 152]
vONES = 56
vTMP = 58
vSD2 = 236; vCSS = 237; vW2D = [238, 239]; vPF = [112, 113, 114, 115]
vXR2 = [232, 233, 234, 235]
ACCA, ACCD = 64, 128
vW = 240
TMP = 192
aX, aG1, aFB = 0, 192, 216
aA2, aA3 = 128, 160

TRANS_ = ('v_exp_f32', 'v_rcp_f32', 'v_sin_f32', 'v_cos_f32', 'v_rsq_f32')
LOG2E = 1.4426950408889634
def fhex(f):
    import struct
    return "0x%08x" % struct.unpack("<I", struct.pack("<f", f))[0]
def vr(a, n): return f"v[{a}:{a+n-1}]"
def ar(a, n): return f"a[{a}:{a+n-1}]"

def merge(main, side, start=0, end=None):
    end = len(main) if end is None else end
    out = list(main[:start]); n = end - start; k = len(side); j = 0
    for i in range(n):
        out.append(main[start + i])
        while j < k and (j + 1) * n <= (i + 1) * k:
            out.append(side[j]); j += 1
    out += side[j:]
    out += main[end:]
    return out
def run(ths):
    for t in ths: t()
def cost(th): return getattr(th, 'cost', 1)
def spread(fill, caps):
    tot = sum(cost(t) for t in fill); cap = sum(caps)
    out = [[] for _ in caps]; acc = 0.0; g = 0; lim = caps[0] * tot / cap if cap else 0
    for t in fill:
        while g < len(caps) - 1 and acc + cost(t) / 2 > lim:
            g += 1; lim += caps[g] * tot / cap
        out[g].append(t); acc += cost(t)
    return out

class Gen:
    def __init__(self, stamps=False, opts=None):
        self.e = E(); self.stamps = stamps; self.nst = 0; self.xnames = []
        self.o = dict(ntw=True, pf=True, s2at={6: [0, 1, 2], 7: [3, 4, 5]}, w2p2=5, z1f=34, h0=4, pfw2=True, pfat=None, xrot=True, lep=[4, 4], hd=8, zp=5, zc=9, zd=(9, 12, 15, 19), tt=(13, 17, 21, 24), ga=(8, 10, 12), xat=22, nsh=8, hpe=0, w11=0, csA=(112, 134, 142), csB=(36, 50, 55), h1=0, wA=75, presetA=1, j0=4, j0e=0, warm2=63, z3fat=0.45, ifdw=1.0, hfat=0, lamax=6, lamin=3, vcap=0, epl=[0, 4], mixq=0, a23d=None, a23pre=0.3, w11at=0.3, stB=(36, 54), ntx='', ntw1='', ntx2='', fin=1, bw2=(1, 15, 23, 34, 43), st2d=8, epfrom=0.3, nown=7, ownA=(116, 124, 140), ownB=28, share=[1, 0], w1b=45, vq=1, tlbB=0, allB=0, wmd=0, pre1=6, lg2=0, diag=1, hfb=0.9, gf=(0,)*7, s4w=0, xlast=1, g1pre=0, strb=1, tlbw=0, prel=0, zra=2, st3d=4, nlate=4, zpoll=[(0.3, 0.7), (0.3, 0.7)], z1g=2)
        self.o.update(opts or {})
    def stamp(self, i):
        if not self.stamps or (self.o.get('only') is not None and i not in self.o['only']): return
        e = self.e
        e(f"{'s_memrealtime' if self.o.get('rt', 1) else 's_memtime'} s[{sSTAMP}:{sSTAMP+1}]"); e.l.append("    s_waitcnt lgkmcnt(0)"); e.lg = []
        e(f"v_writelane_b32 v{vSTAMP}, s{sSTAMP}, {i if i < 15 else i + 5}")
    def light(self):
        if self.nl < 5: self.e(f"s_memtime s[{92+2*self.nl}:{93+2*self.nl}]"); self.nl += 1
    def light_dump(self):
        if not self.o.get('lst'): return
        self.e.l.append("    s_waitcnt lgkmcnt(0)"); self.e.lg = []
        for i in range(self.nl): self.e(f"v_writelane_b32 v{vSTAMP}, s{92+2*i}, {58+i}")
    def xs(self, name):
        if not (self.stamps and self.o.get('xs')): return
        if name not in self.xnames: self.xnames.append(name)
        self.stamp(15 + self.xnames.index(name))
    def dst(self, region):
        if self.o.get('detail') != region: return
        pairs = self.dpairs
        if self.nd < len(pairs):
            self.e(f"s_memtime s[{pairs[self.nd]}:{pairs[self.nd]+1}]"); self.nd += 1
    def dbegin(self, region, pairs):
        if self.o.get('detail') == region: self.nd = 0; self.dpairs = pairs
    def dend(self, region):
        if self.o.get('detail') != region: return
        self.e.l.append("    s_waitcnt lgkmcnt(0)"); self.e.lg = []
        for i in range(self.nd): self.e(f"v_writelane_b32 v{vSTAMP}, s{self.dpairs[i]}, {20+i}")
        run(self.g2_setup())
    def T(self, s, tag=None):
        f = lambda: self.e(s, tag)
        f.cost = sum(2 if x.split()[0] in TRANS_ else 1 for x in s.split("\n") if x.strip()); f.txt = s
        return f
    def W(self, vm=None, lg=None):
        f = lambda: self.e.wait(vm=vm, lg=lg)
        f.cost = 0.5
        return f
    def TL(self, s):
        return [self.T(x) for x in s.split("\n") if x.strip()]

    def prologue(self):
        e = self.e
        e("s_cmp_ge_u32 s2, 256\ns_cbranch_scc1 L_end")
        e(f"s_load_dwordx2 s[{sX}:{sX+1}], s[0:1], 0\ns_load_dwordx4 s[52:55], s[0:1], 32\ns_load_dwordx2 s[{sWS}:{sWS+1}], s[0:1], 64")
        e(f"s_load_dwordx4 s[56:59], s[0:1], 8\ns_load_dwordx2 s[{sOUT}:{sOUT+1}], s[0:1], 48")
        if self.stamps:
            e(f"s_memrealtime s[94:95]\ns_memtime s[96:97]")
            self.start_saved = False
        e(f"v_and_b32 v{vL}, 63, v0\nv_lshrrev_b32 v{vTMP}, 6, v0\nv_lshlrev_b32 v{vL16}, 4, v{vL}\nv_readfirstlane_b32 s{sW}, v{vTMP}")
        if self.o['pf']:
            if self.o.get('pfB'): e(f"s_bitcmp1_b32 s2, 3\ns_cbranch_scc0 L_nopf")
            e(f"s_getpc_b64 s[50:51]\ns_lshr_b32 s60, s2, {4 if self.o.get('pfB') else 3}\ns_lshl_b32 s60, s60, {12 if self.o.get('pfB') else 11}")
            e(f"s_and_b32 s61, s{sW}, {3 if self.o.get('pfB') else 1}\ns_lshl_b32 s61, s61, 10\ns_add_u32 s60, s60, s61\ns_min_u32 s60, s60, L_end-{KNAME}-1280")
            e(f"s_add_u32 s50, s50, s60\ns_addc_u32 s51, s51, 0")
            e(f"v_mov_b32 v{vTMP+1}, s51\nv_add_co_u32 v{vTMP}, vcc, s50, v{vL16}\nv_addc_co_u32 v{vTMP+1}, vcc, 0, v{vTMP+1}, vcc")
            e(f"global_load_dwordx4 {vr(TMP+8,4)}, {vr(vTMP,2)}, off", "pf")
            if self.o.get('pfB'): e("L_nopf:"); e.vm.pop()
        e(f"""s_and_b32 s50, s2, 7
s_lshr_b32 s51, s2, 3
s_lshr_b32 s60, s50, 1
s_lshl_b32 s60, s60, 2
s_lshr_b32 s61, s51, 3
s_add_u32 s{sRB}, s60, s61
s_and_b32 s62, s51, 7
s_and_b32 s{sTY}, s62, 1
s_and_b32 s63, s50, 1
s_lshl_b32 s{sBLK}, s63, 2
s_lshr_b32 s60, s62, 1
s_add_u32 s{sBLK}, s{sBLK}, s60
s_add_u32 s{sC0}, s62, s61
s_add_u32 s{sC0}, s{sC0}, {self.o.get('c0add', 0)}
s_and_b32 s{sC0}, s{sC0}, 7
s_lshl_b32 s{sK1}, s50, 2
s_add_u32 s{sK1}, s{sK1}, s61
s_mov_b32 s{sCG}, s62
s_mov_b32 s{sP}, s{sK1}
s_mov_b32 s{sQ}, s{sC0 if self.o['mixq'] else 62}
s_lshl_b32 s63, s63, 3
s_add_u32 s63, s63, s62""")
        e(f"s_lshl_b32 s60, s{sRB}, 2\ns_add_u32 s60, s60, s{sW}\ns_lshl_b32 s{sXROW}, s60, 10\ns_lshl_b32 s{sXSW}, s{sW}, 13")
        e(f"""s_mul_i32 s60, s{sBLK}, 320
s_and_b32 s50, s{sBLK}, 1
s_lshl_b32 s51, s50, 6
s_add_u32 s51, s51, s60
s_lshl_b32 s50, s50, 8
s_sub_u32 s{sCOL1}, s60, s50
s_add_u32 s{sCOL1}, s{sCOL1}, 256
s_lshl_b32 s61, s{sBLK}, 7
s_add_u32 s61, s61, 2560
s_cmp_eq_u32 s{sTY}, 0
s_cselect_b32 s{sCOL2}, s51, s61""")
        e(f"s_mul_i32 s60, s{sXROW}, 112\ns_add_u32 s60, s60, {WS_H}\ns_lshl_b32 s61, s{sCOL1}, 5\ns_add_u32 s{sHB1}, s60, s61\ns_lshl_b32 s61, s{sCOL2}, 5\ns_add_u32 s{sHB2}, s60, s61")
        t0, t1, t2 = vTMP, vTMP+1, vTMP+2
        e(f"""v_lshrrev_b32 v{t0}, 3, v{vL}
v_and_b32 v{t1}, 7, v{vL}
v_lshrrev_b32 v{t2}, 4, v{vL}
v_xor_b32 v{t1}, v{t1}, v{t2}
v_lshlrev_b32 v{t1}, 4, v{t1}
v_lshl_add_u32 v{vXD[0]}, v{t0}, 16, v{t1}
v_xor_b32 v{vXD[1]}, 64, v{vXD[0]}
v_add_u32 v{vXD[2]}, {2*(524288-1024)}, v{vXD[0]}
v_add_u32 v{vXD[3]}, {3*(524288-1024)}, v{vXD[1]}
v_add_u32 v{vXD[1]}, {524288-1024}, v{vXD[1]}""")
        e(f"""v_lshrrev_b32 v{t1}, 5, v{vL}
v_and_b32 v{t2}, 31, v{vL}
v_lshlrev_b32 v{t2}, 4, v{t2}
v_lshl_add_u32 v{t2}, v{t1}, 16, v{t2}
s_lshl_b32 s60, s63, 17
s_xor_b32 s61, s{sXROW}, {4096 * self.o['strb']}
s_add_u32 s60, s60, s61""")
        e(f"""s_lshl_b32 s61, s{sW}, 4
v_add_u32 v{t0}, s61, v{t0}
v_mul_u32_u24 v{t0}, 3584, v{t0}
v_and_b32 v{t1}, 7, v{vL}
v_lshlrev_b32 v{t1}, 4, v{t1}
v_and_b32 v{vTMP+3}, 16, v{vL}
v_lshlrev_b32 v{vTMP+3}, 2, v{vTMP+3}
v_xor_b32 v{t1}, v{t1}, v{vTMP+3}
v_add_u32 v{vSD[0]}, v{t0}, v{t1}
v_add_u32 v{vSD[1]}, {8*3584-1024}, v{vSD[0]}
v_lshrrev_b32 v{t0}, 2, v{vL}
v_add_u32 v{t0}, s61, v{t0}
v_mul_u32_u24 v{t0}, 3584, v{t0}
v_and_b32 v{t1}, 3, v{vL}
v_lshl_add_u32 v{vS1D}, v{t1}, 4, v{t0}""")
        e.l.append("    s_waitcnt lgkmcnt(0)")
        if self.stamps: e(f"v_writelane_b32 v{vSTAMP}, s96, 0\nv_writelane_b32 v{vSTAMP}, s94, 15")
        self.stamp(4)
        e(f"s_mov_b32 s{sX+2}, 2097152\ns_mov_b32 s{sX+3}, 0x20000")
        if self.o.get('xfirst'): run(self.dma_x(0))
        if self.o['vq']:
            e(f"s_mov_b32 s{sWS+2}, {WS_SIZE}\ns_mov_b32 s{sWS+3}, 0x20000")
            e(f"buffer_load_dword v{vW}, off, {srd(sWS)}, 0 offset:{WS_Q}", "stat")
        e(f"buffer_load_dwordx4 {vr(TMP,4)}, v{t2}, {srd(sX)}, s60 offen {self.o.get('stf', '')}", "stat")
        e(f"buffer_load_dwordx4 {vr(TMP+4,4)}, v{t2}, {srd(sX)}, s60 offen offset:512 {self.o.get('stf', '')}", "stat")
        if not self.o['vq']: e(f"s_load_dword s{sT}, s[{sWS}:{sWS+1}], {WS_Q}")
        e(f"s_mov_b32 s{sW1}, s52\ns_mov_b32 s{sW1+1}, s53\ns_mov_b32 s{sW1+2}, 1835008\ns_mov_b32 s{sW1+3}, 0x20000")
        if not self.o.get('xfirst') and not self.o['xlast']: run(self.dma_x(0))
        e(f"s_mov_b32 s{sW2}, s54\ns_mov_b32 s{sW2+1}, s55\ns_mov_b32 s{sW2+2}, 1835008\ns_mov_b32 s{sW2+3}, 0x20000")
        e(f"s_mov_b32 s{sWS+2}, {WS_SIZE}\ns_mov_b32 s{sWS+3}, 0x20000")
        e(f"s_mov_b32 s{sWR}, s56\ns_mov_b32 s{sWR+1}, s57\ns_mov_b32 s{sWR+2}, 1052672\ns_mov_b32 s{sWR+3}, 0x20000")
        e(f"s_mov_b32 s{sWI}, s58\ns_mov_b32 s{sWI+1}, s59\ns_mov_b32 s{sWI+2}, 1052672\ns_mov_b32 s{sWI+3}, 0x20000")
        e(f"s_mov_b32 s{sOUT+2}, 2097152\ns_mov_b32 s{sOUT+3}, 0x20000")
        if not self.o['tlbB']: self.tlb_warm()
        e(f"s_mov_b32 s{sPOLL}, s63")
        e(f"s_lshl_b32 s{sXS3}, s{sW}, 10\ns_lshl_b32 s{sW2K}, s{sW}, 11\ns_lshl_b32 s{sQB}, s{sQ}, 7\ns_lshl_b32 s56, s{sW}, 14")
        e(f"s_lshr_b32 s50, s{sRB}, 2\ns_lshl_b32 s50, s50, 4\ns_add_u32 s50, s50, s63\ns_lshl_b32 s50, s50, 2\ns_add_u32 s50, s50, s{sW}\ns_lshl_b32 s50, s50, 12\ns_add_u32 s{sCSG}, s50, {WS_CSG}")
        e(f"s_mul_i32 s50, s{sQ}, 7\ns_lshr_b32 s50, s50, 1\ns_and_b32 s51, s{sP}, 3\ns_mul_i32 s51, s51, 7\ns_add_u32 s{sROT}, s50, s51")
        if self.o['xrot']: e(f"s_and_b32 s50, s2, 7\ns_add_u32 s{sROT}, s{sROT}, s50\ns_cmp_ge_u32 s{sROT}, 28\ns_cselect_b32 s50, 28, 0\ns_sub_u32 s{sROT}, s{sROT}, s50")

    def tlb_warm(self):
        e = self.e
        if self.o['tlbw']:
            skip = e.label("tw")
            e(f"s_cmp_lg_u32 s{sW}, {self.o['tlbw'] - 1}\ns_cbranch_scc1 {skip}")
            if self.o.get('tlbfine'):
                pre = [f"s_lshr_b32 s50, s2, 3", f"v_min_u32 v{vW+1}, 7, v{vL}", f"v_lshl_add_u32 v{vW+1}, v{vW+1}, 5, s50", f"v_mul_u32_u24 v{vW+1}, 57344, v{vW+1}",
                       f"v_min_u32 v{vW+2}, 1, v{vL}", f"v_lshl_add_u32 v{vW+2}, v{vW+2}, 5, s50", f"v_lshlrev_b32 v{vW+4}, 15, v{vW+2}", f"v_mul_u32_u24 v{vW+5}, 28672, v{vW+2}", f"v_lshlrev_b32 v{vW+2}, 14, v{vW+2}"]
                a_w2, a_out = vW + 5, vW + 4
            else:
                pre = [f"v_min_u32 v{vW+1}, 6, v{vL}", f"v_lshlrev_b32 v{vW+1}, 21, v{vW+1}", f"v_add_u32 v{vW+1}, 0x100000, v{vW+1}", f"v_min_u32 v{vW+2}, 1, v{vL}", f"v_mul_u32_u24 v{vW+2}, 1052000, v{vW+2}"]
                a_w2 = a_out = vW + 2
            for l in pre + [f"buffer_load_dword v{vW+3}, v{vW+1}, {srd(sWS)}, 0 offen", f"buffer_load_dword v{vW+3}, v{a_w2}, {srd(sW2)}, 0 offen", f"buffer_load_dword v{vW+3}, v{vW+2}, {srd(sWR)}, 0 offen",
                      f"buffer_load_dword v{vW+3}, v{vW+2}, {srd(sWI)}, 0 offen", f"buffer_load_dword v{vW+3}, v{a_out}, {srd(sOUT)}, 0 offen"]: e.l.append("    " + l)
            e(f"{skip}:")
    def chunk(self, t, d):
        return f"s_add_u32 s{d}, s{sC0}, {(t>>1) + 4*(t&1)}\ns_and_b32 s{d}, s{d}, 7\n"
    XSLOT = staticmethod(lambda t: (t + 1) % 3)
    def dma_x(self, t):
        sl = self.XSLOT(t)
        pre = self.chunk(t, 50) + f"s_lshl_b32 s50, s50, 7\ns_add_u32 s50, s50, s{sXROW}\n"
        m0 = f"s_add_u32 m0, s{sXSW}, {L_XS + sl*4096}\n" if sl < 2 else f"s_add_u32 m0, s56, {L_S2}\n"
        return [self.T((m0 + pre if i == 0 else m0) + f"buffer_load_dwordx4 v{vXD[i]}, {srd(sX)}, s50 offen offset:{i*1024} {self.o['ntx'] if t == 0 else self.o['ntx2']} lds", f"x{t}") for i in range(4)]
    def dma_w1(self, ty, t):
        pre = self.chunk(t, 51) + f"s_mul_i32 s51, s51, {64*3584}\ns_add_u32 s52, s51, s{sCOL1}\ns_add_u32 s51, s51, s{sCOL2}\n"
        T = lambda x: self.T(x, f"w1_{t}")
        th = []; fl = self.o['ntw1'] if t < 2 else self.o['ntx2']
        for pr in range(2 - ty):
            p = PAIR[2*(t % 4) + pr] if ty == 0 else BSLOT[t % 6]
            so = "s51" if pr == 0 else "s53"
            th += [T((pre if pr == 0 else "s_add_u32 s53, s51, 128\n") + f"s_add_u32 m0, s{sW2K}, {p}\nbuffer_load_dwordx4 v{vSD[0]}, {srd(sW1)}, {so} offen {fl} lds"),
                   T(f"s_add_u32 m0, s{sW2K}, {p}\nbuffer_load_dwordx4 v{vSD[1]}, {srd(sW1)}, {so} offen offset:1024 {fl} lds")]
        if ty == 0:
            th.append(T(f"s_add_u32 m0, s{sXS3}, {SING[t % 4]}\nbuffer_load_dwordx4 v{vS1D}, {srd(sW1)}, s52 offen {fl} lds"))
        return th

    def addr_setup(self):
        e = self.e
        t0, t1, t2, t3 = vTMP, vTMP+1, vTMP+2, vTMP+3
        e(f"""v_and_b32 v{t0}, 31, v{vL}
v_lshrrev_b32 v{t1}, 5, v{vL}
v_bfe_u32 v{t2}, v{vL}, 1, 3
v_xor_b32 v{t2}, v{t2}, v{t1}
v_lshlrev_b32 v{t2}, 4, v{t2}
v_lshl_add_u32 v{t2}, v{t0}, 7, v{t2}
v_add_u32 v{vXR[0]}, s{sXSW}, v{t2}
v_xor_b32 v{vXR[1]}, 32, v{vXR[0]}
v_xor_b32 v{vXR[2]}, 64, v{vXR[0]}
v_xor_b32 v{vXR[3]}, 96, v{vXR[0]}
s_add_u32 s50, s56, {L_S2}
v_add_u32 v{vXR2[0]}, s50, v{t2}
v_xor_b32 v{vXR2[1]}, 32, v{vXR2[0]}
v_xor_b32 v{vXR2[2]}, 64, v{vXR2[0]}
v_xor_b32 v{vXR2[3]}, 96, v{vXR2[0]}""")
        e(f"""v_bfe_u32 v{t0}, v{vL}, 2, 2
v_lshl_add_u32 v{t2}, v{t1}, 3, v{t0}
v_and_b32 v{t3}, 3, v{vL}
v_lshlrev_b32 v{t3}, 3, v{t3}
v_and_b32 v{vTMP+4}, 16, v{vL}
v_lshl_add_u32 v{t3}, v{vTMP+4}, 1, v{t3}
v_lshl_add_u32 v{vTS}, v{t2}, 6, v{t3}
v_add_u32 v{vTS}, {L_S2}, v{vTS}
v_lshl_add_u32 v{t3}, v{t2}, 7, v{t3}
v_and_b32 v{vTMP+4}, 8, v{vL}
v_lshl_add_u32 v{t3}, v{vTMP+4}, 3, v{t3}
v_add_u32 v{vT1[0]}, {L_S1}, v{t3}
v_xor_b32 v{vT1[1]}, 64, v{vT1[0]}
v_add_u32 v{vT2[0]}, {L_S2}, v{t3}
v_xor_b32 v{vT2[1]}, 64, v{vT2[0]}
s_lshl_b32 s50, s{sW}, 11
v_add_u32 v{vC2[0]}, s50, v{vT2[0]}
v_add_u32 v{vC2[1]}, s50, v{vT2[1]}
v_add_u32 v{vC1[0]}, s50, v{vT1[0]}
v_add_u32 v{vC1[1]}, s50, v{vT1[1]}
v_add_u32 v{vCSS}, s{sXS3}, v{vTS}
v_add_u32 v{vFD}, {L_FD}, v{vL16}
v_mov_b32 v{vONES}, 0x3f803f80
v_mov_b32 v{vONES+1}, 0x3f803f80""")

    def stats(self):
        e = self.e
        U = 96
        for i in range(8):
            e(f"v_lshlrev_b32 v{U+2*i}, 16, v{TMP+i}\nv_and_b32 v{U+2*i+1}, 0xffff0000, v{TMP+i}")
        def reduce(src, n, acc):
            e(f"v_add_f32 v{acc}, v{src}, v{src+1}\nv_add_f32 v{acc+1}, v{src+2}, v{src+3}")
            for i in range(4, n, 2):
                e(f"v_add_f32 v{acc}, v{acc}, v{src+i}\nv_add_f32 v{acc+1}, v{acc+1}, v{src+i+1}")
            e(f"v_add_f32 v{acc}, v{acc}, v{acc+1}")
            for k in (8, 4, 2, 1):
                e(f"v_add_f32_dpp v{acc}, v{acc}, v{acc} row_ror:{k} row_mask:0xf bank_mask:0xf")
            e(f"v_mov_b32 v{acc+1}, v{acc}\nv_permlane16_swap_b32 v{acc}, v{acc+1}\nv_add_f32 v{acc}, v{acc}, v{acc+1}")
        M = 112
        reduce(U, 16, M)
        e(f"v_mul_f32 v{M}, {fhex(1/512)}, v{M}")
        for i in range(16):
            e(f"v_sub_f32 v{U+i}, v{U+i}, v{M}")
        for i in range(16):
            e(f"v_mul_f32 v{U+i}, v{U+i}, v{U+i}")
        reduce(U, 16, M+2)
        e(f"v_mov_b32 v{M+3}, {fhex(1e-5)}\nv_fmac_f32 v{M+3}, {fhex(1/512)}, v{M+2}\nv_rsq_f32 v{M+2}, v{M+3}")
        if self.o['vq']: e(f"v_readfirstlane_b32 s{sT}, v{vW}")
        else: e.l.append("    s_waitcnt lgkmcnt(0)"); e.lg = []
        e(f"s_mul_i32 s{sT}, s{sT}, 0x9E3779B1\ns_add_u32 s{sT}, s{sT}, 0x7F4A7C15")
        e(f"v_mov_b32 v{M+1}, s{sT}\nv_mov_b32 v{M+3}, s{sT}")
        e(f"s_xor_b32 s54, s{sXROW}, {4096 * self.o['strb']}\ns_lshr_b32 s54, s54, 1\ns_lshl_b32 s60, s{sPOLL}, 5\ns_add_u32 s54, s54, s60\ns_add_u32 s54, s54, {WS_STATS}")
        e(f"v_lshrrev_b32 v{vTMP}, 5, v{vL}\nv_lshlrev_b32 v{vTMP}, 4, v{vTMP}\nv_and_b32 v{vTMP+1}, 31, v{vL}\nv_cmp_eq_u32 vcc, 0, v{vTMP+1}")
        e(f"s_and_saveexec_b64 s[58:59], vcc")
        e(f"buffer_store_dwordx4 {vr(M,4)}, v{vTMP}, {srd(sWS)}, s54 offen sc1", "statst")
        e(f"s_mov_b64 exec, s[58:59]")

    def trig(self, n, ang, inc, step, regs, use, group=1, first=None):
        T = self.T; th = []; pend = []
        for g in range(n // group):
            cs = []
            for b in range(group):
                i = g*group + b
                c, s_ = regs[(g & 1)*group + b]
                a = first if (first is not None and i == 0) else ang
                th += [T(f"v_cos_f32 v{c}, v{a}"), T(f"v_sin_f32 v{s_}, v{a}")]
                if i < n - 1:
                    k = step(i)
                    th.append(T(f"v_add_f32 v{ang}, v{ang}, v{inc}") if k == 1 else T(f"v_fmac_f32 v{ang}, {fhex(float(k))}, v{inc}"))
                cs.append((c, s_))
            th += pend
            pend = use(g, cs)
        return th + pend

    def rot(self, zs, rho, tmp):
        T = self.T
        return ([T(f"v_pk_mul_f32 {vr(tmp+2*i,2)}, {vr(z,2)}, {vr(rho,2)} op_sel_hi:[1,0]") for i, z in enumerate(zs)] +
                [T(f"v_pk_fma_f32 {vr(z,2)}, {vr(z,2)}, {vr(rho,2)}, {vr(tmp+2*i,2)} op_sel:[1,1,0] op_sel_hi:[0,1,1] neg_lo:[0,1,0]") for i, z in enumerate(zs)])
    def gen_a2a3(self):
        T = self.T; th = []
        t0, t1, t2, t3, k2, n2, sg = [TMP + 16 + i for i in range(7)]
        ang, inc = TMP + 24, TMP + 25
        regs = [(TMP + 26, TMP + 27), (TMP + 28, TMP + 29)]
        pk = TMP + 26
        th += self.TL(f"""v_bfe_u32 v{t0}, v{vL}, 4, 1
v_bfe_u32 v{t1}, v{vL}, 3, 1
v_bfe_u32 v{t2}, v{vL}, 2, 1
v_bfe_u32 v{t3}, v{vL}, 1, 1
v_lshl_add_u32 v{k2}, v{t1}, 1, v{t3}
v_lshl_add_u32 v{k2}, v{t2}, 2, v{k2}
v_lshl_add_u32 v{k2}, v{t0}, 3, v{k2}
s_lshl_b32 s98, s{sW}, 4
v_add_u32 v{k2}, s98, v{k2}
v_and_b32 v{n2}, 1, v{vL}
v_cvt_f32_u32 v{ang}, v{n2}
v_mul_f32 v{ang}, 0x3e800000, v{ang}
v_cvt_f32_u32 v{inc}, v{k2}
v_mul_f32 v{inc}, {fhex(1/64)}, v{inc}
v_lshrrev_b32 v{k2}, 5, v{vL}
v_lshlrev_b32 v{k2}, 2, v{k2}
v_cvt_f32_u32 v{k2}, v{k2}
v_fmac_f32 v{ang}, v{k2}, v{inc}
s_mov_b32 s98, 0x80008000
v_mul_lo_u32 v{sg}, v{t3}, s98""")
        def use(dst, neg):
            def f(g, cs):
                c, s_ = cs[0]; p = TMP + 30 + 2*(g & 1)
                return [T(f"v_cvt_pk_bf16_f32 v{p}, v{c}, {'-' if neg else ''}v{s_}"), T(f"v_xor_b32 v{p+1}, v{p}, v{sg}"),
                        T(f"v_accvgpr_write_b32 a{dst+g}, v{p}"), T(f"v_accvgpr_write_b32 a{dst+16+g}, v{p+1}")]
            return f
        st4 = lambda i: 1 if (i & 3) < 3 else 5
        th += self.trig(16, ang, inc, st4, regs, use(aA2, False))
        self.n_a2 = len(th)
        th += self.TL(f"""v_bfe_u32 v{n2}, v{vL}, 3, 2
v_lshl_add_u32 v{n2}, v{n2}, 1, v{t2}
v_and_b32 v{t0}, 1, v{vL}
v_lshl_add_u32 v{n2}, v{n2}, 1, v{t0}
s_mov_b32 s98, 0x80008000
v_mul_lo_u32 v{sg}, v{t0}, s98
s_lshl_b32 s98, s{sW}, 4
v_add_u32 v{n2}, s98, v{n2}
v_cvt_f32_u32 v{n2}, v{n2}
v_mul_f32 v{inc}, {fhex(1/64)}, v{n2}
v_cvt_f32_u32 v{ang}, v{t3}
v_mul_f32 v{ang}, 0xbe800000, v{ang}
v_cvt_f32_u32 v{t0}, s{sK1}
v_mul_f32 v{t0}, {fhex(1/2048)}, v{t0}
v_fmac_f32 v{ang}, v{t0}, v{n2}
v_fmac_f32 v{ang}, v{k2}, v{inc}""")
        th += self.trig(16, ang, inc, st4, regs, use(aA3, True))
        return th

    def gen_fd(self):
        T = self.T; th = []
        kc, inc, ang, t0 = TMP + 12, TMP + 13, TMP + 14, TMP + 15
        regs = [(TMP + 16 + 2*i, TMP + 17 + 2*i) for i in range(4)]
        PC, PS = TMP + 24, TMP + 32
        th += self.TL(f"""v_and_b32 v{kc}, 31, v{vL}
s_lshl_b32 s50, s{sBLK}, 5
v_add_u32 v{kc}, s50, v{kc}
v_and_b32 v{t0}, 1, v{kc}
v_lshlrev_b32 v{t0}, 31, v{t0}
v_xor_b32 v{vSIG}, 1.0, v{t0}
v_mov_b32 v{t0}, 0x100
v_cmp_eq_u32 vcc, 0, v{kc}
v_cndmask_b32 v{kc}, v{kc}, v{t0}, vcc
s_add_u32 s50, s{sC0}, s{sW}
s_lshl_b32 s50, s50, 6
v_lshrrev_b32 v{t0}, 5, v{vL}
v_lshlrev_b32 v{t0}, 3, v{t0}
v_add_u32 v{t0}, s50, v{t0}
v_mul_u32_u24 v{t0}, v{t0}, v{kc}
v_and_b32 v{t0}, 511, v{t0}
v_cvt_f32_u32 v{ang}, v{t0}
v_mul_f32 v{ang}, {fhex(1/512)}, v{ang}
v_cvt_f32_u32 v{inc}, v{kc}
v_mul_f32 v{inc}, {fhex(1/512)}, v{inc}
s_lshl_b32 s50, s{sW}, 13
v_add_u32 v{t0}, s50, v{vFD}""")
        C, S, TM, RC, RS = TMP + 12 + 28, 96, 104, 112, 114
        C = 120
        th += self.TL(f"v_mul_f32 v{kc}, {fhex(16.0)}, v{inc}\nv_cos_f32 v{RC}, v{kc}\nv_sin_f32 v{RS}, v{kc}")
        for e_ in range(8):
            th += [T(f"v_cos_f32 v{C+e_}, v{ang}"), T(f"v_sin_f32 v{S+e_}, v{ang}")]
            if e_ < 7: th.append(T(f"v_add_f32 v{ang}, v{ang}, v{inc}"))
        th += self.TL(f"v_mov_b32 v{RC+1}, v{RC}\nv_mov_b32 v{RS+1}, v{RS}")
        for ks in range(4):
            o = 4*(ks & 1)
            if ks >= 2: th.append(self.W(lg=f"fdw{ks-2}"))
            th += [T(f"v_cvt_pk_bf16_f32 v{PC+o+q}, v{C+2*q}, v{C+2*q+1}") for q in range(4)]
            th += [T(f"v_cvt_pk_bf16_f32 v{PS+o+q}, -v{S+2*q}, -v{S+2*q+1}") for q in range(4)]
            if ks < 3:
                th += [T(f"v_pk_mul_f32 {vr(TM+2*q,2)}, {vr(S+2*q,2)}, {vr(RS,2)}") for q in range(4)]
                th += [T(f"v_pk_mul_f32 {vr(S+2*q,2)}, {vr(S+2*q,2)}, {vr(RC,2)}") for q in range(4)]
                th += [T(f"v_pk_fma_f32 {vr(S+2*q,2)}, {vr(C+2*q,2)}, {vr(RS,2)}, {vr(S+2*q,2)}") for q in range(4)]
                th += [T(f"v_pk_fma_f32 {vr(C+2*q,2)}, {vr(C+2*q,2)}, {vr(RC,2)}, {vr(TM+2*q,2)} neg_lo:[0,0,1] neg_hi:[0,0,1]") for q in range(4)]
            th += [T(f"ds_write_b128 v{t0}, {vr(PC+o,4)} offset:{ks*2048}", f"fdw{ks}"), T(f"ds_write_b128 v{t0}, {vr(PS+o,4)} offset:{ks*2048+1024}", f"fdw{ks}")]
        th.append(self.W(lg="fdw3"))
        return th
    def gen_g1(self):
        T = self.T; th = []
        kc, inc, ang, t0, sg = TMP + 12, TMP + 13, TMP + 14, TMP + 15, TMP + 36
        regs = [(TMP + 16 + 2*i, TMP + 17 + 2*i) for i in range(4)]
        P = TMP + 24
        th += self.TL(f"""v_and_b32 v{kc}, 31, v{vL}
v_and_b32 v{t0}, 1, v{vL}
s_mov_b32 s54, 0x80008000
v_mul_lo_u32 v{sg}, v{t0}, s54
v_cvt_f32_u32 v{kc}, v{kc}
v_mul_f32 v{inc}, {fhex(1/32)}, v{kc}
s_lshr_b32 s54, s{sXROW}, 10
v_cvt_f32_u32 v{ang}, s54
v_mul_f32 v{ang}, {fhex(1/2048)}, v{ang}
v_mul_f32 v{ang}, v{ang}, v{kc}
v_lshrrev_b32 v{t0}, 5, v{vL}
v_lshlrev_b32 v{t0}, 2, v{t0}
v_cvt_f32_u32 v{t0}, v{t0}
v_fmac_f32 v{ang}, v{t0}, v{inc}""")
        def use(q, cs):
            r = [T(f"v_cvt_pk_bf16_f32 v{P}, v{cs[0][0]}, v{cs[1][0]}"), T(f"v_cvt_pk_bf16_f32 v{P+1}, v{cs[0][1]}, v{cs[1][1]}"),
                 T(f"v_cvt_pk_bf16_f32 v{P+2}, -v{cs[0][1]}, -v{cs[1][1]}")]
            for k in range(3): r.append(T(f"v_xor_b32 v{P+3+k}, v{P+k}, v{sg}"))
            for k in range(3): r += [T(f"v_accvgpr_write_b32 a{aG1+8*k+q}, v{P+k}"), T(f"v_accvgpr_write_b32 a{aG1+8*k+4+q}, v{P+3+k}")]
            return r
        th += self.trig(8, ang, inc, lambda i: 5 if (i & 3) == 3 else 1, regs, use, group=2)
        return th

    def pair_addr(self, ty, t, pr, cs=False):
        a = PAIR[2*(t % 4) + pr] if ty == 0 else BSLOT[t % 6]
        if a < L_S2: return (vC1 if cs else vT1), a - L_S1
        return (vC2 if cs else vT2), a - L_S2
    def csum_grp(self, tag, tiles, first):
        T = self.T; rd, mm = [], []
        for i, (ad, off, stp, tl) in enumerate(tiles):
            for eh in range(2):
                rd.append(T(f"ds_read_b64_tr_b16 {vr(vCSF[i]+2*eh,2)}, v{ad} offset:{off + eh*stp}", tag))
        mm.append(self.W(lg=tag))
        for eh in range(2):
            for i, (ad, off, stp, tl) in enumerate(tiles):
                c = "0" if (first and eh == 0) else vr(vCSA[tl], 4)
                mm.append(T(f"v_mfma_f32_4x4x4_16b_bf16 {vr(vCSA[tl],4)}, {vr(vONES,2)}, {vr(vCSF[i]+2*eh,2)}, {c}"))
        return rd, mm
    def csum_publish(self, nt):
        th = [self.T(f"s_lshl_b32 s60, s{sW}, 2\nv_add_u32 v{vTMP}, s60, v{vL16}")]
        th += [self.T(f"ds_write_b32 v{vTMP}, v{vCSA[dt]} offset:{L_CS + dt*1024}", "csw") for dt in range(nt)]
        return th
    def cs_tiles(self, ty):
        return [f"s_mov_b32 s60, s{sW}", "s_mov_b32 s60, 4"] if ty == 0 else [f"s_and_b32 s60, s{sW}, 1"] * 2
    def csum_send(self, ty):
        T = self.T; F = [vCSF[0], vCSF[1]]; rd, th = [], []
        for k, code in enumerate(self.cs_tiles(ty)):
            rd.append(T(f"{code}\ns_lshl_b32 s60, s60, 10\nv_add_u32 v{vTMP+1+k}, s60, v{vL16}\nds_read_b128 {vr(F[k],4)}, v{vTMP+1+k} offset:{L_CS}", "csr"))
        a, b = F
        th = [self.W(lg="csr")] + self.TL(f"""v_add_f32 v{a}, v{a}, v{a+1}
v_add_f32 v{a+2}, v{a+2}, v{a+3}
v_add_f32 v{b}, v{b}, v{b+1}
v_add_f32 v{b+2}, v{b+2}, v{b+3}
v_add_f32 v{a}, v{a}, v{a+2}
v_mov_b32 v{a+1}, s{sT}
v_add_f32 v{a+2}, v{b}, v{b+2}
v_mov_b32 v{a+3}, s{sT}
v_lshrrev_b32 v{vTMP+1}, 1, v{vTMP+1}
v_lshrrev_b32 v{vTMP+2}, 1, v{vTMP+2}""")
        st = [T(f"s_and_b32 s60, s{sRB}, 3\ns_lshl_b32 s60, s60, 10\ns_add_u32 s60, s60, s{sCSG}\nbuffer_store_dwordx4 {vr(a,4)}, v{vL16}, {srd(sWS)}, s60 offen sc1", "css")]
        return rd, th, st
    CL = TMP + 4
    def csum_load(self, ty):
        return [self.T(f"buffer_load_dwordx4 {vr(self.CL+4*i,4)}, v{vL16}, {srd(sWS)}, s{sCSG} offen offset:{1024*i} sc1", "csl") for i in range(4)]
    def csum_check(self, ty):
        e = self.e
        e.wait(vm="csl")
        tags = [self.CL + 1 + 2*j for j in range(8)]
        t = f"v_xor_b32 v{vTMP+3}, s{sT}, v{tags[0]}\nv_xor_b32 v{vTMP+5}, s{sT}, v{tags[1]}\n"
        for k in range(2, 8, 2): t += f"v_bitop3_b32 v{vTMP+3}, v{tags[k]}, s{sT}, v{vTMP+3} bitop3:0xbe\nv_bitop3_b32 v{vTMP+5}, v{tags[k+1]}, s{sT}, v{vTMP+5} bitop3:0xbe\n"
        self.spin(t + f"v_or_b32 v{vTMP+3}, v{vTMP+3}, v{vTMP+5}\nv_cmp_ne_u32 vcc, 0, v{vTMP+3}", [th.txt for th in self.csum_load(ty)], 53)
    def csum_build(self, ty):
        C = self.CL; seq = []
        for k in range(2):
            F = C + 2*k
            seq.append([f"v_add_f32 v{F}, v{F}, v{F+4}", f"v_add_f32 v{F+8}, v{F+8}, v{F+12}", f"v_add_f32 v{F}, v{F}, v{F+8}",
                        f"v_cvt_pk_bf16_f32 v{F+5}, v{F}, v{F}", f"v_and_b32 v{F+1}, 0xffff0000, v{F+5}", f"v_sub_f32 v{F+8}, v{F}, v{F+1}", f"v_cvt_pk_bf16_f32 v{F+4}, v{F+1}, v{F+8}"])
        th = [self.T(seq[k][j]) for j in range(7) for k in range(2)]
        return th + [self.T(f"ds_write_b64 v{vTMP+1+k}, {vr(C+2*k+4,2)} offset:{L_CS}", "cxw") for k in range(2)]
    def csum_get(self, nt):
        return [self.T(f"v_lshlrev_b32 v{vTMP+3}, 3, v{vL}")] + [self.T(f"ds_read_b64 {vr(vAX[dt],2)}, v{vTMP+3} offset:{L_CS + dt*512}", "cxr") for dt in range(nt)]
    def csum_fetch(self, nt):
        return [self.T(f"ds_read_b128 {vr(vCSA[dt],4)}, v{vL16} offset:{L_CS + dt*1024}", "csr") for dt in range(nt)]
    def csum_prep(self, nt):
        th = [self.W(lg="csr")]
        seq = []
        for dt in range(nt):
            F, A = vCSA[dt], vAX[dt]
            seq.append([f"v_add_f32 v{F}, v{F}, v{F+1}", f"v_add_f32 v{F+2}, v{F+2}, v{F+3}", f"v_add_f32 v{F}, v{F}, v{F+2}",
                        f"v_cvt_pk_bf16_f32 v{A+1}, v{F}, v{F}", f"v_and_b32 v{F+1}, 0xffff0000, v{A+1}", f"v_sub_f32 v{F+2}, v{F}, v{F+1}", f"v_cvt_pk_bf16_f32 v{A}, v{F+1}, v{F+2}"])
        for k in range(7):
            for dt in range(nt): th.append(self.T(seq[dt][k]))
        return th
    def csum_apply(self, nt):
        return [self.T(f"v_mfma_f32_32x32x16_bf16 {vr(ACCA+16*dt,16)}, {vr(vAX[dt],4)}, {vr(vBX,4)}, {vr(ACCA+16*dt,16)}") for dt in range(nt)]

    def stats_fetch(self):
        e = self.e
        e(f"s_lshr_b32 s63, s{sXROW}, 1\ns_add_u32 s63, s63, {WS_STATS}\nv_and_b32 v{vTMP+4}, 31, v{vL}\nv_lshlrev_b32 v{vTMP+4}, 4, v{vTMP+4}")
        e(f"buffer_load_dwordx4 {vr(TMP,4)}, v{vTMP+4}, {srd(sWS)}, s63 offen sc1", "stl")
    def stats_use(self, ty):
        e = self.e
        e.wait(vm="stl")
        self.spin(f"v_cmp_ne_u32 vcc, s{sT}, v{TMP+1}\nv_cmp_ne_u32 s[54:55], s{sT}, v{TMP+3}\ns_or_b64 vcc, vcc, s[54:55]",
                  [f"buffer_load_dwordx4 {vr(TMP,4)}, v{vTMP+4}, {srd(sWS)}, s63 offen sc1"], 57)
        m, r = TMP, TMP + 2
        e(f"v_mul_f32 v{vNC1}, {fhex(-LOG2E)}, v{r}\nv_rcp_f32 v{vRINV}, v{r}")
        e(f"v_cvt_pk_bf16_f32 v{vBX}, -v{m}, -v{m}\nv_and_b32 v{TMP+1}, 0xffff0000, v{vBX}\nv_sub_f32 v{TMP+1}, -v{m}, v{TMP+1}")
        e(f"v_mov_b32 v{vBX+2}, 0\nv_mov_b32 v{vBX+3}, 0\nv_cvt_pk_bf16_f32 v{vBX+1}, v{TMP+1}, v{vBX+2}")
        if ty == 1:
            e(f"s_lshl_b32 s60, s{sW}, 7\nv_lshrrev_b32 v{vTMP+4}, 2, v{vTMP+4}\nv_add_u32 v{vTMP+4}, s60, v{vTMP+4}")
            e(f"ds_write_b32 v{vTMP+4}, v{r} offset:{L_RB}", "rbw")

    def silu(self, tiles):
        T = self.T; th = self.TL(f"v_mov_b32 v{vTMP}, v{vNC1}\nv_mov_b32 v{vTMP+1}, v{vNC1}\nv_mov_b32 v{vTMP+2}, v{vRINV}\nv_mov_b32 v{vTMP+3}, v{vRINV}")
        for acc, hb, off in tiles:
            for f in range(2):
                P = TMP + 8 + 4 * f
                for q in range(2):
                    a = acc + 8*f + 4*q
                    u = TMP + 4 * q
                    th += [T(f"v_pk_mul_f32 {vr(u+k,2)}, {vr(a+k,2)}, {vr(vTMP,2)}") for k in (0, 2)]
                    th += [T(f"v_exp_f32 v{u+k}, v{u+k}") for k in range(4)]
                    th += [T(f"v_pk_fma_f32 {vr(u+k,2)}, {vr(u+k,2)}, {vr(vTMP+2,2)}, {vr(vTMP+2,2)}") for k in (0, 2)]
                    th += [T(f"v_rcp_f32 v{u+k}, v{u+k}") for k in range(4)]
                    th += [T(f"v_pk_mul_f32 {vr(u+k,2)}, {vr(u+k,2)}, {vr(a+k,2)}") for k in (0, 2)]
                    th += [T(f"v_cvt_pk_bf16_f32 v{P+2*q+k}, v{u+2*k}, v{u+2*k+1}") for k in range(2)]
                th.append(T(f"buffer_store_dwordx4 {vr(P,4)}, v{vL16}, {srd(sWS)}, s{hb} offen offset:{off + f*1024} {self.o.get('hst', 'sc1')}", "h2")); th[-1].st = True
        return th

    def pipeline2(self, units, LA, bounds, streams, mem, pinned, extra, early, P, between, early2):
        sel = lambda L, lo, hi: [(th, a - lo, b - lo) for th, a, b in L if lo <= a < hi]
        for L in (streams, mem, extra):
            for th, a, b in L: assert (a < P) == (b < P), (a, b)
        sh = lambda d, lo, hi: {k - lo: v for k, v in d.items() if lo <= k < hi}
        N = len(units)
        self.pipeline(units[:P], LA, sh(bounds, 0, P), sel(streams, 0, P), sel(mem, 0, P), sh(pinned, 0, P), sel(extra, 0, P), early)
        run(between)
        u2 = [(u[0], u[1]) for u in units[P:]]
        self.pipeline(u2, LA, sh(bounds, P, N + LA), sel(streams, P, N), sel(mem, P, N), sh(pinned, P, N), sel(extra, P, N), early2, off=P)
    def pipeline(self, units, LA, bounds, streams, mem, pinned, extra, early, off=0):
        e = self.e; N = len(units)
        fills = [[] for _ in range(N)]; mj = [[] for _ in range(N)]; rd = {g: [] for g in range(-LA, N)}
        for th, u0, u1 in mem:
            for i, t in enumerate(th): mj[u0 + i * (u1 - u0 + 1) // len(th)].append(t)
        dat = sorted(b for b in bounds if bounds[b][0])
        w = lambda t: 2 if 'b128' in t.txt else 1
        items = []
        for m in range(N):
            lo = max(max([b for b in dat if b <= m], default=0) - LA, m - self.o['lamax'], units[m][2] if len(units[m]) > 2 else -LA)
            items += [[lo, m - self.o['lamin'], t] for t in units[m][0]]
        ex = [[u0, u1, t] for th, u0, u1 in extra for t in th]
        for g in range(-LA, N):
            room = (2 if mj[g] else 3) if g >= 0 else 4
            room -= self.o['vcap'] * sum(1 for th, u0, u1 in streams if u0 <= g <= u1 and len(th) > 3*(u1 - u0 + 1))
            for lst in (items, ex):
                while lst and lst[0][1] <= g:
                    t = lst.pop(0)[2]; rd[g].append(t); room -= w(t)
            for lst in (items, ex):
                while lst and lst[0][0] <= g and room >= w(lst[0][2]):
                    t = lst.pop(0)[2]; rd[g].append(t); room -= w(t)
        assert not items and not ex
        cap = [max(0.5, 6.0 - len(rd[u]) - 5*len(mj[u])) for u in range(N)]
        for th, u0, u1 in streams:
            for k, grp in zip(range(u0, u1 + 1), spread(th, cap[u0:u1 + 1])): fills[k] += grp
        def boundary(m):
            if m not in bounds: return
            tags, pre = bounds[m]
            if m + off in self.o.get('bst', {}).get(self.ty, ()): self.xs(f"b{self.ty}_{m+off}")
            lt = m + off in self.o.get('lst', {}).get(self.ty, ())
            if lt: self.light()
            if tags: e.wait(vm=tags)
            if lt: self.light()
            run(pre)
            e("s_barrier")
            if lt and self.nl < 4 and not self.o.get('l2'): self.light()
        for u in range(-LA, N):
            if u >= 0:
                e.wait(lg=f"r{u+off}")
                e(units[u][1])
            boundary(u + LA)
            if u >= 0: run(mj[u])
            run(rd[u])
            if u == -1: run(early)
            if u < 0: continue
            run(fills[u]); run(pinned.get(u, []))

    def x_read(self, u, k, dst):
        t, ks = k >> 2, k & 3; sl = self.XSLOT(t)
        if sl < 2: return [self.T(f"ds_read_b128 {ar(dst,4)}, v{vXR[ks]} offset:{sl*4096}", f"r{u}")]
        return [self.T(f"ds_read_b128 {ar(dst,4)}, v{vXR2[ks]}", f"r{u}")]
    def ffn_unit(self, u, k, ad, off, stp, tile, xreg, nb):
        fb = aFB + 4 * ((u + 2) % nb); acc = ACCA + 16*tile
        r = [self.T(f"ds_read_b64_tr_b16 {ar(fb+2*eh,2)}, v{ad} offset:{off + eh*stp}", f"r{u}") for eh in range(2)]
        return r, f"v_mfma_f32_32x32x16_bf16 {vr(acc,16)}, {ar(fb,4)}, {ar(xreg,4)}, {'0' if k == 0 else vr(acc,16)}"

    def z1_rl(self):
        T = self.T; th = []
        R = TMP + 16; t = [TMP + 32 + i for i in range(4)]
        th.append(self.W(lg="rbw"))
        th.append(T(f"s_lshl_b32 s60, s{sW}, 7\nv_lshrrev_b32 v{t[0]}, 5, v{vL}\nv_lshlrev_b32 v{t[0]}, 4, v{t[0]}\nv_add_u32 v{t[0]}, s60, v{t[0]}"))
        th += [T(f"ds_read_b128 {vr(R+4*j,4)}, v{t[0]} offset:{L_RB + j*32}", "rbr") for j in range(4)]
        th += self.TL(f"v_and_b32 v{t[1]}, 31, v{vL}\nv_or_b32 v{t[1]}, s{sBLK}, v{t[1]}\nv_mov_b32 v{t[2]}, {fhex(2.0**-19)}\nv_mov_b32 v{t[3]}, {fhex(2.0**-20)}")
        th.append(T(f"v_cmp_eq_u32 vcc, 0, v{t[1]}\nv_cndmask_b32 v{t[2]}, v{t[2]}, v{t[3]}, vcc"))
        th += self.TL(f"v_mov_b32 v{vTMP}, v{vSIG}\nv_mov_b32 v{vTMP+1}, v{vSIG}")
        th.append(self.W(lg="rbr"))
        th += [T(f"v_mul_f32 v{R+i}, v{R+i}, v{t[2]}") for i in range(16)]
        return th
    def z1_prep(self):
        T = self.T; th = []; R = TMP + 16
        for h in range(2):
            th += [T(f"v_pk_fma_f32 {vr(ACCD+16*h+i,2)}, {vr(ACCD+32+16*h+i,2)}, {vr(vTMP,2)}, {vr(ACCD+16*h+i,2)}") for i in range(0, 16, 2)]
            th += [T(f"v_pk_mul_f32 {vr(ACCD+16*h+i,2)}, {vr(ACCD+16*h+i,2)}, {vr(R+i,2)}") for i in range(0, 16, 2)]
        th += [T(f"v_cvt_pk_bf16_f32 v{ACCD+32+i}, v{ACCD+2*i}, v{ACCD+2*i+1}") for i in range(16)]
        return th
    def z1_mfma(self):
        PT = ACCD + 32; Zr, Zi = ACCD, ACCD + 16
        C = lambda j: ar(aG1+4*j, 4); S = lambda j: ar(aG1+8+4*j, 4); N = lambda j: ar(aG1+16+4*j, 4)
        Tr = lambda j: vr(PT+4*j, 4); Ti = lambda j: vr(PT+8+4*j, 4)
        seq = [(Zr, C(0), Tr(0)), (Zi, N(0), Tr(0)), (Zr, C(1), Tr(1)), (Zi, N(1), Tr(1)), (Zr, S(0), Ti(0)), (Zi, C(0), Ti(0)), (Zr, S(1), Ti(1)), (Zi, C(1), Ti(1))]
        return [self.T(f"v_mfma_f32_32x32x16_bf16 {vr(d,16)}, {a}, {b}, {'0' if i < 2 else vr(d,16)}") for i, (d, a, b) in enumerate(seq)]
    def z1_gather_write(self):
        T = self.T; th = []
        Zr, Zi, PT = ACCD, ACCD + 16, ACCD + 32
        t0, t1 = TMP + 32, TMP + 33
        th += self.TL(f"v_lshrrev_b32 v{t0}, 5, v{vL}\nv_and_b32 v{t1}, 31, v{vL}\nv_lshlrev_b32 v{t1}, 4, v{t1}\nv_lshl_add_u32 v{t0}, v{t0}, 11, v{t1}")
        th.append(T(f"s_lshl_b32 s60, s{sW}, 2\ns_add_u32 s60, s60, {L_FD}\nv_add_u32 v{t0}, s60, v{t0}"))
        for i in range(20):
            if i < 16: th.append(T(f"v_cvt_pk_bf16_f32 v{PT+i}, v{Zr+i}, v{Zi+i}"))
            if i >= 4: th.append(T(f"ds_write_b32 v{t0}, v{PT+i-4} offset:{(8*((i-4)>>2) + (i&3))*512}", "z1w"))
        return th
    def z1_gather_read(self):
        e = self.e
        e(f"v_lshlrev_b32 v{TMP+32}, 4, v0")
        for k in range(4):
            e(f"ds_read_b128 {vr(ACCD+4*k,4)}, v{TMP+32} offset:{L_FD + k*4096}", "z1r")
    def z1_store(self):
        e = self.e
        t0, t1 = TMP + 32, TMP + 33
        e(f"v_lshrrev_b32 v{t0}, 5, v0\nv_and_b32 v{t1}, 31, v0\nv_lshlrev_b32 v{t1}, 4, v{t1}\nv_lshl_add_u32 v{t0}, v{t0}, 13, v{t1}")
        e(f"s_lshl_b32 s60, s{sBLK}, 18\ns_lshl_b32 s54, s{sRB}, 9\ns_add_u32 s60, s60, s54\ns_add_u32 s60, s60, {WS_Z1}")
        e.wait(lg="z1r")
        for k in range(4):
            e(f"buffer_store_dwordx4 {vr(ACCD+4*k,4)}, v{t0}, {srd(sWS)}, s60 offen sc1", "z1s")
            if k < 3: e(f"s_add_u32 s60, s60, 65536")
    def flag_store(self, soff, tag):
        e = self.e
        e(f"v_mov_b32 v{vTMP+4}, 0\nv_mov_b32 v{vTMP+5}, s{sT}\ns_mov_b64 exec, 1")
        e(f"buffer_store_dword v{vTMP+5}, v{vTMP+4}, {srd(sWS)}, s{soff} offen sc1", tag)
        e(f"s_mov_b64 exec, -1")
    def z1_flag(self):
        e = self.e
        e.wait(vm="z1s")
        e(f"s_lshl_b32 s60, s{sBLK}, 10\ns_lshl_b32 s54, s{sW}, 8\ns_add_u32 s60, s60, s54\ns_lshl_b32 s54, s{sRB}, 4\ns_add_u32 s60, s60, s54\ns_add_u32 s60, s60, {WS_Z1F}")
        self.flag_store(60, "z1f")

    def g2_setup(self):
        T = self.T; t0, t1 = TMP + 12, TMP + 13
        if self.o['diag']:
            rd = [(0, 0), (1, 0)] + [(0, j) for j in range(1, 7)] + [(2, 0)] + [(1, j) for j in range(1, 7)] + [(3, 0)] + [(2, j) for j in range(1, 7)] + [(3, j) for j in range(1, 7)]
            R = sum(r << (2*n) for n, (r, d) in enumerate(rd))
            D = [sum(d << (4*(n - b)) for n, (r, d) in enumerate(rd) if b <= n < b + 16) for b in (0, 16)]
            t2 = TMP + 16
            head = f"""s_mov_b32 s50, {hex(R & 0xffffffff)}
s_mov_b32 s51, {hex(R >> 32)}
v_lshlrev_b32 v{t0}, 1, v{vL}
v_lshrrev_b64 v[{t2}:{t2+1}], v{t0}, s[50:51]
v_add_u32 v{t2}, s{sP}, v{t2}
v_and_b32 v{t2}, 3, v{t2}
v_mul_u32_u24 v{t2+4}, 7, v{t2}
v_and_b32 v{t0}, 15, v{vL}
v_lshlrev_b32 v{t0}, 2, v{t0}
s_mov_b32 s50, {hex(D[0] & 0xffffffff)}
s_mov_b32 s51, {hex(D[0] >> 32)}
v_lshrrev_b64 v[{t2}:{t2+1}], v{t0}, s[50:51]
s_mov_b32 s50, {hex(D[1] & 0xffffffff)}
s_mov_b32 s51, {hex(D[1] >> 32)}
v_lshrrev_b64 v[{t2+2}:{t2+3}], v{t0}, s[50:51]
v_cmp_le_u32 vcc, 16, v{vL}
v_cndmask_b32 v{t2}, v{t2}, v{t2+2}, vcc
v_and_b32 v{t2}, 7, v{t2}
s_and_b32 s50, s2, 7
s_add_u32 s50, s50, s{sQ}
v_add_u32 v{t0}, s50, v{t2}
v_subrev_u32 v{t1}, 14, v{t0}
v_min_u32 v{t0}, v{t0}, v{t1}
v_subrev_u32 v{t1}, 7, v{t0}
v_min_u32 v{t0}, v{t0}, v{t1}
v_add_u32 v{t0}, v{t0}, v{t2+4}
"""
        else: head = f"""v_add_u32 v{t0}, s{sROT}, v{vL}
v_subrev_u32 v{t1}, 28, v{t0}
v_min_u32 v{t0}, v{t0}, v{t1}
v_subrev_u32 v{t1}, 28, v{t0}
v_min_u32 v{t0}, v{t0}, v{t1}
"""
        th = self.TL(head + f"""s_mul_i32 s50, s{sW}, 20
s_lshl_b32 s51, s{sW}, 3
s_add_u32 s51, s51, 60
v_mov_b32 v{t1}, s50
v_cmp_le_u32 vcc, 20, v{t0}
v_mov_b32 v{t1+1}, s51
v_cndmask_b32 v{t1}, v{t1}, v{t1+1}, vcc
v_add_lshl_u32 v{t0}, v{t0}, v{t1}, 10""")
        th += [T(f"v_readlane_b32 s{sKS+n}, v{t0}, {n}") for n in range(28)]
        return th
    def w2_addr_setup(self):
        t0, t1 = TMP + 36, TMP + 37
        return self.TL(f"""v_lshrrev_b32 v{t0}, 3, v{vL}
v_and_b32 v{t1}, 7, v{vL}
v_lshlrev_b32 v{t1}, 4, v{t1}
v_lshl_add_u32 v{t0}, v{t0}, 10, v{t1}
v_and_b32 v{t1}, 16, v{vL}
v_lshlrev_b32 v{t1}, 2, v{t1}
v_xor_b32 v{vW2D[0]}, v{t0}, v{t1}
v_add_u32 v{vW2D[1]}, {8192-1024}, v{vW2D[0]}""")
    def w2_lds(self, n):
        if n < 8: return (16384, L_S2 + n * 2048)
        if n < 12: return (8192, L_XS + (n - 8) * 2048)
        g = n - 12
        if g < 4 and self.bplan(): return (12288, L_S1 + [2, 3, 0, 1][g] * 8192)
        if g < 4: return (8192, L_XS + g * 2048)
        if g < 10: return (12288, L_S1 + (g - 4) * 8192)
        return (12288, L_S1 + (g - 10) * 8192)
    def bplan(self): return self.o['mixq'] and self.ty == 1
    def pos(self, n):
        if self.bplan() and 12 <= n < 22: return 12 + [0, 1, 2, 3, 6, 7, 4, 5, 8, 9][n - 12]
        return 12 + [3, 4, 5, 6, 7, 8, 9, 0, 1, 2][n - 12] if (self.o['diag'] and 12 <= n < 22) else n
    def dma_w2(self, n):
        mul, base = self.w2_lds(n)
        sb = {16384: 56, 8192: sXSW, 12288: sW2K}[mul]
        return [self.T(f"s_add_u32 m0, s{sb}, {base}\ns_lshl4_add_u32 s55, s{sKS+self.pos(n)}, s{sQB}\nbuffer_load_dwordx4 v{vW2D[0]}, {srd(sW2)}, s55 offen lds", f"w2_{n}"),
                self.T(f"s_add_u32 m0, s{sb}, {base}\ns_lshl4_add_u32 s55, s{sKS+self.pos(n)}, s{sQB}\nbuffer_load_dwordx4 v{vW2D[1]}, {srd(sW2)}, s55 offen offset:1024 lds", f"w2_{n}")]
    vU = {8192: [9, 10], 12288: [11, 12], 16384: [13, 14]}
    def w2_tr_setup(self, regs=(8192, 12288, 16384), tm=vTMP + 3):
        t0, t1, t3 = tm, tm + 1, tm + 2
        th = self.TL(f"""v_lshrrev_b32 v{t1}, 5, v{vL}
v_bfe_u32 v{t0}, v{vL}, 2, 2
v_lshl_add_u32 v{t0}, v{t1}, 2, v{t0}
v_and_b32 v{t3}, 3, v{vL}
v_lshlrev_b32 v{t3}, 3, v{t3}
v_and_b32 v{t1}, 16, v{vL}
v_lshl_add_u32 v{t3}, v{t1}, 1, v{t3}
v_lshl_add_u32 v{t3}, v{t0}, 7, v{t3}
v_and_b32 v{t1}, 8, v{vL}
v_lshl_add_u32 v{t3}, v{t1}, 3, v{t3}""")
        for mul, sb, base in ((8192, sXSW, L_XS), (12288, sW2K, L_S1), (16384, 56, L_S2)):
            if mul not in regs: continue
            a = self.vU[mul]
            th += self.TL(f"s_add_u32 s97, s{sb}, {base}\nv_add_u32 v{a[0]}, s97, v{t3}\nv_xor_b32 v{a[1]}, 64, v{a[0]}")
        return th
    def w2_tr(self, n, dst, tag):
        mul, base = self.w2_lds(n)
        off = base - {8192: L_XS, 12288: L_S1, 16384: L_S2}[mul]
        return [self.T(f"ds_read_b64_tr_b16 {ar(dst+4*dt+2*eh,2)}, v{self.vU[mul][dt]} offset:{off+eh*1024}", tag) for dt in range(2) for eh in range(2)]

    def w_base(self, ty, d):
        if ty == 1: return f"s_add_u32 s{d}, s56, {L_S2 + 12288}"
        return f"s_and_b32 s{d}, s{sW}, 1\ns_lshl_b32 s{d}, s{d}, 12\ns_lshr_b32 s54, s{sW}, 1\ns_lshl_b32 s54, s54, 14\ns_add_u32 s{d}, s{d}, s54\ns_add_u32 s{d}, s{d}, {L_S2 + 2*16384 + 8192}"
    def w_dma(self, ty):
        T = self.T
        t0, t1, t2 = TMP + 38, TMP + 39, TMP + 35
        nb = f"v_subrev_u32 v{t2}, 64, v{t1}\nv_cmp_eq_u32 vcc, 6, v{t0}\nv_cndmask_b32 v{t1}, v{t1}, v{t2}, vcc\n" if ty == 1 else ""
        th = [T(f"""v_and_b32 v{t0}, 7, v{vL}
v_cmp_gt_u32 vcc, 5, v{t0}
v_lshlrev_b32 v{t1}, 4, v{t0}
v_cndmask_b32 v{t1}, 0, v{t1}, vcc
s_lshl_b32 s59, s{sCG}, 6
v_add_u32 v{t1}, s59, v{t1}
s_cmp_eq_u32 s{sCG}, 0
s_cselect_b32 s59, 5, 8
v_mov_b32 v{t2}, 0x200
v_cmp_eq_u32 vcc, s59, v{t0}
v_cndmask_b32 v{t1}, v{t1}, v{t2}, vcc
{nb}v_lshrrev_b32 v{t0}, 3, v{vL}
v_mul_u32_u24 v{t0}, 16448, v{t0}
v_add_u32 v{vSD2}, v{t0}, v{t1}
s_lshl_b32 s58, s{sW}, 9
s_add_u32 s58, s58, s{sK1}
s_mul_i32 s58, s58, 514
s_and_b32 s58, s58, -16
{self.w_base(ty, 59)}""")]
        nt = " nt" if self.o['ntw'] else ""
        th.append(T(f"s_mov_b32 m0, s59\ns_nop 0\nbuffer_load_dwordx4 v{vSD2}, {srd(sWR)}, s58 offen{nt} lds", "wl"))
        th.append(T(f"s_add_u32 m0, s59, 2048\ns_nop 0\nbuffer_load_dwordx4 v{vSD2}, {srd(sWI)}, s58 offen{nt} lds", "wl"))
        th.append(T(f"s_add_u32 m0, s59, 1024\ns_add_u32 s58, s58, {8*16448}\nbuffer_load_dwordx4 v{vSD2}, {srd(sWR)}, s58 offen{nt} lds", "wl"))
        th.append(T(f"s_add_u32 m0, s59, 3072\ns_nop 0\nbuffer_load_dwordx4 v{vSD2}, {srd(sWI)}, s58 offen{nt} lds", "wl"))
        return th
    def w_read_prep(self):
        t0, t1 = TMP + 38, TMP + 39
        th = [self.T(f"""v_and_b32 v{t0}, 31, v{vL}
v_or_b32 v{t1}, s{sCG}, v{t0}
v_cmp_eq_u32 vcc, 0, v{t1}
v_lshlrev_b32 v{t0}, 1, v{t0}
v_mov_b32 v{t1}, 80
v_cndmask_b32 v{t0}, v{t0}, v{t1}, vcc
v_lshrrev_b32 v{t1}, 5, v{vL}
v_lshl_add_u32 v{t0}, v{t1}, 9, v{t0}
s_lshl_b32 s54, s{sK1}, 1
s_and_b32 s54, s54, 15
s_add_u32 s54, s54, s59
v_add_u32 v{self.vWRA}, s54, v{t0}""")]
        return th + [self.T(f"v_mov_b32 v{vW+i}, 0") for i in range(16)]
    def w_read(self):
        th = []
        for z in range(8):
            for a in range(2):
                th.append(self.T(f"ds_read_u16_d16_hi v{vW+2*z+a}, v{self.vWRA} offset:{(8*(z>>2) + (z&3))*128 + a*2048}", "wr"))
        return th
    def pf_setup(self):
        return self.TL(f"v_and_b32 v{vPF[1]}, 15, v{vL}\nv_lshlrev_b32 v{vPF[1]}, 10, v{vPF[1]}\nv_and_b32 v{vPF[2]}, 16, v{vL}\nv_lshlrev_b32 v{vPF[2]}, 3, v{vPF[2]}\nv_xor_b32 v{vPF[2]}, s{sQB}, v{vPF[2]}\nv_add_u32 v{vPF[1]}, v{vPF[1]}, v{vPF[2]}")
    def pf_w2(self, r):
        return [self.T(f"s_lshl_b32 s54, s{sKS + 12 + r}, 4\nbuffer_load_dword v{vPF[3]}, v{vPF[1]}, {srd(sW2)}, s54 offen", f"pf{r}")]

    def f1(self, ty):
        e = self.e; o = self.o; self.ty = ty; self.nl = 0; self.vWRA = 184 if ty == 0 else 116
        if ty == 0: run(self.dma_w1(ty, 0))
        if o['xlast']: run(self.dma_x(0))
        if ty == 1 and not o['xlast']: run(self.dma_x(1))
        if ty == 1 and o['tlbB']: self.tlb_warm()
        self.stamp(5)
        self.addr_setup()
        if ty == 1:
            run(self.gen_fd())
            if o['xlast']: run(self.gen_g1()[:o['g1pre']] + self.dma_x(1))
        else:
            a23 = self.gen_a2a3(); ka = int(len(a23) * o['a23pre'])
            run(self.g2_setup()); run(self.w2_addr_setup()); run(a23[:ka]); run(self.dma_w1(ty, 1)[:o['w11']])
        self.stamp(1)
        e.wait(vm="stat")
        self.stamp(8)
        self.stats()
        zero_ax = lambda nt: sum([self.TL(f"v_mov_b32 v{vAX[dt]+2}, 0\nv_mov_b32 v{vAX[dt]+3}, 0") for dt in range(nt)], [])
        wd = self.w_dma(ty)
        wrp = self.w_read_prep()
        if ty == 0 and o['presetA']: run(wd[:1] + wrp + zero_ax(5)); wd = wd[1:]; wrp = []
        if ty == 0: run(merge(a23[ka:], self.dma_w1(ty, 1)[o['w11']:], int(len(a23[ka:]) * o['w11at'])))
        self.stamp(2)
        if ty == 1: run(self.gen_g1() + self.g2_setup() + self.w2_addr_setup() + self.pf_setup())
        self.stamp(3)
        units, bounds, streams, mem, pinned, extra = [], {}, [], [], {}, []
        def pin(n, th): pinned.setdefault(n, []).extend(th)
        def csum(u0, u1, um, tag, tiles, first):
            rd, mm = self.csum_grp(tag, tiles, first)
            extra.append((rd, u0, u1)); pin(um, mm)
        own = lambda a, b: sum([self.dma_w2(12 + g) for g in range(a, b)], [])
        wrd = wrp + [self.W(vm='wl')]
        aXB = 192
        LA, NB = 4, 8
        share = o['share'][ty]
        vPA, vPD = TMP + 36, TMP + 37
        def zpoll():
            e(f"s_lshr_b32 s60, s{sK1}, 1\ns_and_b32 s60, s60, 3\ns_lshl_b32 s60, s60, 8\ns_lshl_b32 s54, s{sCG}, 10\ns_add_u32 s60, s60, s54\ns_add_u32 s63, s60, {WS_Z1F}")
            e(f"v_and_b32 v{vPA}, 15, v{vL}\nv_lshlrev_b32 v{vPA}, 4, v{vPA}")
            self.poll_issue(vPA, 63, vPD, "pz1")
        def zcheck():
            self.xs("z1 check")
            self.poll_check(vPA, 63, vPD, "pz1")
            self.xs("z1 seen")
            e(f"s_lshl_b32 s60, s{sCG}, 5\ns_add_u32 s60, s60, s{sK1}\ns_lshl_b32 s60, s60, 13\ns_add_u32 s60, s60, s{sW2K}\ns_add_u32 s60, s60, {WS_Z1}\ns_add_u32 m0, s{sW2K}, {L_ZB}")
            for i in range(2): e(f"buffer_load_dwordx4 v{vL16}, {srd(sWS)}, s60 offen offset:{i*1024} sc1 lds", "zb")
        if ty == 0:
            nt = 5
            for k in range(32):
                t, ks = k >> 2, k & 3
                for tl in range(5):
                    u = 5*k + tl
                    if tl < 4:
                        ad, off = self.pair_addr(0, t, tl >> 1)
                        r, mf = self.ffn_unit(u, k, ad[tl & 1], off + ks*2048, 512, tl, aXB + 4*(k % 3), NB)
                    else: r, mf = self.ffn_unit(u, k, vTS, SING[t % 4] - L_S2 + ks*1024, 256, 4, aXB + 4*(k % 3), NB)
                    if tl == 0: r = self.x_read(u, k, aXB + 4*(k % 3)) + r
                    units.append((r, mf))
            for t in range(8):
                b = 20*t
                bounds[b] = ([f"x{t}", f"w1_{t}"], [])
                u0 = max(0, b - LA + 1)
                tiles = []
                for pr in range(2):
                    ad, off = self.pair_addr(0, t, pr, True)
                    tiles += [(ad[i], off, 512, 2*pr + i) for i in range(2)]
                tiles.append((vCSS, SING[t % 4] - L_S2, 256, 4))
                if t < 2 or (t < 7 and not share): csum(u0, u0 + 12, u0 + 15, f"c{t}", tiles, t == 0)
                elif not share: csum(u0, u0 + 7, u0 + 10, f"c{t}", tiles, False)
            jobs = [self.dma_x(t + 2) + self.dma_w1(0, t + 2) for t in range(6)]
            x1 = self.dma_x(1); early = x1[:2]; mem.append((x1[2:], 0, 2)); mem.append((jobs[0], o['j0'], 16 + o['j0e']))
            for t in range(1, 6): mem.append((jobs[t], 20*t - LA + 1, 20*t + 14))
            pin(110, [self.stats_fetch]); pin(126, [lambda: self.stats_use(0)])
            C0, CB, C1, C2, C3 = 36, 60, o['csA'][0], o['csA'][1], o['csA'][2]
            if not o['presetA']: streams.append((zero_ax(5), 100, 110))
            a = o['wA']
            if o['presetA']: mem.append((wd[:2], a, a + 1)); mem.append((wd[2:], a + 20, a + 21))
            else: mem.append((wd[:1], a, a)); pin(a + 1, wd[1:3]); pin(a + 2, wd[3:])
            streams.append((wrd, 118, 128)); extra.append((self.w_read(), 129, 146))
            a, b, c = o['ownA']
            mem.append((own(0, 2), a, b - 1)); mem.append((own(4, 6), b, c - 1)); mem.append((own(2, 4) + own(6, o['nown']), c, 159))
            htiles = [(ACCA + 16*i, sHB2, 2048*i) for i in range(2)] + [(ACCA + 32 + 16*i, 53, 2048*i) for i in range(2)] + [(ACCA + 64, sHB1, 0)]
        else:
            nt = 2; P0 = 64
            for k in range(32):
                t, ks = k >> 2, k & 3
                for cs in range(2):
                    u = 2*k + cs
                    r = self.x_read(u, k, aX + 4*k) if cs == 0 else []
                    if not t & 1:
                        r.append(self.T(f"ds_read_b128 {ar(aFB+8*ks+4*cs,4)}, v{vFD} offset:{(t>>1)*8192+ks*2048+cs*1024}", f"r{u}"))
                    d = ACCD + 32*(t & 1) + 16*cs
                    units.append((r, f"v_mfma_f32_32x32x16_bf16 {vr(d,16)}, {ar(aX+4*k,4)}, {ar(aFB+8*ks+4*cs,4)}, {'0' if k in (0, 4) else vr(d,16)}", u - 6))
            for t in range(8): bounds[8*t] = ([f"x{t}"], [])
            jobs = [self.dma_x(t + 2) for t in range(6)]
            early = jobs[0][:1]; mem.append((jobs[0][1:], 0, 4))
            for t in range(1, 6): mem.append((jobs[t], 8*t - LA + 1, 8*t + 4))
            mem.append(((self.dma_w1(1, 0) + self.dma_w1(1, 1) if o['w1b'] else []) + wd, 45, 54)); mem.append((self.dma_w1(1, 2) + self.dma_w1(1, 3), 55, 62)); mem.append((self.dma_w1(1, 4) + self.dma_w1(1, 5), 64, 71))
            if o['a23d']: streams.append((self.gen_a2a3(), o['a23d'][0], o['a23d'][1]))
            pin(o['stB'][0], [self.stats_fetch]); pin(o['stB'][1], [lambda: self.stats_use(1)])
            streams.append((zero_ax(2), P0 + 12, P0 + 20))
            P = 64
            for k in range(32):
                t, ks = k >> 2, k & 3
                ad, off = self.pair_addr(1, t, 0)
                for tl in range(2): units.append(self.ffn_unit(P + 2*k + tl, k, ad[tl], off + ks*2048, 512, tl, aX + 4*k, NB) + (P + 2*k + tl - (4 if k < 4 else 6),))
            for t in range(8):
                b = P + 8*t
                bounds[b] = ([f"w1_{t}"], [])
                ad, off = self.pair_addr(1, t, 0, True)
                if t < 2 or not share: csum(max(P, b - LA + 1), max(P + 1, b - LA + 2), b + (3 if t == 0 else (1 if t < 7 else 0)), f"c{t}", [(ad[i], off, 512, i) for i in range(2)], t == 0)
                if 2 <= t < 4: mem.append((self.dma_w1(1, t + 4), b - 1, b + 2))
            streams.append((self.z1_rl(), o['stB'][1] + 1, 62))
            gb = P + 8 * o['z1g']
            streams.append((self.z1_gather_write(), P, gb - LA - 1))
            bounds[gb] = (bounds[gb][0], [self.W(lg="z1w")])
            pin(gb - LA, [self.z1_gather_read]); pin(gb - LA + 2, [self.z1_store])
            if o['warm2']:
                t0 = TMP + 36
                mem.append(([self.T(f"v_min_u32 v{t0}, 27, v{vL}\nv_lshlrev_b32 v{t0}, 7, v{t0}\ns_lshr_b32 s54, s2, 4\ns_lshl_b32 s54, s54, 3\ns_and_b32 s60, s2, 7\ns_add_u32 s54, s54, s60\ns_lshl_b32 s54, s54, 2\ns_add_u32 s54, s54, s{sW}\ns_mul_i32 s54, s54, 3584\nbuffer_load_dword v{t0+1}, v{t0}, {srd(sW2)}, s54 offen", "warm")], o['warm2'], o['warm2']))
            for r, u in enumerate(o['pfat'] or []): mem.append((self.pf_w2(r), u, u))
            streams.append((wrd, P + 18, P + 26)); extra.append((self.w_read(), P + 27, P + 40))
            if o['mixq']:
                b = [P + x for x in o['bw2']]
                mem.append((sum([self.dma_w2(n) for n in range(8, 12)], []), b[0], b[1] - 1))
                mem.append((own(0, 2), b[1], b[2] - 1)); mem.append((own(2, 4), b[2], b[3] - 1))
                streams.append((self.w2_tr_setup((12288,), 117), P + 22, P + 30))
                pin(b[3], self.greads(0)[:5] + self.greads(1)[:5]); pin(b[3] + 2, [self.W(lg="g1")]); mem.append((own(6, 8), b[3] + 3, b[4] - 1))
                pin(b[4], self.greads(2)[:5] + self.greads(3)[:5]); pin(b[4] + 2, [self.W(lg="g3")]); mem.append((own(4, 6), b[4] + 3, P + 53))
                mem.append((own(8, 10), P + 54, P + 62))
            elif o['allB']:
                mem.append((own(0, 4) + own(6, 8) + own(4, 6), P + o['ownB'], P + 53)); mem.append((own(8, 10), P + 54, P + 62))
            else: mem.append((own(0, o['nown']), P + o['ownB'], P + 63))
            C0, CB, C1, C2, C3 = P + 11, P + 16, P + o['csB'][0], P + o['csB'][1], P + o['csB'][2]
            pin(P + o['z1f'], [self.z1_flag])
            htiles = [(ACCA, sHB2, 0), (ACCA + 16, sHB2, 2048)]
        if share:
            pin(C0, self.csum_publish(nt))
            bounds[CB] = (bounds[CB][0], bounds[CB][1] + [self.W(lg="csw")])
            rd, th, st = self.csum_send(ty)
            pin(CB - LA, rd); streams.append((th, CB - LA + 2, CB + 1)); mem.append((st, CB + 2, CB + 2))
            mem.append((self.csum_load(ty), C1, C1 + 3))
            pin(C2, [lambda: self.csum_check(ty)])
            streams.append((self.csum_build(ty), C2 + 1, C3 - 1))
            bounds[C3 + LA] = ([], [self.W(lg="cxw")])
            pin(C3, self.csum_get(nt))
            for i, m in enumerate(self.csum_apply(nt)): pin(C3 + 3 + i, ([self.W(lg="cxr")] if i == 0 else []) + [m])
            assert C3 + 3 + nt <= len(units)
        else:
            Y = 148 if ty == 0 else P + 57
            pin(Y, self.csum_publish(nt))
            bounds[Y + 2 + LA] = ([], [self.W(lg="csw")])
            pin(Y + 2, self.csum_fetch(nt))
            streams.append((self.csum_prep(nt), Y + 3, len(units) - 2))
            pin(len(units) - 1, self.csum_apply(nt))
        if ty == 0: self.pipeline(units, LA, bounds, streams, mem, pinned, extra, early)
        else:
            zm = self.z1_mfma()
            self.pipeline2(units, LA, bounds, streams, mem, pinned, extra, early, P, self.z1_prep() + zm[:4], zm[4:])
        self.light_dump()
        self.stamp(6)
        e("s_barrier")
        self.xs("E bar")
        e(f"s_add_u32 s53, s{sHB2}, 4096")
        side = [] if (self.bplan() or (ty == 1 and o['allB'])) else own(o['nown'], 10)
        for n in range(o['epl'][ty]): side += self.dma_w2(n)
        sil = self.silu(htiles)
        if ty == 1 and not o['a23d']: sil += self.gen_a2a3()
        sil = merge(sil, side, int(len(sil) * o['epfrom']))
        sil += self.w2_tr_setup()
        if o.get('silst'):
            for i in (3, 2, 1): sil.insert(len(sil)*i//4, lambda i=i: self.xs(f'sil{i}'))
        k1, k2 = [int(len(sil) * f) for f in o['zpoll'][ty]]
        k3 = int(len(sil) * o['hfb']) if ty == 1 else len(sil)
        if ty == 1 and o['hfb']:
            assert k3 >= k2
            run(sil[:k1]); zpoll(); run(sil[k1:k2]); zcheck(); run(sil[k2:k3]); self.hflag(); run(sil[k3:])
        else:
            run(sil[:k1]); zpoll(); run(sil[k1:k2]); zcheck(); run(sil[k2:])
    def hflag(self):
        e = self.e
        e(f"s_lshl_b32 s50, s{sRB}, 1\ns_lshr_b32 s51, s{sW}, 1\ns_add_u32 s50, s50, s51\ns_lshl_b32 s50, s50, 2\ns_lshr_b32 s51, s{sBLK}, 1\ns_add_u32 s50, s50, s51\ns_lshl_b32 s50, s50, 3")
        e(f"s_lshl_b32 s51, s{sTY}, 2\ns_add_u32 s50, s50, s51\ns_and_b32 s51, s{sBLK}, 1\ns_lshl_b32 s51, s51, 1\ns_add_u32 s50, s50, s51\ns_and_b32 s51, s{sW}, 1\ns_add_u32 s50, s50, s51")
        e(f"s_lshl_b32 s50, s50, 4\ns_add_u32 s50, s50, {WS_HF}")
        self.xs("pre h2 wait"); e.wait(vm="h2"); self.xs("h2 done"); self.flag_store(50, "hf")
    def greads(self, g):
        return [self.W(vm=f"w2_{12+g}")] + self.w2_tr(12 + g, aX + 8*(self.pos(12 + g) - 12), f"g{g}") + ([self.W(lg=f"g{g-2}")] if g >= 2 else [])
    vPA, vPD = 6, 7

    def spin(self, test, loads, lane):
        e = self.e
        again, back = e.label("again"), e.label("back")
        if self.stamps: e(f"s_mov_b32 s{sPOLL}, 0")
        e(test)
        e(f"s_cbranch_vccnz {again} ; soft")
        e(f"{back}: ; soft")
        if self.stamps: e(f"v_writelane_b32 v{vSTAMP}, s{sPOLL}, {lane}")
        loop = e.label("loop")
        e.cold += [f"{again}:", f"    s_mov_b32 s{sPOLL}, 0", f"{loop}:"] + ["    " + l for l in loads] + ["    s_waitcnt vmcnt(0)"]
        e.cold += ["    " + l for l in test.split("\n")]
        e.cold += [f"    s_add_u32 s{sPOLL}, s{sPOLL}, 1", f"    s_cbranch_vccz {back}", f"    s_cmp_gt_u32 s{sPOLL}, 20000", f"    s_cbranch_scc0 {loop}", f"    s_branch {back}"]
    def poll_issue(self, addr_v, soff, dst, tag):
        self.e(f"buffer_load_dword v{dst}, v{addr_v}, {srd(sWS)}, s{soff} offen sc1", tag)
    def poll_check(self, addr_v, soff, dst, tag):
        e = self.e
        e.wait(vm=tag)
        self.spin(f"v_cmp_ne_u32 vcc, s{sT}, v{dst}", [f"buffer_load_dword v{dst}, v{addr_v}, {srd(sWS)}, s{soff} offen sc1"], {'pz1': 54, 'phf': 55, 'pz3': 56}[tag])

    IFD, S4R, S4I = 128, 192, 208
    def gen_s4(self):
        T = self.T; th = []
        n1, inc, ang, sg = 32, 33, 34, 35
        regs = [(36, 37), (38, 39)]
        th += self.TL(f"""v_and_b32 v{n1}, 1, v{vL}
s_mov_b32 s60, 0x80008000
v_mul_lo_u32 v{sg}, v{n1}, s60
v_and_b32 v{n1}, 31, v{vL}
v_cvt_f32_u32 v{n1}, v{n1}
v_mul_f32 v{inc}, {fhex(1/32)}, v{n1}
v_lshrrev_b32 v{n1}, 5, v{vL}
v_lshlrev_b32 v{n1}, 2, v{n1}
v_cvt_f32_u32 v{n1}, v{n1}
v_mul_f32 v{ang}, v{n1}, v{inc}""")
        def use(g, cs):
            c, s_ = cs[0]
            return [T(f"v_cvt_pk_bf16_f32 v{self.S4R+g}, v{c}, -v{s_}"), T(f"v_cvt_pk_bf16_f32 v{self.S4I+g}, v{s_}, v{c}"),
                    T(f"v_xor_b32 v{self.S4R+8+g}, v{self.S4R+g}, v{sg}"), T(f"v_xor_b32 v{self.S4I+8+g}, v{self.S4I+g}, v{sg}")]
        th += self.trig(8, ang, inc, lambda i: 1 if (i & 3) < 3 else 5, regs, use)
        return th
    def gen_ifd(self, dt):
        T = self.T; th = []
        d, inc, ang, t0 = 40, 41, 42, 43
        Z = [104, 106, 108, 110]; RHO, TM, SP = 112, 114, 122
        th.append(T(f"""v_and_b32 v{d}, 31, v{vL}
s_lshl_b32 s60, s{sQ}, 6
s_add_u32 s60, s60, {32*dt}
v_add_u32 v{d}, s60, v{d}
v_lshrrev_b32 v{t0}, 5, v{vL}
v_lshlrev_b32 v{t0}, 1, v{t0}
s_lshl_b32 s60, s{sW}, 6
v_add_u32 v{t0}, s60, v{t0}
v_cmp_eq_u32 s[96:97], 0, v{t0}
v_mul_u32_u24 v{t0}, v{t0}, v{d}
v_and_b32 v{t0}, 511, v{t0}
v_cvt_f32_u32 v{ang}, v{t0}
v_mul_f32 v{ang}, {fhex(1/512)}, v{ang}
v_cvt_f32_u32 v{inc}, v{d}
v_and_b32 v{t0}, 1, v{d}
v_lshlrev_b32 v{t0}, 15, v{t0}
v_xor_b32 v{SP}, 0x3f80, v{t0}
v_mul_f32 v{t0}, {fhex(1/64)}, v{inc}
v_mul_f32 v{inc}, {fhex(1/512)}, v{inc}
v_cos_f32 v{RHO}, v{t0}
v_sin_f32 v{RHO+1}, v{t0}"""))
        for q in range(4):
            th += [T(f"v_cos_f32 v{Z[q]}, v{ang}"), T(f"v_sin_f32 v{Z[q]+1}, v{ang}")]
            if q < 3: th.append(T(f"v_add_f32 v{ang}, v{ang}, v{inc}") if not q & 1 else T(f"v_fmac_f32 v{ang}, {fhex(3.0)}, v{inc}"))
        for g in range(8):
            r = self.rot(Z, RHO, TM) if g < 7 else []
            cv = [T(f"v_cvt_pk_bf16_f32 v{self.IFD + (g*2+dt)*4 + q}, v{Z[q]}, -v{Z[q]+1}") for q in range(4)]
            th += cv + r
            if g == 0: th.append(T(f"v_cndmask_b32 v{self.IFD + dt*4}, v{self.IFD + dt*4}, v{SP}, s[96:97]"))
        return th

    def post(self):
        e = self.e; T = self.T; o = self.o
        vPA, vPD = self.vPA, self.vPD
        self.stamp(7)
        q = sum([self.dma_w2(n) for n in range(o['epl'][self.ty], 8)], [])
        def dma(k):
            nonlocal q
            r = q[:k]; q = q[k:]; return r
        gr = lambda g: self.greads(g)[:5]
        ifd = self.gen_ifd(0) + self.gen_ifd(1)
        def gen(frac):
            nonlocal ifd
            k = int(202 * frac); r = ifd[:k]; ifd = ifd[k:]; return r
        gf = o['gf']
        run(merge(gen(gf[0]), dma(o['pre1'])))
        if o['hfat'] == -1 and not (self.ty == 1 and o['hfb']): self.hflag()
        e.wait(vm="zb"); self.xs("zb landed"); e("s_barrier"); self.xs("bar1")
        ZF = 192
        for t in range(8): e(f"ds_read_b128 {ar(ZF+4*t,4)}, v{vL16} offset:{L_ZB + t*1024}", f"zf{t}")
        run(gen(gf[1]))
        D = 64
        for t in range(8):
            e.wait(lg=f"zf{t}")
            e(f"v_mfma_f32_32x32x16_bf16 {vr(D,16)}, {ar(aA2+4*t,4)}, {ar(ZF+4*t,4)}, {'0' if t == 0 else vr(D,16)}")
            if t < o['st2d']: run(dma(1))
            if t >= 4 and not self.bplan(): run(gr(t - 4))
        self.xs("st2 issued")
        hflag = self.hflag
        if self.ty == 1 and o['hfb']: hflag = lambda: None
        if o['hfat'] == 0: hflag()
        P = 96
        ops = []
        for z in range(8):
            xr, xi, wr_, wi_ = D + 2*z, D + 2*z + 1, vW + 2*z, vW + 2*z + 1
            u = 80 + 2*z
            ops.append([f"v_mul_f32 v{u}, v{xr}, v{wr_}", f"v_mul_f32 v{u+1}, v{xr}, v{wi_}", f"v_fma_f32 v{u}, -v{xi}, v{wi_}, v{u}", f"v_fmac_f32 v{u+1}, v{xi}, v{wr_}", f"v_cvt_pk_bf16_f32 v{P+z}, v{u}, v{u+1}"])
        e(f"v_add_u32 v{vTMP}, s{sW2K}, v{vL16}")
        for z0 in (0, 2, 4, 6):
            for k in range(5): e(ops[z0][k]); e(ops[z0+1][k])
            if o['wmd']: run(dma(1))
            if z0 == 4: e(f"ds_write_b128 v{vTMP}, {vr(P,4)} offset:{L_ZX}", "zxw")
        if o['wmd']: run(dma(1))
        e(f"ds_write_b128 v{vTMP}, {vr(P+4,4)} offset:{L_ZX + 1024}", "zxw")
        if o['hfat'] == 1: hflag()
        if o['wmd']: run(dma(2))
        run(gen(gf[2]))
        e.wait(lg="zxw"); e("s_barrier"); self.xs("bar2")
        if not o['lg2'] and not self.bplan(): q += sum([self.dma_w2(n) for n in range(8, 12)], [])
        for t in range(8): e(f"ds_read_b128 {ar(ZF+4*t,4)}, v{vL16} offset:{L_ZX + t*1024}", f"zg{t}")
        adr = self.TL(f"""v_lshrrev_b32 v{vTMP+1}, 4, v{vL}
v_bfe_u32 v{vTMP+2}, v{vL}, 3, 1
v_lshlrev_b32 v{vTMP+2}, 12, v{vTMP+2}
v_lshl_add_u32 v{vTMP+2}, v{vTMP+1}, 16, v{vTMP+2}
v_and_b32 v{vTMP+3}, 15, v{vL}
v_lshlrev_b32 v{vTMP+3}, 2, v{vTMP+3}
v_lshl_add_u32 v{vTMP+3}, v{vTMP+1}, 7, v{vTMP+3}
v_add_u32 v{vTMP+3}, s{sW2K}, v{vTMP+3}
v_and_b32 v{vTMP+1}, 7, v{vL}
v_lshl_add_u32 v{vTMP+1}, v{vTMP+1}, 4, v{vTMP+2}
s_lshl_b32 s51, s{sW}, 19
s_lshl_b32 s52, s{sK1}, 7
s_add_u32 s51, s51, s52
s_lshl_b32 s52, s{sCG}, 13
s_add_u32 s51, s51, s52
s_add_u32 s51, s51, {WS_Z3}
s_add_u32 s52, s51, {4*65536}""")
        hadr = self.TL(f"""s_lshl_b32 s50, s{sP}, 2
s_add_u32 s50, s50, s{sW}
s_lshl_b32 s50, s50, 7
s_add_u32 s58, s50, {WS_HF}
v_and_b32 v{vPA}, 7, v{vL}
v_lshlrev_b32 v{vPA}, 4, v{vPA}""")
        run(hadr); run(gen(gf[3]))
        if o['hpe']: self.poll_issue(vPA, 58, vPD, "phf")
        adr = spread(adr, [0.5] + [1]*8); run(adr[0])
        for t in range(8):
            e.wait(lg=f"zg{t}")
            e(f"v_mfma_f32_32x32x16_bf16 {vr(D,16)}, {ar(aA3+4*t,4)}, {ar(ZF+4*t,4)}, {'0' if t == 0 else vr(D,16)}")
            run((dma(1) if t < o['st3d'] else []) + adr[t + 1])
        self.xs('st3 issued')
        for k in range(8): e(f"v_cvt_pk_bf16_f32 v{P+k}, v{D+2*k}, v{D+2*k+1}")
        for k in range(8): e(f"ds_write_b32 v{vTMP+3}, v{P+k} offset:{L_ZB + (k>>1)*512 + (k&1)*64}", "zww")
        run(gen(gf[4]))
        e.wait(lg="zww")
        self.xs('zww')
        e("s_barrier")
        self.xs("st3 packed")
        for k in range(2): e(f"ds_read_b128 {vr(D+4*k,4)}, v{vTMP} offset:{L_ZB + k*1024}", "zwr")
        run(gen(gf[5]))
        e.wait(lg="zwr")
        for k in range(2): e(f"buffer_store_dwordx4 {vr(D+4*k,4)}, v{vTMP+1}, {srd(sWS)}, s{51+k} offen sc1", "z3s")
        if not o['hpe']: self.poll_issue(vPA, 58, vPD, "phf")
        self.stamp(9)
        vH = self.vH
        e(f"s_mul_i32 s50, s{sP}, {2*112*1024}\ns_add_u32 s50, s50, {WS_H}\nv_add_u32 v{vH[0]}, s50, v{vL16}\nv_add_u32 v{vH[1]}, {112*1024}, v{vH[0]}")
        run(merge(sum([self.greads(g) for g in range(4, 10)], []), q))
        self.late = (sum([self.dma_w2(n) for n in range(8, 12)], []) if o['lg2'] else []) + sum([self.dma_w2(12 + g) for g in range(10, 16)], [])
        if o['prel']: e.wait(lg="g9"); run(self.late[:o['prel']]); self.late = self.late[o['prel']:]
        run(gen(gf[6]))
        self.xs("pre hpoll")
        self.poll_check(vPA, 58, vPD, "phf")
        e(f"s_lshl_b32 s50, s{sW}, 3\ns_add_u32 s50, s50, s{sCG}\ns_lshl_b32 s50, s50, 5\ns_add_u32 s50, s50, s{sK1}\ns_lshl_b32 s50, s50, 4\ns_add_u32 s50, s50, {WS_Z3F}")
        self.stamp(10)
        return ifd

    vH, vO, vRD, vZD, vZ, XR = [19, 20], 4, 5, 8, [15, 16, 17, 18], 48
    def g2_addr(self):
        e = self.e
        vH, vO, vZD, vZ = self.vH, self.vO, self.vZD, self.vZ
        th = []
        class _E:
            def __call__(_, x): th.extend(self.TL(x))
        e = _E()
        e(f"""v_lshrrev_b32 v{vTMP}, 3, v{vL}
v_and_b32 v{vTMP+1}, 1, v{vTMP}
v_bfe_u32 v{vTMP+2}, v{vTMP}, 1, 1
v_lshrrev_b32 v{vTMP+3}, 2, v{vTMP}
v_lshl_add_u32 v{vTMP+1}, v{vTMP+3}, 1, v{vTMP+1}
v_lshl_add_u32 v{vTMP+3}, v{vTMP+2}, 2, v{vTMP+1}
v_and_b32 v{vTMP+4}, 7, v{vL}
v_lshlrev_b32 v{vO}, 4, v{vTMP+4}
v_lshl_add_u32 v{vO}, v{vTMP+3}, 16, v{vO}
v_lshlrev_b32 v5, 8, v{vTMP+1}
v_lshl_add_u32 v5, v{vTMP+2}, 7, v5
v_and_b32 v{vTMP+1}, 3, v{vL}
v_lshl_add_u32 v5, v{vTMP+1}, 5, v5
v_bfe_u32 v{vTMP+1}, v{vL}, 2, 1
v_mul_u32_u24 v{vTMP+1}, {RED_TS}, v{vTMP+1}
v_add_u32 v5, v5, v{vTMP+1}
s_lshl_b32 s60, s{sW}, 10
v_add_u32 v5, s60, v5
s_lshl_b32 s59, s{sW}, 19
s_lshl_b32 s60, s{sP}, 11
s_add_u32 s59, s59, s60
s_add_u32 s59, s59, s{sQB}""")
        e(f"""v_lshrrev_b32 v{vTMP}, 5, v{vL}
v_bfe_u32 v{vTMP+1}, v{vL}, 2, 2
v_lshl_add_u32 v{vTMP}, v{vTMP}, 3, v{vTMP+1}
v_lshlrev_b32 v{vTMP}, 6, v{vTMP}
v_and_b32 v{vTMP+1}, 3, v{vL}
v_lshl_add_u32 v{vTMP}, v{vTMP+1}, 3, v{vTMP}
v_and_b32 v{vTMP+1}, 16, v{vL}
v_lshl_add_u32 v{vTMP}, v{vTMP+1}, 1, v{vTMP}
s_add_u32 s60, s{sW2K}, {L_MISC}
v_add_u32 v{vZ[0]}, s60, v{vTMP}""")
        return th

    def g2(self, q2):
        e = self.e; T = self.T; o = self.o
        HB, HD = 192, o['hd']
        LB = 160
        ZF = 128
        ACC = 64
        vH, vO, vZD, vZ, XR = self.vH, self.vO, self.vZD, self.vZ, self.XR
        def hload(n):
            return [T(f"buffer_load_dwordx4 {ar(HB + 8*(n % HD) + 4*rt, 4)}, v{vH[rt]}, {srd(sWS)}, s{sKS+n} offen sc1", f"h{n}") for rt in range(2)]
        H0 = o['h0']
        if not o['hpe']: self.flag_store(50, "z3f")
        for n in range(H0): run(hload(n))
        self.xs('h0 issued')
        rest = sum([hload(n) for n in range(H0, HD)], [])
        ifd = merge(q2 + (self.g2_addr() + self.gen_s4() if o['s4w'] else []), rest)
        k = int(len(ifd) * o['z3fat'])
        run(ifd[:k])
        if o['hpe']: e.wait(vm="z3s"); self.flag_store(50, "z3f")
        run(ifd[k:])
        shadow = [] if o['s4w'] else spread(self.g2_addr() + self.gen_s4(), [1] * o['nsh'])
        late = self.late
        e.wait(lg="g9")
        self.xs("ifd done")
        lreads = lambda n: [self.W(vm=f"w2_{n}")] + self.w2_tr(n, LB + 8*(n % 3), f"l{n}")
        run(lreads(0)); run(lreads(1))
        e(f"s_lshr_b32 s50, s{sP}, 3\ns_lshl_b32 s50, s50, 3\ns_lshl_b32 s51, s{sW}, 1\ns_add_u32 s50, s50, s51\ns_lshl_b32 s50, s50, 9\ns_add_u32 s58, s50, {WS_Z3F}")
        e(f"s_lshl_b32 s50, s{sP}, 16\ns_add_u32 s50, s50, s56\ns_add_u32 s50, s50, {WS_Z3}")
        z3d = lambda mt: [T(f"s_add_u32 m0, s{sW2K}, {L_MISC + (2*mt + (i >> 1))*8192 + (i & 1)*1024}\ns_add_u32 s51, s50, {mt*4096 + i*1024}\nbuffer_load_dwordx4 v{vL16}, {srd(sWS)}, s51 offen sc1 lds", f"z3d{mt}") for i in range(4)]
        xres = [T(f"buffer_load_dwordx4 {vr(XR+4*rt,4)}, v{vO}, {srd(sX)}, s59 offen offset:{rt*1024}", "xr") for rt in range(2)]
        DR, DI, PK = 224, 240, 32
        def zreads(mt):
            return [T(f"ds_read_b64_tr_b16 {ar(ZF + 16*(mt&1) + 4*ks + 2*eh, 2)}, v{vZ[0]} offset:{(2*mt + (ks >> 1))*8192 + (ks & 1)*1024 + eh*256}", f"z{mt}_{ks}") for ks in range(4) for eh in range(2)]
        def tail_a(mt):
            for ks in range(4):
                e.wait(lg=f"z{mt}_{ks}")
                fr = ar(ZF + 16*(mt&1) + 4*ks, 4)
                e(f"v_mfma_f32_32x32x16_bf16 {vr(DR,16)}, {fr}, {vr(self.S4R+4*ks,4)}, {'0' if ks == 0 else vr(DR,16)}")
                e(f"v_mfma_f32_32x32x16_bf16 {vr(DI,16)}, {fr}, {vr(self.S4I+4*ks,4)}, {'0' if ks == 0 else vr(DI,16)}")
        def tail_cvt(mt):
            return [T(f"v_cvt_pk_bf16_f32 v{PK + (jj*2+rt)*4 + q}, v{DR + 8*jj + 4*(q>>1) + 2*(q&1) + rt}, v{DI + 8*jj + 4*(q>>1) + 2*(q&1) + rt}") for jj in range(2) for rt in range(2) for q in range(4)]
        def tail_b(mt):
            for jj in range(2):
                for rt in range(2):
                    for dt in range(2):
                        A = ACC + (rt*2+dt)*16
                        e(f"v_mfma_f32_32x32x16_bf16 {vr(A,16)}, {vr(PK+(jj*2+rt)*4,4)}, {vr(self.IFD+((mt*2+jj)*2+dt)*4,4)}, {vr(A,16)}")
        ZP, ZC, ZD, TT, GA = o['zp'], o['zc'], o['zd'], o['tt'], o['ga']
        NL = 28 - (3 if o['fin'] else 0)
        for n in range(NL):
            side = []
            if n + 2 < 12: side += lreads(n + 2)
            side += late[2*n:2*n + 2]
            if n in GA: side += self.greads(10 + 2*GA.index(n))[:5] + self.greads(11 + 2*GA.index(n))[:5]
            if n < len(shadow): side = merge(shadow[n], side)
            if n == ZP: side.append(lambda: self.poll_issue(vL16, 58, 7, "pz3"))
            for mt in range(4):
                if n == ZD[mt]: side += ([self.W(lg=f"g{9 + 2*mt}")] if mt else []) + z3d(mt)[:2]
                if n == ZD[mt] + 1: side += z3d(mt)[2:]
                if n == TT[mt] - o['zra']: side += [self.W(vm=f"z3d{mt}")] + zreads(mt)
            if n == o['xat']: side += xres
            mt = TT.index(n) if n in TT else None
            TS, tb = 1, 0
            if mt is not None: side += tail_cvt(mt)
            if n in o.get('g2st', (1, 4, 8, 12, 16, 20, 24)): self.xs(f"g2 n{n}")
            if n == ZC:
                self.stamp(11); self.poll_check(vL16, 58, 7, "pz3"); self.stamp(12)
            if mt is not None:
                tail_a(mt)
                if mt == 3: e('s_barrier')
            e.wait(vm=f"h{n}")
            if n in o.get('hst2', ()): self.xs(f"h{n} in")
            if n < 12: e.wait(lg=f"l{n}")
            grp = spread(side, [1, 1, 1, 1])
            if mt is not None and tb % TS == 0: grp = [[]] + spread(side, [1, 1, 1])
            for i, (rt, dt) in enumerate(((0, 0), (0, 1), (1, 0), (1, 1))):
                A = ACC + (rt*2+dt)*16
                B = ar(LB + 8*(n % 3) + 4*dt, 4) if n < 12 else ar(aX + 8*(n-12) + 4*dt, 4)
                e(f"v_mfma_f32_32x32x16_bf16 {vr(A,16)}, {ar(HB + 8*(n % HD) + 4*rt, 4)}, {B}, {'0' if n == 0 else vr(A,16)}")
                if n + HD < 28 and dt == 1: run(hload(n + HD)[rt:rt+1])
                run(grp[i])
            if mt is not None and tb % TS == 0: tail_b(mt)
        wr = lambda t: [T(f"ds_write_addtid_b32 v{ACC+16*t+i} offset:{t*RED_TS + i*256}", "rw") for i in range(16)]
        e(f"s_mul_i32 m0, s{sW}, {RED_WS}")
        XU = 224
        unp = [self.W(vm="xr")] + sum([self.TL(f"v_lshlrev_b32 v{XU+2*i}, 16, v{XR+i}\nv_and_b32 v{XU+2*i+1}, 0xffff0000, v{XR+i}") for i in range(8)], [])
        if o['fin']:
            assert max(TT) < NL
            e.wait(vm="h27")
            pend = unp
            for t, (rt, dt) in enumerate(((0, 0), (0, 1), (1, 0), (1, 1))):
                grp = spread(pend, [1, 1, 1]) if t != 1 else [[], [], []]
                for k, n in enumerate(range(NL, 28)):
                    e(f"v_mfma_f32_32x32x16_bf16 {vr(ACC+16*t,16)}, {ar(HB + 8*(n % HD) + 4*rt, 4)}, {ar(aX + 8*(n-12) + 4*dt, 4)}, {vr(ACC+16*t,16)}")
                    run(grp[k])
                if t >= 1: pend = wr(t - 1)
            self.stamp(13)
            run(wr(2) + wr(3))
        else:
            self.stamp(13)
            run(unp + wr(0) + wr(1) + wr(2) + wr(3))
        e.wait(lg="all"); self.xs("red written"); e("s_barrier"); self.xs("red bar2")
        R = 128
        for rt in range(2):
            for pw in range(4):
                for k in range(2):
                    e(f"ds_read_b128 {vr(R + rt*32 + pw*8 + 4*k, 4)}, v5 offset:{pw*RED_WS + rt*2*RED_TS + 16*k}", f"rr{rt}_{pw}")
        for rt in range(2):
            X = XU + 8*rt
            for pw in range(4):
                e.wait(lg=f"rr{rt}_{pw}")
                for i in range(4):
                    e(f"v_pk_add_f32 {vr(X+2*i,2)}, {vr(X+2*i,2)}, {vr(R + rt*32 + pw*8 + 2*i, 2)}")
            for i in range(4):
                e(f"v_cvt_pk_bf16_f32 v{80+4*rt+i}, v{X+2*i}, v{X+2*i+1}")
            e(f"buffer_store_dwordx4 {vr(80+4*rt,4)}, v{vO}, {srd(sOUT)}, s59 offen offset:{rt*1024} {o.get('ost', 'sc1')}")
        done = e.label("nq")
        e(f"s_or_b32 s50, s2, s{sW}\ns_cmp_lg_u32 s50, 0\ns_cbranch_scc1 {done}\ns_mov_b32 s50, {WS_Q}")
        self.flag_store(50, "q")
        e(f"{done}:")
        if self.stamps:
            self.stamp(14)
            e(f"s_memrealtime s[94:95]"); e.l.append("    s_waitcnt lgkmcnt(0)")
            e(f"v_writelane_b32 v{vSTAMP}, s94, 16")
            e(f"s_lshl_b32 s50, s2, 2\ns_add_u32 s50, s50, s{sW}\ns_lshl_b32 s50, s50, 8\ns_add_u32 s50, s50, {WS_DBG}\nv_lshlrev_b32 v{vTMP}, 2, v{vL}")
            e(f"buffer_store_dword v{vSTAMP}, v{vTMP}, {srd(sWS)}, s50 offen")
            if o.get('enc') is not None:
                e(f"v_readlane_b32 s64, v{vSTAMP}, {o['enc']}\ns_add_u32 s64, s64, 3000\ns_mov_b32 s65, 0\nL_enc:\ns_memrealtime s[66:67]"); e.l.append("    s_waitcnt lgkmcnt(0)")
                e(f"s_add_u32 s65, s65, 1\ns_cmp_gt_u32 s65, 100000\ns_cbranch_scc1 L_encd\ns_sub_u32 s66, s66, s64\ns_cmp_lt_i32 s66, 0\ns_cbranch_scc1 L_enc\nL_encd:")
            if o.get('dbgout'):
                e(f"s_load_dwordx2 s[64:65], s[0:1], 56"); e.l.append("    s_waitcnt lgkmcnt(0)")
                e(f"s_mov_b32 s66, 256\ns_mov_b32 s67, 0x20000")
                e(f"v_not_b32 v2, v{vSTAMP}\nv_cmp_eq_u32 vcc, 15, v{vL}\nv_cndmask_b32 v2, v{vSTAMP}, v2, vcc\nv_readlane_b32 s68, v{vSTAMP}, 16\nv_mov_b32 v3, s68\nv_cmp_eq_u32 vcc, 0, v{vL}\nv_cndmask_b32 v2, v2, v3, vcc")
                e(f"s_mov_b64 exec, 0xffff\nbuffer_atomic_umax v2, v{vTMP}, s[64:67], 0 offen sc1\ns_mov_b64 exec, -1")

    def build(self):
        e = self.e
        self.prologue()
        snap = e.snapshot()
        e(f"s_cmp_eq_u32 s{sTY}, 1\ns_cbranch_scc1 L_typeB")
        self.f1(0); self.post()
        endA = e.snapshot()
        e("s_branch L_join\nL_typeB:")
        e.restore(snap)
        self.f1(1); rest = self.post()
        endB = e.snapshot()
        self.e.vm = self.join(endA[0], endB[0]); self.e.lg = self.join(endA[1], endB[1])
        e("L_join:")
        self.g2(rest)
        e("L_end:\ns_endpgm")
        e.l += e.cold
        lines, nn = pad_hazards(e.l)
        hdr = open("parallel_sum__spectral_gfnet__dense_activation_silu__prompt.s.ref").read().split("; Override")[0]
        out = hdr + "; @launch grid=(256,1,1) block=(256,1,1) lds=163840\n"
        out += '.amdgcn_target "amdgcn-amd-amdhsa--gfx950"\n.text\n'
        out += f".globl {KNAME}\n.p2align 8\n.type {KNAME},@function\n{KNAME}:\n"
        out += "\n".join(lines) + "\n"
        out += f""".section .rodata,"a"
.p2align 6
.amdhsa_kernel {KNAME}
  .amdhsa_next_free_vgpr 512
  .amdhsa_next_free_sgpr 102
  .amdhsa_accum_offset 256
  .amdhsa_group_segment_fixed_size 0
  .amdhsa_kernarg_size 72
  .amdhsa_user_sgpr_count 2
  .amdhsa_user_sgpr_kernarg_segment_ptr 1
  .amdhsa_system_sgpr_workgroup_id_x 1
.end_amdhsa_kernel
"""
        return out, nn, len(lines)
    @staticmethod
    def join(a, b):
        def after(l):
            d = {}
            for i, t in enumerate(l): d[t] = len(l) - 1 - i
            return d
        da, db = after(a), after(b)
        n = {t: min(da.get(t, 10**9), db.get(t, 10**9)) for t in set(da) | set(db) if t is not None}
        m = max(n.values()) + 1 if n else 0
        q = [None] * m
        res = []
        for pos in range(m - 1, -1, -1):
            tags = [t for t, v in n.items() if v == pos]
            res.append(MultiTag(tags))
        return res

class MultiTag:
    def __init__(self, tags): self.tags = set(tags)
    def __eq__(self, o): return (o in self.tags) if not isinstance(o, MultiTag) else self is o
    def __hash__(self): return id(self)

if __name__ == "__main__":
    import argparse
    ap = argparse.ArgumentParser()
    ap.add_argument("-o", default="parallel_sum__spectral_gfnet__dense_activation_silu__prompt.s")
    ap.add_argument("--stamps", action="store_true")
    ap.add_argument("--opt", action="append", default=[])
    a = ap.parse_args()
    opts = {}
    for kv in a.opt:
        k, v = kv.split("="); opts[k] = eval(v)
    g = Gen(a.stamps, opts)
    txt, nn, nl = g.build()
    import json; open(a.o + ".names", "w").write(json.dumps(g.xnames))
    open(a.o, "w").write(txt)
    print("lines", nl, "nops added", nn)
```

```python
import sys
from emit import E, pad_hazards

KNAME = "parallel_sum__spectral_gfnet__dense_activation_silu__prompt_kernel"

WS_Q     = 0
WS_STATS = 0x10000
WS_Z1F   = 0x20000
WS_HF    = 0x24000
WS_Z3F   = 0x28000
WS_CSG   = 0xD00000
WS_Z1    = 0x100000
WS_Z3    = 0x300000
WS_H     = 0x500000
WS_DBG   = 0xC00000
WS_SIZE  = 0x1000000

L_XS, L_MISC, L_S1, L_S2 = 0, 32768, 49152, 98304
L_CS = L_MISC + 8192
L_RB = L_MISC + 8192 + 5120
L_ZB = L_MISC
L_ZX = L_MISC + 8192
L_FD = L_S1
PAIR = [L_S1 + i*8192 for i in range(6)] + [L_S2 + 4096, L_S2 + 16384 + 4096]
SING = [L_S2 + 12288, L_S2 + 16384 + 12288, L_S2 + 2*16384 + 4096, L_S2 + 3*16384 + 4096]
BSLOT = [L_S2 + i*16384 + 4096 for i in range(4)] + [L_S1 + 32768, L_S1 + 40960]
RED_TS = 4096 + 16
RED_WS = 4 * RED_TS

sX, sW1, sW2, sWS, sWR, sWI, sOUT = 4, 8, 12, 16, 20, 24, 28
sT, sW, sRB, sBLK, sTY, sC0, sK1, sCG, sP, sQ = 32, 33, 34, 35, 36, 37, 38, 39, 40, 41
sXROW, sCOL1, sCOL2, sHB1, sHB2, sXSW, sQB, sPOLL = 42, 43, 44, 45, 46, 47, 48, 49
sCSG = 57
sXS3, sW2K, sROT = 61, 62, 63
sKS = 64
sSTAMP = 92
def srd(n): return f"s[{n}:{n+3}]"

vTID, vL = 0, 1
vXD = [2, 3, 4, 5]; vSD = [6, 7]; vS1D = 8
vXR = [9, 10, 11, 12]; vT1 = [13, 14]; vT2 = [15, 16]; vTS = 17; vFD = 18
vC1 = [19, 20]; vC2 = [21, 22]; vCS = 8 + 224
vNC1, vRINV, vSIG, vL16 = 23, 24, 25, 26
vSTAMP = 27
vBX = 28; vAX = [32, 36, 160, 164, 176]; vCSA = [40, 44, 168, 172, 180]; vCSF = [48, 52, 144, 148, 152]
vONES = 56
vTMP = 58
vXRb = [156, 157, 158, 159]; vXR2b = [185, 186, 187, 188]; vBXb = 176; vNC1b, vRINVb = 189, 190
vSD2 = 236; vCSS = 237; vW2D = [238, 239]; vPF = [112, 113, 114, 115]
vXR2 = [232, 233, 234, 235]
ACCA, ACCD = 64, 128
vW = 240
TMP = 192
aX, aG1, aFB = 0, 192, 216
aA2, aA3 = 128, 160

TRANS_ = ('v_exp_f32', 'v_rcp_f32', 'v_sin_f32', 'v_cos_f32', 'v_rsq_f32')
LOG2E = 1.4426950408889634
def fhex(f):
    import struct
    return "0x%08x" % struct.unpack("<I", struct.pack("<f", f))[0]
def vr(a, n): return f"v[{a}:{a+n-1}]"
def ar(a, n): return f"a[{a}:{a+n-1}]"

def merge(main, side, start=0, end=None):
    end = len(main) if end is None else end
    out = list(main[:start]); n = end - start; k = len(side); j = 0
    for i in range(n):
        out.append(main[start + i])
        while j < k and (j + 1) * n <= (i + 1) * k:
            out.append(side[j]); j += 1
    out += side[j:]
    out += main[end:]
    return out
def run(ths):
    for t in ths: t()
def cost(th): return getattr(th, 'cost', 1)
def spread(fill, caps):
    tot = sum(cost(t) for t in fill); cap = sum(caps)
    out = [[] for _ in caps]; acc = 0.0; g = 0; lim = caps[0] * tot / cap if cap else 0
    for t in fill:
        while g < len(caps) - 1 and acc + cost(t) / 2 > lim:
            g += 1; lim += caps[g] * tot / cap
        out[g].append(t); acc += cost(t)
    return out

class Gen:
    def __init__(self, stamps=False, opts=None):
        self.e = E(); self.stamps = stamps; self.nst = 0; self.xnames = []
        self.o = dict(ntw=True, pf=True, s2at={6: [0, 1, 2], 7: [3, 4, 5]}, w2p2=5, z1f=34, h0=4, pfw2=True, pfat=None, xrot=True, lep=[4, 4], hd=8, zp=5, zc=9, zd=(9, 12, 15, 19), tt=(13, 17, 21, 24), ga=(8, 10, 12), xat=22, nsh=8, hpe=0, w11=0, csA=(112, 134, 142), csB=(36, 50, 55), h1=0, wA=75, presetA=1, j0=4, j0e=0, warm2=63, z3fat=0.45, ifdw=1.0, hfat=0, lamax=6, lamin=3, vcap=0, epl=[0, 4], mixq=0, a23d=None, a23pre=0.3, w11at=0.3, stB=(36, 54), ntx='', ntw1='', ntx2='', fin=1, bw2=(1, 15, 23, 34, 43), st2d=8, epfrom=0.3, nown=7, ownA=(116, 124, 140), ownB=28, share=[1, 0], w1b=45, vq=1, helpa=0, tlbA=3, tlbfine=1, warmA=0, t64=1, tlbB=0, allB=0, wmd=0, pre1=6, lg2=0, diag=1, hfb=0.9, gf=(0,)*7, s4w=0, xlast=1, g1pre=0, strb=1, tlbw=4, prel=0, zra=2, st3d=4, nlate=4, zpoll=[(0.3, 0.7), (0.3, 0.7)], z1g=2)
        self.o.update(opts or {})
    def stamp(self, i):
        if not self.stamps or (self.o.get('only') is not None and i not in self.o['only']): return
        e = self.e
        e(f"{'s_memrealtime' if self.o.get('rt', 1) else 's_memtime'} s[{sSTAMP}:{sSTAMP+1}]"); e.l.append("    s_waitcnt lgkmcnt(0)"); e.lg = []
        e(f"v_writelane_b32 v{vSTAMP}, s{sSTAMP}, {i if i < 15 else i + 5}")
    def light(self):
        if self.nl < 5: self.e(f"s_memtime s[{92+2*self.nl}:{93+2*self.nl}]"); self.nl += 1
    def light_dump(self):
        if not self.o.get('lst'): return
        self.e.l.append("    s_waitcnt lgkmcnt(0)"); self.e.lg = []
        for i in range(self.nl): self.e(f"v_writelane_b32 v{vSTAMP}, s{92+2*i}, {58+i}")
    def xs(self, name):
        if not (self.stamps and self.o.get('xs')): return
        if name not in self.xnames: self.xnames.append(name)
        self.stamp(15 + self.xnames.index(name))
    def dst(self, region):
        if self.o.get('detail') != region: return
        pairs = self.dpairs
        if self.nd < len(pairs):
            self.e(f"s_memtime s[{pairs[self.nd]}:{pairs[self.nd]+1}]"); self.nd += 1
    def dbegin(self, region, pairs):
        if self.o.get('detail') == region: self.nd = 0; self.dpairs = pairs
    def dend(self, region):
        if self.o.get('detail') != region: return
        self.e.l.append("    s_waitcnt lgkmcnt(0)"); self.e.lg = []
        for i in range(self.nd): self.e(f"v_writelane_b32 v{vSTAMP}, s{self.dpairs[i]}, {20+i}")
        run(self.g2_setup())
    def T(self, s, tag=None):
        f = lambda: self.e(s, tag)
        f.cost = sum(2 if x.split()[0] in TRANS_ else 1 for x in s.split("\n") if x.strip()); f.txt = s
        return f
    def W(self, vm=None, lg=None):
        f = lambda: self.e.wait(vm=vm, lg=lg)
        f.cost = 0.5
        return f
    def TL(self, s):
        return [self.T(x) for x in s.split("\n") if x.strip()]

    def prologue(self):
        e = self.e
        e("s_cmp_ge_u32 s2, 256\ns_cbranch_scc1 L_end")
        e(f"s_load_dwordx2 s[{sX}:{sX+1}], s[0:1], 0\ns_load_dwordx4 s[52:55], s[0:1], 32\ns_load_dwordx2 s[{sWS}:{sWS+1}], s[0:1], 64")
        e(f"s_load_dwordx4 s[56:59], s[0:1], 8\ns_load_dwordx2 s[{sOUT}:{sOUT+1}], s[0:1], 48")
        if self.stamps:
            e(f"s_memrealtime s[94:95]\ns_memtime s[96:97]")
            self.start_saved = False
        e(f"v_and_b32 v{vL}, 63, v0\nv_lshrrev_b32 v{vTMP}, 6, v0\nv_lshlrev_b32 v{vL16}, 4, v{vL}\nv_readfirstlane_b32 s{sW}, v{vTMP}")
        if self.o['pf']:
            if self.o.get('pfB'): e(f"s_bitcmp1_b32 s2, 3\ns_cbranch_scc0 L_nopf")
            e(f"s_getpc_b64 s[50:51]\ns_lshr_b32 s60, s2, {4 if self.o.get('pfB') else 3}\ns_lshl_b32 s60, s60, {12 if self.o.get('pfB') else 11}")
            e(f"s_and_b32 s61, s{sW}, {3 if self.o.get('pfB') else 1}\ns_lshl_b32 s61, s61, 10\ns_add_u32 s60, s60, s61\ns_min_u32 s60, s60, L_end-{KNAME}-1280")
            e(f"s_add_u32 s50, s50, s60\ns_addc_u32 s51, s51, 0")
            e(f"v_mov_b32 v{vTMP+1}, s51\nv_add_co_u32 v{vTMP}, vcc, s50, v{vL16}\nv_addc_co_u32 v{vTMP+1}, vcc, 0, v{vTMP+1}, vcc")
            e(f"global_load_dwordx4 {vr(TMP+8,4)}, {vr(vTMP,2)}, off", "pf")
            if self.o.get('pfB'): e("L_nopf:"); e.vm.pop()
        e(f"""s_and_b32 s50, s2, 7
s_lshr_b32 s51, s2, 3
s_lshr_b32 s60, s50, 1
s_lshl_b32 s60, s60, 2
s_lshr_b32 s61, s51, 3
s_add_u32 s{sRB}, s60, s61
s_and_b32 s62, s51, 7
s_and_b32 s{sTY}, s62, 1
s_and_b32 s63, s50, 1
s_lshl_b32 s{sBLK}, s63, 2
s_lshr_b32 s60, s62, 1
s_add_u32 s{sBLK}, s{sBLK}, s60
s_add_u32 s{sC0}, s62, s61
s_add_u32 s{sC0}, s{sC0}, {self.o.get('c0add', 0)}
s_and_b32 s{sC0}, s{sC0}, 7
s_lshl_b32 s{sK1}, s50, 2
s_add_u32 s{sK1}, s{sK1}, s61
s_mov_b32 s{sCG}, s62
s_mov_b32 s{sP}, s{sK1}
s_mov_b32 s{sQ}, s{sC0 if self.o['mixq'] else 62}
s_lshl_b32 s63, s63, 3
s_add_u32 s63, s63, s62""")
        e(f"s_lshl_b32 s60, s{sRB}, 2\ns_add_u32 s60, s60, s{sW}\ns_lshl_b32 s{sXROW}, s60, 10\ns_lshl_b32 s{sXSW}, s{sW}, 13")
        e(f"""s_mul_i32 s60, s{sBLK}, 320
s_and_b32 s50, s{sBLK}, 1
s_lshl_b32 s51, s50, 6
s_add_u32 s51, s51, s60
s_lshl_b32 s50, s50, 8
s_sub_u32 s{sCOL1}, s60, s50
s_add_u32 s{sCOL1}, s{sCOL1}, 256
s_lshl_b32 s61, s{sBLK}, 7
s_add_u32 s61, s61, 2560
s_cmp_eq_u32 s{sTY}, 0
s_cselect_b32 s{sCOL2}, s51, s61""")
        e(f"s_mul_i32 s60, s{sXROW}, 112\ns_add_u32 s60, s60, {WS_H}\ns_lshl_b32 s61, s{sCOL1}, 5\ns_add_u32 s{sHB1}, s60, s61\ns_lshl_b32 s61, s{sCOL2}, 5\ns_add_u32 s{sHB2}, s60, s61")
        t0, t1, t2 = vTMP, vTMP+1, vTMP+2
        e(f"""v_lshrrev_b32 v{t0}, 3, v{vL}
v_and_b32 v{t1}, 7, v{vL}
v_lshrrev_b32 v{t2}, 4, v{vL}
v_xor_b32 v{t1}, v{t1}, v{t2}
v_lshlrev_b32 v{t1}, 4, v{t1}
v_lshl_add_u32 v{vXD[0]}, v{t0}, 16, v{t1}
v_xor_b32 v{vXD[1]}, 64, v{vXD[0]}
v_add_u32 v{vXD[2]}, {2*(524288-1024)}, v{vXD[0]}
v_add_u32 v{vXD[3]}, {3*(524288-1024)}, v{vXD[1]}
v_add_u32 v{vXD[1]}, {524288-1024}, v{vXD[1]}""")
        e(f"""v_lshrrev_b32 v{t1}, 5, v{vL}
v_and_b32 v{t2}, 31, v{vL}
v_lshlrev_b32 v{t2}, 4, v{t2}
v_lshl_add_u32 v{t2}, v{t1}, 16, v{t2}
s_lshl_b32 s60, s63, 17
s_xor_b32 s61, s{sXROW}, {4096 * self.o['strb']}
s_add_u32 s60, s60, s61""")
        e(f"""s_lshl_b32 s61, s{sW}, 4
v_add_u32 v{t0}, s61, v{t0}
v_mul_u32_u24 v{t0}, 3584, v{t0}
v_and_b32 v{t1}, 7, v{vL}
v_lshlrev_b32 v{t1}, 4, v{t1}
v_and_b32 v{vTMP+3}, 16, v{vL}
v_lshlrev_b32 v{vTMP+3}, 2, v{vTMP+3}
v_xor_b32 v{t1}, v{t1}, v{vTMP+3}
v_add_u32 v{vSD[0]}, v{t0}, v{t1}
v_add_u32 v{vSD[1]}, {8*3584-1024}, v{vSD[0]}
v_lshrrev_b32 v{t0}, 2, v{vL}
v_add_u32 v{t0}, s61, v{t0}
v_mul_u32_u24 v{t0}, 3584, v{t0}
v_and_b32 v{t1}, 3, v{vL}
v_lshl_add_u32 v{vS1D}, v{t1}, 4, v{t0}""")
        e.l.append("    s_waitcnt lgkmcnt(0)")
        if self.stamps: e(f"v_writelane_b32 v{vSTAMP}, s96, 0\nv_writelane_b32 v{vSTAMP}, s94, 15")
        self.stamp(4)
        e(f"s_mov_b32 s{sX+2}, 2097152\ns_mov_b32 s{sX+3}, 0x20000")
        if self.o.get('xfirst'): run(self.dma_x(0))
        if self.o['vq']:
            e(f"s_mov_b32 s{sWS+2}, {WS_SIZE}\ns_mov_b32 s{sWS+3}, 0x20000")
            e(f"buffer_load_dword v{vW}, off, {srd(sWS)}, 0 offset:{WS_Q}", "stat")
        e(f"buffer_load_dwordx4 {vr(TMP,4)}, v{t2}, {srd(sX)}, s60 offen {self.o.get('stf', '')}", "stat")
        e(f"buffer_load_dwordx4 {vr(TMP+4,4)}, v{t2}, {srd(sX)}, s60 offen offset:512 {self.o.get('stf', '')}", "stat")
        if not self.o['vq']: e(f"s_load_dword s{sT}, s[{sWS}:{sWS+1}], {WS_Q}")
        e(f"s_mov_b32 s{sW1}, s52\ns_mov_b32 s{sW1+1}, s53\ns_mov_b32 s{sW1+2}, 1835008\ns_mov_b32 s{sW1+3}, 0x20000")
        if not self.o.get('xfirst') and not self.o['xlast']: run(self.dma_x(0))
        e(f"s_mov_b32 s{sW2}, s54\ns_mov_b32 s{sW2+1}, s55\ns_mov_b32 s{sW2+2}, 1835008\ns_mov_b32 s{sW2+3}, 0x20000")
        e(f"s_mov_b32 s{sWS+2}, {WS_SIZE}\ns_mov_b32 s{sWS+3}, 0x20000")
        e(f"s_mov_b32 s{sWR}, s56\ns_mov_b32 s{sWR+1}, s57\ns_mov_b32 s{sWR+2}, 1052672\ns_mov_b32 s{sWR+3}, 0x20000")
        e(f"s_mov_b32 s{sWI}, s58\ns_mov_b32 s{sWI+1}, s59\ns_mov_b32 s{sWI+2}, 1052672\ns_mov_b32 s{sWI+3}, 0x20000")
        e(f"s_mov_b32 s{sOUT+2}, 2097152\ns_mov_b32 s{sOUT+3}, 0x20000")
        if not self.o['tlbB'] and not self.o['tlbA']: self.tlb_warm()
        e(f"s_mov_b32 s{sPOLL}, s63")
        e(f"s_lshl_b32 s{sXS3}, s{sW}, 10\ns_lshl_b32 s{sW2K}, s{sW}, 11\ns_lshl_b32 s{sQB}, s{sQ}, 7\ns_lshl_b32 s56, s{sW}, 14")
        e(f"s_lshr_b32 s50, s{sRB}, 2\ns_lshl_b32 s50, s50, 4\ns_add_u32 s50, s50, s63\ns_lshl_b32 s50, s50, 2\ns_add_u32 s50, s50, s{sW}\ns_lshl_b32 s50, s50, 12\ns_add_u32 s{sCSG}, s50, {WS_CSG}")
        e(f"s_mul_i32 s50, s{sQ}, 7\ns_lshr_b32 s50, s50, 1\ns_and_b32 s51, s{sP}, 3\ns_mul_i32 s51, s51, 7\ns_add_u32 s{sROT}, s50, s51")
        if self.o['xrot']: e(f"s_and_b32 s50, s2, 7\ns_add_u32 s{sROT}, s{sROT}, s50\ns_cmp_ge_u32 s{sROT}, 28\ns_cselect_b32 s50, 28, 0\ns_sub_u32 s{sROT}, s{sROT}, s50")

    def tlb_warm(self, sh=0):
        e = self.e; vW = globals()['vW'] if not sh else 116
        if self.o['tlbw']:
            skip = e.label("tw")
            e(f"s_cmp_lg_u32 s{sW}, {self.o['tlbw'] - 1}\ns_cbranch_scc1 {skip}")
            if self.o.get('tlbfine'):
                pre = [f"s_lshr_b32 s54, s2, 3", f"v_min_u32 v{vW+1}, 7, v{vL}", f"v_lshl_add_u32 v{vW+1}, v{vW+1}, 5, s54", f"v_mul_u32_u24 v{vW+1}, 57344, v{vW+1}",
                       f"v_min_u32 v{vW+2}, 1, v{vL}", f"v_lshl_add_u32 v{vW+2}, v{vW+2}, 5, s54", f"v_lshlrev_b32 v{vW+4}, 15, v{vW+2}", f"v_mul_u32_u24 v{vW+5}, 28672, v{vW+2}", f"v_lshlrev_b32 v{vW+2}, 14, v{vW+2}"]
                a_w2, a_out = vW + 5, vW + 4
            else:
                pre = [f"v_min_u32 v{vW+1}, 6, v{vL}", f"v_lshlrev_b32 v{vW+1}, 21, v{vW+1}", f"v_add_u32 v{vW+1}, 0x100000, v{vW+1}", f"v_min_u32 v{vW+2}, 1, v{vL}", f"v_mul_u32_u24 v{vW+2}, 1052000, v{vW+2}"]
                a_w2 = a_out = vW + 2
            for l in pre + [f"buffer_load_dword v{191 if sh else vW+3}, v{vW+1}, {srd(sWS)}, 0 offen", f"buffer_load_dword v{191 if sh else vW+3}, v{a_w2}, {srd(sW2)}, 0 offen", f"buffer_load_dword v{191 if sh else vW+3}, v{vW+2}, {srd(sWR)}, 0 offen",
                      f"buffer_load_dword v{191 if sh else vW+3}, v{vW+2}, {srd(sWI)}, 0 offen", f"buffer_load_dword v{191 if sh else vW+3}, v{a_out}, {srd(sOUT)}, 0 offen"]: e.l.append("    " + l)
            e(f"{skip}:")
    def chunk(self, t, d):
        return f"s_add_u32 s{d}, s{sC0}, {(t>>1) + 4*(t&1)}\ns_and_b32 s{d}, s{d}, 7\n"
    XSLOT = staticmethod(lambda t: (t + 1) % 3)
    def dma_x(self, t):
        sl = self.XSLOT(t)
        pre = self.chunk(t, 50) + f"s_lshl_b32 s50, s50, 7\ns_add_u32 s50, s50, s{sXROW}\n"
        m0 = f"s_add_u32 m0, s{sXSW}, {L_XS + sl*4096}\n" if sl < 2 else f"s_add_u32 m0, s56, {L_S2}\n"
        return [self.T((m0 + pre if i == 0 else m0) + f"buffer_load_dwordx4 v{vXD[i]}, {srd(sX)}, s50 offen offset:{i*1024} {self.o['ntx'] if t == 0 else self.o['ntx2']} lds", f"x{t}") for i in range(4)]
    def dma_w1(self, ty, t):
        pre = self.chunk(t, 51) + f"s_mul_i32 s51, s51, {64*3584}\ns_add_u32 s52, s51, s{sCOL1}\ns_add_u32 s51, s51, s{sCOL2}\n"
        T = lambda x: self.T(x, f"w1_{t}")
        th = []; fl = self.o['ntw1'] if t < 2 else self.o['ntx2']
        for pr in range(2 - ty):
            p = PAIR[2*(t % 4) + pr] if ty == 0 else BSLOT[t % 6]
            so = "s51" if pr == 0 else "s53"
            th += [T((pre if pr == 0 else "s_add_u32 s53, s51, 128\n") + f"s_add_u32 m0, s{sW2K}, {p}\nbuffer_load_dwordx4 v{vSD[0]}, {srd(sW1)}, {so} offen {fl} lds"),
                   T(f"s_add_u32 m0, s{sW2K}, {p}\nbuffer_load_dwordx4 v{vSD[1]}, {srd(sW1)}, {so} offen offset:1024 {fl} lds")]
        if ty == 0:
            th.append(T(f"s_add_u32 m0, s{sXS3}, {SING[t % 4]}\nbuffer_load_dwordx4 v{vS1D}, {srd(sW1)}, s52 offen {fl} lds"))
        return th

    def addr_setup(self):
        e = self.e
        t0, t1, t2, t3 = vTMP, vTMP+1, vTMP+2, vTMP+3
        e(f"""v_and_b32 v{t0}, 31, v{vL}
v_lshrrev_b32 v{t1}, 5, v{vL}
v_bfe_u32 v{t2}, v{vL}, 1, 3
v_xor_b32 v{t2}, v{t2}, v{t1}
v_lshlrev_b32 v{t2}, 4, v{t2}
v_lshl_add_u32 v{t2}, v{t0}, 7, v{t2}
v_add_u32 v{vXR[0]}, s{sXSW}, v{t2}
v_xor_b32 v{vXR[1]}, 32, v{vXR[0]}
v_xor_b32 v{vXR[2]}, 64, v{vXR[0]}
v_xor_b32 v{vXR[3]}, 96, v{vXR[0]}
s_add_u32 s50, s56, {L_S2}
v_add_u32 v{vXR2[0]}, s50, v{t2}
v_xor_b32 v{vXR2[1]}, 32, v{vXR2[0]}
v_xor_b32 v{vXR2[2]}, 64, v{vXR2[0]}
v_xor_b32 v{vXR2[3]}, 96, v{vXR2[0]}""")
        e(f"""v_bfe_u32 v{t0}, v{vL}, 2, 2
v_lshl_add_u32 v{t2}, v{t1}, 3, v{t0}
v_and_b32 v{t3}, 3, v{vL}
v_lshlrev_b32 v{t3}, 3, v{t3}
v_and_b32 v{vTMP+4}, 16, v{vL}
v_lshl_add_u32 v{t3}, v{vTMP+4}, 1, v{t3}
v_lshl_add_u32 v{vTS}, v{t2}, 6, v{t3}
v_add_u32 v{vTS}, {L_S2}, v{vTS}
v_lshl_add_u32 v{t3}, v{t2}, 7, v{t3}
v_and_b32 v{vTMP+4}, 8, v{vL}
v_lshl_add_u32 v{t3}, v{vTMP+4}, 3, v{t3}
v_add_u32 v{vT1[0]}, {L_S1}, v{t3}
v_xor_b32 v{vT1[1]}, 64, v{vT1[0]}
v_add_u32 v{vT2[0]}, {L_S2}, v{t3}
v_xor_b32 v{vT2[1]}, 64, v{vT2[0]}
s_lshl_b32 s50, s{sW}, 11
v_add_u32 v{vC2[0]}, s50, v{vT2[0]}
v_add_u32 v{vC2[1]}, s50, v{vT2[1]}
v_add_u32 v{vC1[0]}, s50, v{vT1[0]}
v_add_u32 v{vC1[1]}, s50, v{vT1[1]}
v_add_u32 v{vCSS}, s{sXS3}, v{vTS}
v_add_u32 v{vFD}, {L_FD}, v{vL16}
v_mov_b32 v{vONES}, 0x3f803f80
v_mov_b32 v{vONES+1}, 0x3f803f80""")

    def stats(self):
        e = self.e
        U = 96
        for i in range(8):
            e(f"v_lshlrev_b32 v{U+2*i}, 16, v{TMP+i}\nv_and_b32 v{U+2*i+1}, 0xffff0000, v{TMP+i}")
        def reduce(src, n, acc):
            e(f"v_add_f32 v{acc}, v{src}, v{src+1}\nv_add_f32 v{acc+1}, v{src+2}, v{src+3}")
            for i in range(4, n, 2):
                e(f"v_add_f32 v{acc}, v{acc}, v{src+i}\nv_add_f32 v{acc+1}, v{acc+1}, v{src+i+1}")
            e(f"v_add_f32 v{acc}, v{acc}, v{acc+1}")
            for k in (8, 4, 2, 1):
                e(f"v_add_f32_dpp v{acc}, v{acc}, v{acc} row_ror:{k} row_mask:0xf bank_mask:0xf")
            e(f"v_mov_b32 v{acc+1}, v{acc}\nv_permlane16_swap_b32 v{acc}, v{acc+1}\nv_add_f32 v{acc}, v{acc}, v{acc+1}")
        M = 112
        reduce(U, 16, M)
        e(f"v_mul_f32 v{M}, {fhex(1/512)}, v{M}")
        for i in range(16):
            e(f"v_sub_f32 v{U+i}, v{U+i}, v{M}")
        for i in range(16):
            e(f"v_mul_f32 v{U+i}, v{U+i}, v{U+i}")
        reduce(U, 16, M+2)
        e(f"v_mov_b32 v{M+3}, {fhex(1e-5)}\nv_fmac_f32 v{M+3}, {fhex(1/512)}, v{M+2}\nv_rsq_f32 v{M+2}, v{M+3}")
        if self.o['vq']: e(f"v_readfirstlane_b32 s{sT}, v{vW}")
        else: e.l.append("    s_waitcnt lgkmcnt(0)"); e.lg = []
        e(f"s_mul_i32 s{sT}, s{sT}, 0x9E3779B1\ns_add_u32 s{sT}, s{sT}, 0x7F4A7C15")
        e(f"v_mov_b32 v{M+1}, s{sT}\nv_mov_b32 v{M+3}, s{sT}")
        e(f"s_xor_b32 s54, s{sXROW}, {4096 * self.o['strb']}\ns_lshr_b32 s54, s54, 1\ns_lshl_b32 s60, s{sPOLL}, 5\ns_add_u32 s54, s54, s60\ns_add_u32 s54, s54, {WS_STATS}")
        e(f"v_lshrrev_b32 v{vTMP}, 5, v{vL}\nv_lshlrev_b32 v{vTMP}, 4, v{vTMP}\nv_and_b32 v{vTMP+1}, 31, v{vL}\nv_cmp_eq_u32 vcc, 0, v{vTMP+1}")
        e(f"s_and_saveexec_b64 s[58:59], vcc")
        e(f"buffer_store_dwordx4 {vr(M,4)}, v{vTMP}, {srd(sWS)}, s54 offen sc1", "statst")
        e(f"s_mov_b64 exec, s[58:59]")

    def trig(self, n, ang, inc, step, regs, use, group=1, first=None):
        T = self.T; th = []; pend = []
        for g in range(n // group):
            cs = []
            for b in range(group):
                i = g*group + b
                c, s_ = regs[(g & 1)*group + b]
                a = first if (first is not None and i == 0) else ang
                th += [T(f"v_cos_f32 v{c}, v{a}"), T(f"v_sin_f32 v{s_}, v{a}")]
                if i < n - 1:
                    k = step(i)
                    th.append(T(f"v_add_f32 v{ang}, v{ang}, v{inc}") if k == 1 else T(f"v_fmac_f32 v{ang}, {fhex(float(k))}, v{inc}"))
                cs.append((c, s_))
            th += pend
            pend = use(g, cs)
        return th + pend

    def rot(self, zs, rho, tmp):
        T = self.T
        return ([T(f"v_pk_mul_f32 {vr(tmp+2*i,2)}, {vr(z,2)}, {vr(rho,2)} op_sel_hi:[1,0]") for i, z in enumerate(zs)] +
                [T(f"v_pk_fma_f32 {vr(z,2)}, {vr(z,2)}, {vr(rho,2)}, {vr(tmp+2*i,2)} op_sel:[1,1,0] op_sel_hi:[0,1,1] neg_lo:[0,1,0]") for i, z in enumerate(zs)])
    def gen_a2a3(self):
        T = self.T; th = []
        t0, t1, t2, t3, k2, n2, sg = [TMP + 16 + i for i in range(7)]
        ang, inc = TMP + 24, TMP + 25
        regs = [(TMP + 26, TMP + 27), (TMP + 28, TMP + 29)]
        pk = TMP + 26
        th += self.TL(f"""v_bfe_u32 v{t0}, v{vL}, 4, 1
v_bfe_u32 v{t1}, v{vL}, 3, 1
v_bfe_u32 v{t2}, v{vL}, 2, 1
v_bfe_u32 v{t3}, v{vL}, 1, 1
v_lshl_add_u32 v{k2}, v{t1}, 1, v{t3}
v_lshl_add_u32 v{k2}, v{t2}, 2, v{k2}
v_lshl_add_u32 v{k2}, v{t0}, 3, v{k2}
s_lshl_b32 s98, s{sW}, 4
v_add_u32 v{k2}, s98, v{k2}
v_and_b32 v{n2}, 1, v{vL}
v_cvt_f32_u32 v{ang}, v{n2}
v_mul_f32 v{ang}, 0x3e800000, v{ang}
v_cvt_f32_u32 v{inc}, v{k2}
v_mul_f32 v{inc}, {fhex(1/64)}, v{inc}
v_lshrrev_b32 v{k2}, 5, v{vL}
v_lshlrev_b32 v{k2}, 2, v{k2}
v_cvt_f32_u32 v{k2}, v{k2}
v_fmac_f32 v{ang}, v{k2}, v{inc}
s_mov_b32 s98, 0x80008000
v_mul_lo_u32 v{sg}, v{t3}, s98""")
        def use(dst, neg):
            def f(g, cs):
                c, s_ = cs[0]; p = TMP + 30 + 2*(g & 1)
                return [T(f"v_cvt_pk_bf16_f32 v{p}, v{c}, {'-' if neg else ''}v{s_}"), T(f"v_xor_b32 v{p+1}, v{p}, v{sg}"),
                        T(f"v_accvgpr_write_b32 a{dst+g}, v{p}"), T(f"v_accvgpr_write_b32 a{dst+16+g}, v{p+1}")]
            return f
        st4 = lambda i: 1 if (i & 3) < 3 else 5
        th += self.trig(16, ang, inc, st4, regs, use(aA2, False))
        self.n_a2 = len(th)
        th += self.TL(f"""v_bfe_u32 v{n2}, v{vL}, 3, 2
v_lshl_add_u32 v{n2}, v{n2}, 1, v{t2}
v_and_b32 v{t0}, 1, v{vL}
v_lshl_add_u32 v{n2}, v{n2}, 1, v{t0}
s_mov_b32 s98, 0x80008000
v_mul_lo_u32 v{sg}, v{t0}, s98
s_lshl_b32 s98, s{sW}, 4
v_add_u32 v{n2}, s98, v{n2}
v_cvt_f32_u32 v{n2}, v{n2}
v_mul_f32 v{inc}, {fhex(1/64)}, v{n2}
v_cvt_f32_u32 v{ang}, v{t3}
v_mul_f32 v{ang}, 0xbe800000, v{ang}
v_cvt_f32_u32 v{t0}, s{sK1}
v_mul_f32 v{t0}, {fhex(1/2048)}, v{t0}
v_fmac_f32 v{ang}, v{t0}, v{n2}
v_fmac_f32 v{ang}, v{k2}, v{inc}""")
        th += self.trig(16, ang, inc, st4, regs, use(aA3, True))
        return th

    def gen_fd(self):
        T = self.T; th = []
        kc, inc, ang, t0 = TMP + 12, TMP + 13, TMP + 14, TMP + 15
        regs = [(TMP + 16 + 2*i, TMP + 17 + 2*i) for i in range(4)]
        PC, PS = TMP + 24, TMP + 32
        th += self.TL(f"""v_and_b32 v{kc}, 31, v{vL}
s_lshl_b32 s50, s{sBLK}, 5
v_add_u32 v{kc}, s50, v{kc}
v_and_b32 v{t0}, 1, v{kc}
v_lshlrev_b32 v{t0}, 31, v{t0}
v_xor_b32 v{vSIG}, 1.0, v{t0}
v_mov_b32 v{t0}, 0x100
v_cmp_eq_u32 vcc, 0, v{kc}
v_cndmask_b32 v{kc}, v{kc}, v{t0}, vcc
s_add_u32 s50, s{sC0}, s{sW}
s_lshl_b32 s50, s50, 6
v_lshrrev_b32 v{t0}, 5, v{vL}
v_lshlrev_b32 v{t0}, 3, v{t0}
v_add_u32 v{t0}, s50, v{t0}
v_mul_u32_u24 v{t0}, v{t0}, v{kc}
v_and_b32 v{t0}, 511, v{t0}
v_cvt_f32_u32 v{ang}, v{t0}
v_mul_f32 v{ang}, {fhex(1/512)}, v{ang}
v_cvt_f32_u32 v{inc}, v{kc}
v_mul_f32 v{inc}, {fhex(1/512)}, v{inc}
s_lshl_b32 s50, s{sW}, 13
v_add_u32 v{t0}, s50, v{vFD}""")
        C, S, TM, RC, RS = TMP + 12 + 28, 96, 104, 112, 114
        C = 120
        th += self.TL(f"v_mul_f32 v{kc}, {fhex(16.0)}, v{inc}\nv_cos_f32 v{RC}, v{kc}\nv_sin_f32 v{RS}, v{kc}")
        for e_ in range(8):
            th += [T(f"v_cos_f32 v{C+e_}, v{ang}"), T(f"v_sin_f32 v{S+e_}, v{ang}")]
            if e_ < 7: th.append(T(f"v_add_f32 v{ang}, v{ang}, v{inc}"))
        th += self.TL(f"v_mov_b32 v{RC+1}, v{RC}\nv_mov_b32 v{RS+1}, v{RS}")
        for ks in range(4):
            o = 4*(ks & 1)
            if ks >= 2: th.append(self.W(lg=f"fdw{ks-2}"))
            th += [T(f"v_cvt_pk_bf16_f32 v{PC+o+q}, v{C+2*q}, v{C+2*q+1}") for q in range(4)]
            th += [T(f"v_cvt_pk_bf16_f32 v{PS+o+q}, -v{S+2*q}, -v{S+2*q+1}") for q in range(4)]
            if ks < 3:
                th += [T(f"v_pk_mul_f32 {vr(TM+2*q,2)}, {vr(S+2*q,2)}, {vr(RS,2)}") for q in range(4)]
                th += [T(f"v_pk_mul_f32 {vr(S+2*q,2)}, {vr(S+2*q,2)}, {vr(RC,2)}") for q in range(4)]
                th += [T(f"v_pk_fma_f32 {vr(S+2*q,2)}, {vr(C+2*q,2)}, {vr(RS,2)}, {vr(S+2*q,2)}") for q in range(4)]
                th += [T(f"v_pk_fma_f32 {vr(C+2*q,2)}, {vr(C+2*q,2)}, {vr(RC,2)}, {vr(TM+2*q,2)} neg_lo:[0,0,1] neg_hi:[0,0,1]") for q in range(4)]
            th += [T(f"ds_write_b128 v{t0}, {vr(PC+o,4)} offset:{ks*2048}", f"fdw{ks}"), T(f"ds_write_b128 v{t0}, {vr(PS+o,4)} offset:{ks*2048+1024}", f"fdw{ks}")]
        th.append(self.W(lg="fdw3"))
        return th
    def gen_g1(self):
        T = self.T; th = []
        kc, inc, ang, t0, sg = TMP + 12, TMP + 13, TMP + 14, TMP + 15, TMP + 36
        regs = [(TMP + 16 + 2*i, TMP + 17 + 2*i) for i in range(4)]
        P = TMP + 24
        th += self.TL(f"""v_and_b32 v{kc}, 31, v{vL}
v_and_b32 v{t0}, 1, v{vL}
s_mov_b32 s54, 0x80008000
v_mul_lo_u32 v{sg}, v{t0}, s54
v_cvt_f32_u32 v{kc}, v{kc}
v_mul_f32 v{inc}, {fhex(1/32)}, v{kc}
s_lshr_b32 s54, s{sXROW}, 10
v_cvt_f32_u32 v{ang}, s54
v_mul_f32 v{ang}, {fhex(1/2048)}, v{ang}
v_mul_f32 v{ang}, v{ang}, v{kc}
v_lshrrev_b32 v{t0}, 5, v{vL}
v_lshlrev_b32 v{t0}, 2, v{t0}
v_cvt_f32_u32 v{t0}, v{t0}
v_fmac_f32 v{ang}, v{t0}, v{inc}""")
        def use(q, cs):
            r = [T(f"v_cvt_pk_bf16_f32 v{P}, v{cs[0][0]}, v{cs[1][0]}"), T(f"v_cvt_pk_bf16_f32 v{P+1}, v{cs[0][1]}, v{cs[1][1]}"),
                 T(f"v_cvt_pk_bf16_f32 v{P+2}, -v{cs[0][1]}, -v{cs[1][1]}")]
            for k in range(3): r.append(T(f"v_xor_b32 v{P+3+k}, v{P+k}, v{sg}"))
            for k in range(3): r += [T(f"v_accvgpr_write_b32 a{aG1+8*k+q}, v{P+k}"), T(f"v_accvgpr_write_b32 a{aG1+8*k+4+q}, v{P+3+k}")]
            return r
        th += self.trig(8, ang, inc, lambda i: 5 if (i & 3) == 3 else 1, regs, use, group=2)
        return th

    def pair_addr(self, ty, t, pr, cs=False):
        a = PAIR[2*(t % 4) + pr] if ty == 0 else BSLOT[t % 6]
        if a < L_S2: return (vC1 if cs else vT1), a - L_S1
        return (vC2 if cs else vT2), a - L_S2
    def csum_grp(self, tag, tiles, first):
        T = self.T; rd, mm = [], []
        for i, (ad, off, stp, tl) in enumerate(tiles):
            for eh in range(2):
                rd.append(T(f"ds_read_b64_tr_b16 {vr(vCSF[i]+2*eh,2)}, v{ad} offset:{off + eh*stp}", tag))
        mm.append(self.W(lg=tag))
        for eh in range(2):
            for i, (ad, off, stp, tl) in enumerate(tiles):
                c = "0" if (first and eh == 0) else vr(vCSA[tl], 4)
                mm.append(T(f"v_mfma_f32_4x4x4_16b_bf16 {vr(vCSA[tl],4)}, {vr(vONES,2)}, {vr(vCSF[i]+2*eh,2)}, {c}"))
        return rd, mm
    def csum_publish(self, nt):
        th = [self.T(f"s_lshl_b32 s60, s{sW}, 2\nv_add_u32 v{vTMP}, s60, v{vL16}")]
        th += [self.T(f"ds_write_b32 v{vTMP}, v{vCSA[dt]} offset:{L_CS + dt*1024}", "csw") for dt in range(nt)]
        return th
    def cs_tiles(self, ty):
        return [f"s_mov_b32 s60, s{sW}", "s_mov_b32 s60, 4"] if ty == 0 else [f"s_and_b32 s60, s{sW}, 1"] * 2
    def csum_send(self, ty):
        T = self.T; F = [vCSF[0], vCSF[1]]; rd, th = [], []
        for k, code in enumerate(self.cs_tiles(ty)):
            rd.append(T(f"{code}\ns_lshl_b32 s60, s60, 10\nv_add_u32 v{vTMP+1+k}, s60, v{vL16}\nds_read_b128 {vr(F[k],4)}, v{vTMP+1+k} offset:{L_CS}", "csr"))
        a, b = F
        th = [self.W(lg="csr")] + self.TL(f"""v_add_f32 v{a}, v{a}, v{a+1}
v_add_f32 v{a+2}, v{a+2}, v{a+3}
v_add_f32 v{b}, v{b}, v{b+1}
v_add_f32 v{b+2}, v{b+2}, v{b+3}
v_add_f32 v{a}, v{a}, v{a+2}
v_mov_b32 v{a+1}, s{sT}
v_add_f32 v{a+2}, v{b}, v{b+2}
v_mov_b32 v{a+3}, s{sT}
v_lshrrev_b32 v{vTMP+1}, 1, v{vTMP+1}
v_lshrrev_b32 v{vTMP+2}, 1, v{vTMP+2}""")
        st = [T(f"s_and_b32 s60, s{sRB}, 3\ns_lshl_b32 s60, s60, 10\ns_add_u32 s60, s60, s{sCSG}\nbuffer_store_dwordx4 {vr(a,4)}, v{vL16}, {srd(sWS)}, s60 offen sc1", "css")]
        return rd, th, st
    CL = TMP + 4
    def csum_load(self, ty):
        return [self.T(f"buffer_load_dwordx4 {vr(self.CL+4*i,4)}, v{vL16}, {srd(sWS)}, s{sCSG} offen offset:{1024*i} sc1", "csl") for i in range(4)]
    def csum_check(self, ty):
        e = self.e
        e.wait(vm="csl")
        tags = [self.CL + 1 + 2*j for j in range(8)]
        t = f"v_xor_b32 v{vTMP+3}, s{sT}, v{tags[0]}\nv_xor_b32 v{vTMP+5}, s{sT}, v{tags[1]}\n"
        for k in range(2, 8, 2): t += f"v_bitop3_b32 v{vTMP+3}, v{tags[k]}, s{sT}, v{vTMP+3} bitop3:0xbe\nv_bitop3_b32 v{vTMP+5}, v{tags[k+1]}, s{sT}, v{vTMP+5} bitop3:0xbe\n"
        self.spin(t + f"v_or_b32 v{vTMP+3}, v{vTMP+3}, v{vTMP+5}\nv_cmp_ne_u32 vcc, 0, v{vTMP+3}", [th.txt for th in self.csum_load(ty)], 53)
    def csum_build(self, ty):
        C = self.CL; seq = []
        for k in range(2):
            F = C + 2*k
            seq.append([f"v_add_f32 v{F}, v{F}, v{F+4}", f"v_add_f32 v{F+8}, v{F+8}, v{F+12}", f"v_add_f32 v{F}, v{F}, v{F+8}",
                        f"v_cvt_pk_bf16_f32 v{F+5}, v{F}, v{F}", f"v_and_b32 v{F+1}, 0xffff0000, v{F+5}", f"v_sub_f32 v{F+8}, v{F}, v{F+1}", f"v_cvt_pk_bf16_f32 v{F+4}, v{F+1}, v{F+8}"])
        th = [self.T(seq[k][j]) for j in range(7) for k in range(2)]
        return th + [self.T(f"ds_write_b64 v{vTMP+1+k}, {vr(C+2*k+4,2)} offset:{L_CS}", "cxw") for k in range(2)]
    def csum_get(self, nt):
        if self.two():
            return [self.T(f"s_and_b32 s60, s{sW}, 1\ns_lshl_b32 s60, s60, 10\nv_lshlrev_b32 v{vTMP+3}, 3, v{vL}\nv_add_u32 v{vTMP+5}, s60, v{vTMP+3}")] + \
                   [self.T(f"ds_read_b64 {vr(vAX[dt],2)}, v{vTMP+5} offset:{L_CS + dt*512}", "cxr") for dt in range(2)] + [self.T(f"ds_read_b64 {vr(vAX[2],2)}, v{vTMP+3} offset:{L_CS + 4*512}", "cxr")]
        return [self.T(f"v_lshlrev_b32 v{vTMP+3}, 3, v{vL}")] + [self.T(f"ds_read_b64 {vr(vAX[dt],2)}, v{vTMP+3} offset:{L_CS + dt*512}", "cxr") for dt in range(nt)]
    def csum_fetch(self, nt):
        return [self.T(f"ds_read_b128 {vr(vCSA[dt],4)}, v{vL16} offset:{L_CS + dt*1024}", "csr") for dt in range(nt)]
    def csum_prep(self, nt):
        th = [self.W(lg="csr")]
        seq = []
        for dt in range(nt):
            F, A = vCSA[dt], vAX[dt]
            seq.append([f"v_add_f32 v{F}, v{F}, v{F+1}", f"v_add_f32 v{F+2}, v{F+2}, v{F+3}", f"v_add_f32 v{F}, v{F}, v{F+2}",
                        f"v_cvt_pk_bf16_f32 v{A+1}, v{F}, v{F}", f"v_and_b32 v{F+1}, 0xffff0000, v{A+1}", f"v_sub_f32 v{F+2}, v{F}, v{F+1}", f"v_cvt_pk_bf16_f32 v{A}, v{F+1}, v{F+2}"])
        for k in range(7):
            for dt in range(nt): th.append(self.T(seq[dt][k]))
        return th
    def csum_apply(self, nt):
        if self.two():
            return [self.T(f"v_mfma_f32_32x32x16_bf16 {vr(ACCA+16*dt,16)}, {vr(vAX[dt >> 1],4)}, {vr(vBXb if dt & 1 else vBX,4)}, {vr(ACCA+16*dt,16)}") for dt in range(5)]
        return [self.T(f"v_mfma_f32_32x32x16_bf16 {vr(ACCA+16*dt,16)}, {vr(vAX[dt],4)}, {vr(vBX,4)}, {vr(ACCA+16*dt,16)}") for dt in range(nt)]

    def two(self): return self.ty == 0 and self.o['t64']
    def stats_fetch(self):
        e = self.e
        e(f"s_lshr_b32 s63, s{sXROW}, 1\ns_add_u32 s63, s63, {WS_STATS}\nv_and_b32 v{vTMP+4}, 31, v{vL}\nv_lshlrev_b32 v{vTMP+4}, 4, v{vTMP+4}")
        e(f"buffer_load_dwordx4 {vr(TMP,4)}, v{vTMP+4}, {srd(sWS)}, s63 offen sc1", "stl")
        if self.two(): e(f"s_xor_b32 s99, s63, 512\nbuffer_load_dwordx4 {vr(TMP+20,4)}, v{vTMP+4}, {srd(sWS)}, s99 offen sc1", "stl")
    def stats_use(self, ty):
        e = self.e
        e.wait(vm="stl")
        test = f"v_cmp_ne_u32 vcc, s{sT}, v{TMP+1}\nv_cmp_ne_u32 s[54:55], s{sT}, v{TMP+3}\ns_or_b64 vcc, vcc, s[54:55]"
        lds = [f"buffer_load_dwordx4 {vr(TMP,4)}, v{vTMP+4}, {srd(sWS)}, s63 offen sc1"]
        if self.two():
            test = (f"v_xor_b32 v{vTMP+3}, s{sT}, v{TMP+1}\nv_xor_b32 v{vTMP+5}, s{sT}, v{TMP+3}\nv_bitop3_b32 v{vTMP+3}, v{TMP+21}, s{sT}, v{vTMP+3} bitop3:0xbe\n"
                    f"v_bitop3_b32 v{vTMP+5}, v{TMP+23}, s{sT}, v{vTMP+5} bitop3:0xbe\nv_or_b32 v{vTMP+3}, v{vTMP+3}, v{vTMP+5}\nv_cmp_ne_u32 vcc, 0, v{vTMP+3}")
            lds.append(f"buffer_load_dwordx4 {vr(TMP+20,4)}, v{vTMP+4}, {srd(sWS)}, s99 offen sc1")
        self.spin(test, lds, 57)
        for m, c1, ri, bx in [(TMP, vNC1, vRINV, vBX)] + ([(TMP + 20, vNC1b, vRINVb, vBXb)] if self.two() else []):
            r = m + 2
            e(f"v_mul_f32 v{c1}, {fhex(-LOG2E)}, v{r}\nv_rcp_f32 v{ri}, v{r}")
            e(f"v_cvt_pk_bf16_f32 v{bx}, -v{m}, -v{m}\nv_mov_b32 v{bx+2}, 0\nv_and_b32 v{m+1}, 0xffff0000, v{bx}\nv_mov_b32 v{bx+3}, 0\nv_sub_f32 v{m+1}, -v{m}, v{m+1}")
            e(f"v_cvt_pk_bf16_f32 v{bx+1}, v{m+1}, v{bx+2}")
        r = TMP + 2
        if ty == 1:
            e(f"s_lshl_b32 s60, s{sW}, 7\nv_lshrrev_b32 v{vTMP+4}, 2, v{vTMP+4}\nv_add_u32 v{vTMP+4}, s60, v{vTMP+4}")
            e(f"ds_write_b32 v{vTMP+4}, v{r} offset:{L_RB}", "rbw")

    def silu(self, tiles):
        T = self.T; th = self.TL(f"v_mov_b32 v{vTMP}, v{vNC1}\nv_mov_b32 v{vTMP+1}, v{vNC1}\nv_mov_b32 v{vTMP+2}, v{vRINV}\nv_mov_b32 v{vTMP+3}, v{vRINV}")
        cur = 0
        for acc, hb, off, grp in tiles:
            if grp != cur:
                th += self.TL(f"v_mov_b32 v{vTMP}, v{vNC1b}\nv_mov_b32 v{vTMP+1}, v{vNC1b}\nv_mov_b32 v{vTMP+2}, v{vRINVb}\nv_mov_b32 v{vTMP+3}, v{vRINVb}"); cur = grp
            for f in range(2):
                P = TMP + 8 + 4 * f
                for q in range(2):
                    a = acc + 8*f + 4*q
                    u = TMP + 4 * q
                    th += [T(f"v_pk_mul_f32 {vr(u+k,2)}, {vr(a+k,2)}, {vr(vTMP,2)}") for k in (0, 2)]
                    th += [T(f"v_exp_f32 v{u+k}, v{u+k}") for k in range(4)]
                    th += [T(f"v_pk_fma_f32 {vr(u+k,2)}, {vr(u+k,2)}, {vr(vTMP+2,2)}, {vr(vTMP+2,2)}") for k in (0, 2)]
                    th += [T(f"v_rcp_f32 v{u+k}, v{u+k}") for k in range(4)]
                    th += [T(f"v_pk_mul_f32 {vr(u+k,2)}, {vr(u+k,2)}, {vr(a+k,2)}") for k in (0, 2)]
                    th += [T(f"v_cvt_pk_bf16_f32 v{P+2*q+k}, v{u+2*k}, v{u+2*k+1}") for k in range(2)]
                th.append(T(f"buffer_store_dwordx4 {vr(P,4)}, v{vL16}, {srd(sWS)}, s{hb} offen offset:{off + f*1024} {self.o.get('hst', 'sc1')}", "h2")); th[-1].st = True
        return th

    def pipeline2(self, units, LA, bounds, streams, mem, pinned, extra, early, P, between, early2):
        sel = lambda L, lo, hi: [(th, a - lo, b - lo) for th, a, b in L if lo <= a < hi]
        for L in (streams, mem, extra):
            for th, a, b in L: assert (a < P) == (b < P), (a, b)
        sh = lambda d, lo, hi: {k - lo: v for k, v in d.items() if lo <= k < hi}
        N = len(units)
        self.pipeline(units[:P], LA, sh(bounds, 0, P), sel(streams, 0, P), sel(mem, 0, P), sh(pinned, 0, P), sel(extra, 0, P), early)
        run(between)
        u2 = [(u[0], u[1]) for u in units[P:]]
        self.pipeline(u2, LA, sh(bounds, P, N + LA), sel(streams, P, N), sel(mem, P, N), sh(pinned, P, N), sel(extra, P, N), early2, off=P)
    def pipeline(self, units, LA, bounds, streams, mem, pinned, extra, early, off=0):
        e = self.e; N = len(units)
        fills = [[] for _ in range(N)]; mj = [[] for _ in range(N)]; rd = {g: [] for g in range(-LA, N)}
        for th, u0, u1 in mem:
            for i, t in enumerate(th): mj[u0 + i * (u1 - u0 + 1) // len(th)].append(t)
        dat = sorted(b for b in bounds if bounds[b][0])
        w = lambda t: 2 if 'b128' in t.txt else 1
        items = []
        for m in range(N):
            lo = max(max([b for b in dat if b <= m], default=0) - LA, m - self.o['lamax'], units[m][2] if len(units[m]) > 2 else -LA)
            items += [[lo, m - self.o['lamin'], t] for t in units[m][0]]
        ex = [[u0, u1, t] for th, u0, u1 in extra for t in th]
        for g in range(-LA, N):
            room = (2 if mj[g] else 3) if g >= 0 else 4
            room -= self.o['vcap'] * sum(1 for th, u0, u1 in streams if u0 <= g <= u1 and len(th) > 3*(u1 - u0 + 1))
            for lst in (items, ex):
                while lst and lst[0][1] <= g:
                    t = lst.pop(0)[2]; rd[g].append(t); room -= w(t)
            for lst in (items, ex):
                while lst and lst[0][0] <= g and room >= w(lst[0][2]):
                    t = lst.pop(0)[2]; rd[g].append(t); room -= w(t)
        assert not items and not ex
        cap = [max(0.5, 6.0 - len(rd[u]) - 5*len(mj[u])) for u in range(N)]
        for th, u0, u1 in streams:
            for k, grp in zip(range(u0, u1 + 1), spread(th, cap[u0:u1 + 1])): fills[k] += grp
        def boundary(m):
            if m not in bounds: return
            tags, pre = bounds[m]
            if m + off in self.o.get('bst', {}).get(self.ty, ()): self.xs(f"b{self.ty}_{m+off}")
            lt = m + off in self.o.get('lst', {}).get(self.ty, ())
            if lt: self.light()
            if tags: e.wait(vm=tags)
            if lt: self.light()
            run(pre)
            e("s_barrier")
            if lt and self.nl < 4 and not self.o.get('l2'): self.light()
        for u in range(-LA, N):
            if u >= 0:
                e.wait(lg=f"r{u+off}")
                e(units[u][1])
            boundary(u + LA)
            if u >= 0: run(mj[u])
            run(rd[u])
            if u == -1: run(early)
            if u < 0: continue
            run(fills[u]); run(pinned.get(u, []))

    def x_read(self, u, k, dst, other=False):
        t, ks = k >> 2, k & 3; sl = self.XSLOT(t)
        if sl < 2: return [self.T(f"ds_read_b128 {ar(dst,4)}, v{(vXRb if other else vXR)[ks]} offset:{sl*4096}", f"r{u}")]
        return [self.T(f"ds_read_b128 {ar(dst,4)}, v{(vXR2b if other else vXR2)[ks]}", f"r{u}")]
    def t64_setup(self):
        th = [f"v_xor_b32 v{vXRb[k]}, 0x2000, v{vXR[k]}" for k in range(4)]
        th += [f"s_xor_b32 s54, s56, 0x4000", f"s_sub_u32 s54, s54, s56"] + [f"v_add_u32 v{vXR2b[k]}, s54, v{vXR2[k]}" for k in range(4)]
        th += [f"s_and_b32 s54, s{sW}, 1", f"s_lshl_b32 s54, s54, 13", f"v_add_u32 v{vT1[0]}, s54, v{vT1[0]}", f"v_add_u32 v{vT1[1]}, s54, v{vT1[1]}",
               f"s_lshl_b32 s54, s54, 1", f"v_add_u32 v{vT2[0]}, s54, v{vT2[0]}", f"v_add_u32 v{vT2[1]}, s54, v{vT2[1]}"]
        return [self.T("\n".join(th))]
    def ffn_unit(self, u, k, ad, off, stp, tile, xreg, nb, fi=None):
        fb = aFB + 4 * (((u if fi is None else fi) + 2) % nb); acc = ACCA + 16*tile
        r = [self.T(f"ds_read_b64_tr_b16 {ar(fb+2*eh,2)}, v{ad} offset:{off + eh*stp}", f"r{u}") for eh in range(2)]
        return r, f"v_mfma_f32_32x32x16_bf16 {vr(acc,16)}, {ar(fb,4)}, {ar(xreg,4)}, {'0' if k == 0 else vr(acc,16)}"

    def z1_rl(self):
        T = self.T; th = []
        R = TMP + 16; t = [TMP + 32 + i for i in range(4)]
        th.append(self.W(lg="rbw"))
        th.append(T(f"s_lshl_b32 s60, s{sW}, 7\nv_lshrrev_b32 v{t[0]}, 5, v{vL}\nv_lshlrev_b32 v{t[0]}, 4, v{t[0]}\nv_add_u32 v{t[0]}, s60, v{t[0]}"))
        th += [T(f"ds_read_b128 {vr(R+4*j,4)}, v{t[0]} offset:{L_RB + j*32}", "rbr") for j in range(4)]
        th += self.TL(f"v_and_b32 v{t[1]}, 31, v{vL}\nv_or_b32 v{t[1]}, s{sBLK}, v{t[1]}\nv_mov_b32 v{t[2]}, {fhex(2.0**-19)}\nv_mov_b32 v{t[3]}, {fhex(2.0**-20)}")
        th.append(T(f"v_cmp_eq_u32 vcc, 0, v{t[1]}\nv_cndmask_b32 v{t[2]}, v{t[2]}, v{t[3]}, vcc"))
        th += self.TL(f"v_mov_b32 v{vTMP}, v{vSIG}\nv_mov_b32 v{vTMP+1}, v{vSIG}")
        th.append(self.W(lg="rbr"))
        th += [T(f"v_mul_f32 v{R+i}, v{R+i}, v{t[2]}") for i in range(16)]
        return th
    def z1_prep(self):
        T = self.T; th = []; R = TMP + 16
        for h in range(2):
            th += [T(f"v_pk_fma_f32 {vr(ACCD+16*h+i,2)}, {vr(ACCD+32+16*h+i,2)}, {vr(vTMP,2)}, {vr(ACCD+16*h+i,2)}") for i in range(0, 16, 2)]
            th += [T(f"v_pk_mul_f32 {vr(ACCD+16*h+i,2)}, {vr(ACCD+16*h+i,2)}, {vr(R+i,2)}") for i in range(0, 16, 2)]
        th += [T(f"v_cvt_pk_bf16_f32 v{ACCD+32+i}, v{ACCD+2*i}, v{ACCD+2*i+1}") for i in range(16)]
        return th
    def z1_mfma(self):
        PT = ACCD + 32; Zr, Zi = ACCD, ACCD + 16
        C = lambda j: ar(aG1+4*j, 4); S = lambda j: ar(aG1+8+4*j, 4); N = lambda j: ar(aG1+16+4*j, 4)
        Tr = lambda j: vr(PT+4*j, 4); Ti = lambda j: vr(PT+8+4*j, 4)
        seq = [(Zr, C(0), Tr(0)), (Zi, N(0), Tr(0)), (Zr, C(1), Tr(1)), (Zi, N(1), Tr(1)), (Zr, S(0), Ti(0)), (Zi, C(0), Ti(0)), (Zr, S(1), Ti(1)), (Zi, C(1), Ti(1))]
        return [self.T(f"v_mfma_f32_32x32x16_bf16 {vr(d,16)}, {a}, {b}, {'0' if i < 2 else vr(d,16)}") for i, (d, a, b) in enumerate(seq)]
    def z1_gather_write(self):
        T = self.T; th = []
        Zr, Zi, PT = ACCD, ACCD + 16, ACCD + 32
        t0, t1 = TMP + 32, TMP + 33
        th += self.TL(f"v_lshrrev_b32 v{t0}, 5, v{vL}\nv_and_b32 v{t1}, 31, v{vL}\nv_lshlrev_b32 v{t1}, 4, v{t1}\nv_lshl_add_u32 v{t0}, v{t0}, 11, v{t1}")
        th.append(T(f"s_lshl_b32 s60, s{sW}, 2\ns_add_u32 s60, s60, {L_FD}\nv_add_u32 v{t0}, s60, v{t0}"))
        for i in range(20):
            if i < 16: th.append(T(f"v_cvt_pk_bf16_f32 v{PT+i}, v{Zr+i}, v{Zi+i}"))
            if i >= 4: th.append(T(f"ds_write_b32 v{t0}, v{PT+i-4} offset:{(8*((i-4)>>2) + (i&3))*512}", "z1w"))
        return th
    def z1_gather_read(self):
        e = self.e
        e(f"v_lshlrev_b32 v{TMP+32}, 4, v0")
        for k in range(4):
            e(f"ds_read_b128 {vr(ACCD+4*k,4)}, v{TMP+32} offset:{L_FD + k*4096}", "z1r")
    def z1_store(self):
        e = self.e
        t0, t1 = TMP + 32, TMP + 33
        e(f"v_lshrrev_b32 v{t0}, 5, v0\nv_and_b32 v{t1}, 31, v0\nv_lshlrev_b32 v{t1}, 4, v{t1}\nv_lshl_add_u32 v{t0}, v{t0}, 13, v{t1}")
        e(f"s_lshl_b32 s60, s{sBLK}, 18\ns_lshl_b32 s54, s{sRB}, 9\ns_add_u32 s60, s60, s54\ns_add_u32 s60, s60, {WS_Z1}")
        e.wait(lg="z1r")
        for k in range(4):
            e(f"buffer_store_dwordx4 {vr(ACCD+4*k,4)}, v{t0}, {srd(sWS)}, s60 offen sc1", "z1s")
            if k < 3: e(f"s_add_u32 s60, s60, 65536")
    def flag_store(self, soff, tag):
        e = self.e
        e(f"v_mov_b32 v{vTMP+4}, 0\nv_mov_b32 v{vTMP+5}, s{sT}\ns_mov_b64 exec, 1")
        e(f"buffer_store_dword v{vTMP+5}, v{vTMP+4}, {srd(sWS)}, s{soff} offen sc1", tag)
        e(f"s_mov_b64 exec, -1")
    def z1_flag(self):
        e = self.e
        e.wait(vm="z1s")
        e(f"s_lshl_b32 s60, s{sBLK}, 10\ns_lshl_b32 s54, s{sW}, 8\ns_add_u32 s60, s60, s54\ns_lshl_b32 s54, s{sRB}, 4\ns_add_u32 s60, s60, s54\ns_add_u32 s60, s60, {WS_Z1F}")
        self.flag_store(60, "z1f")

    def g2_setup(self):
        T = self.T; t0, t1 = TMP + 12, TMP + 13
        if self.o['diag']:
            rd = [(0, 0), (1, 0)] + [(0, j) for j in range(1, 7)] + [(2, 0)] + [(1, j) for j in range(1, 7)] + [(3, 0)] + [(2, j) for j in range(1, 7)] + [(3, j) for j in range(1, 7)]
            R = sum(r << (2*n) for n, (r, d) in enumerate(rd))
            D = [sum(d << (4*(n - b)) for n, (r, d) in enumerate(rd) if b <= n < b + 16) for b in (0, 16)]
            t2 = TMP + 16
            head = f"""s_mov_b32 s50, {hex(R & 0xffffffff)}
s_mov_b32 s51, {hex(R >> 32)}
v_lshlrev_b32 v{t0}, 1, v{vL}
v_lshrrev_b64 v[{t2}:{t2+1}], v{t0}, s[50:51]
v_add_u32 v{t2}, s{sP}, v{t2}
v_and_b32 v{t2}, 3, v{t2}
v_mul_u32_u24 v{t2+4}, 7, v{t2}
v_and_b32 v{t0}, 15, v{vL}
v_lshlrev_b32 v{t0}, 2, v{t0}
s_mov_b32 s50, {hex(D[0] & 0xffffffff)}
s_mov_b32 s51, {hex(D[0] >> 32)}
v_lshrrev_b64 v[{t2}:{t2+1}], v{t0}, s[50:51]
s_mov_b32 s50, {hex(D[1] & 0xffffffff)}
s_mov_b32 s51, {hex(D[1] >> 32)}
v_lshrrev_b64 v[{t2+2}:{t2+3}], v{t0}, s[50:51]
v_cmp_le_u32 vcc, 16, v{vL}
v_cndmask_b32 v{t2}, v{t2}, v{t2+2}, vcc
v_and_b32 v{t2}, 7, v{t2}
s_and_b32 s50, s2, 7
s_add_u32 s50, s50, s{sQ}
v_add_u32 v{t0}, s50, v{t2}
v_subrev_u32 v{t1}, 14, v{t0}
v_min_u32 v{t0}, v{t0}, v{t1}
v_subrev_u32 v{t1}, 7, v{t0}
v_min_u32 v{t0}, v{t0}, v{t1}
v_add_u32 v{t0}, v{t0}, v{t2+4}
"""
        else: head = f"""v_add_u32 v{t0}, s{sROT}, v{vL}
v_subrev_u32 v{t1}, 28, v{t0}
v_min_u32 v{t0}, v{t0}, v{t1}
v_subrev_u32 v{t1}, 28, v{t0}
v_min_u32 v{t0}, v{t0}, v{t1}
"""
        th = self.TL(head + f"""s_mul_i32 s50, s{sW}, 20
s_lshl_b32 s51, s{sW}, 3
s_add_u32 s51, s51, 60
v_mov_b32 v{t1}, s50
v_cmp_le_u32 vcc, 20, v{t0}
v_mov_b32 v{t1+1}, s51
v_cndmask_b32 v{t1}, v{t1}, v{t1+1}, vcc
v_add_lshl_u32 v{t0}, v{t0}, v{t1}, 10""")
        th += [T(f"v_readlane_b32 s{sKS+n}, v{t0}, {n}") for n in range(28)]
        return th
    def w2_addr_setup(self):
        t0, t1 = TMP + 36, TMP + 37
        return self.TL(f"""v_lshrrev_b32 v{t0}, 3, v{vL}
v_and_b32 v{t1}, 7, v{vL}
v_lshlrev_b32 v{t1}, 4, v{t1}
v_lshl_add_u32 v{t0}, v{t0}, 10, v{t1}
v_and_b32 v{t1}, 16, v{vL}
v_lshlrev_b32 v{t1}, 2, v{t1}
v_xor_b32 v{vW2D[0]}, v{t0}, v{t1}
v_add_u32 v{vW2D[1]}, {8192-1024}, v{vW2D[0]}""")
    def w2_lds(self, n):
        if n < 8: return (16384, L_S2 + n * 2048)
        if n < 12: return (8192, L_XS + (n - 8) * 2048)
        g = n - 12
        if g < 4 and self.bplan(): return (12288, L_S1 + [2, 3, 0, 1][g] * 8192)
        if g < 4: return (8192, L_XS + g * 2048)
        if g < 10: return (12288, L_S1 + (g - 4) * 8192)
        return (12288, L_S1 + (g - 10) * 8192)
    def bplan(self): return self.o['mixq'] and self.ty == 1
    def pos(self, n):
        if self.bplan() and 12 <= n < 22: return 12 + [0, 1, 2, 3, 6, 7, 4, 5, 8, 9][n - 12]
        return 12 + [3, 4, 5, 6, 7, 8, 9, 0, 1, 2][n - 12] if (self.o['diag'] and 12 <= n < 22) else n
    def dma_w2(self, n):
        mul, base = self.w2_lds(n)
        sb = {16384: 56, 8192: sXSW, 12288: sW2K}[mul]
        return [self.T(f"s_add_u32 m0, s{sb}, {base}\ns_lshl4_add_u32 s55, s{sKS+self.pos(n)}, s{sQB}\nbuffer_load_dwordx4 v{vW2D[0]}, {srd(sW2)}, s55 offen lds", f"w2_{n}"),
                self.T(f"s_add_u32 m0, s{sb}, {base}\ns_lshl4_add_u32 s55, s{sKS+self.pos(n)}, s{sQB}\nbuffer_load_dwordx4 v{vW2D[1]}, {srd(sW2)}, s55 offen offset:1024 lds", f"w2_{n}")]
    vU = {8192: [9, 10], 12288: [11, 12], 16384: [13, 14]}
    def w2_tr_setup(self, regs=(8192, 12288, 16384), tm=vTMP + 3):
        t0, t1, t3 = tm, tm + 1, tm + 2
        th = self.TL(f"""v_lshrrev_b32 v{t1}, 5, v{vL}
v_bfe_u32 v{t0}, v{vL}, 2, 2
v_lshl_add_u32 v{t0}, v{t1}, 2, v{t0}
v_and_b32 v{t3}, 3, v{vL}
v_lshlrev_b32 v{t3}, 3, v{t3}
v_and_b32 v{t1}, 16, v{vL}
v_lshl_add_u32 v{t3}, v{t1}, 1, v{t3}
v_lshl_add_u32 v{t3}, v{t0}, 7, v{t3}
v_and_b32 v{t1}, 8, v{vL}
v_lshl_add_u32 v{t3}, v{t1}, 3, v{t3}""")
        for mul, sb, base in ((8192, sXSW, L_XS), (12288, sW2K, L_S1), (16384, 56, L_S2)):
            if mul not in regs: continue
            a = self.vU[mul]
            th += self.TL(f"s_add_u32 s97, s{sb}, {base}\nv_add_u32 v{a[0]}, s97, v{t3}\nv_xor_b32 v{a[1]}, 64, v{a[0]}")
        return th
    def w2_tr(self, n, dst, tag):
        mul, base = self.w2_lds(n)
        off = base - {8192: L_XS, 12288: L_S1, 16384: L_S2}[mul]
        return [self.T(f"ds_read_b64_tr_b16 {ar(dst+4*dt+2*eh,2)}, v{self.vU[mul][dt]} offset:{off+eh*1024}", tag) for dt in range(2) for eh in range(2)]

    def w_base(self, ty, d):
        if ty == 1: return f"s_add_u32 s{d}, s56, {L_S2 + 12288}"
        return f"s_and_b32 s{d}, s{sW}, 1\ns_lshl_b32 s{d}, s{d}, 12\ns_lshr_b32 s54, s{sW}, 1\ns_lshl_b32 s54, s54, 14\ns_add_u32 s{d}, s{d}, s54\ns_add_u32 s{d}, s{d}, {L_S2 + 2*16384 + 8192}"
    def w_dma(self, ty):
        T = self.T
        t0, t1, t2 = TMP + 38, TMP + 39, TMP + 35
        nb = f"v_subrev_u32 v{t2}, 64, v{t1}\nv_cmp_eq_u32 vcc, 6, v{t0}\nv_cndmask_b32 v{t1}, v{t1}, v{t2}, vcc\n" if ty == 1 else ""
        th = [T(f"""v_and_b32 v{t0}, 7, v{vL}
v_cmp_gt_u32 vcc, 5, v{t0}
v_lshlrev_b32 v{t1}, 4, v{t0}
v_cndmask_b32 v{t1}, 0, v{t1}, vcc
s_lshl_b32 s59, s{sCG}, 6
v_add_u32 v{t1}, s59, v{t1}
s_cmp_eq_u32 s{sCG}, 0
s_cselect_b32 s59, 5, 8
v_mov_b32 v{t2}, 0x200
v_cmp_eq_u32 vcc, s59, v{t0}
v_cndmask_b32 v{t1}, v{t1}, v{t2}, vcc
{nb}v_lshrrev_b32 v{t0}, 3, v{vL}
v_mul_u32_u24 v{t0}, 16448, v{t0}
v_add_u32 v{vSD2}, v{t0}, v{t1}
s_lshl_b32 s58, s{sW}, 9
s_add_u32 s58, s58, s{sK1}
s_mul_i32 s58, s58, 514
s_and_b32 s58, s58, -16
{self.w_base(ty, 59)}""")]
        nt = " nt" if self.o['ntw'] else ""
        th.append(T(f"s_mov_b32 m0, s59\ns_nop 0\nbuffer_load_dwordx4 v{vSD2}, {srd(sWR)}, s58 offen{nt} lds", "wl"))
        th.append(T(f"s_add_u32 m0, s59, 2048\ns_nop 0\nbuffer_load_dwordx4 v{vSD2}, {srd(sWI)}, s58 offen{nt} lds", "wl"))
        th.append(T(f"s_add_u32 m0, s59, 1024\ns_add_u32 s58, s58, {8*16448}\nbuffer_load_dwordx4 v{vSD2}, {srd(sWR)}, s58 offen{nt} lds", "wl"))
        th.append(T(f"s_add_u32 m0, s59, 3072\ns_nop 0\nbuffer_load_dwordx4 v{vSD2}, {srd(sWI)}, s58 offen{nt} lds", "wl"))
        return th
    def w_read_prep(self):
        t0, t1 = TMP + 38, TMP + 39
        th = [self.T(f"""v_and_b32 v{t0}, 31, v{vL}
v_or_b32 v{t1}, s{sCG}, v{t0}
v_cmp_eq_u32 vcc, 0, v{t1}
v_lshlrev_b32 v{t0}, 1, v{t0}
v_mov_b32 v{t1}, 80
v_cndmask_b32 v{t0}, v{t0}, v{t1}, vcc
v_lshrrev_b32 v{t1}, 5, v{vL}
v_lshl_add_u32 v{t0}, v{t1}, 9, v{t0}
s_lshl_b32 s54, s{sK1}, 1
s_and_b32 s54, s54, 15
s_add_u32 s54, s54, s59
v_add_u32 v{self.vWRA}, s54, v{t0}""")]
        return th + [self.T(f"v_mov_b32 v{vW+i}, 0") for i in range(16)]
    def w_read(self):
        th = []
        for z in range(8):
            for a in range(2):
                th.append(self.T(f"ds_read_u16_d16_hi v{vW+2*z+a}, v{self.vWRA} offset:{(8*(z>>2) + (z&3))*128 + a*2048}", "wr"))
        return th
    def pf_setup(self):
        return self.TL(f"v_and_b32 v{vPF[1]}, 15, v{vL}\nv_lshlrev_b32 v{vPF[1]}, 10, v{vPF[1]}\nv_and_b32 v{vPF[2]}, 16, v{vL}\nv_lshlrev_b32 v{vPF[2]}, 3, v{vPF[2]}\nv_xor_b32 v{vPF[2]}, s{sQB}, v{vPF[2]}\nv_add_u32 v{vPF[1]}, v{vPF[1]}, v{vPF[2]}")
    def pf_w2(self, r):
        return [self.T(f"s_lshl_b32 s54, s{sKS + 12 + r}, 4\nbuffer_load_dword v{vPF[3]}, v{vPF[1]}, {srd(sW2)}, s54 offen", f"pf{r}")]

    def warm_w2(self):
        t0 = TMP + 36
        return [self.T(f"v_min_u32 v{t0}, 27, v{vL}\nv_lshlrev_b32 v{t0}, 7, v{t0}\ns_lshr_b32 s54, s2, 4\ns_lshl_b32 s54, s54, 3\ns_and_b32 s60, s2, 7\ns_add_u32 s54, s54, s60\ns_lshl_b32 s54, s54, 2\ns_add_u32 s54, s54, s{sW}\ns_mul_i32 s54, s54, 3584\nbuffer_load_dword v{t0+1}, v{t0}, {srd(sW2)}, s54 offen", "warm")]
    def help_a(self):
        t0, t1 = 120, 121
        return [self.T(f"""v_min_u32 v{t0}, 47, v{vL}
v_and_b32 v{t1}, 15, v{t0}
v_mul_u32_u24 v{t1}, 3584, v{t1}
v_lshrrev_b32 v{t0}, 4, v{t0}
v_lshl_add_u32 v{t0}, v{t0}, 7, v{t1}
s_add_u32 s54, s{sC0}, 3
s_and_b32 s54, s54, 7
s_lshl_b32 s54, s54, 2
s_add_u32 s54, s54, s{sW}
s_mul_i32 s54, s54, {16*3584}
s_mul_i32 s60, s{sBLK}, 320
s_and_b32 s60, s60, -128
s_add_u32 s54, s54, s60
buffer_load_dword v{vW+6}, v{t0}, {srd(sW1)}, s54 offen""", "helpa")]
    def f1(self, ty):
        e = self.e; o = self.o; self.ty = ty; self.nl = 0; self.vWRA = 184 if ty == 0 else 116
        if ty == 0: run(self.dma_w1(ty, 0))
        if o['xlast']: run(self.dma_x(0))
        if ty == 1 and not o['xlast']: run(self.dma_x(1))
        if ty == 1 and o['tlbB']: self.tlb_warm()
        if ty == 1 and o['helpa'] == 1: run(self.help_a())
        if ty == 0 and o['tlbA'] == 1: self.tlb_warm()
        self.stamp(5)
        self.addr_setup()
        if ty == 1:
            run(self.gen_fd())
            if o['xlast']: run(self.gen_g1()[:o['g1pre']] + self.dma_x(1))
            if o['helpa'] == 2: run(self.help_a())
        else:
            a23 = self.gen_a2a3(); ka = int(len(a23) * o['a23pre'])
            run(self.g2_setup()); run(self.w2_addr_setup()); run(a23[:ka]); run(self.dma_w1(ty, 1)[:o['w11']])
        if ty == 0 and o['tlbA'] == 2: self.tlb_warm(TMP + 24 - vW)
        self.stamp(1)
        e.wait(vm="stat")
        self.stamp(8)
        self.stats()
        zero_ax = lambda nt: sum([self.TL(f"v_mov_b32 v{vAX[dt]+2}, 0\nv_mov_b32 v{vAX[dt]+3}, 0") for dt in range(nt)], [])
        wd = self.w_dma(ty)
        wrp = self.w_read_prep()
        if ty == 0 and o['presetA']: run(wd[:1] + wrp + zero_ax(3 if o['t64'] else 5)); wd = wd[1:]; wrp = []
        if self.two(): assert o['presetA']; run(self.t64_setup())
        if ty == 0: run(merge(a23[ka:], self.dma_w1(ty, 1)[o['w11']:], int(len(a23[ka:]) * o['w11at'])))
        if ty == 0 and o['tlbA'] == 3: self.tlb_warm(TMP + 24 - vW)
        if ty == 0 and o['warmA'] == -1: run(self.warm_w2())
        self.stamp(2)
        if ty == 1: run(self.gen_g1() + self.g2_setup() + self.w2_addr_setup() + self.pf_setup())
        self.stamp(3)
        units, bounds, streams, mem, pinned, extra = [], {}, [], [], {}, []
        def pin(n, th): pinned.setdefault(n, []).extend(th)
        def csum(u0, u1, um, tag, tiles, first):
            rd, mm = self.csum_grp(tag, tiles, first)
            extra.append((rd, u0, u1)); pin(um, mm)
        own = lambda a, b: sum([self.dma_w2(12 + g) for g in range(a, b)], [])
        wrd = wrp + [self.W(vm='wl')]
        aXB = 192
        LA, NB = 4, 8
        share = o['share'][ty]
        vPA, vPD = TMP + 36, TMP + 37
        def zpoll():
            e(f"s_lshr_b32 s60, s{sK1}, 1\ns_and_b32 s60, s60, 3\ns_lshl_b32 s60, s60, 8\ns_lshl_b32 s54, s{sCG}, 10\ns_add_u32 s60, s60, s54\ns_add_u32 s63, s60, {WS_Z1F}")
            e(f"v_and_b32 v{vPA}, 15, v{vL}\nv_lshlrev_b32 v{vPA}, 4, v{vPA}")
            self.poll_issue(vPA, 63, vPD, "pz1")
        def zcheck():
            self.xs("z1 check")
            self.poll_check(vPA, 63, vPD, "pz1")
            self.xs("z1 seen")
            e(f"s_lshl_b32 s60, s{sCG}, 5\ns_add_u32 s60, s60, s{sK1}\ns_lshl_b32 s60, s60, 13\ns_add_u32 s60, s60, s{sW2K}\ns_add_u32 s60, s60, {WS_Z1}\ns_add_u32 m0, s{sW2K}, {L_ZB}")
            for i in range(2): e(f"buffer_load_dwordx4 v{vL16}, {srd(sWS)}, s60 offen offset:{i*1024} sc1 lds", "zb")
        if ty == 0:
            nt = 5
            t64 = o['t64']
            assert share or not t64
            for k in range(32):
                t, ks = k >> 2, k & 3
                for tl in range(5):
                    u = 5*k + tl; xa, xb = aXB + 4*(k % 3), aXB + 12 + 4*(k % 3)
                    if t64:
                        fi = 3*k + (tl >> 1)
                        if tl < 4:
                            ad, off = self.pair_addr(0, t, 0)
                            r, mf = self.ffn_unit(u, k, ad[tl >> 1], off + ks*2048, 512, tl, xb if tl & 1 else xa, 6, fi)
                            if tl & 1: r = []
                        else: r, mf = self.ffn_unit(u, k, vTS, SING[t % 4] - L_S2 + ks*1024, 256, 4, xa, 6, fi)
                        if tl == 1: r = self.x_read(u, k, xb, True)
                    elif tl < 4:
                        ad, off = self.pair_addr(0, t, tl >> 1)
                        r, mf = self.ffn_unit(u, k, ad[tl & 1], off + ks*2048, 512, tl, xa, NB)
                    else: r, mf = self.ffn_unit(u, k, vTS, SING[t % 4] - L_S2 + ks*1024, 256, 4, xa, NB)
                    if tl == 0: r = self.x_read(u, k, xa) + r
                    units.append((r, mf))
            for t in range(8):
                b = 20*t
                bounds[b] = ([f"x{t}", f"w1_{t}"], [])
                u0 = max(0, b - LA + 1)
                tiles = []
                for pr in range(2):
                    ad, off = self.pair_addr(0, t, pr, True)
                    tiles += [(ad[i], off, 512, 2*pr + i) for i in range(2)]
                tiles.append((vCSS, SING[t % 4] - L_S2, 256, 4))
                if t < 2 or (t < 7 and not share): csum(u0, u0 + 12, u0 + 15, f"c{t}", tiles, t == 0)
                elif not share: csum(u0, u0 + 7, u0 + 10, f"c{t}", tiles, False)
            jobs = [self.dma_x(t + 2) + self.dma_w1(0, t + 2) for t in range(6)]
            x1 = self.dma_x(1); early = x1[:2]; mem.append((x1[2:], 0, 2)); mem.append((jobs[0], o['j0'], 16 + o['j0e']))
            for t in range(1, 6): mem.append((jobs[t], 20*t - LA + 1, 20*t + 14))
            pin(110, [self.stats_fetch]); pin(126, [lambda: self.stats_use(0)])
            C0, CB, C1, C2, C3 = 36, 60, o['csA'][0], o['csA'][1], o['csA'][2]
            if not o['presetA']: streams.append((zero_ax(5), 100, 110))
            a = o['wA']
            if o['presetA']: mem.append((wd[:2], a, a + 1)); mem.append((wd[2:], a + 20, a + 21))
            else: mem.append((wd[:1], a, a)); pin(a + 1, wd[1:3]); pin(a + 2, wd[3:])
            streams.append((wrd, 118, 128)); extra.append((self.w_read(), 129, 146))
            if o['warmA'] > 0: mem.append((self.warm_w2(), o['warmA'], o['warmA']))
            a, b, c = o['ownA']
            mem.append((own(0, 2), a, b - 1)); mem.append((own(4, 6), b, c - 1)); mem.append((own(2, 4) + own(6, o['nown']), c, 159))
            htiles = [(ACCA + 16*i, sHB2, 2048*i, 0) for i in range(2)] + [(ACCA + 32 + 16*i, 53, 2048*i, 0) for i in range(2)] + [(ACCA + 64, sHB1, 0, 0)]
            if t64: htiles = [(ACCA, 53, 0, 0), (ACCA + 32, 53, 2048, 0), (ACCA + 64, sHB1, 0, 0), (ACCA + 16, 52, 0, 1), (ACCA + 48, 52, 2048, 1)]
        else:
            nt = 2; P0 = 64
            for k in range(32):
                t, ks = k >> 2, k & 3
                for cs in range(2):
                    u = 2*k + cs
                    r = self.x_read(u, k, aX + 4*k) if cs == 0 else []
                    if not t & 1:
                        r.append(self.T(f"ds_read_b128 {ar(aFB+8*ks+4*cs,4)}, v{vFD} offset:{(t>>1)*8192+ks*2048+cs*1024}", f"r{u}"))
                    d = ACCD + 32*(t & 1) + 16*cs
                    units.append((r, f"v_mfma_f32_32x32x16_bf16 {vr(d,16)}, {ar(aX+4*k,4)}, {ar(aFB+8*ks+4*cs,4)}, {'0' if k in (0, 4) else vr(d,16)}", u - 6))
            for t in range(8): bounds[8*t] = ([f"x{t}"], [])
            jobs = [self.dma_x(t + 2) for t in range(6)]
            early = jobs[0][:1]; mem.append((jobs[0][1:], 0, 4))
            for t in range(1, 6): mem.append((jobs[t], 8*t - LA + 1, 8*t + 4))
            mem.append(((self.dma_w1(1, 0) + self.dma_w1(1, 1) if o['w1b'] else []) + wd, 45, 54)); mem.append((self.dma_w1(1, 2) + self.dma_w1(1, 3), 55, 62)); mem.append((self.dma_w1(1, 4) + self.dma_w1(1, 5), 64, 71))
            if o['a23d']: streams.append((self.gen_a2a3(), o['a23d'][0], o['a23d'][1]))
            pin(o['stB'][0], [self.stats_fetch]); pin(o['stB'][1], [lambda: self.stats_use(1)])
            streams.append((zero_ax(2), P0 + 12, P0 + 20))
            P = 64
            for k in range(32):
                t, ks = k >> 2, k & 3
                ad, off = self.pair_addr(1, t, 0)
                for tl in range(2): units.append(self.ffn_unit(P + 2*k + tl, k, ad[tl], off + ks*2048, 512, tl, aX + 4*k, NB) + (P + 2*k + tl - (4 if k < 4 else 6),))
            for t in range(8):
                b = P + 8*t
                bounds[b] = ([f"w1_{t}"], [])
                ad, off = self.pair_addr(1, t, 0, True)
                if t < 2 or not share: csum(max(P, b - LA + 1), max(P + 1, b - LA + 2), b + (3 if t == 0 else (1 if t < 7 else 0)), f"c{t}", [(ad[i], off, 512, i) for i in range(2)], t == 0)
                if 2 <= t < 4: mem.append((self.dma_w1(1, t + 4), b - 1, b + 2))
            streams.append((self.z1_rl(), o['stB'][1] + 1, 62))
            gb = P + 8 * o['z1g']
            streams.append((self.z1_gather_write(), P, gb - LA - 1))
            bounds[gb] = (bounds[gb][0], [self.W(lg="z1w")])
            pin(gb - LA, [self.z1_gather_read]); pin(gb - LA + 2, [self.z1_store])
            if o['warm2']: mem.append((self.warm_w2(), o['warm2'], o['warm2']))
            for r, u in enumerate(o['pfat'] or []): mem.append((self.pf_w2(r), u, u))
            streams.append((wrd, P + 18, P + 26)); extra.append((self.w_read(), P + 27, P + 40))
            if o['mixq']:
                b = [P + x for x in o['bw2']]
                mem.append((sum([self.dma_w2(n) for n in range(8, 12)], []), b[0], b[1] - 1))
                mem.append((own(0, 2), b[1], b[2] - 1)); mem.append((own(2, 4), b[2], b[3] - 1))
                streams.append((self.w2_tr_setup((12288,), 117), P + 22, P + 30))
                pin(b[3], self.greads(0)[:5] + self.greads(1)[:5]); pin(b[3] + 2, [self.W(lg="g1")]); mem.append((own(6, 8), b[3] + 3, b[4] - 1))
                pin(b[4], self.greads(2)[:5] + self.greads(3)[:5]); pin(b[4] + 2, [self.W(lg="g3")]); mem.append((own(4, 6), b[4] + 3, P + 53))
                mem.append((own(8, 10), P + 54, P + 62))
            elif o['allB']:
                mem.append((own(0, 4) + own(6, 8) + own(4, 6), P + o['ownB'], P + 53)); mem.append((own(8, 10), P + 54, P + 62))
            else: mem.append((own(0, o['nown']), P + o['ownB'], P + 63))
            C0, CB, C1, C2, C3 = P + 11, P + 16, P + o['csB'][0], P + o['csB'][1], P + o['csB'][2]
            pin(P + o['z1f'], [self.z1_flag])
            htiles = [(ACCA, sHB2, 0, 0), (ACCA + 16, sHB2, 2048, 0)]
        if share:
            pin(C0, self.csum_publish(nt))
            bounds[CB] = (bounds[CB][0], bounds[CB][1] + [self.W(lg="csw")])
            rd, th, st = self.csum_send(ty)
            pin(CB - LA, rd); streams.append((th, CB - LA + 2, CB + 1)); mem.append((st, CB + 2, CB + 2))
            mem.append((self.csum_load(ty), C1, C1 + 3))
            pin(C2, [lambda: self.csum_check(ty)])
            streams.append((self.csum_build(ty), C2 + 1, C3 - 1))
            bounds[C3 + LA] = ([], [self.W(lg="cxw")])
            pin(C3, self.csum_get(nt))
            for i, m in enumerate(self.csum_apply(nt)): pin(C3 + 3 + i, ([self.W(lg="cxr")] if i == 0 else []) + [m])
            assert C3 + 3 + nt <= len(units)
        else:
            Y = 148 if ty == 0 else P + 57
            pin(Y, self.csum_publish(nt))
            bounds[Y + 2 + LA] = ([], [self.W(lg="csw")])
            pin(Y + 2, self.csum_fetch(nt))
            streams.append((self.csum_prep(nt), Y + 3, len(units) - 2))
            pin(len(units) - 1, self.csum_apply(nt))
        if ty == 0: self.pipeline(units, LA, bounds, streams, mem, pinned, extra, early)
        else:
            zm = self.z1_mfma()
            self.pipeline2(units, LA, bounds, streams, mem, pinned, extra, early, P, self.z1_prep() + zm[:4], zm[4:])
        self.light_dump()
        self.stamp(6)
        e("s_barrier")
        self.xs("E bar")
        if ty == 0 and o['t64']:
            e(f"s_and_b32 s54, s{sW}, 1\ns_lshl_b32 s53, s54, 12\ns_add_u32 s53, s53, s{sHB2}\ns_mul_i32 s54, s54, {2*114688}\ns_add_u32 s52, s53, 114688\ns_sub_u32 s52, s52, s54")
        else: e(f"s_add_u32 s53, s{sHB2}, 4096")
        side = [] if (self.bplan() or (ty == 1 and o['allB'])) else own(o['nown'], 10)
        for n in range(o['epl'][ty]): side += self.dma_w2(n)
        sil = self.silu(htiles)
        if ty == 1 and not o['a23d']: sil += self.gen_a2a3()
        sil = merge(sil, side, int(len(sil) * o['epfrom']))
        sil += self.w2_tr_setup()
        if o.get('silst'):
            for i in (3, 2, 1): sil.insert(len(sil)*i//4, lambda i=i: self.xs(f'sil{i}'))
        k1, k2 = [int(len(sil) * f) for f in o['zpoll'][ty]]
        k3 = int(len(sil) * o['hfb']) if ty == 1 else len(sil)
        if ty == 1 and o['hfb']:
            assert k3 >= k2
            run(sil[:k1]); zpoll(); run(sil[k1:k2]); zcheck(); run(sil[k2:k3]); self.hflag(); run(sil[k3:])
        else:
            run(sil[:k1]); zpoll(); run(sil[k1:k2]); zcheck(); run(sil[k2:])
    def hflag(self):
        e = self.e
        e(f"s_lshl_b32 s50, s{sRB}, 1\ns_lshr_b32 s51, s{sW}, 1\ns_add_u32 s50, s50, s51\ns_lshl_b32 s50, s50, 2\ns_lshr_b32 s51, s{sBLK}, 1\ns_add_u32 s50, s50, s51\ns_lshl_b32 s50, s50, 3")
        e(f"s_lshl_b32 s51, s{sTY}, 2\ns_add_u32 s50, s50, s51\ns_and_b32 s51, s{sBLK}, 1\ns_lshl_b32 s51, s51, 1\ns_add_u32 s50, s50, s51\ns_and_b32 s51, s{sW}, 1\ns_add_u32 s50, s50, s51")
        e(f"s_lshl_b32 s50, s50, 4\ns_add_u32 s50, s50, {WS_HF}")
        self.xs("pre h2 wait"); e.wait(vm="h2"); self.xs("h2 done"); self.flag_store(50, "hf")
    def greads(self, g):
        return [self.W(vm=f"w2_{12+g}")] + self.w2_tr(12 + g, aX + 8*(self.pos(12 + g) - 12), f"g{g}") + ([self.W(lg=f"g{g-2}")] if g >= 2 else [])
    vPA, vPD = 6, 7

    def spin(self, test, loads, lane):
        e = self.e
        again, back = e.label("again"), e.label("back")
        if self.stamps: e(f"s_mov_b32 s{sPOLL}, 0")
        e(test)
        e(f"s_cbranch_vccnz {again} ; soft")
        e(f"{back}: ; soft")
        if self.stamps: e(f"v_writelane_b32 v{vSTAMP}, s{sPOLL}, {lane}")
        loop = e.label("loop")
        e.cold += [f"{again}:", f"    s_mov_b32 s{sPOLL}, 0", f"{loop}:"] + ["    " + l for l in loads] + ["    s_waitcnt vmcnt(0)"]
        e.cold += ["    " + l for l in test.split("\n")]
        e.cold += [f"    s_add_u32 s{sPOLL}, s{sPOLL}, 1", f"    s_cbranch_vccz {back}", f"    s_cmp_gt_u32 s{sPOLL}, 20000", f"    s_cbranch_scc0 {loop}", f"    s_branch {back}"]
    def poll_issue(self, addr_v, soff, dst, tag):
        self.e(f"buffer_load_dword v{dst}, v{addr_v}, {srd(sWS)}, s{soff} offen sc1", tag)
    def poll_check(self, addr_v, soff, dst, tag):
        e = self.e
        e.wait(vm=tag)
        self.spin(f"v_cmp_ne_u32 vcc, s{sT}, v{dst}", [f"buffer_load_dword v{dst}, v{addr_v}, {srd(sWS)}, s{soff} offen sc1"], {'pz1': 54, 'phf': 55, 'pz3': 56}[tag])

    IFD, S4R, S4I = 128, 192, 208
    def gen_s4(self):
        T = self.T; th = []
        n1, inc, ang, sg = 32, 33, 34, 35
        regs = [(36, 37), (38, 39)]
        th += self.TL(f"""v_and_b32 v{n1}, 1, v{vL}
s_mov_b32 s60, 0x80008000
v_mul_lo_u32 v{sg}, v{n1}, s60
v_and_b32 v{n1}, 31, v{vL}
v_cvt_f32_u32 v{n1}, v{n1}
v_mul_f32 v{inc}, {fhex(1/32)}, v{n1}
v_lshrrev_b32 v{n1}, 5, v{vL}
v_lshlrev_b32 v{n1}, 2, v{n1}
v_cvt_f32_u32 v{n1}, v{n1}
v_mul_f32 v{ang}, v{n1}, v{inc}""")
        def use(g, cs):
            c, s_ = cs[0]
            return [T(f"v_cvt_pk_bf16_f32 v{self.S4R+g}, v{c}, -v{s_}"), T(f"v_cvt_pk_bf16_f32 v{self.S4I+g}, v{s_}, v{c}"),
                    T(f"v_xor_b32 v{self.S4R+8+g}, v{self.S4R+g}, v{sg}"), T(f"v_xor_b32 v{self.S4I+8+g}, v{self.S4I+g}, v{sg}")]
        th += self.trig(8, ang, inc, lambda i: 1 if (i & 3) < 3 else 5, regs, use)
        return th
    def gen_ifd(self, dt):
        T = self.T; th = []
        d, inc, ang, t0 = 40, 41, 42, 43
        Z = [104, 106, 108, 110]; RHO, TM, SP = 112, 114, 122
        th.append(T(f"""v_and_b32 v{d}, 31, v{vL}
s_lshl_b32 s60, s{sQ}, 6
s_add_u32 s60, s60, {32*dt}
v_add_u32 v{d}, s60, v{d}
v_lshrrev_b32 v{t0}, 5, v{vL}
v_lshlrev_b32 v{t0}, 1, v{t0}
s_lshl_b32 s60, s{sW}, 6
v_add_u32 v{t0}, s60, v{t0}
v_cmp_eq_u32 s[96:97], 0, v{t0}
v_mul_u32_u24 v{t0}, v{t0}, v{d}
v_and_b32 v{t0}, 511, v{t0}
v_cvt_f32_u32 v{ang}, v{t0}
v_mul_f32 v{ang}, {fhex(1/512)}, v{ang}
v_cvt_f32_u32 v{inc}, v{d}
v_and_b32 v{t0}, 1, v{d}
v_lshlrev_b32 v{t0}, 15, v{t0}
v_xor_b32 v{SP}, 0x3f80, v{t0}
v_mul_f32 v{t0}, {fhex(1/64)}, v{inc}
v_mul_f32 v{inc}, {fhex(1/512)}, v{inc}
v_cos_f32 v{RHO}, v{t0}
v_sin_f32 v{RHO+1}, v{t0}"""))
        for q in range(4):
            th += [T(f"v_cos_f32 v{Z[q]}, v{ang}"), T(f"v_sin_f32 v{Z[q]+1}, v{ang}")]
            if q < 3: th.append(T(f"v_add_f32 v{ang}, v{ang}, v{inc}") if not q & 1 else T(f"v_fmac_f32 v{ang}, {fhex(3.0)}, v{inc}"))
        for g in range(8):
            r = self.rot(Z, RHO, TM) if g < 7 else []
            cv = [T(f"v_cvt_pk_bf16_f32 v{self.IFD + (g*2+dt)*4 + q}, v{Z[q]}, -v{Z[q]+1}") for q in range(4)]
            th += cv + r
            if g == 0: th.append(T(f"v_cndmask_b32 v{self.IFD + dt*4}, v{self.IFD + dt*4}, v{SP}, s[96:97]"))
        return th

    def post(self):
        e = self.e; T = self.T; o = self.o
        vPA, vPD = self.vPA, self.vPD
        self.stamp(7)
        q = sum([self.dma_w2(n) for n in range(o['epl'][self.ty], 8)], [])
        def dma(k):
            nonlocal q
            r = q[:k]; q = q[k:]; return r
        gr = lambda g: self.greads(g)[:5]
        ifd = self.gen_ifd(0) + self.gen_ifd(1)
        def gen(frac):
            nonlocal ifd
            k = int(202 * frac); r = ifd[:k]; ifd = ifd[k:]; return r
        gf = o['gf']
        run(merge(gen(gf[0]), dma(o['pre1'])))
        if o['hfat'] == -1 and not (self.ty == 1 and o['hfb']): self.hflag()
        e.wait(vm="zb"); self.xs("zb landed"); e("s_barrier"); self.xs("bar1")
        ZF = 192
        for t in range(8): e(f"ds_read_b128 {ar(ZF+4*t,4)}, v{vL16} offset:{L_ZB + t*1024}", f"zf{t}")
        run(gen(gf[1]))
        D = 64
        for t in range(8):
            e.wait(lg=f"zf{t}")
            e(f"v_mfma_f32_32x32x16_bf16 {vr(D,16)}, {ar(aA2+4*t,4)}, {ar(ZF+4*t,4)}, {'0' if t == 0 else vr(D,16)}")
            if t < o['st2d']: run(dma(1))
            if t >= 4 and not self.bplan(): run(gr(t - 4))
        self.xs("st2 issued")
        hflag = self.hflag
        if self.ty == 1 and o['hfb']: hflag = lambda: None
        if o['hfat'] == 0: hflag()
        P = 96
        ops = []
        for z in range(8):
            xr, xi, wr_, wi_ = D + 2*z, D + 2*z + 1, vW + 2*z, vW + 2*z + 1
            u = 80 + 2*z
            ops.append([f"v_mul_f32 v{u}, v{xr}, v{wr_}", f"v_mul_f32 v{u+1}, v{xr}, v{wi_}", f"v_fma_f32 v{u}, -v{xi}, v{wi_}, v{u}", f"v_fmac_f32 v{u+1}, v{xi}, v{wr_}", f"v_cvt_pk_bf16_f32 v{P+z}, v{u}, v{u+1}"])
        e(f"v_add_u32 v{vTMP}, s{sW2K}, v{vL16}")
        for z0 in (0, 2, 4, 6):
            for k in range(5): e(ops[z0][k]); e(ops[z0+1][k])
            if o['wmd']: run(dma(1))
            if z0 == 4: e(f"ds_write_b128 v{vTMP}, {vr(P,4)} offset:{L_ZX}", "zxw")
        if o['wmd']: run(dma(1))
        e(f"ds_write_b128 v{vTMP}, {vr(P+4,4)} offset:{L_ZX + 1024}", "zxw")
        if o['hfat'] == 1: hflag()
        if o['wmd']: run(dma(2))
        run(gen(gf[2]))
        e.wait(lg="zxw"); e("s_barrier"); self.xs("bar2")
        if not o['lg2'] and not self.bplan(): q += sum([self.dma_w2(n) for n in range(8, 12)], [])
        for t in range(8): e(f"ds_read_b128 {ar(ZF+4*t,4)}, v{vL16} offset:{L_ZX + t*1024}", f"zg{t}")
        adr = self.TL(f"""v_lshrrev_b32 v{vTMP+1}, 4, v{vL}
v_bfe_u32 v{vTMP+2}, v{vL}, 3, 1
v_lshlrev_b32 v{vTMP+2}, 12, v{vTMP+2}
v_lshl_add_u32 v{vTMP+2}, v{vTMP+1}, 16, v{vTMP+2}
v_and_b32 v{vTMP+3}, 15, v{vL}
v_lshlrev_b32 v{vTMP+3}, 2, v{vTMP+3}
v_lshl_add_u32 v{vTMP+3}, v{vTMP+1}, 7, v{vTMP+3}
v_add_u32 v{vTMP+3}, s{sW2K}, v{vTMP+3}
v_and_b32 v{vTMP+1}, 7, v{vL}
v_lshl_add_u32 v{vTMP+1}, v{vTMP+1}, 4, v{vTMP+2}
s_lshl_b32 s51, s{sW}, 19
s_lshl_b32 s52, s{sK1}, 7
s_add_u32 s51, s51, s52
s_lshl_b32 s52, s{sCG}, 13
s_add_u32 s51, s51, s52
s_add_u32 s51, s51, {WS_Z3}
s_add_u32 s52, s51, {4*65536}""")
        hadr = self.TL(f"""s_lshl_b32 s50, s{sP}, 2
s_add_u32 s50, s50, s{sW}
s_lshl_b32 s50, s50, 7
s_add_u32 s58, s50, {WS_HF}
v_and_b32 v{vPA}, 7, v{vL}
v_lshlrev_b32 v{vPA}, 4, v{vPA}""")
        run(hadr); run(gen(gf[3]))
        if o['hpe']: self.poll_issue(vPA, 58, vPD, "phf")
        adr = spread(adr, [0.5] + [1]*8); run(adr[0])
        for t in range(8):
            e.wait(lg=f"zg{t}")
            e(f"v_mfma_f32_32x32x16_bf16 {vr(D,16)}, {ar(aA3+4*t,4)}, {ar(ZF+4*t,4)}, {'0' if t == 0 else vr(D,16)}")
            run((dma(1) if t < o['st3d'] else []) + adr[t + 1])
        self.xs('st3 issued')
        for k in range(8): e(f"v_cvt_pk_bf16_f32 v{P+k}, v{D+2*k}, v{D+2*k+1}")
        for k in range(8): e(f"ds_write_b32 v{vTMP+3}, v{P+k} offset:{L_ZB + (k>>1)*512 + (k&1)*64}", "zww")
        run(gen(gf[4]))
        e.wait(lg="zww")
        self.xs('zww')
        e("s_barrier")
        self.xs("st3 packed")
        for k in range(2): e(f"ds_read_b128 {vr(D+4*k,4)}, v{vTMP} offset:{L_ZB + k*1024}", "zwr")
        run(gen(gf[5]))
        e.wait(lg="zwr")
        for k in range(2): e(f"buffer_store_dwordx4 {vr(D+4*k,4)}, v{vTMP+1}, {srd(sWS)}, s{51+k} offen sc1", "z3s")
        if not o['hpe']: self.poll_issue(vPA, 58, vPD, "phf")
        self.stamp(9)
        vH = self.vH
        e(f"s_mul_i32 s50, s{sP}, {2*112*1024}\ns_add_u32 s50, s50, {WS_H}\nv_add_u32 v{vH[0]}, s50, v{vL16}\nv_add_u32 v{vH[1]}, {112*1024}, v{vH[0]}")
        run(merge(sum([self.greads(g) for g in range(4, 10)], []), q))
        self.late = (sum([self.dma_w2(n) for n in range(8, 12)], []) if o['lg2'] else []) + sum([self.dma_w2(12 + g) for g in range(10, 16)], [])
        if o['prel']: e.wait(lg="g9"); run(self.late[:o['prel']]); self.late = self.late[o['prel']:]
        run(gen(gf[6]))
        self.xs("pre hpoll")
        self.poll_check(vPA, 58, vPD, "phf")
        e(f"s_lshl_b32 s50, s{sW}, 3\ns_add_u32 s50, s50, s{sCG}\ns_lshl_b32 s50, s50, 5\ns_add_u32 s50, s50, s{sK1}\ns_lshl_b32 s50, s50, 4\ns_add_u32 s50, s50, {WS_Z3F}")
        self.stamp(10)
        return ifd

    vH, vO, vRD, vZD, vZ, XR = [19, 20], 4, 5, 8, [15, 16, 17, 18], 48
    def g2_addr(self):
        e = self.e
        vH, vO, vZD, vZ = self.vH, self.vO, self.vZD, self.vZ
        th = []
        class _E:
            def __call__(_, x): th.extend(self.TL(x))
        e = _E()
        e(f"""v_lshrrev_b32 v{vTMP}, 3, v{vL}
v_and_b32 v{vTMP+1}, 1, v{vTMP}
v_bfe_u32 v{vTMP+2}, v{vTMP}, 1, 1
v_lshrrev_b32 v{vTMP+3}, 2, v{vTMP}
v_lshl_add_u32 v{vTMP+1}, v{vTMP+3}, 1, v{vTMP+1}
v_lshl_add_u32 v{vTMP+3}, v{vTMP+2}, 2, v{vTMP+1}
v_and_b32 v{vTMP+4}, 7, v{vL}
v_lshlrev_b32 v{vO}, 4, v{vTMP+4}
v_lshl_add_u32 v{vO}, v{vTMP+3}, 16, v{vO}
v_lshlrev_b32 v5, 8, v{vTMP+1}
v_lshl_add_u32 v5, v{vTMP+2}, 7, v5
v_and_b32 v{vTMP+1}, 3, v{vL}
v_lshl_add_u32 v5, v{vTMP+1}, 5, v5
v_bfe_u32 v{vTMP+1}, v{vL}, 2, 1
v_mul_u32_u24 v{vTMP+1}, {RED_TS}, v{vTMP+1}
v_add_u32 v5, v5, v{vTMP+1}
s_lshl_b32 s60, s{sW}, 10
v_add_u32 v5, s60, v5
s_lshl_b32 s59, s{sW}, 19
s_lshl_b32 s60, s{sP}, 11
s_add_u32 s59, s59, s60
s_add_u32 s59, s59, s{sQB}""")
        e(f"""v_lshrrev_b32 v{vTMP}, 5, v{vL}
v_bfe_u32 v{vTMP+1}, v{vL}, 2, 2
v_lshl_add_u32 v{vTMP}, v{vTMP}, 3, v{vTMP+1}
v_lshlrev_b32 v{vTMP}, 6, v{vTMP}
v_and_b32 v{vTMP+1}, 3, v{vL}
v_lshl_add_u32 v{vTMP}, v{vTMP+1}, 3, v{vTMP}
v_and_b32 v{vTMP+1}, 16, v{vL}
v_lshl_add_u32 v{vTMP}, v{vTMP+1}, 1, v{vTMP}
s_add_u32 s60, s{sW2K}, {L_MISC}
v_add_u32 v{vZ[0]}, s60, v{vTMP}""")
        return th

    def g2(self, q2):
        e = self.e; T = self.T; o = self.o
        HB, HD = 192, o['hd']
        LB = 160
        ZF = 128
        ACC = 64
        vH, vO, vZD, vZ, XR = self.vH, self.vO, self.vZD, self.vZ, self.XR
        def hload(n):
            return [T(f"buffer_load_dwordx4 {ar(HB + 8*(n % HD) + 4*rt, 4)}, v{vH[rt]}, {srd(sWS)}, s{sKS+n} offen sc1", f"h{n}") for rt in range(2)]
        H0 = o['h0']
        if not o['hpe']: self.flag_store(50, "z3f")
        for n in range(H0): run(hload(n))
        self.xs('h0 issued')
        rest = sum([hload(n) for n in range(H0, HD)], [])
        ifd = merge(q2 + (self.g2_addr() + self.gen_s4() if o['s4w'] else []), rest)
        k = int(len(ifd) * o['z3fat'])
        run(ifd[:k])
        if o['hpe']: e.wait(vm="z3s"); self.flag_store(50, "z3f")
        run(ifd[k:])
        shadow = [] if o['s4w'] else spread(self.g2_addr() + self.gen_s4(), [1] * o['nsh'])
        late = self.late
        e.wait(lg="g9")
        self.xs("ifd done")
        lreads = lambda n: [self.W(vm=f"w2_{n}")] + self.w2_tr(n, LB + 8*(n % 3), f"l{n}")
        run(lreads(0)); run(lreads(1))
        e(f"s_lshr_b32 s50, s{sP}, 3\ns_lshl_b32 s50, s50, 3\ns_lshl_b32 s51, s{sW}, 1\ns_add_u32 s50, s50, s51\ns_lshl_b32 s50, s50, 9\ns_add_u32 s58, s50, {WS_Z3F}")
        e(f"s_lshl_b32 s50, s{sP}, 16\ns_add_u32 s50, s50, s56\ns_add_u32 s50, s50, {WS_Z3}")
        z3d = lambda mt: [T(f"s_add_u32 m0, s{sW2K}, {L_MISC + (2*mt + (i >> 1))*8192 + (i & 1)*1024}\ns_add_u32 s51, s50, {mt*4096 + i*1024}\nbuffer_load_dwordx4 v{vL16}, {srd(sWS)}, s51 offen sc1 lds", f"z3d{mt}") for i in range(4)]
        xres = [T(f"buffer_load_dwordx4 {vr(XR+4*rt,4)}, v{vO}, {srd(sX)}, s59 offen offset:{rt*1024}", "xr") for rt in range(2)]
        DR, DI, PK = 224, 240, 32
        def zreads(mt):
            return [T(f"ds_read_b64_tr_b16 {ar(ZF + 16*(mt&1) + 4*ks + 2*eh, 2)}, v{vZ[0]} offset:{(2*mt + (ks >> 1))*8192 + (ks & 1)*1024 + eh*256}", f"z{mt}_{ks}") for ks in range(4) for eh in range(2)]
        def tail_a(mt):
            for ks in range(4):
                e.wait(lg=f"z{mt}_{ks}")
                fr = ar(ZF + 16*(mt&1) + 4*ks, 4)
                e(f"v_mfma_f32_32x32x16_bf16 {vr(DR,16)}, {fr}, {vr(self.S4R+4*ks,4)}, {'0' if ks == 0 else vr(DR,16)}")
                e(f"v_mfma_f32_32x32x16_bf16 {vr(DI,16)}, {fr}, {vr(self.S4I+4*ks,4)}, {'0' if ks == 0 else vr(DI,16)}")
        def tail_cvt(mt):
            return [T(f"v_cvt_pk_bf16_f32 v{PK + (jj*2+rt)*4 + q}, v{DR + 8*jj + 4*(q>>1) + 2*(q&1) + rt}, v{DI + 8*jj + 4*(q>>1) + 2*(q&1) + rt}") for jj in range(2) for rt in range(2) for q in range(4)]
        def tail_b(mt):
            for jj in range(2):
                for rt in range(2):
                    for dt in range(2):
                        A = ACC + (rt*2+dt)*16
                        e(f"v_mfma_f32_32x32x16_bf16 {vr(A,16)}, {vr(PK+(jj*2+rt)*4,4)}, {vr(self.IFD+((mt*2+jj)*2+dt)*4,4)}, {vr(A,16)}")
        ZP, ZC, ZD, TT, GA = o['zp'], o['zc'], o['zd'], o['tt'], o['ga']
        NL = 28 - (3 if o['fin'] else 0)
        for n in range(NL):
            side = []
            if n + 2 < 12: side += lreads(n + 2)
            side += late[2*n:2*n + 2]
            if n in GA: side += self.greads(10 + 2*GA.index(n))[:5] + self.greads(11 + 2*GA.index(n))[:5]
            if n < len(shadow): side = merge(shadow[n], side)
            if n == ZP: side.append(lambda: self.poll_issue(vL16, 58, 7, "pz3"))
            for mt in range(4):
                if n == ZD[mt]: side += ([self.W(lg=f"g{9 + 2*mt}")] if mt else []) + z3d(mt)[:2]
                if n == ZD[mt] + 1: side += z3d(mt)[2:]
                if n == TT[mt] - o['zra']: side += [self.W(vm=f"z3d{mt}")] + zreads(mt)
            if n == o['xat']: side += xres
            mt = TT.index(n) if n in TT else None
            TS, tb = 1, 0
            if mt is not None: side += tail_cvt(mt)
            if n in o.get('g2st', (1, 4, 8, 12, 16, 20, 24)): self.xs(f"g2 n{n}")
            if n == ZC:
                self.stamp(11); self.poll_check(vL16, 58, 7, "pz3"); self.stamp(12)
            if mt is not None:
                tail_a(mt)
                if mt == 3: e('s_barrier')
            e.wait(vm=f"h{n}")
            if n in o.get('hst2', ()): self.xs(f"h{n} in")
            if n < 12: e.wait(lg=f"l{n}")
            grp = spread(side, [1, 1, 1, 1])
            if mt is not None and tb % TS == 0: grp = [[]] + spread(side, [1, 1, 1])
            for i, (rt, dt) in enumerate(((0, 0), (0, 1), (1, 0), (1, 1))):
                A = ACC + (rt*2+dt)*16
                B = ar(LB + 8*(n % 3) + 4*dt, 4) if n < 12 else ar(aX + 8*(n-12) + 4*dt, 4)
                e(f"v_mfma_f32_32x32x16_bf16 {vr(A,16)}, {ar(HB + 8*(n % HD) + 4*rt, 4)}, {B}, {'0' if n == 0 else vr(A,16)}")
                if n + HD < 28 and dt == 1: run(hload(n + HD)[rt:rt+1])
                run(grp[i])
            if mt is not None and tb % TS == 0: tail_b(mt)
        wr = lambda t: [T(f"ds_write_addtid_b32 v{ACC+16*t+i} offset:{t*RED_TS + i*256}", "rw") for i in range(16)]
        e(f"s_mul_i32 m0, s{sW}, {RED_WS}")
        XU = 224
        unp = [self.W(vm="xr")] + sum([self.TL(f"v_lshlrev_b32 v{XU+2*i}, 16, v{XR+i}\nv_and_b32 v{XU+2*i+1}, 0xffff0000, v{XR+i}") for i in range(8)], [])
        if o['fin']:
            assert max(TT) < NL
            e.wait(vm="h27")
            pend = unp
            for t, (rt, dt) in enumerate(((0, 0), (0, 1), (1, 0), (1, 1))):
                grp = spread(pend, [1, 1, 1]) if t != 1 else [[], [], []]
                for k, n in enumerate(range(NL, 28)):
                    e(f"v_mfma_f32_32x32x16_bf16 {vr(ACC+16*t,16)}, {ar(HB + 8*(n % HD) + 4*rt, 4)}, {ar(aX + 8*(n-12) + 4*dt, 4)}, {vr(ACC+16*t,16)}")
                    run(grp[k])
                if t >= 1: pend = wr(t - 1)
            self.stamp(13)
            run(wr(2) + wr(3))
        else:
            self.stamp(13)
            run(unp + wr(0) + wr(1) + wr(2) + wr(3))
        e.wait(lg="all"); self.xs("red written"); e("s_barrier"); self.xs("red bar2")
        R = 128
        for rt in range(2):
            for pw in range(4):
                for k in range(2):
                    e(f"ds_read_b128 {vr(R + rt*32 + pw*8 + 4*k, 4)}, v5 offset:{pw*RED_WS + rt*2*RED_TS + 16*k}", f"rr{rt}_{pw}")
        for rt in range(2):
            X = XU + 8*rt
            for pw in range(4):
                e.wait(lg=f"rr{rt}_{pw}")
                for i in range(4):
                    e(f"v_pk_add_f32 {vr(X+2*i,2)}, {vr(X+2*i,2)}, {vr(R + rt*32 + pw*8 + 2*i, 2)}")
            for i in range(4):
                e(f"v_cvt_pk_bf16_f32 v{80+4*rt+i}, v{X+2*i}, v{X+2*i+1}")
            e(f"buffer_store_dwordx4 {vr(80+4*rt,4)}, v{vO}, {srd(sOUT)}, s59 offen offset:{rt*1024} {o.get('ost', 'sc1')}")
        done = e.label("nq")
        e(f"s_or_b32 s50, s2, s{sW}\ns_cmp_lg_u32 s50, 0\ns_cbranch_scc1 {done}\ns_mov_b32 s50, {WS_Q}")
        self.flag_store(50, "q")
        e(f"{done}:")
        if self.stamps:
            self.stamp(14)
            e(f"s_memrealtime s[94:95]"); e.l.append("    s_waitcnt lgkmcnt(0)")
            e(f"v_writelane_b32 v{vSTAMP}, s94, 16")
            e(f"s_lshl_b32 s50, s2, 2\ns_add_u32 s50, s50, s{sW}\ns_lshl_b32 s50, s50, 8\ns_add_u32 s50, s50, {WS_DBG}\nv_lshlrev_b32 v{vTMP}, 2, v{vL}")
            e(f"buffer_store_dword v{vSTAMP}, v{vTMP}, {srd(sWS)}, s50 offen")
            if o.get('enc') is not None:
                e(f"v_readlane_b32 s64, v{vSTAMP}, {o['enc']}\ns_add_u32 s64, s64, 3000\ns_mov_b32 s65, 0\nL_enc:\ns_memrealtime s[66:67]"); e.l.append("    s_waitcnt lgkmcnt(0)")
                e(f"s_add_u32 s65, s65, 1\ns_cmp_gt_u32 s65, 100000\ns_cbranch_scc1 L_encd\ns_sub_u32 s66, s66, s64\ns_cmp_lt_i32 s66, 0\ns_cbranch_scc1 L_enc\nL_encd:")
            if o.get('dbgout'):
                e(f"s_load_dwordx2 s[64:65], s[0:1], 56"); e.l.append("    s_waitcnt lgkmcnt(0)")
                e(f"s_mov_b32 s66, 256\ns_mov_b32 s67, 0x20000")
                e(f"v_not_b32 v2, v{vSTAMP}\nv_cmp_eq_u32 vcc, 15, v{vL}\nv_cndmask_b32 v2, v{vSTAMP}, v2, vcc\nv_readlane_b32 s68, v{vSTAMP}, 16\nv_mov_b32 v3, s68\nv_cmp_eq_u32 vcc, 0, v{vL}\nv_cndmask_b32 v2, v2, v3, vcc")
                e(f"s_mov_b64 exec, 0xffff\nbuffer_atomic_umax v2, v{vTMP}, s[64:67], 0 offen sc1\ns_mov_b64 exec, -1")

    def build(self):
        e = self.e
        self.prologue()
        snap = e.snapshot()
        e(f"s_cmp_eq_u32 s{sTY}, 1\ns_cbranch_scc1 L_typeB")
        self.f1(0); self.post()
        endA = e.snapshot()
        e("s_branch L_join\nL_typeB:")
        e.restore(snap)
        self.f1(1); rest = self.post()
        endB = e.snapshot()
        self.e.vm = self.join(endA[0], endB[0]); self.e.lg = self.join(endA[1], endB[1])
        e("L_join:")
        self.g2(rest)
        e("L_end:\ns_endpgm")
        e.l += e.cold
        lines, nn = pad_hazards(e.l)
        hdr = open("parallel_sum__spectral_gfnet__dense_activation_silu__prompt.s.ref").read().split("; Override")[0]
        out = hdr + "; @launch grid=(256,1,1) block=(256,1,1) lds=163840\n"
        out += '.amdgcn_target "amdgcn-amd-amdhsa--gfx950"\n.text\n'
        out += f".globl {KNAME}\n.p2align 8\n.type {KNAME},@function\n{KNAME}:\n"
        out += "\n".join(lines) + "\n"
        out += f""".section .rodata,"a"
.p2align 6
.amdhsa_kernel {KNAME}
  .amdhsa_next_free_vgpr 512
  .amdhsa_next_free_sgpr 102
  .amdhsa_accum_offset 256
  .amdhsa_group_segment_fixed_size 0
  .amdhsa_kernarg_size 72
  .amdhsa_user_sgpr_count 2
  .amdhsa_user_sgpr_kernarg_segment_ptr 1
  .amdhsa_system_sgpr_workgroup_id_x 1
.end_amdhsa_kernel
"""
        return out, nn, len(lines)
    @staticmethod
    def join(a, b):
        def after(l):
            d = {}
            for i, t in enumerate(l): d[t] = len(l) - 1 - i
            return d
        da, db = after(a), after(b)
        n = {t: min(da.get(t, 10**9), db.get(t, 10**9)) for t in set(da) | set(db) if t is not None}
        m = max(n.values()) + 1 if n else 0
        q = [None] * m
        res = []
        for pos in range(m - 1, -1, -1):
            tags = [t for t, v in n.items() if v == pos]
            res.append(MultiTag(tags))
        return res

class MultiTag:
    def __init__(self, tags): self.tags = set(tags)
    def __eq__(self, o): return (o in self.tags) if not isinstance(o, MultiTag) else self is o
    def __hash__(self): return id(self)

if __name__ == "__main__":
    import argparse
    ap = argparse.ArgumentParser()
    ap.add_argument("-o", default="parallel_sum__spectral_gfnet__dense_activation_silu__prompt.s")
    ap.add_argument("--stamps", action="store_true")
    ap.add_argument("--opt", action="append", default=[])
    a = ap.parse_args()
    opts = {}
    for kv in a.opt:
        k, v = kv.split("="); opts[k] = eval(v)
    g = Gen(a.stamps, opts)
    txt, nn, nl = g.build()
    import json; open(a.o + ".names", "w").write(json.dumps(g.xnames))
    open(a.o, "w").write(txt)
    print("lines", nl, "nops added", nn)
```

```python
import re, copy

REG_RE = re.compile(r'^(-|abs\()?([vas])(\d+)\)?$')
RNG_RE = re.compile(r'^(-)?([vas])\[(\d+):(\d+)\]$')
TRANS = ('v_exp_f32', 'v_log_f32', 'v_rcp_f32', 'v_rsq_f32', 'v_sqrt_f32', 'v_sin_f32', 'v_cos_f32')

def regs_of(tok):
    tok = tok.strip()
    m = REG_RE.match(tok)
    if m: return [(m.group(2), int(m.group(3)))]
    m = RNG_RE.match(tok)
    if m: return [(m.group(2), i) for i in range(int(m.group(3)), int(m.group(4)) + 1)]
    if tok == 'vcc': return [('s', 'vcc')]
    if tok == 'm0': return [('s', 'm0')]
    if tok == 'exec': return [('s', 'exec')]
    return []

class Ins:
    __slots__ = ('text', 'mn', 'kind', 'w', 'r', 'srcc', 'ab', 'passes', 'dpp')
    def __init__(self, text):
        self.text = text
        t = text.split(';')[0].strip()
        t = re.sub(r'\s+(op_sel|op_sel_hi|neg_lo|neg_hi):\[[^\]]*\]', '', t)
        self.w, self.r, self.srcc, self.ab, self.passes, self.dpp = [], [], [], [], 0, False
        if not t or t.startswith('.'):
            self.mn, self.kind = '', 'none'; return
        if t.endswith(':'):
            self.mn, self.kind = t, 'label'; return
        p = t.split(None, 1)
        mn = p[0]; self.mn = mn
        rest = p[1] if len(p) > 1 else ''
        ops = [o.strip() for o in rest.split(',')] if rest else []
        mods = ''
        if ops:
            lp = ops[-1].split(None, 1)
            ops[-1] = lp[0]
            mods = lp[1] if len(lp) > 1 else ''
        R = [regs_of(o) for o in ops]
        flat = lambda L: [x for l in L for x in l]
        base = mn.replace('_e32', '').replace('_e64', '').replace('_dpp', '')
        if mn.startswith('v_mfma'):
            self.kind = 'mfma'; self.w = R[0]; self.ab = R[1] + R[2]; self.srcc = R[3]; self.r = self.ab + self.srcc
            self.passes = 2 if '4x4x4' in mn else (8 if '32x32' in mn else 4)
        elif mn.startswith('ds_'):
            self.kind = 'ds'
            if mn.startswith('ds_read') or mn.startswith('ds_bpermute') or mn.startswith('ds_swizzle'):
                self.w = R[0]; self.r = flat(R[1:])
            else:
                self.r = flat(R)
            if 'addtid' in mn: self.r = self.r + [('s', 'm0')]
        elif mn.startswith('buffer_') or mn.startswith('global_'):
            self.kind = 'vmem'
            islds = re.search(r'\blds\b', mods) is not None or '_lds_' in mn
            if islds:
                self.r = flat(R) + [('s', 'm0')]
            elif '_load' in mn:
                self.w = R[0]; self.r = flat(R[1:])
            else:
                self.r = flat(R)
        elif mn.startswith('s_'):
            if mn in ('s_waitcnt', 's_barrier', 's_endpgm', 's_sleep', 's_setprio'): self.kind = 'misc'
            elif mn == 's_nop': self.kind = 'nop'; self.passes = int(ops[0], 0) + 1
            elif mn.startswith('s_cbranch') or mn == 's_branch': self.kind = 'branch'
            elif mn.startswith('s_cmp'): self.kind = 'salu'; self.r = flat(R)
            elif mn.startswith('s_load') or mn.startswith('s_mem'): self.kind = 'smem'; self.w = R[0]; self.r = flat(R[1:])
            else:
                self.kind = 'salu'; self.w = R[0]; self.r = flat(R[1:])
                if 'saveexec' in mn: self.w = self.w + [('s', 'exec')]
        elif mn.startswith('v_'):
            self.kind = 'trans' if base in TRANS else 'valu'
            self.dpp = '_dpp' in mn
            if 'permlane' in mn and 'swap' in mn:
                self.w = R[0] + R[1]; self.r = R[0] + R[1]
            elif base.startswith('v_cmp'):
                self.w = R[0]; self.r = flat(R[1:])
            elif '_co_' in base:
                self.w = R[0] + R[1]; self.r = flat(R[2:])
            else:
                self.w = R[0]; self.r = flat(R[1:])
                if base in ('v_fmac_f32', 'v_dot2c_f32_bf16') or self.dpp: self.r = self.r + R[0]
        else:
            raise ValueError('cannot parse: ' + text)

def peephole(lines):
    out = []; known = {}
    for text in lines:
        I = Ins(text)
        if I.kind in ('label', 'branch') and '; soft' not in text: known = {}
        if I.kind == 'salu' and I.w in ([('s', 'm0')], [('s', 55)]) and I.mn in ('s_add_u32', 's_lshl4_add_u32'):
            key = text.split(';')[0].strip()
            if known.get(I.w[0], (None,))[0] == key: continue
            for k in [k for k, v in known.items() if I.w[0] in v[1]]: del known[k]
            known[I.w[0]] = (key, set(I.r))
            if I.w == [('s', 'm0')]:
                j = len(out)
                while j > 0 and Ins(out[j-1]).kind == 'salu' and ('s', 'm0') not in Ins(out[j-1]).w and not set(Ins(out[j-1]).w) & set(I.r) and not Ins(out[j-1]).mn.startswith(('s_cmp', 's_cselect', 's_addc', 's_bitcmp')): j -= 1
                if j < len(out): pass
                elif j > 0 and Ins(out[j-1]).kind == 'mfma': j -= 1
                out.insert(j, text); continue
        else:
            for rg in I.w:
                known.pop(rg, None)
                for k in [k for k, v in known.items() if rg in v[1]]: del known[k]
        out.append(text)
    return out

def pad_hazards(lines):
    out = []
    pos = 0
    last = {}
    def need(key, n):
        if key in last:
            p = last[key]
            return max(0, n - (pos - p[0] - 1))
        return 0
    nops_added = 0
    for text in lines:
        I = Ins(text)
        if I.kind == 'none':
            out.append(text); continue
        req = 0
        soft = '; soft' in text
        if I.kind in ('label', 'branch') and not soft:
            for (cl, rg), p in last.items():
                lim = {'valu': 2, 'valus': 5, 'trans': 1, 'm0': 1, 'store': 2}.get(cl)
                if cl == 'mfma': lim = {2: 5, 4: 8, 8: 12}[p[1]]
                if cl == 'srcc': lim = {2: 1, 4: 3, 8: 7}[p[1]]
                req = max(req, lim - (pos - p[0] - 1))
        isv = I.kind in ('valu', 'trans')
        if I.kind == 'mfma':
            for rg in I.r: req = max(req, need(('valu', rg), 2))
            for rg in I.ab:
                if ('mfma', rg) in last: req = max(req, need(('mfma', rg), {2: 5, 4: 8, 8: 12}[last[('mfma', rg)][1]]))
            for rg in I.srcc:
                if ('mfma', rg) in last:
                    p = last[('mfma', rg)]
                    same = p[2] == tuple(I.srcc) and p[1] == I.passes
                    req = max(req, need(('mfma', rg), ({2: 2, 4: 0, 8: 0} if same else {2: 4, 4: 6, 8: 10})[p[1]]))
            for rg in I.w:
                if rg not in I.srcc and ('mfma', rg) in last:
                    p = last[('mfma', rg)]
                    req = max(req, need(('mfma', rg), {2: 4, 4: 6, 8: 10}[p[1]]))
            req = max(req, need(('valus', ('s', 'exec')), 4))
        if isv or I.kind in ('ds', 'vmem'):
            for rg in I.r + I.w:
                if ('mfma', rg) in last: req = max(req, need(('mfma', rg), {2: 5, 4: 8, 8: 12}[last[('mfma', rg)][1]]))
        if isv:
            for rg in I.w:
                if ('srcc', rg) in last: req = max(req, need(('srcc', rg), {2: 1, 4: 3, 8: 7}[last[('srcc', rg)][1]]))
                req = max(req, need(('store', rg), 2))
            for rg in I.r:
                if I.kind != 'trans': req = max(req, need(('trans', rg), 1))
                if rg[0] == 's': req = max(req, need(('valus', rg), 4 if 'lane' in I.mn else 2))
                if 'readfirstlane' in I.mn or 'readlane' in I.mn: req = max(req, need(('valu', rg), 1))
                if 'permlane' in I.mn or I.dpp: req = max(req, need(('valu', rg), 2))
            if I.dpp: req = max(req, need(('valus', ('s', 'exec')), 5))
        if I.kind in ('ds', 'vmem'):
            for rg in I.w: req = max(req, need(('store', rg), 1))
            for rg in I.r:
                req = max(req, need(('trans', rg), 1))
                if rg == ('s', 'm0'): req = max(req, need(('m0', rg), 1))
                if rg[0] == 's' and I.kind == 'vmem': req = max(req, need(('valus', rg), 5))
        if I.kind in ('salu', 'smem', 'branch'):
            for rg in I.r: req = max(req, need(('valus', rg), 2))
            if 'vcc' in I.mn: req = max(req, need(('valus', ('s', 'vcc')), 2))
        while req > 0:
            n = min(req, 16)
            out.append(f'    s_nop {n-1}'); pos += n; req -= n; nops_added += 1
        out.append(text)
        if I.kind == 'label':
            if not soft: last = {}
            continue
        if isv:
            for rg in I.w:
                if rg[0] == 's': last[('valus', rg)] = (pos,)
                else:
                    last[('valu', rg)] = (pos,)
                    last.pop(('trans', rg), None)
                    if I.kind == 'trans': last[('trans', rg)] = (pos,)
                last.pop(('mfma', rg), None)
        if I.kind == 'mfma':
            for rg in I.w: last[('mfma', rg)] = (pos, I.passes, tuple(I.w))
            for rg in I.srcc: last[('srcc', rg)] = (pos, I.passes)
        if I.kind == 'salu':
            for rg in I.w:
                if rg == ('s', 'm0'): last[('m0', rg)] = (pos,)
                last.pop(('valus', rg), None)
        if I.kind == 'vmem' and '_store' in I.mn and ('x4' in I.mn or 'x3' in I.mn):
            for rg in I.r:
                if rg[0] != 's': last[('store', rg)] = (pos,)
        pos += I.passes if I.kind == 'nop' else 1
        if I.kind == 'branch' and not soft: last = {}
    return out, nops_added

class E:
    def __init__(self):
        self.l = []
        self.vm = []
        self.lg = []
        self.uid = 0
        self.cold = []
    def __call__(self, s, tag=None):
        for x in s.split('\n'):
            x = x.strip()
            if not x: continue
            self.l.append(x if x.split(';')[0].strip().endswith(':') or x.startswith('.') or x.startswith(';') else '    ' + x)
            mn = x.split()[0]
            if mn.startswith('buffer_') or mn.startswith('global_'):
                self.vm.append(tag)
                if len(self.vm) > 63: print('WARN vm outstanding', len(self.vm), x)
            elif mn.startswith('ds_'):
                self.lg.append(tag)
                if len(self.lg) > 15: print('WARN lgkm outstanding', len(self.lg), x)
    def _cnt(self, lst, tags, mx):
        tags = tags if isinstance(tags, (list, tuple, set)) else [tags]
        idx = [i for i, t in enumerate(lst) if t in tags]
        if not idx: return None
        n = len(lst) - 1 - max(idx)
        return min(n, mx)
    def wait(self, vm=None, lg=None):
        parts = []
        if vm is not None:
            n = 0 if vm == 'all' else self._cnt(self.vm, vm, 63)
            if n is not None and (vm != 'all' or self.vm):
                parts.append(f'vmcnt({n})'); self.vm = self.vm[len(self.vm) - n:] if n else []
        if lg is not None:
            n = 0 if lg == 'all' else self._cnt(self.lg, lg, 15)
            if n is not None and (lg != 'all' or self.lg):
                parts.append(f'lgkmcnt({n})'); self.lg = self.lg[len(self.lg) - n:] if n else []
        if parts: self.l.append('    s_waitcnt ' + ' '.join(parts))
    def label(self, base):
        self.uid += 1
        return f'L_{base}_{self.uid}'
    def snapshot(self): return (list(self.vm), list(self.lg))
    def restore(self, s): self.vm, self.lg = list(s[0]), list(s[1])
```

```python
import sys
from emit import E, pad_hazards, peephole

KNAME = "parallel_sum__spectral_gfnet__dense_activation_silu__prompt_kernel"

WS_Q     = 0
WS_STATS = 0x10000
WS_Z1F   = 0x20000
WS_HF    = 0x24000
WS_Z3F   = 0x28000
WS_CSG   = 0xD00000
WS_Z1    = 0x100000
WS_Z3    = 0x300000
WS_H     = 0x500000
WS_DBG   = 0xC00000
WS_SIZE  = 0x1000000

L_XS, L_MISC, L_S1, L_S2 = 0, 32768, 49152, 98304
L_CS = L_MISC + 8192
L_RB = L_MISC + 8192 + 5120
L_ZB = L_MISC
L_ZX = L_MISC + 8192
L_FD = L_S1
PAIR = [L_S1 + i*8192 for i in range(6)] + [L_S2 + 4096, L_S2 + 16384 + 4096]
SING = [L_S2 + 12288, L_S2 + 16384 + 12288, L_S2 + 2*16384 + 4096, L_S2 + 3*16384 + 4096]
BSLOT = [L_S2 + i*16384 + 4096 for i in range(4)] + [L_S1 + 32768, L_S1 + 40960]
RED_TS = 4096 + 16
RED_WS = 4 * RED_TS

sX, sW1, sW2, sWS, sWR, sWI, sOUT = 4, 8, 12, 16, 20, 24, 28
sT, sW, sRB, sBLK, sTY, sC0, sK1, sCG, sP, sQ = 32, 33, 34, 35, 36, 37, 38, 39, 40, 41
sXROW, sCOL1, sCOL2, sHB1, sHB2, sXSW, sQB, sPOLL = 42, 43, 44, 45, 46, 47, 48, 49
sCSG = 57; sC7 = 3
sXS3, sW2K, sROT = 61, 62, 63
sKS = 64
sSTAMP = 92
def srd(n): return f"s[{n}:{n+3}]"

vTID, vL = 0, 1
vXD = [2, 3, 4, 5]; vSD = [6, 7]; vS1D = 8
vXR = [9, 10, 11, 12]; vT1 = [13, 14]; vT2 = [15, 16]; vTS = 17; vFD = 18
vC1 = [19, 20]; vC2 = [21, 22]; vCS = 8 + 224
vNC1, vRINV, vSIG, vL16 = 23, 24, 25, 26
vSTAMP = 27
vBX = 28; vAX = [32, 36, 160, 164, 176]; vCSA = [40, 44, 168, 172, 180]; vCSF = [48, 52, 144, 148, 152]
vONES = 56
vTMP = 58
vXRb = [156, 157, 158, 159]; vXR2b = [185, 186, 187, 188]; vBXb = 176; vNC1b, vRINVb = 189, 190
vSD2 = 236; vCSS = 237; vW2D = [238, 239]; vPF = [112, 113, 114, 115]
vXR2 = [232, 233, 234, 235]
ACCA, ACCD = 64, 128
vW = 240
TMP = 192
aX, aG1, aFB = 0, 192, 216
aA2, aA3 = 128, 160

TRANS_ = ('v_exp_f32', 'v_rcp_f32', 'v_sin_f32', 'v_cos_f32', 'v_rsq_f32')
LOG2E = 1.4426950408889634
def fhex(f):
    import struct
    return "0x%08x" % struct.unpack("<I", struct.pack("<f", f))[0]
def vr(a, n): return f"v[{a}:{a+n-1}]"
def ar(a, n): return f"a[{a}:{a+n-1}]"

def merge(main, side, start=0, end=None):
    end = len(main) if end is None else end
    out = list(main[:start]); n = end - start; k = len(side); j = 0
    for i in range(n):
        out.append(main[start + i])
        while j < k and (j + 1) * n <= (i + 1) * k:
            out.append(side[j]); j += 1
    out += side[j:]
    out += main[end:]
    return out
def run(ths):
    for t in ths: t()
def cost(th): return getattr(th, 'cost', 1)
def spread(fill, caps):
    tot = sum(cost(t) for t in fill); cap = sum(caps)
    out = [[] for _ in caps]; acc = 0.0; g = 0; lim = caps[0] * tot / cap if cap else 0
    for t in fill:
        while g < len(caps) - 1 and acc + cost(t) / 2 > lim:
            g += 1; lim += caps[g] * tot / cap
        out[g].append(t); acc += cost(t)
    return out

class Gen:
    def __init__(self, stamps=False, opts=None):
        self.e = E(); self.stamps = stamps; self.nst = 0; self.xnames = []
        self.o = dict(ntw=False, pf=True, s2at={6: [0, 1, 2], 7: [3, 4, 5]}, w2p2=5, z1f=34, h0=4, pfw2=True, pfat=None, xrot=True, lep=[4, 4], hd=8, zp=5, zc=9, zd=(9, 12, 15, 19), tt=(13, 17, 21, 24), ga=(8, 10, 12), xat=22, nsh=8, hpe=0, w11=0, csA=(112, 134, 142), csB=(36, 50, 55), h1=0, wA=75, presetA=1, j0=4, j0e=0, warm2=63, z3fat=0.45, ifdw=1.0, hfat=0, lamax=6, lamin=3, vcap=0, epl=[0, 4], mixq=0, a23d=None, a23pre=0.3, w11at=0.3, stB=(36, 54), ntx='', ntw1='', ntx2='', fin=1, bw2=(1, 15, 23, 34, 43), st2d=8, epfrom=0.3, nown=7, ownA=(116, 124, 140), ownB=28, share=[1, 0], w1b=45, vq=1, latew=0, gs=dict(ta=(13, 16, 19, 22), cv=2, cd=3, cv_=28, hl=40, zp=5, zc=9, ze=60, zl=24, zr=9, late=(9, 15, 16, 20), bar=21, xat=20), peep=1, lateA=(0.6, 2, 104), helpa=0, tlbA=3, tlbfine=1, warmA=0, t64=1, tlbB=0, allB=0, wmd=0, pre1=0, lg2=0, diag=1, hfb=0.9, gf=(0,)*7, s4w=0, xlast=1, g1pre=0, strb=1, tlbw=4, prel=0, zra=2, st3d=2, nlate=4, zpoll=[(0.3, 0.7), (0.3, 0.7)], z1g=2)
        self.o.update(opts or {})
    def stamp(self, i):
        if not self.stamps or (self.o.get('only') is not None and i not in self.o['only']): return
        e = self.e
        e(f"{'s_memrealtime' if self.o.get('rt', 1) else 's_memtime'} s[{sSTAMP}:{sSTAMP+1}]"); e.l.append("    s_waitcnt lgkmcnt(0)"); e.lg = []
        e(f"v_writelane_b32 v{vSTAMP}, s{sSTAMP}, {i if i < 15 else i + 5}")
    def light(self):
        if self.nl < 5: self.e(f"s_memtime s[{92+2*self.nl}:{93+2*self.nl}]"); self.nl += 1
    def light_dump(self):
        if not self.o.get('lst'): return
        self.e.l.append("    s_waitcnt lgkmcnt(0)"); self.e.lg = []
        for i in range(self.nl): self.e(f"v_writelane_b32 v{vSTAMP}, s{92+2*i}, {58+i}")
    def xs(self, name):
        if not (self.stamps and self.o.get('xs')): return
        if name not in self.xnames: self.xnames.append(name)
        self.stamp(15 + self.xnames.index(name))
    def dst(self, region):
        if self.o.get('detail') != region: return
        pairs = self.dpairs
        if self.nd < len(pairs):
            self.e(f"s_memtime s[{pairs[self.nd]}:{pairs[self.nd]+1}]"); self.nd += 1
    def dbegin(self, region, pairs):
        if self.o.get('detail') == region: self.nd = 0; self.dpairs = pairs
    def dend(self, region):
        if self.o.get('detail') != region: return
        self.e.l.append("    s_waitcnt lgkmcnt(0)"); self.e.lg = []
        for i in range(self.nd): self.e(f"v_writelane_b32 v{vSTAMP}, s{self.dpairs[i]}, {20+i}")
        run(self.g2_setup())
    def T(self, s, tag=None):
        f = lambda: self.e(s, tag)
        f.cost = sum(2 if x.split()[0] in TRANS_ else 1 for x in s.split("\n") if x.strip()); f.txt = s
        return f
    def W(self, vm=None, lg=None):
        f = lambda: self.e.wait(vm=vm, lg=lg)
        f.cost = 0.5
        return f
    def TL(self, s):
        return [self.T(x) for x in s.split("\n") if x.strip()]

    def prologue(self):
        e = self.e
        e("s_cmp_ge_u32 s2, 256\ns_cbranch_scc1 L_end")
        e(f"s_load_dwordx2 s[{sX}:{sX+1}], s[0:1], 0\ns_load_dwordx4 s[52:55], s[0:1], 32\ns_load_dwordx2 s[{sWS}:{sWS+1}], s[0:1], 64")
        e(f"s_load_dwordx4 s[56:59], s[0:1], 8\ns_load_dwordx2 s[{sOUT}:{sOUT+1}], s[0:1], 48")
        if self.stamps:
            e(f"s_memrealtime s[94:95]\ns_memtime s[96:97]")
            self.start_saved = False
        e(f"v_and_b32 v{vL}, 63, v0\nv_lshrrev_b32 v{vTMP}, 6, v0\nv_lshlrev_b32 v{vL16}, 4, v{vL}\nv_readfirstlane_b32 s{sW}, v{vTMP}")
        if self.o['pf']:
            if self.o.get('pfB'): e(f"s_bitcmp1_b32 s2, 3\ns_cbranch_scc0 L_nopf")
            e(f"s_getpc_b64 s[50:51]\ns_lshr_b32 s60, s2, {4 if self.o.get('pfB') else 3}\ns_lshl_b32 s60, s60, {12 if self.o.get('pfB') else 11}")
            e(f"s_and_b32 s61, s{sW}, {3 if self.o.get('pfB') else 1}\ns_lshl_b32 s61, s61, 10\ns_add_u32 s60, s60, s61\ns_min_u32 s60, s60, L_end-{KNAME}-1280")
            e(f"s_add_u32 s50, s50, s60\ns_addc_u32 s51, s51, 0")
            e(f"v_mov_b32 v{vTMP+1}, s51\nv_add_co_u32 v{vTMP}, vcc, s50, v{vL16}\nv_addc_co_u32 v{vTMP+1}, vcc, 0, v{vTMP+1}, vcc")
            e(f"global_load_dwordx4 {vr(TMP+8,4)}, {vr(vTMP,2)}, off", "pf")
            if self.o.get('pfB'): e("L_nopf:"); e.vm.pop()
        e(f"""s_and_b32 s50, s2, 7
s_lshr_b32 s51, s2, 3
s_lshr_b32 s60, s50, 1
s_lshl_b32 s60, s60, 2
s_lshr_b32 s61, s51, 3
s_add_u32 s{sRB}, s60, s61
s_and_b32 s62, s51, 7
s_and_b32 s{sTY}, s62, 1
s_and_b32 s63, s50, 1
s_lshl_b32 s{sBLK}, s63, 2
s_lshr_b32 s60, s62, 1
s_add_u32 s{sBLK}, s{sBLK}, s60
s_add_u32 s{sC0}, s62, s61
s_add_u32 s{sC0}, s{sC0}, {self.o.get('c0add', 0)}
s_and_b32 s{sC0}, s{sC0}, 7
s_lshl_b32 s{sK1}, s50, 2
s_add_u32 s{sK1}, s{sK1}, s61
s_mov_b32 s{sCG}, s62
s_mov_b32 s{sP}, s{sK1}
s_mov_b32 s{sQ}, s{sC0 if self.o['mixq'] else 62}
s_lshl_b32 s63, s63, 3
s_add_u32 s63, s63, s62""")
        e(f"s_lshl_b32 s60, s{sRB}, 2\ns_add_u32 s60, s60, s{sW}\ns_lshl_b32 s{sXROW}, s60, 10\ns_lshl_b32 s{sXSW}, s{sW}, 13")
        e(f"""s_mul_i32 s60, s{sBLK}, 320
s_and_b32 s50, s{sBLK}, 1
s_lshl_b32 s51, s50, 6
s_add_u32 s51, s51, s60
s_lshl_b32 s50, s50, 8
s_sub_u32 s{sCOL1}, s60, s50
s_add_u32 s{sCOL1}, s{sCOL1}, 256
s_lshl_b32 s61, s{sBLK}, 7
s_add_u32 s61, s61, 2560
s_cmp_eq_u32 s{sTY}, 0
s_cselect_b32 s{sCOL2}, s51, s61""")
        e(f"s_mul_i32 s60, s{sXROW}, 112\ns_add_u32 s60, s60, {WS_H}\ns_lshl_b32 s61, s{sCOL1}, 5\ns_add_u32 s{sHB1}, s60, s61\ns_lshl_b32 s61, s{sCOL2}, 5\ns_add_u32 s{sHB2}, s60, s61")
        t0, t1, t2 = vTMP, vTMP+1, vTMP+2
        e(f"""v_lshrrev_b32 v{t0}, 3, v{vL}
v_and_b32 v{t1}, 7, v{vL}
v_lshrrev_b32 v{t2}, 4, v{vL}
v_xor_b32 v{t1}, v{t1}, v{t2}
v_lshlrev_b32 v{t1}, 4, v{t1}
v_lshl_add_u32 v{vXD[0]}, v{t0}, 16, v{t1}
v_add_u32 v{vXD[0]}, s{sXROW}, v{vXD[0]}
s_lshl_b32 s{sC7}, s{sC0}, 7
v_xor_b32 v{vXD[1]}, 64, v{vXD[0]}
v_add_u32 v{vXD[2]}, {2*(524288-1024)}, v{vXD[0]}
v_add_u32 v{vXD[3]}, {3*(524288-1024)}, v{vXD[1]}
v_add_u32 v{vXD[1]}, {524288-1024}, v{vXD[1]}""")
        e(f"""v_lshrrev_b32 v{t1}, 5, v{vL}
v_and_b32 v{t2}, 31, v{vL}
v_lshlrev_b32 v{t2}, 4, v{t2}
v_lshl_add_u32 v{t2}, v{t1}, 16, v{t2}
s_lshl_b32 s60, s63, 17
s_xor_b32 s61, s{sXROW}, {4096 * self.o['strb']}
s_add_u32 s60, s60, s61""")
        e(f"""s_lshl_b32 s61, s{sW}, 4
v_add_u32 v{t0}, s61, v{t0}
v_mul_u32_u24 v{t0}, 3584, v{t0}
v_and_b32 v{t1}, 7, v{vL}
v_lshlrev_b32 v{t1}, 4, v{t1}
v_and_b32 v{vTMP+3}, 16, v{vL}
v_lshlrev_b32 v{vTMP+3}, 2, v{vTMP+3}
v_xor_b32 v{t1}, v{t1}, v{vTMP+3}
v_add3_u32 v{vSD[0]}, v{t0}, v{t1}, s{sCOL2}
v_add_u32 v{vSD[1]}, {8*3584-1024}, v{vSD[0]}
v_lshrrev_b32 v{t0}, 2, v{vL}
v_add_u32 v{t0}, s61, v{t0}
v_mul_u32_u24 v{t0}, 3584, v{t0}
v_and_b32 v{t1}, 3, v{vL}
v_lshl_add_u32 v{vS1D}, v{t1}, 4, v{t0}
v_add_u32 v{vS1D}, s{sCOL1}, v{vS1D}""")
        e.l.append("    s_waitcnt lgkmcnt(0)")
        if self.stamps: e(f"v_writelane_b32 v{vSTAMP}, s96, 0\nv_writelane_b32 v{vSTAMP}, s94, 15")
        self.stamp(4)
        e(f"s_mov_b32 s{sX+2}, 2097152\ns_mov_b32 s{sX+3}, 0x20000")
        if self.o.get('xfirst'): run(self.dma_x(0))
        if self.o['vq']:
            e(f"s_mov_b32 s{sWS+2}, {WS_SIZE}\ns_mov_b32 s{sWS+3}, 0x20000")
            e(f"buffer_load_dword v{vW}, off, {srd(sWS)}, 0 offset:{WS_Q}", "stat")
        e(f"buffer_load_dwordx4 {vr(TMP,4)}, v{t2}, {srd(sX)}, s60 offen {self.o.get('stf', '')}", "stat")
        e(f"buffer_load_dwordx4 {vr(TMP+4,4)}, v{t2}, {srd(sX)}, s60 offen offset:512 {self.o.get('stf', '')}", "stat")
        if not self.o['vq']: e(f"s_load_dword s{sT}, s[{sWS}:{sWS+1}], {WS_Q}")
        e(f"s_mov_b32 s{sW1}, s52\ns_mov_b32 s{sW1+1}, s53\ns_mov_b32 s{sW1+2}, 1835008\ns_mov_b32 s{sW1+3}, 0x20000")
        if not self.o.get('xfirst') and not self.o['xlast']: run(self.dma_x(0))
        e(f"s_mov_b32 s{sW2}, s54\ns_mov_b32 s{sW2+1}, s55\ns_mov_b32 s{sW2+2}, 1835008\ns_mov_b32 s{sW2+3}, 0x20000")
        e(f"s_mov_b32 s{sWS+2}, {WS_SIZE}\ns_mov_b32 s{sWS+3}, 0x20000")
        e(f"s_mov_b32 s{sWR}, s56\ns_mov_b32 s{sWR+1}, s57\ns_mov_b32 s{sWR+2}, 1052672\ns_mov_b32 s{sWR+3}, 0x20000")
        e(f"s_mov_b32 s{sWI}, s58\ns_mov_b32 s{sWI+1}, s59\ns_mov_b32 s{sWI+2}, 1052672\ns_mov_b32 s{sWI+3}, 0x20000")
        e(f"s_mov_b32 s{sOUT+2}, 2097152\ns_mov_b32 s{sOUT+3}, 0x20000")
        if not self.o['tlbB'] and not self.o['tlbA']: self.tlb_warm()
        e(f"s_mov_b32 s{sPOLL}, s63")
        e(f"s_lshl_b32 s{sXS3}, s{sW}, 10\ns_lshl_b32 s{sW2K}, s{sW}, 11\ns_lshl_b32 s{sQB}, s{sQ}, 7\ns_lshl_b32 s56, s{sW}, 14")
        e(f"s_lshr_b32 s50, s{sRB}, 2\ns_lshl_b32 s50, s50, 4\ns_add_u32 s50, s50, s63\ns_lshl_b32 s50, s50, 2\ns_add_u32 s50, s50, s{sW}\ns_lshl_b32 s50, s50, 12\ns_add_u32 s{sCSG}, s50, {WS_CSG}")
        e(f"s_mul_i32 s50, s{sQ}, 7\ns_lshr_b32 s50, s50, 1\ns_and_b32 s51, s{sP}, 3\ns_mul_i32 s51, s51, 7\ns_add_u32 s{sROT}, s50, s51")
        if self.o['xrot']: e(f"s_and_b32 s50, s2, 7\ns_add_u32 s{sROT}, s{sROT}, s50\ns_cmp_ge_u32 s{sROT}, 28\ns_cselect_b32 s50, 28, 0\ns_sub_u32 s{sROT}, s{sROT}, s50")

    def tlb_warm(self, sh=0):
        e = self.e; vW = globals()['vW'] if not sh else 116
        if self.o['tlbw']:
            skip = e.label("tw")
            e(f"s_cmp_lg_u32 s{sW}, {self.o['tlbw'] - 1}\ns_cbranch_scc1 {skip}")
            if self.o.get('tlbfine'):
                pre = [f"s_lshr_b32 s54, s2, 3", f"v_min_u32 v{vW+1}, 7, v{vL}", f"v_lshl_add_u32 v{vW+1}, v{vW+1}, 5, s54", f"v_mul_u32_u24 v{vW+1}, 57344, v{vW+1}",
                       f"v_min_u32 v{vW+2}, 1, v{vL}", f"v_lshl_add_u32 v{vW+2}, v{vW+2}, 5, s54", f"v_lshlrev_b32 v{vW+4}, 15, v{vW+2}", f"v_mul_u32_u24 v{vW+5}, 28672, v{vW+2}", f"v_lshlrev_b32 v{vW+2}, 14, v{vW+2}"]
                a_w2, a_out = vW + 5, vW + 4
            else:
                pre = [f"v_min_u32 v{vW+1}, 6, v{vL}", f"v_lshlrev_b32 v{vW+1}, 21, v{vW+1}", f"v_add_u32 v{vW+1}, 0x100000, v{vW+1}", f"v_min_u32 v{vW+2}, 1, v{vL}", f"v_mul_u32_u24 v{vW+2}, 1052000, v{vW+2}"]
                a_w2 = a_out = vW + 2
            for l in pre + [f"buffer_load_dword v{191 if sh else vW+3}, v{vW+1}, {srd(sWS)}, 0 offen", f"buffer_load_dword v{191 if sh else vW+3}, v{a_w2}, {srd(sW2)}, 0 offen", f"buffer_load_dword v{191 if sh else vW+3}, v{vW+2}, {srd(sWR)}, 0 offen",
                      f"buffer_load_dword v{191 if sh else vW+3}, v{vW+2}, {srd(sWI)}, 0 offen", f"buffer_load_dword v{191 if sh else vW+3}, v{a_out}, {srd(sOUT)}, 0 offen"]: e.l.append("    " + l)
            e(f"{skip}:")
    def chunk(self, t, d):
        return f"s_add_u32 s{d}, s{sC7}, {128*((t>>1) + 4*(t&1))}\ns_and_b32 s{d}, s{d}, 0x380\n"
    XSLOT = staticmethod(lambda t: (t + 1) % 3)
    def dma_x(self, t):
        sl = self.XSLOT(t)
        pre = self.chunk(t, 50)
        m0 = f"s_add_u32 m0, s{sXSW}, {L_XS + sl*4096}\n" if sl < 2 else f"s_add_u32 m0, s56, {L_S2}\n"
        return [self.T((m0 + pre if i == 0 else m0) + f"buffer_load_dwordx4 v{vXD[i]}, {srd(sX)}, s50 offen offset:{i*1024} {self.o['ntx'] if t == 0 else self.o['ntx2']} lds", f"x{t}") for i in range(4)]
    def dma_w1(self, ty, t):
        pre = self.chunk(t, 51) + f"s_mul_i32 s51, s51, 1792\n"
        T = lambda x: self.T(x, f"w1_{t}")
        th = []; fl = self.o['ntw1'] if t < 2 else self.o['ntx2']
        for pr in range(2 - ty):
            p = (PAIR[2*(t % 4) + pr] if ty == 0 else BSLOT[t % 6]) - 128*pr
            th += [T((pre if pr == 0 else "") + f"s_add_u32 m0, s{sW2K}, {p}\nbuffer_load_dwordx4 v{vSD[0]}, {srd(sW1)}, s51 offen offset:{128*pr} {fl} lds"),
                   T(f"s_add_u32 m0, s{sW2K}, {p}\nbuffer_load_dwordx4 v{vSD[1]}, {srd(sW1)}, s51 offen offset:{1024 + 128*pr} {fl} lds")]
        if ty == 0:
            th.append(T(f"s_add_u32 m0, s{sXS3}, {SING[t % 4]}\nbuffer_load_dwordx4 v{vS1D}, {srd(sW1)}, s51 offen {fl} lds"))
        return th

    def addr_setup(self):
        e = self.e
        t0, t1, t2, t3 = vTMP, vTMP+1, vTMP+2, vTMP+3
        e(f"""v_and_b32 v{t0}, 31, v{vL}
v_lshrrev_b32 v{t1}, 5, v{vL}
v_bfe_u32 v{t2}, v{vL}, 1, 3
v_xor_b32 v{t2}, v{t2}, v{t1}
v_lshlrev_b32 v{t2}, 4, v{t2}
v_lshl_add_u32 v{t2}, v{t0}, 7, v{t2}
v_add_u32 v{vXR[0]}, s{sXSW}, v{t2}
v_xor_b32 v{vXR[1]}, 32, v{vXR[0]}
v_xor_b32 v{vXR[2]}, 64, v{vXR[0]}
v_xor_b32 v{vXR[3]}, 96, v{vXR[0]}
s_add_u32 s50, s56, {L_S2}
v_add_u32 v{vXR2[0]}, s50, v{t2}
v_xor_b32 v{vXR2[1]}, 32, v{vXR2[0]}
v_xor_b32 v{vXR2[2]}, 64, v{vXR2[0]}
v_xor_b32 v{vXR2[3]}, 96, v{vXR2[0]}""")
        e(f"""v_bfe_u32 v{t0}, v{vL}, 2, 2
v_lshl_add_u32 v{t2}, v{t1}, 3, v{t0}
v_and_b32 v{t3}, 3, v{vL}
v_lshlrev_b32 v{t3}, 3, v{t3}
v_and_b32 v{vTMP+4}, 16, v{vL}
v_lshl_add_u32 v{t3}, v{vTMP+4}, 1, v{t3}
v_lshl_add_u32 v{vTS}, v{t2}, 6, v{t3}
v_add_u32 v{vTS}, {L_S2}, v{vTS}
v_lshl_add_u32 v{t3}, v{t2}, 7, v{t3}
v_and_b32 v{vTMP+4}, 8, v{vL}
v_lshl_add_u32 v{t3}, v{vTMP+4}, 3, v{t3}
v_add_u32 v{vT1[0]}, {L_S1}, v{t3}
v_xor_b32 v{vT1[1]}, 64, v{vT1[0]}
v_add_u32 v{vT2[0]}, {L_S2}, v{t3}
v_xor_b32 v{vT2[1]}, 64, v{vT2[0]}
s_lshl_b32 s50, s{sW}, 11
v_add_u32 v{vC2[0]}, s50, v{vT2[0]}
v_add_u32 v{vC2[1]}, s50, v{vT2[1]}
v_add_u32 v{vC1[0]}, s50, v{vT1[0]}
v_add_u32 v{vC1[1]}, s50, v{vT1[1]}
v_add_u32 v{vCSS}, s{sXS3}, v{vTS}
v_add_u32 v{vFD}, {L_FD}, v{vL16}
v_mov_b32 v{vONES}, 0x3f803f80
v_mov_b32 v{vONES+1}, 0x3f803f80""")

    def stats(self):
        e = self.e
        U = 96
        for i in range(8):
            e(f"v_lshlrev_b32 v{U+2*i}, 16, v{TMP+i}\nv_and_b32 v{U+2*i+1}, 0xffff0000, v{TMP+i}")
        def reduce(src, n, acc):
            e(f"v_add_f32 v{acc}, v{src}, v{src+1}\nv_add_f32 v{acc+1}, v{src+2}, v{src+3}")
            for i in range(4, n, 2):
                e(f"v_add_f32 v{acc}, v{acc}, v{src+i}\nv_add_f32 v{acc+1}, v{acc+1}, v{src+i+1}")
            e(f"v_add_f32 v{acc}, v{acc}, v{acc+1}")
            for k in (8, 4, 2, 1):
                e(f"v_add_f32_dpp v{acc}, v{acc}, v{acc} row_ror:{k} row_mask:0xf bank_mask:0xf")
            e(f"v_mov_b32 v{acc+1}, v{acc}\nv_permlane16_swap_b32 v{acc}, v{acc+1}\nv_add_f32 v{acc}, v{acc}, v{acc+1}")
        M = 112
        reduce(U, 16, M)
        e(f"v_mul_f32 v{M}, {fhex(1/512)}, v{M}")
        for i in range(16):
            e(f"v_sub_f32 v{U+i}, v{U+i}, v{M}")
        for i in range(16):
            e(f"v_mul_f32 v{U+i}, v{U+i}, v{U+i}")
        reduce(U, 16, M+2)
        e(f"v_mov_b32 v{M+3}, {fhex(1e-5)}\nv_fmac_f32 v{M+3}, {fhex(1/512)}, v{M+2}\nv_rsq_f32 v{M+2}, v{M+3}")
        if self.o['vq']: e(f"v_readfirstlane_b32 s{sT}, v{vW}")
        else: e.l.append("    s_waitcnt lgkmcnt(0)"); e.lg = []
        e(f"s_mul_i32 s{sT}, s{sT}, 0x9E3779B1\ns_add_u32 s{sT}, s{sT}, 0x7F4A7C15")
        e(f"v_mov_b32 v{M+1}, s{sT}\nv_mov_b32 v{M+3}, s{sT}")
        e(f"s_xor_b32 s54, s{sXROW}, {4096 * self.o['strb']}\ns_lshr_b32 s54, s54, 1\ns_lshl_b32 s60, s{sPOLL}, 5\ns_add_u32 s54, s54, s60\ns_add_u32 s54, s54, {WS_STATS}")
        e(f"v_lshrrev_b32 v{vTMP}, 5, v{vL}\nv_lshlrev_b32 v{vTMP}, 4, v{vTMP}\nv_and_b32 v{vTMP+1}, 31, v{vL}\nv_cmp_eq_u32 vcc, 0, v{vTMP+1}")
        e(f"s_and_saveexec_b64 s[58:59], vcc")
        e(f"buffer_store_dwordx4 {vr(M,4)}, v{vTMP}, {srd(sWS)}, s54 offen sc1", "statst")
        e(f"s_mov_b64 exec, s[58:59]")

    def trig(self, n, ang, inc, step, regs, use, group=1, first=None):
        T = self.T; th = []; pend = []
        for g in range(n // group):
            cs = []
            for b in range(group):
                i = g*group + b
                c, s_ = regs[(g & 1)*group + b]
                a = first if (first is not None and i == 0) else ang
                th += [T(f"v_cos_f32 v{c}, v{a}"), T(f"v_sin_f32 v{s_}, v{a}")]
                if i < n - 1:
                    k = step(i)
                    th.append(T(f"v_add_f32 v{ang}, v{ang}, v{inc}") if k == 1 else T(f"v_fmac_f32 v{ang}, {fhex(float(k))}, v{inc}"))
                cs.append((c, s_))
            th += pend
            pend = use(g, cs)
        return th + pend

    def rot(self, zs, rho, tmp):
        T = self.T
        return ([T(f"v_pk_mul_f32 {vr(tmp+2*i,2)}, {vr(z,2)}, {vr(rho,2)} op_sel_hi:[1,0]") for i, z in enumerate(zs)] +
                [T(f"v_pk_fma_f32 {vr(z,2)}, {vr(z,2)}, {vr(rho,2)}, {vr(tmp+2*i,2)} op_sel:[1,1,0] op_sel_hi:[0,1,1] neg_lo:[0,1,0]") for i, z in enumerate(zs)])
    def gen_a2a3(self):
        T = self.T; th = []
        t0, t1, t2, t3, k2, n2, sg = [TMP + 16 + i for i in range(7)]
        ang, inc = TMP + 24, TMP + 25
        regs = [(TMP + 26, TMP + 27), (TMP + 28, TMP + 29)]
        pk = TMP + 26
        th += self.TL(f"""v_bfe_u32 v{t0}, v{vL}, 4, 1
v_bfe_u32 v{t1}, v{vL}, 3, 1
v_bfe_u32 v{t2}, v{vL}, 2, 1
v_bfe_u32 v{t3}, v{vL}, 1, 1
v_lshl_add_u32 v{k2}, v{t1}, 1, v{t3}
v_lshl_add_u32 v{k2}, v{t2}, 2, v{k2}
v_lshl_add_u32 v{k2}, v{t0}, 3, v{k2}
s_lshl_b32 s98, s{sW}, 4
v_add_u32 v{k2}, s98, v{k2}
v_and_b32 v{n2}, 1, v{vL}
v_cvt_f32_u32 v{ang}, v{n2}
v_mul_f32 v{ang}, 0x3e800000, v{ang}
v_cvt_f32_u32 v{inc}, v{k2}
v_mul_f32 v{inc}, {fhex(1/64)}, v{inc}
v_lshrrev_b32 v{k2}, 5, v{vL}
v_lshlrev_b32 v{k2}, 2, v{k2}
v_cvt_f32_u32 v{k2}, v{k2}
v_fmac_f32 v{ang}, v{k2}, v{inc}
s_mov_b32 s98, 0x80008000
v_mul_lo_u32 v{sg}, v{t3}, s98""")
        def use(dst, neg):
            def f(g, cs):
                c, s_ = cs[0]; p = TMP + 30 + 2*(g & 1)
                return [T(f"v_cvt_pk_bf16_f32 v{p}, v{c}, {'-' if neg else ''}v{s_}"), T(f"v_xor_b32 v{p+1}, v{p}, v{sg}"),
                        T(f"v_accvgpr_write_b32 a{dst+g}, v{p}"), T(f"v_accvgpr_write_b32 a{dst+16+g}, v{p+1}")]
            return f
        st4 = lambda i: 1 if (i & 3) < 3 else 5
        th += self.trig(16, ang, inc, st4, regs, use(aA2, False))
        self.n_a2 = len(th)
        th += self.TL(f"""v_bfe_u32 v{n2}, v{vL}, 3, 2
v_lshl_add_u32 v{n2}, v{n2}, 1, v{t2}
v_and_b32 v{t0}, 1, v{vL}
v_lshl_add_u32 v{n2}, v{n2}, 1, v{t0}
s_mov_b32 s98, 0x80008000
v_mul_lo_u32 v{sg}, v{t0}, s98
s_lshl_b32 s98, s{sW}, 4
v_add_u32 v{n2}, s98, v{n2}
v_cvt_f32_u32 v{n2}, v{n2}
v_mul_f32 v{inc}, {fhex(1/64)}, v{n2}
v_cvt_f32_u32 v{ang}, v{t3}
v_mul_f32 v{ang}, 0xbe800000, v{ang}
v_cvt_f32_u32 v{t0}, s{sK1}
v_mul_f32 v{t0}, {fhex(1/2048)}, v{t0}
v_fmac_f32 v{ang}, v{t0}, v{n2}
v_fmac_f32 v{ang}, v{k2}, v{inc}""")
        th += self.trig(16, ang, inc, st4, regs, use(aA3, True))
        return th

    def gen_fd(self):
        T = self.T; th = []
        kc, inc, ang, t0 = TMP + 12, TMP + 13, TMP + 14, TMP + 15
        regs = [(TMP + 16 + 2*i, TMP + 17 + 2*i) for i in range(4)]
        PC, PS = TMP + 24, TMP + 32
        th += self.TL(f"""v_and_b32 v{kc}, 31, v{vL}
s_lshl_b32 s50, s{sBLK}, 5
v_add_u32 v{kc}, s50, v{kc}
v_and_b32 v{t0}, 1, v{kc}
v_lshlrev_b32 v{t0}, 31, v{t0}
v_xor_b32 v{vSIG}, 1.0, v{t0}
v_mov_b32 v{t0}, 0x100
v_cmp_eq_u32 vcc, 0, v{kc}
v_cndmask_b32 v{kc}, v{kc}, v{t0}, vcc
s_add_u32 s50, s{sC0}, s{sW}
s_lshl_b32 s50, s50, 6
v_lshrrev_b32 v{t0}, 5, v{vL}
v_lshlrev_b32 v{t0}, 3, v{t0}
v_add_u32 v{t0}, s50, v{t0}
v_mul_u32_u24 v{t0}, v{t0}, v{kc}
v_and_b32 v{t0}, 511, v{t0}
v_cvt_f32_u32 v{ang}, v{t0}
v_mul_f32 v{ang}, {fhex(1/512)}, v{ang}
v_cvt_f32_u32 v{inc}, v{kc}
v_mul_f32 v{inc}, {fhex(1/512)}, v{inc}
s_lshl_b32 s50, s{sW}, 13
v_add_u32 v{t0}, s50, v{vFD}""")
        C, S, TM, RC, RS = TMP + 12 + 28, 96, 104, 112, 114
        C = 120
        th += self.TL(f"v_mul_f32 v{kc}, {fhex(16.0)}, v{inc}\nv_cos_f32 v{RC}, v{kc}\nv_sin_f32 v{RS}, v{kc}")
        for e_ in range(8):
            th += [T(f"v_cos_f32 v{C+e_}, v{ang}"), T(f"v_sin_f32 v{S+e_}, v{ang}")]
            if e_ < 7: th.append(T(f"v_add_f32 v{ang}, v{ang}, v{inc}"))
        th += self.TL(f"v_mov_b32 v{RC+1}, v{RC}\nv_mov_b32 v{RS+1}, v{RS}")
        for ks in range(4):
            o = 4*(ks & 1)
            if ks >= 2: th.append(self.W(lg=f"fdw{ks-2}"))
            th += [T(f"v_cvt_pk_bf16_f32 v{PC+o+q}, v{C+2*q}, v{C+2*q+1}") for q in range(4)]
            th += [T(f"v_cvt_pk_bf16_f32 v{PS+o+q}, -v{S+2*q}, -v{S+2*q+1}") for q in range(4)]
            if ks < 3:
                th += [T(f"v_pk_mul_f32 {vr(TM+2*q,2)}, {vr(S+2*q,2)}, {vr(RS,2)}") for q in range(4)]
                th += [T(f"v_pk_mul_f32 {vr(S+2*q,2)}, {vr(S+2*q,2)}, {vr(RC,2)}") for q in range(4)]
                th += [T(f"v_pk_fma_f32 {vr(S+2*q,2)}, {vr(C+2*q,2)}, {vr(RS,2)}, {vr(S+2*q,2)}") for q in range(4)]
                th += [T(f"v_pk_fma_f32 {vr(C+2*q,2)}, {vr(C+2*q,2)}, {vr(RC,2)}, {vr(TM+2*q,2)} neg_lo:[0,0,1] neg_hi:[0,0,1]") for q in range(4)]
            th += [T(f"ds_write_b128 v{t0}, {vr(PC+o,4)} offset:{ks*2048}", f"fdw{ks}"), T(f"ds_write_b128 v{t0}, {vr(PS+o,4)} offset:{ks*2048+1024}", f"fdw{ks}")]
        th.append(self.W(lg="fdw3"))
        return th
    def gen_g1(self):
        T = self.T; th = []
        kc, inc, ang, t0, sg = TMP + 12, TMP + 13, TMP + 14, TMP + 15, TMP + 36
        regs = [(TMP + 16 + 2*i, TMP + 17 + 2*i) for i in range(4)]
        P = TMP + 24
        th += self.TL(f"""v_and_b32 v{kc}, 31, v{vL}
v_and_b32 v{t0}, 1, v{vL}
s_mov_b32 s54, 0x80008000
v_mul_lo_u32 v{sg}, v{t0}, s54
v_cvt_f32_u32 v{kc}, v{kc}
v_mul_f32 v{inc}, {fhex(1/32)}, v{kc}
s_lshr_b32 s54, s{sXROW}, 10
v_cvt_f32_u32 v{ang}, s54
v_mul_f32 v{ang}, {fhex(1/2048)}, v{ang}
v_mul_f32 v{ang}, v{ang}, v{kc}
v_lshrrev_b32 v{t0}, 5, v{vL}
v_lshlrev_b32 v{t0}, 2, v{t0}
v_cvt_f32_u32 v{t0}, v{t0}
v_fmac_f32 v{ang}, v{t0}, v{inc}""")
        def use(q, cs):
            r = [T(f"v_cvt_pk_bf16_f32 v{P}, v{cs[0][0]}, v{cs[1][0]}"), T(f"v_cvt_pk_bf16_f32 v{P+1}, v{cs[0][1]}, v{cs[1][1]}"),
                 T(f"v_cvt_pk_bf16_f32 v{P+2}, -v{cs[0][1]}, -v{cs[1][1]}")]
            for k in range(3): r.append(T(f"v_xor_b32 v{P+3+k}, v{P+k}, v{sg}"))
            for k in range(3): r += [T(f"v_accvgpr_write_b32 a{aG1+8*k+q}, v{P+k}"), T(f"v_accvgpr_write_b32 a{aG1+8*k+4+q}, v{P+3+k}")]
            return r
        th += self.trig(8, ang, inc, lambda i: 5 if (i & 3) == 3 else 1, regs, use, group=2)
        return th

    def pair_addr(self, ty, t, pr, cs=False):
        a = PAIR[2*(t % 4) + pr] if ty == 0 else BSLOT[t % 6]
        if a < L_S2: return (vC1 if cs else vT1), a - L_S1
        return (vC2 if cs else vT2), a - L_S2
    def csum_grp(self, tag, tiles, first):
        T = self.T; rd, mm = [], []
        for i, (ad, off, stp, tl) in enumerate(tiles):
            for eh in range(2):
                rd.append(T(f"ds_read_b64_tr_b16 {vr(vCSF[i]+2*eh,2)}, v{ad} offset:{off + eh*stp}", tag))
        mm.append(self.W(lg=tag))
        for eh in range(2):
            for i, (ad, off, stp, tl) in enumerate(tiles):
                c = "0" if (first and eh == 0) else vr(vCSA[tl], 4)
                mm.append(T(f"v_mfma_f32_4x4x4_16b_bf16 {vr(vCSA[tl],4)}, {vr(vONES,2)}, {vr(vCSF[i]+2*eh,2)}, {c}"))
        return rd, mm
    def csum_publish(self, nt):
        th = [self.T(f"s_lshl_b32 s60, s{sW}, 2\nv_add_u32 v{vTMP}, s60, v{vL16}")]
        th += [self.T(f"ds_write_b32 v{vTMP}, v{vCSA[dt]} offset:{L_CS + dt*1024}", "csw") for dt in range(nt)]
        return th
    def cs_tiles(self, ty):
        return [f"s_mov_b32 s60, s{sW}", "s_mov_b32 s60, 4"] if ty == 0 else [f"s_and_b32 s60, s{sW}, 1"] * 2
    def csum_send(self, ty):
        T = self.T; F = [vCSF[0], vCSF[1]]; rd, th = [], []
        for k, code in enumerate(self.cs_tiles(ty)):
            rd.append(T(f"{code}\ns_lshl_b32 s60, s60, 10\nv_add_u32 v{vTMP+1+k}, s60, v{vL16}\nds_read_b128 {vr(F[k],4)}, v{vTMP+1+k} offset:{L_CS}", "csr"))
        a, b = F
        th = [self.W(lg="csr")] + self.TL(f"""v_add_f32 v{a}, v{a}, v{a+1}
v_add_f32 v{a+2}, v{a+2}, v{a+3}
v_add_f32 v{b}, v{b}, v{b+1}
v_add_f32 v{b+2}, v{b+2}, v{b+3}
v_add_f32 v{a}, v{a}, v{a+2}
v_mov_b32 v{a+1}, s{sT}
v_add_f32 v{a+2}, v{b}, v{b+2}
v_mov_b32 v{a+3}, s{sT}
v_lshrrev_b32 v{vTMP+1}, 1, v{vTMP+1}
v_lshrrev_b32 v{vTMP+2}, 1, v{vTMP+2}""")
        st = [T(f"s_and_b32 s60, s{sRB}, 3\ns_lshl_b32 s60, s60, 10\ns_add_u32 s60, s60, s{sCSG}\nbuffer_store_dwordx4 {vr(a,4)}, v{vL16}, {srd(sWS)}, s60 offen sc1", "css")]
        return rd, th, st
    CL = TMP + 4
    def csum_load(self, ty):
        return [self.T(f"buffer_load_dwordx4 {vr(self.CL+4*i,4)}, v{vL16}, {srd(sWS)}, s{sCSG} offen offset:{1024*i} sc1", "csl") for i in range(4)]
    def csum_check(self, ty):
        e = self.e
        e.wait(vm="csl")
        tags = [self.CL + 1 + 2*j for j in range(8)]
        t = f"v_xor_b32 v{vTMP+3}, s{sT}, v{tags[0]}\nv_xor_b32 v{vTMP+5}, s{sT}, v{tags[1]}\n"
        for k in range(2, 8, 2): t += f"v_bitop3_b32 v{vTMP+3}, v{tags[k]}, s{sT}, v{vTMP+3} bitop3:0xbe\nv_bitop3_b32 v{vTMP+5}, v{tags[k+1]}, s{sT}, v{vTMP+5} bitop3:0xbe\n"
        self.spin(t + f"v_or_b32 v{vTMP+3}, v{vTMP+3}, v{vTMP+5}\nv_cmp_ne_u32 vcc, 0, v{vTMP+3}", [th.txt for th in self.csum_load(ty)], 53)
    def csum_build(self, ty):
        C = self.CL; seq = []
        for k in range(2):
            F = C + 2*k
            seq.append([f"v_add_f32 v{F}, v{F}, v{F+4}", f"v_add_f32 v{F+8}, v{F+8}, v{F+12}", f"v_add_f32 v{F}, v{F}, v{F+8}",
                        f"v_cvt_pk_bf16_f32 v{F+5}, v{F}, v{F}", f"v_and_b32 v{F+1}, 0xffff0000, v{F+5}", f"v_sub_f32 v{F+8}, v{F}, v{F+1}", f"v_cvt_pk_bf16_f32 v{F+4}, v{F+1}, v{F+8}"])
        th = [self.T(seq[k][j]) for j in range(7) for k in range(2)]
        return th + [self.T(f"ds_write_b64 v{vTMP+1+k}, {vr(C+2*k+4,2)} offset:{L_CS}", "cxw") for k in range(2)]
    def csum_get(self, nt):
        if self.two():
            return [self.T(f"s_and_b32 s60, s{sW}, 1\ns_lshl_b32 s60, s60, 10\nv_lshlrev_b32 v{vTMP+3}, 3, v{vL}\nv_add_u32 v{vTMP+5}, s60, v{vTMP+3}")] + \
                   [self.T(f"ds_read_b64 {vr(vAX[dt],2)}, v{vTMP+5} offset:{L_CS + dt*512}", "cxr") for dt in range(2)] + [self.T(f"ds_read_b64 {vr(vAX[2],2)}, v{vTMP+3} offset:{L_CS + 4*512}", "cxr")]
        return [self.T(f"v_lshlrev_b32 v{vTMP+3}, 3, v{vL}")] + [self.T(f"ds_read_b64 {vr(vAX[dt],2)}, v{vTMP+3} offset:{L_CS + dt*512}", "cxr") for dt in range(nt)]
    def csum_fetch(self, nt):
        return [self.T(f"ds_read_b128 {vr(vCSA[dt],4)}, v{vL16} offset:{L_CS + dt*1024}", "csr") for dt in range(nt)]
    def csum_prep(self, nt):
        th = [self.W(lg="csr")]
        seq = []
        for dt in range(nt):
            F, A = vCSA[dt], vAX[dt]
            seq.append([f"v_add_f32 v{F}, v{F}, v{F+1}", f"v_add_f32 v{F+2}, v{F+2}, v{F+3}", f"v_add_f32 v{F}, v{F}, v{F+2}",
                        f"v_cvt_pk_bf16_f32 v{A+1}, v{F}, v{F}", f"v_and_b32 v{F+1}, 0xffff0000, v{A+1}", f"v_sub_f32 v{F+2}, v{F}, v{F+1}", f"v_cvt_pk_bf16_f32 v{A}, v{F+1}, v{F+2}"])
        for k in range(7):
            for dt in range(nt): th.append(self.T(seq[dt][k]))
        return th
    def csum_apply(self, nt):
        if self.two():
            return [self.T(f"v_mfma_f32_32x32x16_bf16 {vr(ACCA+16*dt,16)}, {vr(vAX[dt >> 1],4)}, {vr(vBXb if dt & 1 else vBX,4)}, {vr(ACCA+16*dt,16)}") for dt in range(5)]
        return [self.T(f"v_mfma_f32_32x32x16_bf16 {vr(ACCA+16*dt,16)}, {vr(vAX[dt],4)}, {vr(vBX,4)}, {vr(ACCA+16*dt,16)}") for dt in range(nt)]

    def two(self): return self.ty == 0 and self.o['t64']
    def stats_fetch(self):
        e = self.e
        e(f"s_lshr_b32 s63, s{sXROW}, 1\ns_add_u32 s63, s63, {WS_STATS}\nv_and_b32 v{vTMP+4}, 31, v{vL}\nv_lshlrev_b32 v{vTMP+4}, 4, v{vTMP+4}")
        e(f"buffer_load_dwordx4 {vr(TMP,4)}, v{vTMP+4}, {srd(sWS)}, s63 offen sc1", "stl")
        if self.two(): e(f"s_xor_b32 s99, s63, 512\nbuffer_load_dwordx4 {vr(TMP+20,4)}, v{vTMP+4}, {srd(sWS)}, s99 offen sc1", "stl")
    def stats_use(self, ty):
        e = self.e
        e.wait(vm="stl")
        test = f"v_cmp_ne_u32 vcc, s{sT}, v{TMP+1}\nv_cmp_ne_u32 s[54:55], s{sT}, v{TMP+3}\ns_or_b64 vcc, vcc, s[54:55]"
        lds = [f"buffer_load_dwordx4 {vr(TMP,4)}, v{vTMP+4}, {srd(sWS)}, s63 offen sc1"]
        if self.two():
            test = (f"v_xor_b32 v{vTMP+3}, s{sT}, v{TMP+1}\nv_xor_b32 v{vTMP+5}, s{sT}, v{TMP+3}\nv_bitop3_b32 v{vTMP+3}, v{TMP+21}, s{sT}, v{vTMP+3} bitop3:0xbe\n"
                    f"v_bitop3_b32 v{vTMP+5}, v{TMP+23}, s{sT}, v{vTMP+5} bitop3:0xbe\nv_or_b32 v{vTMP+3}, v{vTMP+3}, v{vTMP+5}\nv_cmp_ne_u32 vcc, 0, v{vTMP+3}")
            lds.append(f"buffer_load_dwordx4 {vr(TMP+20,4)}, v{vTMP+4}, {srd(sWS)}, s99 offen sc1")
        self.spin(test, lds, 57)
        for m, c1, ri, bx in [(TMP, vNC1, vRINV, vBX)] + ([(TMP + 20, vNC1b, vRINVb, vBXb)] if self.two() else []):
            r = m + 2
            e(f"v_mul_f32 v{c1}, {fhex(-LOG2E)}, v{r}\nv_rcp_f32 v{ri}, v{r}")
            e(f"v_cvt_pk_bf16_f32 v{bx}, -v{m}, -v{m}\nv_mov_b32 v{bx+2}, 0\nv_and_b32 v{m+1}, 0xffff0000, v{bx}\nv_mov_b32 v{bx+3}, 0\nv_sub_f32 v{m+1}, -v{m}, v{m+1}")
            e(f"v_cvt_pk_bf16_f32 v{bx+1}, v{m+1}, v{bx+2}")
        r = TMP + 2
        if ty == 1:
            e(f"s_lshl_b32 s60, s{sW}, 7\nv_lshrrev_b32 v{vTMP+4}, 2, v{vTMP+4}\nv_add_u32 v{vTMP+4}, s60, v{vTMP+4}")
            e(f"ds_write_b32 v{vTMP+4}, v{r} offset:{L_RB}", "rbw")

    def silu(self, tiles):
        T = self.T; th = self.TL(f"v_mov_b32 v{vTMP}, v{vNC1}\nv_mov_b32 v{vTMP+1}, v{vNC1}\nv_mov_b32 v{vTMP+2}, v{vRINV}\nv_mov_b32 v{vTMP+3}, v{vRINV}")
        cur = 0
        for acc, hb, off, grp in tiles:
            if grp != cur:
                th += self.TL(f"v_mov_b32 v{vTMP}, v{vNC1b}\nv_mov_b32 v{vTMP+1}, v{vNC1b}\nv_mov_b32 v{vTMP+2}, v{vRINVb}\nv_mov_b32 v{vTMP+3}, v{vRINVb}"); cur = grp
            for f in range(2):
                P = TMP + 8 + 4 * f
                for q in range(2):
                    a = acc + 8*f + 4*q
                    u = TMP + 4 * q
                    th += [T(f"v_pk_mul_f32 {vr(u+k,2)}, {vr(a+k,2)}, {vr(vTMP,2)}") for k in (0, 2)]
                    th += [T(f"v_exp_f32 v{u+k}, v{u+k}") for k in range(4)]
                    th += [T(f"v_pk_fma_f32 {vr(u+k,2)}, {vr(u+k,2)}, {vr(vTMP+2,2)}, {vr(vTMP+2,2)}") for k in (0, 2)]
                    th += [T(f"v_rcp_f32 v{u+k}, v{u+k}") for k in range(4)]
                    th += [T(f"v_pk_mul_f32 {vr(u+k,2)}, {vr(u+k,2)}, {vr(a+k,2)}") for k in (0, 2)]
                    th += [T(f"v_cvt_pk_bf16_f32 v{P+2*q+k}, v{u+2*k}, v{u+2*k+1}") for k in range(2)]
                th.append(T(f"buffer_store_dwordx4 {vr(P,4)}, v{vL16}, {srd(sWS)}, s{hb} offen offset:{off + f*1024} {self.o.get('hst', 'sc1')}", "h2")); th[-1].st = True
        return th

    def pipeline2(self, units, LA, bounds, streams, mem, pinned, extra, early, P, between, early2):
        sel = lambda L, lo, hi: [(th, a - lo, b - lo) for th, a, b in L if lo <= a < hi]
        for L in (streams, mem, extra):
            for th, a, b in L: assert (a < P) == (b < P), (a, b)
        sh = lambda d, lo, hi: {k - lo: v for k, v in d.items() if lo <= k < hi}
        N = len(units)
        self.pipeline(units[:P], LA, sh(bounds, 0, P), sel(streams, 0, P), sel(mem, 0, P), sh(pinned, 0, P), sel(extra, 0, P), early)
        run(between)
        u2 = [(u[0], u[1]) for u in units[P:]]
        self.pipeline(u2, LA, sh(bounds, P, N + LA), sel(streams, P, N), sel(mem, P, N), sh(pinned, P, N), sel(extra, P, N), early2, off=P)
    def pipeline(self, units, LA, bounds, streams, mem, pinned, extra, early, off=0):
        e = self.e; N = len(units)
        fills = [[] for _ in range(N)]; mj = [[] for _ in range(N)]; rd = {g: [] for g in range(-LA, N)}
        for th, u0, u1 in mem:
            for i, t in enumerate(th): mj[u0 + i * (u1 - u0 + 1) // len(th)].append(t)
        dat = sorted(b for b in bounds if bounds[b][0])
        w = lambda t: 2 if 'b128' in t.txt else 1
        items = []
        for m in range(N):
            lo = max(max([b for b in dat if b <= m], default=0) - LA, m - self.o['lamax'], units[m][2] if len(units[m]) > 2 else -LA)
            items += [[lo, m - self.o['lamin'], t] for t in units[m][0]]
        ex = [[u0, u1, t] for th, u0, u1 in extra for t in th]
        for g in range(-LA, N):
            room = (2 if mj[g] else 3) if g >= 0 else 4
            room -= self.o['vcap'] * sum(1 for th, u0, u1 in streams if u0 <= g <= u1 and len(th) > 3*(u1 - u0 + 1))
            for lst in (items, ex):
                while lst and lst[0][1] <= g:
                    t = lst.pop(0)[2]; rd[g].append(t); room -= w(t)
            for lst in (items, ex):
                while lst and lst[0][0] <= g and room >= w(lst[0][2]):
                    t = lst.pop(0)[2]; rd[g].append(t); room -= w(t)
        assert not items and not ex
        cap = [max(0.5, 6.0 - len(rd[u]) - 5*len(mj[u])) for u in range(N)]
        for th, u0, u1 in streams:
            for k, grp in zip(range(u0, u1 + 1), spread(th, cap[u0:u1 + 1])): fills[k] += grp
        def boundary(m):
            if m not in bounds: return
            tags, pre = bounds[m]
            if m + off in self.o.get('bst', {}).get(self.ty, ()): self.xs(f"b{self.ty}_{m+off}")
            lt = m + off in self.o.get('lst', {}).get(self.ty, ())
            if lt: self.light()
            if tags: e.wait(vm=tags)
            if lt: self.light()
            run(pre)
            e("s_barrier")
            if lt and self.nl < 4 and not self.o.get('l2'): self.light()
        for u in range(-LA, N):
            if u >= 0:
                e.wait(lg=f"r{u+off}")
                e(units[u][1])
            boundary(u + LA)
            if u >= 0: run(mj[u])
            run(rd[u])
            if u == -1: run(early)
            if u < 0: continue
            run(fills[u]); run(pinned.get(u, []))

    def x_read(self, u, k, dst, other=False):
        t, ks = k >> 2, k & 3; sl = self.XSLOT(t)
        if sl < 2: return [self.T(f"ds_read_b128 {ar(dst,4)}, v{(vXRb if other else vXR)[ks]} offset:{sl*4096}", f"r{u}")]
        return [self.T(f"ds_read_b128 {ar(dst,4)}, v{(vXR2b if other else vXR2)[ks]}", f"r{u}")]
    def t64_setup(self):
        th = [f"v_xor_b32 v{vXRb[k]}, 0x2000, v{vXR[k]}" for k in range(4)]
        th += [f"s_xor_b32 s54, s56, 0x4000", f"s_sub_u32 s54, s54, s56"] + [f"v_add_u32 v{vXR2b[k]}, s54, v{vXR2[k]}" for k in range(4)]
        th += [f"s_and_b32 s54, s{sW}, 1", f"s_lshl_b32 s54, s54, 13", f"v_add_u32 v{vT1[0]}, s54, v{vT1[0]}", f"v_add_u32 v{vT1[1]}, s54, v{vT1[1]}",
               f"s_lshl_b32 s54, s54, 1", f"v_add_u32 v{vT2[0]}, s54, v{vT2[0]}", f"v_add_u32 v{vT2[1]}, s54, v{vT2[1]}"]
        return [self.T("\n".join(th))]
    def ffn_unit(self, u, k, ad, off, stp, tile, xreg, nb, fi=None):
        fb = aFB + 4 * (((u if fi is None else fi) + 2) % nb); acc = ACCA + 16*tile
        r = [self.T(f"ds_read_b64_tr_b16 {ar(fb+2*eh,2)}, v{ad} offset:{off + eh*stp}", f"r{u}") for eh in range(2)]
        return r, f"v_mfma_f32_32x32x16_bf16 {vr(acc,16)}, {ar(fb,4)}, {ar(xreg,4)}, {'0' if k == 0 else vr(acc,16)}"

    def z1_rl(self):
        T = self.T; th = []
        R = TMP + 16; t = [TMP + 32 + i for i in range(4)]
        th.append(self.W(lg="rbw"))
        th.append(T(f"s_lshl_b32 s60, s{sW}, 7\nv_lshrrev_b32 v{t[0]}, 5, v{vL}\nv_lshlrev_b32 v{t[0]}, 4, v{t[0]}\nv_add_u32 v{t[0]}, s60, v{t[0]}"))
        th += [T(f"ds_read_b128 {vr(R+4*j,4)}, v{t[0]} offset:{L_RB + j*32}", "rbr") for j in range(4)]
        th += self.TL(f"v_and_b32 v{t[1]}, 31, v{vL}\nv_or_b32 v{t[1]}, s{sBLK}, v{t[1]}\nv_mov_b32 v{t[2]}, {fhex(2.0**-19)}\nv_mov_b32 v{t[3]}, {fhex(2.0**-20)}")
        th.append(T(f"v_cmp_eq_u32 vcc, 0, v{t[1]}\nv_cndmask_b32 v{t[2]}, v{t[2]}, v{t[3]}, vcc"))
        th += self.TL(f"v_mov_b32 v{vTMP}, v{vSIG}\nv_mov_b32 v{vTMP+1}, v{vSIG}")
        th.append(self.W(lg="rbr"))
        th += [T(f"v_mul_f32 v{R+i}, v{R+i}, v{t[2]}") for i in range(16)]
        return th
    def z1_prep(self):
        T = self.T; th = []; R = TMP + 16
        for h in range(2):
            th += [T(f"v_pk_fma_f32 {vr(ACCD+16*h+i,2)}, {vr(ACCD+32+16*h+i,2)}, {vr(vTMP,2)}, {vr(ACCD+16*h+i,2)}") for i in range(0, 16, 2)]
            th += [T(f"v_pk_mul_f32 {vr(ACCD+16*h+i,2)}, {vr(ACCD+16*h+i,2)}, {vr(R+i,2)}") for i in range(0, 16, 2)]
        th += [T(f"v_cvt_pk_bf16_f32 v{ACCD+32+i}, v{ACCD+2*i}, v{ACCD+2*i+1}") for i in range(16)]
        return th
    def z1_mfma(self):
        PT = ACCD + 32; Zr, Zi = ACCD, ACCD + 16
        C = lambda j: ar(aG1+4*j, 4); S = lambda j: ar(aG1+8+4*j, 4); N = lambda j: ar(aG1+16+4*j, 4)
        Tr = lambda j: vr(PT+4*j, 4); Ti = lambda j: vr(PT+8+4*j, 4)
        seq = [(Zr, C(0), Tr(0)), (Zi, N(0), Tr(0)), (Zr, C(1), Tr(1)), (Zi, N(1), Tr(1)), (Zr, S(0), Ti(0)), (Zi, C(0), Ti(0)), (Zr, S(1), Ti(1)), (Zi, C(1), Ti(1))]
        return [self.T(f"v_mfma_f32_32x32x16_bf16 {vr(d,16)}, {a}, {b}, {'0' if i < 2 else vr(d,16)}") for i, (d, a, b) in enumerate(seq)]
    def z1_gather_write(self):
        T = self.T; th = []
        Zr, Zi, PT = ACCD, ACCD + 16, ACCD + 32
        t0, t1 = TMP + 32, TMP + 33
        th += self.TL(f"v_lshrrev_b32 v{t0}, 5, v{vL}\nv_and_b32 v{t1}, 31, v{vL}\nv_lshlrev_b32 v{t1}, 4, v{t1}\nv_lshl_add_u32 v{t0}, v{t0}, 11, v{t1}")
        th.append(T(f"s_lshl_b32 s60, s{sW}, 2\ns_add_u32 s60, s60, {L_FD}\nv_add_u32 v{t0}, s60, v{t0}"))
        for i in range(20):
            if i < 16: th.append(T(f"v_cvt_pk_bf16_f32 v{PT+i}, v{Zr+i}, v{Zi+i}"))
            if i >= 4: th.append(T(f"ds_write_b32 v{t0}, v{PT+i-4} offset:{(8*((i-4)>>2) + (i&3))*512}", "z1w"))
        return th
    def z1_gather_read(self):
        e = self.e
        e(f"v_lshlrev_b32 v{TMP+32}, 4, v0")
        for k in range(4):
            e(f"ds_read_b128 {vr(ACCD+4*k,4)}, v{TMP+32} offset:{L_FD + k*4096}", "z1r")
    def z1_store(self):
        e = self.e
        t0, t1 = TMP + 32, TMP + 33
        e(f"v_lshrrev_b32 v{t0}, 5, v0\nv_and_b32 v{t1}, 31, v0\nv_lshlrev_b32 v{t1}, 4, v{t1}\nv_lshl_add_u32 v{t0}, v{t0}, 13, v{t1}")
        e(f"s_lshl_b32 s60, s{sBLK}, 18\ns_lshl_b32 s54, s{sRB}, 9\ns_add_u32 s60, s60, s54\ns_add_u32 s60, s60, {WS_Z1}")
        e.wait(lg="z1r")
        for k in range(4):
            e(f"buffer_store_dwordx4 {vr(ACCD+4*k,4)}, v{t0}, {srd(sWS)}, s60 offen sc1", "z1s")
            if k < 3: e(f"s_add_u32 s60, s60, 65536")
    def flag_store(self, soff, tag):
        e = self.e
        e(f"v_mov_b32 v{vTMP+4}, 0\nv_mov_b32 v{vTMP+5}, s{sT}\ns_mov_b64 exec, 1")
        e(f"buffer_store_dword v{vTMP+5}, v{vTMP+4}, {srd(sWS)}, s{soff} offen sc1", tag)
        e(f"s_mov_b64 exec, -1")
    def z1_flag(self):
        e = self.e
        e.wait(vm="z1s")
        e(f"s_lshl_b32 s60, s{sBLK}, 10\ns_lshl_b32 s54, s{sW}, 8\ns_add_u32 s60, s60, s54\ns_lshl_b32 s54, s{sRB}, 4\ns_add_u32 s60, s60, s54\ns_add_u32 s60, s60, {WS_Z1F}")
        self.flag_store(60, "z1f")

    def g2_setup(self, sa=50, tm=TMP + 12):
        T = self.T; t0, t1 = tm, tm + 1
        if self.o['diag']:
            rd = [(0, 0), (1, 0)] + [(0, j) for j in range(1, 7)] + [(2, 0)] + [(1, j) for j in range(1, 7)] + [(3, 0)] + [(2, j) for j in range(1, 7)] + [(3, j) for j in range(1, 7)]
            R = sum(r << (2*n) for n, (r, d) in enumerate(rd))
            D = [sum(d << (4*(n - b)) for n, (r, d) in enumerate(rd) if b <= n < b + 16) for b in (0, 16)]
            t2 = tm + 4
            head = f"""s_mov_b32 s{sa}, {hex(R & 0xffffffff)}
s_mov_b32 s{sa+1}, {hex(R >> 32)}
v_lshlrev_b32 v{t0}, 1, v{vL}
v_lshrrev_b64 v[{t2}:{t2+1}], v{t0}, s[{sa}:{sa+1}]
v_add_u32 v{t2}, s{sP}, v{t2}
v_and_b32 v{t2}, 3, v{t2}
v_mul_u32_u24 v{t2+4}, 7, v{t2}
v_and_b32 v{t0}, 15, v{vL}
v_lshlrev_b32 v{t0}, 2, v{t0}
s_mov_b32 s{sa}, {hex(D[0] & 0xffffffff)}
s_mov_b32 s{sa+1}, {hex(D[0] >> 32)}
v_lshrrev_b64 v[{t2}:{t2+1}], v{t0}, s[{sa}:{sa+1}]
s_mov_b32 s{sa}, {hex(D[1] & 0xffffffff)}
s_mov_b32 s{sa+1}, {hex(D[1] >> 32)}
v_lshrrev_b64 v[{t2+2}:{t2+3}], v{t0}, s[{sa}:{sa+1}]
v_cmp_le_u32 vcc, 16, v{vL}
v_cndmask_b32 v{t2}, v{t2}, v{t2+2}, vcc
v_and_b32 v{t2}, 7, v{t2}
s_and_b32 s{sa}, s2, 7
s_add_u32 s{sa}, s{sa}, s{sQ}
v_add_u32 v{t0}, s{sa}, v{t2}
v_subrev_u32 v{t1}, 14, v{t0}
v_min_u32 v{t0}, v{t0}, v{t1}
v_subrev_u32 v{t1}, 7, v{t0}
v_min_u32 v{t0}, v{t0}, v{t1}
v_add_u32 v{t0}, v{t0}, v{t2+4}
"""
        else: head = f"""v_add_u32 v{t0}, s{sROT}, v{vL}
v_subrev_u32 v{t1}, 28, v{t0}
v_min_u32 v{t0}, v{t0}, v{t1}
v_subrev_u32 v{t1}, 28, v{t0}
v_min_u32 v{t0}, v{t0}, v{t1}
"""
        th = self.TL(head + f"""s_mul_i32 s{sa}, s{sW}, 20
s_lshl_b32 s{sa+1}, s{sW}, 3
s_add_u32 s{sa+1}, s{sa+1}, 60
v_mov_b32 v{t1}, s{sa}
v_cmp_le_u32 vcc, 20, v{t0}
v_mov_b32 v{t1+1}, s{sa+1}
v_cndmask_b32 v{t1}, v{t1}, v{t1+1}, vcc
v_add_lshl_u32 v{t0}, v{t0}, v{t1}, 10""")
        th += [T(f"v_readlane_b32 s{sKS+n}, v{t0}, {n}") for n in range(28)]
        return th
    def w2_addr_setup(self):
        t0, t1 = TMP + 36, TMP + 37
        return self.TL(f"""v_lshrrev_b32 v{t0}, 3, v{vL}
v_and_b32 v{t1}, 7, v{vL}
v_lshlrev_b32 v{t1}, 4, v{t1}
v_lshl_add_u32 v{t0}, v{t0}, 10, v{t1}
v_and_b32 v{t1}, 16, v{vL}
v_lshlrev_b32 v{t1}, 2, v{t1}
v_xor_b32 v{vW2D[0]}, v{t0}, v{t1}
v_add_u32 v{vW2D[1]}, {8192-1024}, v{vW2D[0]}""")
    def w2_lds(self, n):
        if n < 8: return (16384, L_S2 + n * 2048)
        if n < 12: return (8192, L_XS + (n - 8) * 2048)
        g = n - 12
        if g < 4 and self.bplan(): return (12288, L_S1 + [2, 3, 0, 1][g] * 8192)
        if g < 4: return (8192, L_XS + g * 2048)
        if g < 10: return (12288, L_S1 + (g - 4) * 8192)
        return (12288, L_S1 + (g - 10) * 8192)
    def bplan(self): return self.o['mixq'] and self.ty == 1
    def pos(self, n):
        if self.bplan() and 12 <= n < 22: return 12 + [0, 1, 2, 3, 6, 7, 4, 5, 8, 9][n - 12]
        return 12 + [3, 4, 5, 6, 7, 8, 9, 0, 1, 2][n - 12] if (self.o['diag'] and 12 <= n < 22) else n
    def dma_w2(self, n):
        mul, base = self.w2_lds(n)
        sb = {16384: 56, 8192: sXSW, 12288: sW2K}[mul]
        return [self.T(f"s_add_u32 m0, s{sb}, {base}\ns_lshl4_add_u32 s55, s{sKS+self.pos(n)}, s{sQB}\nbuffer_load_dwordx4 v{vW2D[0]}, {srd(sW2)}, s55 offen lds", f"w2_{n}"),
                self.T(f"s_add_u32 m0, s{sb}, {base}\ns_lshl4_add_u32 s55, s{sKS+self.pos(n)}, s{sQB}\nbuffer_load_dwordx4 v{vW2D[1]}, {srd(sW2)}, s55 offen offset:1024 lds", f"w2_{n}")]
    vU = {8192: [9, 10], 12288: [11, 12], 16384: [13, 14]}
    def w2_tr_setup(self, regs=(8192, 12288, 16384), tm=vTMP + 3):
        t0, t1, t3 = tm, tm + 1, tm + 2
        th = self.TL(f"""v_lshrrev_b32 v{t1}, 5, v{vL}
v_bfe_u32 v{t0}, v{vL}, 2, 2
v_lshl_add_u32 v{t0}, v{t1}, 2, v{t0}
v_and_b32 v{t3}, 3, v{vL}
v_lshlrev_b32 v{t3}, 3, v{t3}
v_and_b32 v{t1}, 16, v{vL}
v_lshl_add_u32 v{t3}, v{t1}, 1, v{t3}
v_lshl_add_u32 v{t3}, v{t0}, 7, v{t3}
v_and_b32 v{t1}, 8, v{vL}
v_lshl_add_u32 v{t3}, v{t1}, 3, v{t3}""")
        for mul, sb, base in ((8192, sXSW, L_XS), (12288, sW2K, L_S1), (16384, 56, L_S2)):
            if mul not in regs: continue
            a = self.vU[mul]
            th += self.TL(f"s_add_u32 s97, s{sb}, {base}\nv_add_u32 v{a[0]}, s97, v{t3}\nv_xor_b32 v{a[1]}, 64, v{a[0]}")
        return th
    def w2_tr(self, n, dst, tag):
        mul, base = self.w2_lds(n)
        off = base - {8192: L_XS, 12288: L_S1, 16384: L_S2}[mul]
        return [self.T(f"ds_read_b64_tr_b16 {ar(dst+4*dt+2*eh,2)}, v{self.vU[mul][dt]} offset:{off+eh*1024}", tag) for dt in range(2) for eh in range(2)]

    def w_base(self, ty, d):
        if ty == 1: return f"s_add_u32 s{d}, s56, {L_S2 + 12288}"
        return f"s_and_b32 s{d}, s{sW}, 1\ns_lshl_b32 s{d}, s{d}, 12\ns_lshr_b32 s54, s{sW}, 1\ns_lshl_b32 s54, s54, 14\ns_add_u32 s{d}, s{d}, s54\ns_add_u32 s{d}, s{d}, {L_S2 + 2*16384 + 8192}"
    def w_dma(self, ty):
        T = self.T
        t0, t1, t2 = TMP + 38, TMP + 39, TMP + 35
        nb = f"v_subrev_u32 v{t2}, 64, v{t1}\nv_cmp_eq_u32 vcc, 6, v{t0}\nv_cndmask_b32 v{t1}, v{t1}, v{t2}, vcc\n" if ty == 1 else ""
        th = [T(f"""v_and_b32 v{t0}, 7, v{vL}
v_cmp_gt_u32 vcc, 5, v{t0}
v_lshlrev_b32 v{t1}, 4, v{t0}
v_cndmask_b32 v{t1}, 0, v{t1}, vcc
s_lshl_b32 s59, s{sCG}, 6
v_add_u32 v{t1}, s59, v{t1}
s_cmp_eq_u32 s{sCG}, 0
s_cselect_b32 s59, 5, 8
v_mov_b32 v{t2}, 0x200
v_cmp_eq_u32 vcc, s59, v{t0}
v_cndmask_b32 v{t1}, v{t1}, v{t2}, vcc
{nb}v_lshrrev_b32 v{t0}, 3, v{vL}
v_mul_u32_u24 v{t0}, 16448, v{t0}
v_add_u32 v{vSD2}, v{t0}, v{t1}
s_lshl_b32 s58, s{sW}, 9
s_add_u32 s58, s58, s{sK1}
s_mul_i32 s58, s58, 514
s_and_b32 s58, s58, -16
{self.w_base(ty, 59)}""")]
        nt = " nt" if self.o['ntw'] else ""
        th.append(T(f"s_mov_b32 m0, s59\ns_nop 0\nbuffer_load_dwordx4 v{vSD2}, {srd(sWR)}, s58 offen{nt} lds", "wl"))
        th.append(T(f"s_add_u32 m0, s59, 2048\ns_nop 0\nbuffer_load_dwordx4 v{vSD2}, {srd(sWI)}, s58 offen{nt} lds", "wl"))
        th.append(T(f"s_add_u32 m0, s59, 1024\ns_add_u32 s58, s58, {8*16448}\nbuffer_load_dwordx4 v{vSD2}, {srd(sWR)}, s58 offen{nt} lds", "wl"))
        th.append(T(f"s_add_u32 m0, s59, 3072\ns_nop 0\nbuffer_load_dwordx4 v{vSD2}, {srd(sWI)}, s58 offen{nt} lds", "wl"))
        return th
    def w_read_prep(self):
        t0, t1 = TMP + 38, TMP + 39
        th = [self.T(f"""v_and_b32 v{t0}, 31, v{vL}
v_or_b32 v{t1}, s{sCG}, v{t0}
v_cmp_eq_u32 vcc, 0, v{t1}
v_lshlrev_b32 v{t0}, 1, v{t0}
v_mov_b32 v{t1}, 80
v_cndmask_b32 v{t0}, v{t0}, v{t1}, vcc
v_lshrrev_b32 v{t1}, 5, v{vL}
v_lshl_add_u32 v{t0}, v{t1}, 9, v{t0}
s_lshl_b32 s54, s{sK1}, 1
s_and_b32 s54, s54, 15
s_add_u32 s54, s54, s59
v_add_u32 v{self.vWRA}, s54, v{t0}""")]
        return th + [self.T(f"v_mov_b32 v{vW+i}, 0") for i in range(16)]
    def w_read(self):
        th = []
        for z in range(8):
            for a in range(2):
                th.append(self.T(f"ds_read_u16_d16_hi v{vW+2*z+a}, v{self.vWRA} offset:{(8*(z>>2) + (z&3))*128 + a*2048}", "wr"))
        return th
    def pf_setup(self):
        return self.TL(f"v_and_b32 v{vPF[1]}, 15, v{vL}\nv_lshlrev_b32 v{vPF[1]}, 10, v{vPF[1]}\nv_and_b32 v{vPF[2]}, 16, v{vL}\nv_lshlrev_b32 v{vPF[2]}, 3, v{vPF[2]}\nv_xor_b32 v{vPF[2]}, s{sQB}, v{vPF[2]}\nv_add_u32 v{vPF[1]}, v{vPF[1]}, v{vPF[2]}")
    def pf_w2(self, r):
        return [self.T(f"s_lshl_b32 s54, s{sKS + 12 + r}, 4\nbuffer_load_dword v{vPF[3]}, v{vPF[1]}, {srd(sW2)}, s54 offen", f"pf{r}")]

    def warm_w2(self):
        t0 = TMP + 36
        return [self.T(f"v_min_u32 v{t0}, 27, v{vL}\nv_lshlrev_b32 v{t0}, 7, v{t0}\ns_lshr_b32 s54, s2, 4\ns_lshl_b32 s54, s54, 3\ns_and_b32 s60, s2, 7\ns_add_u32 s54, s54, s60\ns_lshl_b32 s54, s54, 2\ns_add_u32 s54, s54, s{sW}\ns_mul_i32 s54, s54, 3584\nbuffer_load_dword v{t0+1}, v{t0}, {srd(sW2)}, s54 offen", "warm")]
    def help_a(self):
        t0, t1 = 120, 121
        return [self.T(f"""v_min_u32 v{t0}, 47, v{vL}
v_and_b32 v{t1}, 15, v{t0}
v_mul_u32_u24 v{t1}, 3584, v{t1}
v_lshrrev_b32 v{t0}, 4, v{t0}
v_lshl_add_u32 v{t0}, v{t0}, 7, v{t1}
s_add_u32 s54, s{sC0}, 3
s_and_b32 s54, s54, 7
s_lshl_b32 s54, s54, 2
s_add_u32 s54, s54, s{sW}
s_mul_i32 s54, s54, {16*3584}
s_mul_i32 s60, s{sBLK}, 320
s_and_b32 s60, s60, -128
s_add_u32 s54, s54, s60
buffer_load_dword v{vW+6}, v{t0}, {srd(sW1)}, s54 offen""", "helpa")]
    def f1(self, ty):
        e = self.e; o = self.o; self.ty = ty; self.nl = 0; self.vWRA = 184 if ty == 0 else 116
        if ty == 0: run(self.dma_w1(ty, 0))
        if o['xlast']: run(self.dma_x(0))
        if ty == 1 and not o['xlast']: run(self.dma_x(1))
        if ty == 1 and o['tlbB']: self.tlb_warm()
        if ty == 1 and o['helpa'] == 1: run(self.help_a())
        if ty == 0 and o['tlbA'] == 1: self.tlb_warm()
        self.stamp(5)
        self.addr_setup()
        if ty == 1:
            run(self.gen_fd())
            if o['xlast']: run(self.gen_g1()[:o['g1pre']] + self.dma_x(1))
            if o['helpa'] == 2: run(self.help_a())
        else:
            a23 = self.gen_a2a3(); ka = int(len(a23) * o['a23pre'])
            if o['lateA']: ka = int(len(a23) * o['lateA'][0]); run(self.t64_setup())
            else: run(self.g2_setup()); run(self.w2_addr_setup())
            run(a23[:ka]); run(self.dma_w1(ty, 1)[:o['w11']])
        if ty == 0 and o['tlbA'] == 2: self.tlb_warm(TMP + 24 - vW)
        self.stamp(1)
        e.wait(vm="stat")
        self.stamp(8)
        self.stats()
        zero_ax = lambda nt: sum([self.TL(f"v_mov_b32 v{vAX[dt]+2}, 0\nv_mov_b32 v{vAX[dt]+3}, 0") for dt in range(nt)], [])
        wd = self.w_dma(ty)
        wrp = self.w_read_prep()
        inloop = []
        if ty == 0 and o['lateA']:
            inloop = wd[:1] + self.g2_setup(94, TMP + 4) + self.w2_addr_setup() + wrp + zero_ax(3) + a23[ka:]; wd = wd[1:]; wrp = []; a23 = []; ka = 0
        elif ty == 0 and o['presetA']: run(wd[:1] + wrp + zero_ax(3 if o['t64'] else 5)); wd = wd[1:]; wrp = []
        if self.two() and not o['lateA']: assert o['presetA']; run(self.t64_setup())
        if ty == 0: run(merge(a23[ka:], self.dma_w1(ty, 1)[o['w11']:], int(len(a23[ka:]) * o['w11at'])) if a23 else self.dma_w1(ty, 1)[o['w11']:])
        if ty == 0 and o['tlbA'] == 3: self.tlb_warm(TMP + 24 - vW)
        if ty == 0 and o['warmA'] == -1: run(self.warm_w2())
        self.stamp(2)
        if ty == 1: run(self.gen_g1() + self.g2_setup() + self.w2_addr_setup() + self.pf_setup())
        self.stamp(3)
        units, bounds, streams, mem, pinned, extra = [], {}, [], [], {}, []
        def pin(n, th): pinned.setdefault(n, []).extend(th)
        def csum(u0, u1, um, tag, tiles, first):
            rd, mm = self.csum_grp(tag, tiles, first)
            extra.append((rd, u0, u1)); pin(um, mm)
        own = lambda a, b: sum([self.dma_w2(12 + g) for g in range(a, b)], [])
        wrd = wrp + [self.W(vm='wl')]
        aXB = 192
        LA, NB = 4, 8
        share = o['share'][ty]
        vPA, vPD = TMP + 36, TMP + 37
        def zpoll():
            e(f"s_lshr_b32 s60, s{sK1}, 1\ns_and_b32 s60, s60, 3\ns_lshl_b32 s60, s60, 8\ns_lshl_b32 s54, s{sCG}, 10\ns_add_u32 s60, s60, s54\ns_add_u32 s63, s60, {WS_Z1F}")
            e(f"v_and_b32 v{vPA}, 15, v{vL}\nv_lshlrev_b32 v{vPA}, 4, v{vPA}")
            self.poll_issue(vPA, 63, vPD, "pz1")
        def zcheck():
            self.xs("z1 check")
            self.poll_check(vPA, 63, vPD, "pz1")
            self.xs("z1 seen")
            e(f"s_lshl_b32 s60, s{sCG}, 5\ns_add_u32 s60, s60, s{sK1}\ns_lshl_b32 s60, s60, 13\ns_add_u32 s60, s60, s{sW2K}\ns_add_u32 s60, s60, {WS_Z1}\ns_add_u32 m0, s{sW2K}, {L_ZB}")
            for i in range(2): e(f"buffer_load_dwordx4 v{vL16}, {srd(sWS)}, s60 offen offset:{i*1024} sc1 lds", "zb")
        if ty == 0:
            nt = 5
            t64 = o['t64']
            assert share or not t64
            for k in range(32):
                t, ks = k >> 2, k & 3
                for tl in range(5):
                    u = 5*k + tl; xa, xb = aXB + 4*(k % 3), aXB + 12 + 4*(k % 3)
                    if t64:
                        fi = 3*k + (tl >> 1)
                        if tl < 4:
                            ad, off = self.pair_addr(0, t, 0)
                            r, mf = self.ffn_unit(u, k, ad[tl >> 1], off + ks*2048, 512, tl, xb if tl & 1 else xa, 6, fi)
                            if tl & 1: r = []
                        else: r, mf = self.ffn_unit(u, k, vTS, SING[t % 4] - L_S2 + ks*1024, 256, 4, xa, 6, fi)
                        if tl == 1: r = self.x_read(u, k, xb, True)
                    elif tl < 4:
                        ad, off = self.pair_addr(0, t, tl >> 1)
                        r, mf = self.ffn_unit(u, k, ad[tl & 1], off + ks*2048, 512, tl, xa, NB)
                    else: r, mf = self.ffn_unit(u, k, vTS, SING[t % 4] - L_S2 + ks*1024, 256, 4, xa, NB)
                    if tl == 0: r = self.x_read(u, k, xa) + r
                    units.append((r, mf))
            for t in range(8):
                b = 20*t
                bounds[b] = ([f"x{t}", f"w1_{t}"], [])
                u0 = max(0, b - LA + 1)
                tiles = []
                for pr in range(2):
                    ad, off = self.pair_addr(0, t, pr, True)
                    tiles += [(ad[i], off, 512, 2*pr + i) for i in range(2)]
                tiles.append((vCSS, SING[t % 4] - L_S2, 256, 4))
                if t < 2 or (t < 7 and not share): csum(u0, u0 + 12, u0 + 15, f"c{t}", tiles, t == 0)
                elif not share: csum(u0, u0 + 7, u0 + 10, f"c{t}", tiles, False)
            jobs = [self.dma_x(t + 2) + self.dma_w1(0, t + 2) for t in range(6)]
            x1 = self.dma_x(1); early = x1[:2]; mem.append((x1[2:], 0, 2)); mem.append((jobs[0], o['j0'], 16 + o['j0e']))
            for t in range(1, 6): mem.append((jobs[t], 20*t - LA + 1, 20*t + 14))
            pin(110, [self.stats_fetch]); pin(126, [lambda: self.stats_use(0)])
            C0, CB, C1, C2, C3 = 36, 60, o['csA'][0], o['csA'][1], o['csA'][2]
            if not o['presetA']: streams.append((zero_ax(5), 100, 110))
            a = o['wA']
            if o['presetA']: mem.append((wd[:2], a, a + 1)); mem.append((wd[2:], a + 20, a + 21))
            else: mem.append((wd[:1], a, a)); pin(a + 1, wd[1:3]); pin(a + 2, wd[3:])
            streams.append((wrd, 118, 128)); extra.append((self.w_read(), 129, 146))
            if inloop: streams.append((inloop, o['lateA'][1], o['lateA'][2]))
            if o['warmA'] > 0: mem.append((self.warm_w2(), o['warmA'], o['warmA']))
            a, b, c = o['ownA']
            mem.append((own(0, 2), a, b - 1)); mem.append((own(4, 6), b, c - 1)); mem.append((own(2, 4) + own(6, o['nown']), c, 159))
            htiles = [(ACCA + 16*i, sHB2, 2048*i, 0) for i in range(2)] + [(ACCA + 32 + 16*i, 53, 2048*i, 0) for i in range(2)] + [(ACCA + 64, sHB1, 0, 0)]
            if t64: htiles = [(ACCA, 53, 0, 0), (ACCA + 32, 53, 2048, 0), (ACCA + 64, sHB1, 0, 0), (ACCA + 16, 52, 0, 1), (ACCA + 48, 52, 2048, 1)]
        else:
            nt = 2; P0 = 64
            for k in range(32):
                t, ks = k >> 2, k & 3
                for cs in range(2):
                    u = 2*k + cs
                    r = self.x_read(u, k, aX + 4*k) if cs == 0 else []
                    if not t & 1:
                        r.append(self.T(f"ds_read_b128 {ar(aFB+8*ks+4*cs,4)}, v{vFD} offset:{(t>>1)*8192+ks*2048+cs*1024}", f"r{u}"))
                    d = ACCD + 32*(t & 1) + 16*cs
                    units.append((r, f"v_mfma_f32_32x32x16_bf16 {vr(d,16)}, {ar(aX+4*k,4)}, {ar(aFB+8*ks+4*cs,4)}, {'0' if k in (0, 4) else vr(d,16)}", u - 6))
            for t in range(8): bounds[8*t] = ([f"x{t}"], [])
            jobs = [self.dma_x(t + 2) for t in range(6)]
            early = jobs[0][:1]; mem.append((jobs[0][1:], 0, 4))
            for t in range(1, 6): mem.append((jobs[t], 8*t - LA + 1, 8*t + 4))
            mem.append(((self.dma_w1(1, 0) + self.dma_w1(1, 1) if o['w1b'] else []) + wd, 45, 54)); mem.append((self.dma_w1(1, 2) + self.dma_w1(1, 3), 55, 62)); mem.append((self.dma_w1(1, 4) + self.dma_w1(1, 5), 64, 71))
            if o['a23d']: streams.append((self.gen_a2a3(), o['a23d'][0], o['a23d'][1]))
            pin(o['stB'][0], [self.stats_fetch]); pin(o['stB'][1], [lambda: self.stats_use(1)])
            streams.append((zero_ax(2), P0 + 12, P0 + 20))
            P = 64
            for k in range(32):
                t, ks = k >> 2, k & 3
                ad, off = self.pair_addr(1, t, 0)
                for tl in range(2): units.append(self.ffn_unit(P + 2*k + tl, k, ad[tl], off + ks*2048, 512, tl, aX + 4*k, NB) + (P + 2*k + tl - (4 if k < 4 else 6),))
            for t in range(8):
                b = P + 8*t
                bounds[b] = ([f"w1_{t}"], [])
                ad, off = self.pair_addr(1, t, 0, True)
                if t < 2 or not share: csum(max(P, b - LA + 1), max(P + 1, b - LA + 2), b + (3 if t == 0 else (1 if t < 7 else 0)), f"c{t}", [(ad[i], off, 512, i) for i in range(2)], t == 0)
                if 2 <= t < 4: mem.append((self.dma_w1(1, t + 4), b - 1, b + 2))
            streams.append((self.z1_rl(), o['stB'][1] + 1, 62))
            gb = P + 8 * o['z1g']
            streams.append((self.z1_gather_write(), P, gb - LA - 1))
            bounds[gb] = (bounds[gb][0], [self.W(lg="z1w")])
            pin(gb - LA, [self.z1_gather_read]); pin(gb - LA + 2, [self.z1_store])
            if o['warm2']: mem.append((self.warm_w2(), o['warm2'], o['warm2']))
            for r, u in enumerate(o['pfat'] or []): mem.append((self.pf_w2(r), u, u))
            streams.append((wrd, P + 18, P + 26)); extra.append((self.w_read(), P + 27, P + 40))
            if o['mixq']:
                b = [P + x for x in o['bw2']]
                mem.append((sum([self.dma_w2(n) for n in range(8, 12)], []), b[0], b[1] - 1))
                mem.append((own(0, 2), b[1], b[2] - 1)); mem.append((own(2, 4), b[2], b[3] - 1))
                streams.append((self.w2_tr_setup((12288,), 117), P + 22, P + 30))
                pin(b[3], self.greads(0)[:5] + self.greads(1)[:5]); pin(b[3] + 2, [self.W(lg="g1")]); mem.append((own(6, 8), b[3] + 3, b[4] - 1))
                pin(b[4], self.greads(2)[:5] + self.greads(3)[:5]); pin(b[4] + 2, [self.W(lg="g3")]); mem.append((own(4, 6), b[4] + 3, P + 53))
                mem.append((own(8, 10), P + 54, P + 62))
            elif o['allB']:
                mem.append((own(0, 4) + own(6, 8) + own(4, 6), P + o['ownB'], P + 53)); mem.append((own(8, 10), P + 54, P + 62))
            else: mem.append((own(0, o['nown']), P + o['ownB'], P + 63))
            C0, CB, C1, C2, C3 = P + 11, P + 16, P + o['csB'][0], P + o['csB'][1], P + o['csB'][2]
            pin(P + o['z1f'], [self.z1_flag])
            htiles = [(ACCA, sHB2, 0, 0), (ACCA + 16, sHB2, 2048, 0)]
        if share:
            pin(C0, self.csum_publish(nt))
            bounds[CB] = (bounds[CB][0], bounds[CB][1] + [self.W(lg="csw")])
            rd, th, st = self.csum_send(ty)
            pin(CB - LA, rd); streams.append((th, CB - LA + 2, CB + 1)); mem.append((st, CB + 2, CB + 2))
            mem.append((self.csum_load(ty), C1, C1 + 3))
            pin(C2, [lambda: self.csum_check(ty)])
            streams.append((self.csum_build(ty), C2 + 1, C3 - 1))
            bounds[C3 + LA] = ([], [self.W(lg="cxw")])
            pin(C3, self.csum_get(nt))
            for i, m in enumerate(self.csum_apply(nt)): pin(C3 + 3 + i, ([self.W(lg="cxr")] if i == 0 else []) + [m])
            assert C3 + 3 + nt <= len(units)
        else:
            Y = 148 if ty == 0 else P + 57
            pin(Y, self.csum_publish(nt))
            bounds[Y + 2 + LA] = ([], [self.W(lg="csw")])
            pin(Y + 2, self.csum_fetch(nt))
            streams.append((self.csum_prep(nt), Y + 3, len(units) - 2))
            pin(len(units) - 1, self.csum_apply(nt))
        if ty == 0: self.pipeline(units, LA, bounds, streams, mem, pinned, extra, early)
        else:
            zm = self.z1_mfma()
            self.pipeline2(units, LA, bounds, streams, mem, pinned, extra, early, P, self.z1_prep() + zm[:4], zm[4:])
        self.light_dump()
        self.stamp(6)
        e("s_barrier")
        self.xs("E bar")
        if ty == 0 and o['t64']:
            e(f"s_and_b32 s54, s{sW}, 1\ns_lshl_b32 s53, s54, 12\ns_add_u32 s53, s53, s{sHB2}\ns_mul_i32 s54, s54, {2*114688}\ns_add_u32 s52, s53, 114688\ns_sub_u32 s52, s52, s54")
        else: e(f"s_add_u32 s53, s{sHB2}, 4096")
        side = [] if (self.bplan() or (ty == 1 and o['allB'])) else own(o['nown'], 10)
        for n in range(o['epl'][ty]): side += self.dma_w2(n)
        sil = self.silu(htiles)
        if ty == 1 and not o['a23d']: sil += self.gen_a2a3()
        sil = merge(sil, side, int(len(sil) * o['epfrom']))
        sil += self.w2_tr_setup()
        if o.get('silst'):
            for i in (3, 2, 1): sil.insert(len(sil)*i//4, lambda i=i: self.xs(f'sil{i}'))
        k1, k2 = [int(len(sil) * f) for f in o['zpoll'][ty]]
        k3 = int(len(sil) * o['hfb']) if ty == 1 else len(sil)
        if ty == 1 and o['hfb']:
            assert k3 >= k2
            run(sil[:k1]); zpoll(); run(sil[k1:k2]); zcheck(); run(sil[k2:k3]); self.hflag(); run(sil[k3:])
        else:
            run(sil[:k1]); zpoll(); run(sil[k1:k2]); zcheck(); run(sil[k2:])
    def hflag(self):
        e = self.e
        e(f"s_lshl_b32 s50, s{sRB}, 1\ns_lshr_b32 s51, s{sW}, 1\ns_add_u32 s50, s50, s51\ns_lshl_b32 s50, s50, 2\ns_lshr_b32 s51, s{sBLK}, 1\ns_add_u32 s50, s50, s51\ns_lshl_b32 s50, s50, 3")
        e(f"s_lshl_b32 s51, s{sTY}, 2\ns_add_u32 s50, s50, s51\ns_and_b32 s51, s{sBLK}, 1\ns_lshl_b32 s51, s51, 1\ns_add_u32 s50, s50, s51\ns_and_b32 s51, s{sW}, 1\ns_add_u32 s50, s50, s51")
        e(f"s_lshl_b32 s50, s50, 4\ns_add_u32 s50, s50, {WS_HF}")
        self.xs("pre h2 wait"); e.wait(vm="h2"); self.xs("h2 done"); self.flag_store(50, "hf")
    def greads(self, g):
        return [self.W(vm=f"w2_{12+g}")] + self.w2_tr(12 + g, aX + 8*(self.pos(12 + g) - 12), f"g{g}") + ([self.W(lg=f"g{g-2}")] if g >= 2 else [])
    vPA, vPD = 6, 7

    def spin(self, test, loads, lane):
        e = self.e
        again, back = e.label("again"), e.label("back")
        if self.stamps: e(f"s_mov_b32 s{sPOLL}, 0")
        e(test)
        e(f"s_cbranch_vccnz {again} ; soft")
        e(f"{back}: ; soft")
        if self.stamps: e(f"v_writelane_b32 v{vSTAMP}, s{sPOLL}, {lane}")
        loop = e.label("loop")
        e.cold += [f"{again}:", f"    s_mov_b32 s{sPOLL}, 0", f"{loop}:"] + ["    " + l for l in loads] + ["    s_waitcnt vmcnt(0)"]
        e.cold += ["    " + l for l in test.split("\n")]
        e.cold += [f"    s_add_u32 s{sPOLL}, s{sPOLL}, 1", f"    s_cbranch_vccz {back}", f"    s_cmp_gt_u32 s{sPOLL}, 20000", f"    s_cbranch_scc0 {loop}", f"    s_branch {back}"]
    def poll_issue(self, addr_v, soff, dst, tag):
        self.e(f"buffer_load_dword v{dst}, v{addr_v}, {srd(sWS)}, s{soff} offen sc1", tag)
    def poll_check(self, addr_v, soff, dst, tag):
        e = self.e
        e.wait(vm=tag)
        self.spin(f"v_cmp_ne_u32 vcc, s{sT}, v{dst}", [f"buffer_load_dword v{dst}, v{addr_v}, {srd(sWS)}, s{soff} offen sc1"], {'pz1': 54, 'phf': 55, 'pz3': 56}[tag])

    IFD, S4R, S4I = 128, 192, 208
    def gen_s4(self):
        T = self.T; th = []
        n1, inc, ang, sg = 32, 33, 34, 35
        regs = [(36, 37), (38, 39)]
        th += self.TL(f"""v_and_b32 v{n1}, 1, v{vL}
s_mov_b32 s60, 0x80008000
v_mul_lo_u32 v{sg}, v{n1}, s60
v_and_b32 v{n1}, 31, v{vL}
v_cvt_f32_u32 v{n1}, v{n1}
v_mul_f32 v{inc}, {fhex(1/32)}, v{n1}
v_lshrrev_b32 v{n1}, 5, v{vL}
v_lshlrev_b32 v{n1}, 2, v{n1}
v_cvt_f32_u32 v{n1}, v{n1}
v_mul_f32 v{ang}, v{n1}, v{inc}""")
        def use(g, cs):
            c, s_ = cs[0]
            return [T(f"v_cvt_pk_bf16_f32 v{self.S4R+g}, v{c}, -v{s_}"), T(f"v_cvt_pk_bf16_f32 v{self.S4I+g}, v{s_}, v{c}"),
                    T(f"v_xor_b32 v{self.S4R+8+g}, v{self.S4R+g}, v{sg}"), T(f"v_xor_b32 v{self.S4I+8+g}, v{self.S4I+g}, v{sg}")]
        th += self.trig(8, ang, inc, lambda i: 1 if (i & 3) < 3 else 5, regs, use)
        return th
    def gen_ifd(self, dt):
        T = self.T; th = []
        d, inc, ang, t0 = 40, 41, 42, 43
        Z = [104, 106, 108, 110]; RHO, TM, SP = 112, 114, 122
        th.append(T(f"""v_and_b32 v{d}, 31, v{vL}
s_lshl_b32 s60, s{sQ}, 6
s_add_u32 s60, s60, {32*dt}
v_add_u32 v{d}, s60, v{d}
v_lshrrev_b32 v{t0}, 5, v{vL}
v_lshlrev_b32 v{t0}, 1, v{t0}
s_lshl_b32 s60, s{sW}, 6
v_add_u32 v{t0}, s60, v{t0}
v_cmp_eq_u32 s[96:97], 0, v{t0}
v_mul_u32_u24 v{t0}, v{t0}, v{d}
v_and_b32 v{t0}, 511, v{t0}
v_cvt_f32_u32 v{ang}, v{t0}
v_mul_f32 v{ang}, {fhex(1/512)}, v{ang}
v_cvt_f32_u32 v{inc}, v{d}
v_and_b32 v{t0}, 1, v{d}
v_lshlrev_b32 v{t0}, 15, v{t0}
v_xor_b32 v{SP}, 0x3f80, v{t0}
v_mul_f32 v{t0}, {fhex(1/64)}, v{inc}
v_mul_f32 v{inc}, {fhex(1/512)}, v{inc}
v_cos_f32 v{RHO}, v{t0}
v_sin_f32 v{RHO+1}, v{t0}"""))
        for q in range(4):
            th += [T(f"v_cos_f32 v{Z[q]}, v{ang}"), T(f"v_sin_f32 v{Z[q]+1}, v{ang}")]
            if q < 3: th.append(T(f"v_add_f32 v{ang}, v{ang}, v{inc}") if not q & 1 else T(f"v_fmac_f32 v{ang}, {fhex(3.0)}, v{inc}"))
        for g in range(8):
            r = self.rot(Z, RHO, TM) if g < 7 else []
            cv = [T(f"v_cvt_pk_bf16_f32 v{self.IFD + (g*2+dt)*4 + q}, v{Z[q]}, -v{Z[q]+1}") for q in range(4)]
            th += cv + r
            if g == 0: th.append(T(f"v_cndmask_b32 v{self.IFD + dt*4}, v{self.IFD + dt*4}, v{SP}, s[96:97]"))
        return th

    def post(self):
        e = self.e; T = self.T; o = self.o
        vPA, vPD = self.vPA, self.vPD
        self.stamp(7)
        q = sum([self.dma_w2(n) for n in range(o['epl'][self.ty], 8)], [])
        def dma(k):
            nonlocal q
            r = q[:k]; q = q[k:]; return r
        gr = lambda g: self.greads(g)[:5]
        ifd = self.gen_ifd(0) + self.gen_ifd(1)
        def gen(frac):
            nonlocal ifd
            k = int(202 * frac); r = ifd[:k]; ifd = ifd[k:]; return r
        gf = o['gf']
        run(merge(gen(gf[0]), dma(o['pre1'])))
        if o['hfat'] == -1 and not (self.ty == 1 and o['hfb']): self.hflag()
        e.wait(vm="zb"); self.xs("zb landed"); e("s_barrier"); self.xs("bar1")
        ZF = 192
        for t in range(8): e(f"ds_read_b128 {ar(ZF+4*t,4)}, v{vL16} offset:{L_ZB + t*1024}", f"zf{t}")
        run(gen(gf[1]))
        D = 64
        for t in range(8):
            e.wait(lg=f"zf{t}")
            e(f"v_mfma_f32_32x32x16_bf16 {vr(D,16)}, {ar(aA2+4*t,4)}, {ar(ZF+4*t,4)}, {'0' if t == 0 else vr(D,16)}")
            if t < o['st2d']: run(dma(1))
            if t >= 4 and not self.bplan(): run(gr(t - 4))
        self.xs("st2 issued")
        hflag = self.hflag
        if self.ty == 1 and o['hfb']: hflag = lambda: None
        if o['hfat'] == 0: hflag()
        P = 96
        ops = []
        for z in range(8):
            xr, xi, wr_, wi_ = D + 2*z, D + 2*z + 1, vW + 2*z, vW + 2*z + 1
            u = 80 + 2*z
            ops.append([f"v_mul_f32 v{u}, v{xr}, v{wr_}", f"v_mul_f32 v{u+1}, v{xr}, v{wi_}", f"v_fma_f32 v{u}, -v{xi}, v{wi_}, v{u}", f"v_fmac_f32 v{u+1}, v{xi}, v{wr_}", f"v_cvt_pk_bf16_f32 v{P+z}, v{u}, v{u+1}"])
        e(f"v_add_u32 v{vTMP}, s{sW2K}, v{vL16}")
        for z0 in (0, 2, 4, 6):
            for k in range(5): e(ops[z0][k]); e(ops[z0+1][k])
            if o['wmd']: run(dma(1))
            if z0 == 4: e(f"ds_write_b128 v{vTMP}, {vr(P,4)} offset:{L_ZX}", "zxw")
        if o['wmd']: run(dma(1))
        e(f"ds_write_b128 v{vTMP}, {vr(P+4,4)} offset:{L_ZX + 1024}", "zxw")
        if o['hfat'] == 1: hflag()
        if o['wmd']: run(dma(2))
        run(gen(gf[2]))
        e.wait(lg="zxw"); e("s_barrier"); self.xs("bar2")
        if not o['lg2'] and not self.bplan(): q += sum([self.dma_w2(n) for n in range(8, 12)], [])
        for t in range(8): e(f"ds_read_b128 {ar(ZF+4*t,4)}, v{vL16} offset:{L_ZX + t*1024}", f"zg{t}")
        adr = self.TL(f"""v_lshrrev_b32 v{vTMP+1}, 4, v{vL}
v_bfe_u32 v{vTMP+2}, v{vL}, 3, 1
v_lshlrev_b32 v{vTMP+2}, 12, v{vTMP+2}
v_lshl_add_u32 v{vTMP+2}, v{vTMP+1}, 16, v{vTMP+2}
v_and_b32 v{vTMP+3}, 15, v{vL}
v_lshlrev_b32 v{vTMP+3}, 2, v{vTMP+3}
v_lshl_add_u32 v{vTMP+3}, v{vTMP+1}, 7, v{vTMP+3}
v_add_u32 v{vTMP+3}, s{sW2K}, v{vTMP+3}
v_and_b32 v{vTMP+1}, 7, v{vL}
v_lshl_add_u32 v{vTMP+1}, v{vTMP+1}, 4, v{vTMP+2}
s_lshl_b32 s51, s{sW}, 19
s_lshl_b32 s52, s{sK1}, 7
s_add_u32 s51, s51, s52
s_lshl_b32 s52, s{sCG}, 13
s_add_u32 s51, s51, s52
s_add_u32 s51, s51, {WS_Z3}
s_add_u32 s52, s51, {4*65536}""")
        hadr = self.TL(f"""s_lshl_b32 s50, s{sP}, 2
s_add_u32 s50, s50, s{sW}
s_lshl_b32 s50, s50, 7
s_add_u32 s58, s50, {WS_HF}
v_and_b32 v{vPA}, 7, v{vL}
v_lshlrev_b32 v{vPA}, 4, v{vPA}""")
        run(hadr); run(gen(gf[3]))
        if o['hpe'] == 1: self.poll_issue(vPA, 58, vPD, "phf")
        adr = spread(adr, [0.5] + [1]*8); run(adr[0])
        for t in range(8):
            e.wait(lg=f"zg{t}")
            e(f"v_mfma_f32_32x32x16_bf16 {vr(D,16)}, {ar(aA3+4*t,4)}, {ar(ZF+4*t,4)}, {'0' if t == 0 else vr(D,16)}")
            run((dma(1) if t < o['st3d'] else []) + adr[t + 1])
        if o['hpe'] == 2: self.poll_issue(vPA, 58, vPD, "phf")
        self.xs('st3 issued')
        for k in range(8): e(f"v_cvt_pk_bf16_f32 v{P+k}, v{D+2*k}, v{D+2*k+1}")
        for k in range(8): e(f"ds_write_b32 v{vTMP+3}, v{P+k} offset:{L_ZB + (k>>1)*512 + (k&1)*64}", "zww")
        run(gen(gf[4]))
        e.wait(lg="zww")
        self.xs('zww')
        if not o['gs']: e("s_barrier")
        self.xs("st3 packed")
        for k in range(2): e(f"ds_read_b128 {vr(D+4*k,4)}, v{vTMP} offset:{L_ZB + k*1024}", "zwr")
        if o['hpe'] == 3: self.poll_issue(vPA, 58, vPD, "phf")
        run(gen(gf[5]))
        e.wait(lg="zwr")
        for k in range(2): e(f"buffer_store_dwordx4 {vr(D+4*k,4)}, v{vTMP+1}, {srd(sWS)}, s{51+k} offen sc1", "z3s")
        if not o['hpe']: self.poll_issue(vPA, 58, vPD, "phf")
        self.stamp(9)
        vH = self.vH
        e(f"s_mul_i32 s50, s{sP}, {2*112*1024}\ns_add_u32 s50, s50, {WS_H}\nv_add_u32 v{vH[0]}, s50, v{vL16}\nv_add_u32 v{vH[1]}, {112*1024}, v{vH[0]}")
        run(merge(sum([self.greads(g) for g in range(4, 10)], []), q))
        keep = list(vW2D); e(f"v_mov_b32 v2, v{vW2D[0]}\nv_mov_b32 v3, v{vW2D[1]}"); vW2D[:] = [2, 3]
        self.late = (sum([self.dma_w2(n) for n in range(8, 12)], []) if o['lg2'] else []) + sum([self.dma_w2(12 + g) for g in range(10, 16)], [])
        vW2D[:] = keep
        if o['prel']: e.wait(lg="g9"); run(self.late[:o['prel']]); self.late = self.late[o['prel']:]
        run(gen(gf[6]))
        self.xs("pre hpoll")
        self.poll_check(vPA, 58, vPD, "phf")
        e(f"s_lshl_b32 s50, s{sW}, 3\ns_add_u32 s50, s50, s{sCG}\ns_lshl_b32 s50, s50, 5\ns_add_u32 s50, s50, s{sK1}\ns_lshl_b32 s50, s50, 4\ns_add_u32 s50, s50, {WS_Z3F}")
        self.stamp(10)
        return ifd

    vH, vO, vRD, vZD, vZ, XR = [19, 20], 4, 5, 8, [15, 16, 17, 18], 48
    def g2_addr(self):
        e = self.e
        vH, vO, vZD, vZ = self.vH, self.vO, self.vZD, self.vZ
        th = []
        class _E:
            def __call__(_, x): th.extend(self.TL(x))
        e = _E()
        e(f"""v_lshrrev_b32 v{vTMP}, 3, v{vL}
v_and_b32 v{vTMP+1}, 1, v{vTMP}
v_bfe_u32 v{vTMP+2}, v{vTMP}, 1, 1
v_lshrrev_b32 v{vTMP+3}, 2, v{vTMP}
v_lshl_add_u32 v{vTMP+1}, v{vTMP+3}, 1, v{vTMP+1}
v_lshl_add_u32 v{vTMP+3}, v{vTMP+2}, 2, v{vTMP+1}
v_and_b32 v{vTMP+4}, 7, v{vL}
v_lshlrev_b32 v{vO}, 4, v{vTMP+4}
v_lshl_add_u32 v{vO}, v{vTMP+3}, 16, v{vO}
v_lshlrev_b32 v5, 8, v{vTMP+1}
v_lshl_add_u32 v5, v{vTMP+2}, 7, v5
v_and_b32 v{vTMP+1}, 3, v{vL}
v_lshl_add_u32 v5, v{vTMP+1}, 5, v5
v_bfe_u32 v{vTMP+1}, v{vL}, 2, 1
v_mul_u32_u24 v{vTMP+1}, {RED_TS}, v{vTMP+1}
v_add_u32 v5, v5, v{vTMP+1}
s_lshl_b32 s60, s{sW}, 10
v_add_u32 v5, s60, v5
s_lshl_b32 s59, s{sW}, 19
s_lshl_b32 s60, s{sP}, 11
s_add_u32 s59, s59, s60
s_add_u32 s59, s59, s{sQB}""")
        e(f"""v_lshrrev_b32 v{vTMP}, 5, v{vL}
v_bfe_u32 v{vTMP+1}, v{vL}, 2, 2
v_lshl_add_u32 v{vTMP}, v{vTMP}, 3, v{vTMP+1}
v_lshlrev_b32 v{vTMP}, 6, v{vTMP}
v_and_b32 v{vTMP+1}, 3, v{vL}
v_lshl_add_u32 v{vTMP}, v{vTMP+1}, 3, v{vTMP}
v_and_b32 v{vTMP+1}, 16, v{vL}
v_lshl_add_u32 v{vTMP}, v{vTMP+1}, 1, v{vTMP}
s_add_u32 s60, s{56 if self.o['gs'] else sW2K}, {L_S2 if self.o['gs'] else L_MISC}
v_add_u32 v{vZ[0]}, s60, v{vTMP}""")
        return th

    def g2_sched(self, hload, lreads, late, xres, shadow):
        e = self.e; T = self.T; o = self.o; G = o['gs']
        HB, HD, LB, ZF, ACC, DR, DI, PK = 192, o['hd'], 160, 128, 64, 224, 240, 32
        NL = 25
        units, pre, first, last = [], {}, {}, {}
        def add(key, mf, waits):
            first[key] = len(units)
            for i, m in enumerate(mf):
                if waits.get(i): pre[len(units)] = waits[i]
                units.append(m)
            last[key] = len(units) - 1
        for n in range(NL):
            for mt in range(4):
                if G['ta'][mt] == n:
                    mf, w = [], {}
                    for ks in range(4):
                        fr = ar(ZF + 16*(mt & 1) + 4*ks, 4); w[2*ks] = [self.W(lg=f"z{mt}_{ks}")]
                        mf += [f"v_mfma_f32_32x32x16_bf16 {vr(D,16)}, {fr}, {vr(S+4*ks,4)}, {'0' if ks == 0 else vr(D,16)}" for D, S in ((DR, self.S4R), (DI, self.S4I))]
                    add(('a', mt), mf, w)
                if G['ta'][mt] + G['cv'] == n:
                    add(('b', mt), [f"v_mfma_f32_32x32x16_bf16 {vr(ACC+(rt*2+dt)*16,16)}, {vr(PK+(jj*2+rt)*4,4)}, {vr(self.IFD+((mt*2+jj)*2+dt)*4,4)}, {vr(ACC+(rt*2+dt)*16,16)}"
                                    for jj in range(2) for rt in range(2) for dt in range(2)], {})
            mf = []
            for rt, dt in ((0, 0), (0, 1), (1, 0), (1, 1)):
                A = ACC + (rt*2+dt)*16
                B = ar(LB + 8*(n % 3) + 4*dt, 4) if n < 12 else ar(aX + 8*(n-12) + 4*dt, 4)
                mf.append(f"v_mfma_f32_32x32x16_bf16 {vr(A,16)}, {ar(HB + 8*(n % HD) + 4*rt, 4)}, {B}, {'0' if n == 0 else vr(A,16)}")
            add(('k', n), mf, {0: [self.W(vm=f"h{n}")] + ([self.W(lg=f"l{n}")] if n < 12 else [])})
        assert all(('b', mt) in first for mt in range(4))
        N = len(units); K0 = lambda n: first[('k', n)] if n < NL else N
        cst = lambda t: (G['cv_'] if 'buffer_' in t.txt else 8 if 'ds_' in t.txt else 5*t.cost) if hasattr(t, 'txt') else 0
        chains = []
        def chain(items): chains.append([[lo, hi, th if isinstance(th, list) else [th]] for lo, hi, th in items])
        chain([(first[('k', n)] + 1 + 2*rt, max(first[('k', n)] + 1 + 2*rt, K0(n + HD) - G['hl']), hload(n + HD)[rt]) for n in range(28 - HD) for rt in range(2)])
        it = []
        for n in range(2, 12):
            r = lreads(n); it += [(K0(n - 2) + (0 if n > 2 else 0), K0(n) - 4 + min(i, 1), ([r[0]] if i == 0 else []) + [r[1 + i]]) for i in range(4)]
        chain(it)
        gc = K0(G['zc'])
        chain([(K0(G['zp']), K0(G['zp']), T(f"buffer_load_dword v7, v{vL16}, {srd(sWS)}, s58 offen sc1", "pz3"))])
        pre.setdefault(gc, []).insert(0, lambda: (self.stamp(11), self.poll_check(vL16, 58, 7, "pz3"), self.stamp(12)))
        it, it2, it3 = [], [], []
        for mt in range(4):
            a0 = first[('a', mt)]
            lo = max(gc, K0(2*mt + 2), a0 - G['ze'])
            it += [(lo, max(lo, a0 - G['zl']), T(f"s_add_u32 m0, s56, {L_S2 + mt*4096 + i*1024}\ns_add_u32 s51, s50, {mt*4096 + i*1024}\nbuffer_load_dwordx4 v{vL16}, {srd(sWS)}, s51 offen sc1 lds", f"z3d{mt}")) for i in range(4)]
            zr = [T(f"ds_read_b64_tr_b16 {ar(ZF + 16*(mt&1) + 4*ks + 2*eh, 2)}, v{self.vZ[0]} offset:{mt*4096 + ks*1024 + eh*256}", f"z{mt}_{ks}") for ks in range(4) for eh in range(2)]
            it2 += [(a0 - G['zr'], a0 - 3 + i, ([self.W(vm=f"z3d{mt}")] if i == 0 else []) + [zr[i]]) for i in range(8)]
            it3 += [(last[('a', mt)] + G['cd'], first[('b', mt)] - 1 + (4 if jj else 0) + (2 if rt else 0) - (1 if jj or rt else 0),
                     T(f"v_cvt_pk_bf16_f32 v{PK + (jj*2+rt)*4 + q}, v{DR + 8*jj + 4*(q>>1) + 2*(q&1) + rt}, v{DI + 8*jj + 4*(q>>1) + 2*(q&1) + rt}")) for jj in range(2) for rt in range(2) for q in range(4)]
        chain(it); chain(it2); chain(it3)
        l0, l1, g0, g1 = [K0(x) for x in G['late']]
        chain([(l0, l1, t) for t in late])
        it = []
        for g in range(10, 16):
            r = self.greads(g); it += [(g0, g1, ([r[0]] if i == 0 else []) + [r[1 + i]]) for i in range(4)]
        chain(it)
        pre.setdefault(K0(G['bar']), []).extend([self.W(lg="g15"), T("s_barrier")])
        assert K0(G['bar']) > g1
        chain([(K0(G['xat']), K0(G['xat']) + 8, t) for t in xres])
        gens = sum(shadow, [])
        chain([(0, first[('a', 0)] - G['zr'] - 1, t) for t in gens])
        for g in range(N):
            run(pre.get(g, [])); e(units[g])
            room, put = 24, []
            while True:
                heads = [c for c in chains if c and c[0][0] <= g]
                forced = [c for c in heads if c[0][1] <= g]
                fit = [c for c in heads if sum(map(cst, c[0][2])) <= room or (room == 24 and not put)]
                pick = forced or fit
                if not pick: break
                c = min(pick, key=lambda c: c[0][1]); lo, hi, th = c.pop(0)
                put.append(th); room -= sum(map(cst, th))
            key = lambda th: 0 if any('buffer_' in getattr(t, 'txt', '') for t in th) else 1
            for th in sorted(put, key=key): run(th)
        assert not any(chains), [c[0] for c in chains if c]

    def g2(self, q2):
        e = self.e; T = self.T; o = self.o
        HB, HD = 192, o['hd']
        LB = 160
        ZF = 128
        ACC = 64
        vH, vO, vZD, vZ, XR = self.vH, self.vO, self.vZD, self.vZ, self.XR
        def hload(n):
            return [T(f"buffer_load_dwordx4 {ar(HB + 8*(n % HD) + 4*rt, 4)}, v{vH[rt]}, {srd(sWS)}, s{sKS+n} offen sc1", f"h{n}") for rt in range(2)]
        H0 = o['h0']
        if not o['hpe']: self.flag_store(50, "z3f")
        for n in range(H0): run(hload(n))
        self.xs('h0 issued')
        rest = sum([hload(n) for n in range(H0, HD)], [])
        if o['latew']: rest += [self.W(lg='g9')] + self.late[:o['latew']]; self.late = self.late[o['latew']:]
        ifd = merge(q2 + (self.g2_addr() + self.gen_s4() if o['s4w'] else []), rest)
        k = int(len(ifd) * o['z3fat'])
        run(ifd[:k])
        if o['hpe']: e.wait(vm="z3s"); self.flag_store(50, "z3f")
        run(ifd[k:])
        shadow = [] if o['s4w'] else spread(self.g2_addr() + self.gen_s4(), [1] * o['nsh'])
        late = self.late
        e.wait(lg="g9")
        self.xs("ifd done")
        lreads = lambda n: [self.W(vm=f"w2_{n}")] + self.w2_tr(n, LB + 8*(n % 3), f"l{n}")
        run(lreads(0)); run(lreads(1))
        e(f"s_lshr_b32 s50, s{sP}, 3\ns_lshl_b32 s50, s50, 3\ns_lshl_b32 s51, s{sW}, 1\ns_add_u32 s50, s50, s51\ns_lshl_b32 s50, s50, 9\ns_add_u32 s58, s50, {WS_Z3F}")
        e(f"s_lshl_b32 s50, s{sP}, 16\ns_add_u32 s50, s50, s56\ns_add_u32 s50, s50, {WS_Z3}")
        z3d = lambda mt: [T(f"s_add_u32 m0, s{sW2K}, {L_MISC + (2*mt + (i >> 1))*8192 + (i & 1)*1024}\ns_add_u32 s51, s50, {mt*4096 + i*1024}\nbuffer_load_dwordx4 v{vL16}, {srd(sWS)}, s51 offen sc1 lds", f"z3d{mt}") for i in range(4)]
        xres = [T(f"buffer_load_dwordx4 {vr(XR+4*rt,4)}, v{vO}, {srd(sX)}, s59 offen offset:{rt*1024}", "xr") for rt in range(2)]
        DR, DI, PK = 224, 240, 32
        def zreads(mt):
            return [T(f"ds_read_b64_tr_b16 {ar(ZF + 16*(mt&1) + 4*ks + 2*eh, 2)}, v{vZ[0]} offset:{(2*mt + (ks >> 1))*8192 + (ks & 1)*1024 + eh*256}", f"z{mt}_{ks}") for ks in range(4) for eh in range(2)]
        def tail_a(mt):
            for ks in range(4):
                e.wait(lg=f"z{mt}_{ks}")
                fr = ar(ZF + 16*(mt&1) + 4*ks, 4)
                e(f"v_mfma_f32_32x32x16_bf16 {vr(DR,16)}, {fr}, {vr(self.S4R+4*ks,4)}, {'0' if ks == 0 else vr(DR,16)}")
                e(f"v_mfma_f32_32x32x16_bf16 {vr(DI,16)}, {fr}, {vr(self.S4I+4*ks,4)}, {'0' if ks == 0 else vr(DI,16)}")
        def tail_cvt(mt):
            return [T(f"v_cvt_pk_bf16_f32 v{PK + (jj*2+rt)*4 + q}, v{DR + 8*jj + 4*(q>>1) + 2*(q&1) + rt}, v{DI + 8*jj + 4*(q>>1) + 2*(q&1) + rt}") for jj in range(2) for rt in range(2) for q in range(4)]
        def tail_b(mt):
            for jj in range(2):
                for rt in range(2):
                    for dt in range(2):
                        A = ACC + (rt*2+dt)*16
                        e(f"v_mfma_f32_32x32x16_bf16 {vr(A,16)}, {vr(PK+(jj*2+rt)*4,4)}, {vr(self.IFD+((mt*2+jj)*2+dt)*4,4)}, {vr(A,16)}")
        if o['gs']:
            self.g2_sched(hload, lreads, late, xres, shadow); TT = [0]
        ZP, ZC, ZD, TT, GA = o['zp'], o['zc'], o['zd'], o['tt'], o['ga']
        NL = 28 - (3 if o['fin'] else 0)
        for n in range(NL if not o['gs'] else 0):
            side = []
            if n + 2 < 12: side += lreads(n + 2)
            side += late[2*n:2*n + 2]
            if n in GA: side += self.greads(10 + 2*GA.index(n))[:5] + self.greads(11 + 2*GA.index(n))[:5]
            if n < len(shadow): side = merge(shadow[n], side)
            if n == ZP: side.append(lambda: self.poll_issue(vL16, 58, 7, "pz3"))
            for mt in range(4):
                if n == ZD[mt]: side += ([self.W(lg=f"g{9 + 2*mt}")] if mt else []) + z3d(mt)[:2]
                if n == ZD[mt] + 1: side += z3d(mt)[2:]
                if n == TT[mt] - o['zra']: side += [self.W(vm=f"z3d{mt}")] + zreads(mt)
            if n == o['xat']: side += xres
            mt = TT.index(n) if n in TT else None
            TS, tb = 1, 0
            if mt is not None: side += tail_cvt(mt)
            if n in o.get('g2st', (1, 4, 8, 12, 16, 20, 24)): self.xs(f"g2 n{n}")
            if n == ZC:
                self.stamp(11); self.poll_check(vL16, 58, 7, "pz3"); self.stamp(12)
            if mt is not None:
                tail_a(mt)
                if mt == 3: e('s_barrier')
            e.wait(vm=f"h{n}")
            if n in o.get('hst2', ()): self.xs(f"h{n} in")
            if n < 12: e.wait(lg=f"l{n}")
            grp = spread(side, [1, 1, 1, 1])
            if mt is not None and tb % TS == 0: grp = [[]] + spread(side, [1, 1, 1])
            for i, (rt, dt) in enumerate(((0, 0), (0, 1), (1, 0), (1, 1))):
                A = ACC + (rt*2+dt)*16
                B = ar(LB + 8*(n % 3) + 4*dt, 4) if n < 12 else ar(aX + 8*(n-12) + 4*dt, 4)
                e(f"v_mfma_f32_32x32x16_bf16 {vr(A,16)}, {ar(HB + 8*(n % HD) + 4*rt, 4)}, {B}, {'0' if n == 0 else vr(A,16)}")
                if n + HD < 28 and dt == 1: run(hload(n + HD)[rt:rt+1])
                run(grp[i])
            if mt is not None and tb % TS == 0: tail_b(mt)
        wr = lambda t: [T(f"ds_write_addtid_b32 v{ACC+16*t+i} offset:{t*RED_TS + i*256}", "rw") for i in range(16)]
        e(f"s_mul_i32 m0, s{sW}, {RED_WS}")
        XU = 224
        unp = [self.W(vm="xr")] + sum([self.TL(f"v_lshlrev_b32 v{XU+2*i}, 16, v{XR+i}\nv_and_b32 v{XU+2*i+1}, 0xffff0000, v{XR+i}") for i in range(8)], [])
        if o['fin']:
            e.wait(vm="h27")
            pend = unp
            for t, (rt, dt) in enumerate(((0, 0), (0, 1), (1, 0), (1, 1))):
                grp = spread(pend, [1, 1, 1]) if t != 1 else [[], [], []]
                for k, n in enumerate(range(NL, 28)):
                    e(f"v_mfma_f32_32x32x16_bf16 {vr(ACC+16*t,16)}, {ar(HB + 8*(n % HD) + 4*rt, 4)}, {ar(aX + 8*(n-12) + 4*dt, 4)}, {vr(ACC+16*t,16)}")
                    run(grp[k])
                if t >= 1: pend = wr(t - 1)
            self.stamp(13)
            run(wr(2) + wr(3))
        else:
            self.stamp(13)
            run(unp + wr(0) + wr(1) + wr(2) + wr(3))
        e.wait(lg="all"); self.xs("red written"); e("s_barrier"); self.xs("red bar2")
        R = 128
        for rt in range(2):
            for pw in range(4):
                for k in range(2):
                    e(f"ds_read_b128 {vr(R + rt*32 + pw*8 + 4*k, 4)}, v5 offset:{pw*RED_WS + rt*2*RED_TS + 16*k}", f"rr{rt}_{pw}")
        for rt in range(2):
            X = XU + 8*rt
            for pw in range(4):
                e.wait(lg=f"rr{rt}_{pw}")
                for i in range(4):
                    e(f"v_pk_add_f32 {vr(X+2*i,2)}, {vr(X+2*i,2)}, {vr(R + rt*32 + pw*8 + 2*i, 2)}")
            for i in range(4):
                e(f"v_cvt_pk_bf16_f32 v{80+4*rt+i}, v{X+2*i}, v{X+2*i+1}")
            e(f"buffer_store_dwordx4 {vr(80+4*rt,4)}, v{vO}, {srd(sOUT)}, s59 offen offset:{rt*1024} {o.get('ost', 'sc1')}")
        done = e.label("nq")
        e(f"s_or_b32 s50, s2, s{sW}\ns_cmp_lg_u32 s50, 0\ns_cbranch_scc1 {done}\ns_mov_b32 s50, {WS_Q}")
        self.flag_store(50, "q")
        e(f"{done}:")
        if self.stamps:
            self.stamp(14)
            e(f"s_memrealtime s[94:95]"); e.l.append("    s_waitcnt lgkmcnt(0)")
            e(f"v_writelane_b32 v{vSTAMP}, s94, 16")
            e(f"s_lshl_b32 s50, s2, 2\ns_add_u32 s50, s50, s{sW}\ns_lshl_b32 s50, s50, 8\ns_add_u32 s50, s50, {WS_DBG}\nv_lshlrev_b32 v{vTMP}, 2, v{vL}")
            e(f"buffer_store_dword v{vSTAMP}, v{vTMP}, {srd(sWS)}, s50 offen")
            if o.get('enc') is not None:
                if o.get('encwg') is not None: e(f"s_cmp_lg_u32 s2, {o['encwg']}\ns_cbranch_scc1 L_encd")
                e(f"v_readlane_b32 s64, v{vSTAMP}, {o['enc']}\ns_add_u32 s64, s64, 3000\ns_mov_b32 s65, 0\nL_enc:\ns_memrealtime s[66:67]"); e.l.append("    s_waitcnt lgkmcnt(0)")
                e(f"s_add_u32 s65, s65, 1\ns_cmp_gt_u32 s65, 100000\ns_cbranch_scc1 L_encd\ns_sub_u32 s66, s66, s64\ns_cmp_lt_i32 s66, 0\ns_cbranch_scc1 L_enc\nL_encd:")
            if o.get('dbgout'):
                e(f"s_load_dwordx2 s[64:65], s[0:1], 56"); e.l.append("    s_waitcnt lgkmcnt(0)")
                e(f"s_mov_b32 s66, 256\ns_mov_b32 s67, 0x20000")
                e(f"v_not_b32 v2, v{vSTAMP}\nv_cmp_eq_u32 vcc, 15, v{vL}\nv_cndmask_b32 v2, v{vSTAMP}, v2, vcc\nv_readlane_b32 s68, v{vSTAMP}, 16\nv_mov_b32 v3, s68\nv_cmp_eq_u32 vcc, 0, v{vL}\nv_cndmask_b32 v2, v2, v3, vcc")
                e(f"s_mov_b64 exec, 0xffff\nbuffer_atomic_umax v2, v{vTMP}, s[64:67], 0 offen sc1\ns_mov_b64 exec, -1")

    def build(self):
        e = self.e
        self.prologue()
        snap = e.snapshot()
        e(f"s_cmp_eq_u32 s{sTY}, 1\ns_cbranch_scc1 L_typeB")
        self.f1(0); self.post()
        endA = e.snapshot()
        e("s_branch L_join\nL_typeB:")
        e.restore(snap)
        self.f1(1); rest = self.post()
        endB = e.snapshot()
        self.e.vm = self.join(endA[0], endB[0]); self.e.lg = self.join(endA[1], endB[1])
        e("L_join:")
        self.g2(rest)
        e("L_end:\ns_endpgm")
        e.l += e.cold
        lines, nn = pad_hazards(peephole(e.l) if self.o['peep'] else e.l)
        hdr = open("parallel_sum__spectral_gfnet__dense_activation_silu__prompt.s.ref").read().split("; Override")[0]
        out = hdr + "; @launch grid=(256,1,1) block=(256,1,1) lds=163840\n"
        out += DOC.lstrip('\n')
        out += '.amdgcn_target "amdgcn-amd-amdhsa--gfx950"\n.text\n'
        out += f".globl {KNAME}\n.p2align 8\n.type {KNAME},@function\n{KNAME}:\n"
        out += "\n".join(lines) + "\n"
        out += f""".section .rodata,"a"
.p2align 6
.amdhsa_kernel {KNAME}
  .amdhsa_next_free_vgpr 512
  .amdhsa_next_free_sgpr 102
  .amdhsa_accum_offset 256
  .amdhsa_group_segment_fixed_size 0
  .amdhsa_kernarg_size 72
  .amdhsa_user_sgpr_count 2
  .amdhsa_user_sgpr_kernarg_segment_ptr 1
  .amdhsa_system_sgpr_workgroup_id_x 1
.end_amdhsa_kernel
"""
        return out, nn, len(lines)
    @staticmethod
    def join(a, b):
        def after(l):
            d = {}
            for i, t in enumerate(l): d[t] = len(l) - 1 - i
            return d
        da, db = after(a), after(b)
        n = {t: min(da.get(t, 10**9), db.get(t, 10**9)) for t in set(da) | set(db) if t is not None}
        m = max(n.values()) + 1 if n else 0
        q = [None] * m
        res = []
        for pos in range(m - 1, -1, -1):
            tags = [t for t, v in n.items() if v == pos]
            res.append(MultiTag(tags))
        return res

DOC = r'''
; ---------------------------------------------------------------------------------------------------------------
;  rows s = 64*n1 + n2, frequencies u = k1 + 32*k2; every DFT is a bf16 MFMA product with matrices built by v_sin/v_cos.
;  Hand-offs between workgroups (row statistics, column sums, Z1, h, Z3): write-through stores, then a flag or tagged word
;  carrying this launch's tag (derived from a seed word in d_ws that workgroup 0 advances at the end); every wait is bounded.
; ---------------------------------------------------------------------------------------------------------------
'''

class MultiTag:
    def __init__(self, tags): self.tags = set(tags)
    def __eq__(self, o): return (o in self.tags) if not isinstance(o, MultiTag) else self is o
    def __hash__(self): return id(self)

if __name__ == "__main__":
    import argparse
    ap = argparse.ArgumentParser()
    ap.add_argument("-o", default="parallel_sum__spectral_gfnet__dense_activation_silu__prompt.s")
    ap.add_argument("--stamps", action="store_true")
    ap.add_argument("--opt", action="append", default=[])
    a = ap.parse_args()
    opts = {}
    for kv in a.opt:
        k, v = kv.split("="); opts[k] = eval(v)
    g = Gen(a.stamps, opts)
    txt, nn, nl = g.build()
    import json; open(a.o + ".names", "w").write(json.dumps(g.xnames))
    open(a.o, "w").write(txt)
    print("lines", nl, "nops added", nn)
```
